```python
import torch

def _softmax(x, axis=-1):
    return torch.softmax(x, dim=axis)
def _gelu(x):
    return torch.nn.functional.gelu(x, approximate="tanh")
def _silu(x):
    return torch.nn.functional.silu(x)
def _sigmoid(x):
    return torch.sigmoid(x)
def _layernorm(x, axis=-1, eps=1e-5):
    m = x.mean(dim=axis, keepdim=True)
    v = x.var(dim=axis, keepdim=True, unbiased=False)
    return (x - m) / torch.sqrt(v + eps)
def _scatter_add(tgt, idx, src, axis=0):
    return tgt.clone().index_add_(axis, idx, src)
def _segment_sum(src, seg, n):
    out = torch.zeros((n,) + src.shape[1:], dtype=src.dtype)
    return out.index_add_(0, seg, src)
def _pad(x, pw):
    flat = tuple(v for pair in reversed(pw) for v in pair)
    return torch.nn.functional.pad(x, flat)

kernel_name = 'interleave_layers__sliding_block_cached__glu_gated_swiglu__decode'

def setup_inputs():

    _w = (lambda a: (lambda t: t.to(torch.bfloat16) if t.is_floating_point() else t)(torch.as_tensor(a)))
    def _A_setup():
        B, Sq, D = 1, 1, 448
        Hq, Hkv, Sk, Dh = 16, 8, 8192, 256
        assert Hq % Hkv == 0, (Hq, Hkv)
        return {
            "x": _w((lambda *s: torch.randn(*s, dtype=torch.bfloat16) * 0.05)(B, Sq, D)),
            "k_cache": _w((lambda *s: torch.randn(*s, dtype=torch.bfloat16) * 1.6)(B, Hkv, Sk, Dh)),
            "v_cache": _w((lambda *s: torch.randn(*s, dtype=torch.bfloat16) * 0.8)(B, Hkv, Sk, Dh)),
            "wq": _w((lambda *s: torch.randn(*s, dtype=torch.bfloat16) * 1.6)(D, Hq * Dh) * (D ** -0.5)),
            "wo": _w((lambda *s: torch.randn(*s, dtype=torch.bfloat16) * 0.8)(Hq * Dh, D) * ((Hq * Dh) ** -0.5)),
        }
    _A_in = _A_setup()

    def _B_setup():
        B, S, D, F = 1, 1, 448, 1792
        return {
            "x": _w((lambda *s: torch.randn(*s, dtype=torch.bfloat16) * 0.05)(B, S, D)),
            "w1": _w((lambda *s: torch.randn(*s, dtype=torch.bfloat16) * 0.4)(D, F) * (2.0 / D) ** 0.5),
            "w3": _w((lambda *s: torch.randn(*s, dtype=torch.bfloat16) * 0.4)(D, F) * (2.0 / D) ** 0.5),
            "w2": _w((lambda *s: torch.randn(*s, dtype=torch.bfloat16) * 0.4)(F, D) * (2.0 / F) ** 0.5),
        }
    _B_in = _B_setup()

    return {
        "A_x": _A_in["x"],
        "A_k_cache": _A_in["k_cache"],
        "A_v_cache": _A_in["v_cache"],
        "A_wq": _A_in["wq"],
        "A_wo": _A_in["wo"],
        "B_x": _B_in["x"],
        "B_w1": _B_in["w1"],
        "B_w3": _B_in["w3"],
        "B_w2": _B_in["w2"],
    }

def reference(A_x, A_k_cache, A_v_cache, A_wq, A_wo, B_x, B_w1, B_w3, B_w2):
    def _A_ref(x, k_cache, v_cache, wq, wo):
        B, Sq, D = x.shape
        Hq, Dh = 16, 256
        Hkv, Sk = k_cache.shape[1], k_cache.shape[2]
        W = min(4096, max(256, Sk // 4))
        rep = Hq // Hkv
        q = (lambda x, *d: x.permute(*d))((x @ wq).reshape(B, Sq, Hq, Dh), 0, 2, 1, 3)
        k = (lambda x, n, axis: torch.repeat_interleave(x, n, dim=axis))(k_cache[:, :, Sk - W:, :], rep, axis=1)
        v = (lambda x, n, axis: torch.repeat_interleave(x, n, dim=axis))(v_cache[:, :, Sk - W:, :], rep, axis=1)
        scores = torch.einsum("bhqd,bhkd->bhqk", q, k) * (Dh ** -0.5)
        p = _softmax(scores, axis=-1)
        o = torch.einsum("bhqk,bhkd->bhqd", p, v)
        return (lambda x, *d: x.permute(*d))(o, 0, 2, 1, 3).reshape(B, Sq, Hq * Dh) @ wo

    def _B_ref(x, w1, w3, w2):
        gate = torch.einsum("bsd,df->bsf", x, w1)
        up = torch.einsum("bsd,df->bsf", x, w3)
        h = _silu(gate) * up
        out = torch.einsum("bsf,fd->bsd", h, w2)
        return out

    x = A_x
    x = x + _A_ref(_layernorm(x, axis=-1), A_k_cache, A_v_cache, A_wq, A_wo)
    x = x + _B_ref(_layernorm(x, axis=-1), B_w1, B_w3, B_w2)
    x = x + _A_ref(_layernorm(x, axis=-1), A_k_cache, A_v_cache, A_wq, A_wo)
    x = x + _B_ref(_layernorm(x, axis=-1), B_w1, B_w3, B_w2)
    return x
```

```python
import re
TRANS = ("v_exp_f32", "v_rcp_f32", "v_rsq_f32", "v_sqrt_f32", "v_log_f32")
def regs_of(tok):
    tok = tok.strip()
    tok = re.sub(r"^-|^abs\(|\)$|^\|", "", tok).rstrip("|")
    m = re.fullmatch(r"([vs])\[(\d+):(\d+)\]", tok)
    if m: return {(m.group(1), i) for i in range(int(m.group(2)), int(m.group(3)) + 1)}
    m = re.fullmatch(r"([vs])(\d+)", tok)
    if m: return {(m.group(1), int(m.group(2)))}
    if tok in ("vcc", "vcc_lo", "vcc_hi"): return {("vcc", 0)}
    return set()

class Asm:
    def __init__(self):
        self.lines = []
        self.hist = []
        self.maxv = 0
    def raw(self, s): self.lines.append(s)
    def label(self, name):
        self.lines.append(f"{name}:")
    def comment(self, s): self.lines.append(f"    ; {s}")
    def _dist(self, pred):
        d = 0
        for h in reversed(self.hist):
            if pred(h): return d
            d += h["states"]
            if d > 24: break
        return 99
    def __call__(self, s):
        for line in s.strip("\n").split("\n"):
            line = line.split(";")[0].strip()
            if not line: continue
            if line.endswith(":"):
                self.label(line[:-1]); continue
            self.emit(line)
    def emit(self, line):
        parts = line.split(None, 1)
        op = parts[0]
        rest = parts[1] if len(parts) > 1 else ""
        ops = [o.strip() for o in re.split(r",\s*(?![^\[]*\])", rest)] if rest else []
        mods = ""
        if ops:
            sp = ops[-1].split(None, 1)
            ops[-1] = sp[0]
            mods = sp[1] if len(sp) > 1 else ""
        R = [regs_of(o) for o in ops]
        for r in R:
            for (k, n) in r:
                if k == "v": self.maxv = max(self.maxv, n)
        ismfma = op.startswith("v_mfma") or op.startswith("v_smfmac")
        isvalu = op.startswith("v_") and not ismfma
        isvmem = op.startswith("buffer_") or op.startswith("global_")
        isds = op.startswith("ds_")
        wr, rd = set(), set()
        kind = "other"
        isdpp = ("_dpp" in op) or any(x in mods for x in ("row_", "quad_perm"))
        if ismfma:
            kind = "mfma"; wr = R[0]; rd = set().union(*R[1:])
            cin = R[0] if op.startswith("v_smfmac") else R[3]
            ab = R[1] | R[2] | (R[3] if op.startswith("v_smfmac") else set())
        elif isvalu:
            kind = "trans" if op.startswith(TRANS) else "valu"
            if op.startswith("v_permlane"):
                wr = R[0] | R[1]; rd = R[0] | R[1]
            else:
                wr = set(R[0]); rd = set().union(*R[1:]) if len(R) > 1 else set()
                if op.startswith(("v_fmac", "v_dot2c", "v_pk_fmac")) or isdpp: rd |= R[0]
                if op.startswith(("v_add_co", "v_sub_co", "v_addc_co")): wr |= R[1]
                if op.startswith("v_cndmask") and len(ops) == 3: rd |= {("vcc", 0)}
        elif isvmem:
            kind = "vmem"
            if "load" in op: wr = R[0]; rd = set().union(*R[1:])
            else: rd = set().union(*R)
        elif isds:
            kind = "ds"
            if "read" in op or "bpermute" in op: wr = R[0]; rd = set().union(*R[1:])
            else: rd = set().union(*R)
        need = 0
        vr = {x for x in rd if x[0] == "v"}
        sr = {x for x in rd if x[0] in ("s", "vcc")}
        def chk(n, pred):
            nonlocal need
            d = self._dist(pred)
            if d < n: need = max(need, n - d)
        valu_w = lambda S: (lambda h: h["kind"] in ("valu", "trans") and h["wr"] & S)
        if kind in ("valu", "trans"):
            if isdpp or op.startswith("v_permlane"): chk(2, valu_w(vr))
            if op.startswith(("v_readfirstlane", "v_readlane")): chk(1, valu_w(vr))
            if kind == "valu": chk(1, lambda h: h["kind"] == "trans" and h["wr"] & vr)
            chk(2, valu_w(sr))
            chk(8, lambda h: h["kind"] == "mfma" and h["wr"] & (vr | wr))
            chk(2, lambda h: h.get("wide") and h["rd"] & wr)
        if kind == "mfma":
            chk(2, valu_w(vr | cin))
            chk(8, lambda h: h["kind"] == "mfma" and h["wr"] & ab)
            chk(8, lambda h: h["kind"] == "mfma" and (h["wr"] & cin) and h["wr"] != cin)
        if kind in ("vmem", "ds"):
            chk(8, lambda h: h["kind"] == "mfma" and h["wr"] & (vr | wr))
            chk(5, valu_w(sr))
            chk(1, lambda h: h.get("wide") and h["rd"] & wr)
        if kind == "other" and op.startswith("s_") and not op.startswith(("s_waitcnt", "s_nop", "s_barrier")):
            allr = set().union(*R) if R else set()
            if op.startswith(("s_cbranch_vcc",)): allr |= {("vcc", 0)}
            chk(1, valu_w(allr))
        while need > 0:
            n = min(need, 8)
            self.lines.append(f"    s_nop {n-1}")
            self.hist.append(dict(kind="other", wr=set(), rd=set(), states=n))
            need -= n
        st = 1
        if op == "s_nop": st = int(ops[0]) + 1
        h = dict(kind=kind, wr=wr, rd=rd, states=st)
        if kind == "vmem" and "store" in op and ("x4" in op or "x3" in op): h["wide"] = True; h["rd"] = R[0]
        self.hist.append(h)
        if len(self.hist) > 64: self.hist = self.hist[-40:]
        self.lines.append("    " + line)
    def text(self): return "\n".join(self.lines) + "\n"
```

```python
import sys
from asmlib import Asm
NAME = "interleave_layers__sliding_block_cached__glu_gated_swiglu__decode_kernel"
CH = 16384
C_FLAG, C_H1, C_H2O, C_H2M, C_H3, C_XR2, C_H4, C_XR1, C_XR3 = 1, 3, 8, 72, 88, 104, 105, 121, 122
NQ, NA, NW, NF = 64, 128, 32, 28
ID_Q, ID_A, ID_W, ID_F = 0, 64, 192, 224
NWG = 252
TMO = 20000
LOG2E = 1.4426950408889634
import struct
def f2u(x): return struct.unpack("<I", struct.pack("<f", x))[0]

class G:
    def __init__(self, diag=False, opts=None):
        self.a = Asm(); self.diag = diag; self.o = opts or {}
        self.nst = 0
    STS = list(range(56, 64)) + list(range(88, 100))
    def stamp(self, k):
        if not self.diag: return
        self.a(f"s_memrealtime s[54:55]\ns_waitcnt lgkmcnt(0)\ns_mov_b32 s{self.STS[k]}, s54")
    def stamp_l(self, k0, k1):
        if not self.diag: return
        self.a(f"s_memrealtime s[54:55]\ns_waitcnt lgkmcnt(0)\ns_cmp_eq_u32 s23, 1\ns_cselect_b32 s{self.STS[k1]}, s54, s{self.STS[k1]}\ns_cmp_eq_u32 s23, 0\ns_cselect_b32 s{self.STS[k0]}, s54, s{self.STS[k0]}")
    def srd(self, d, p, nbytes, off_s=None):
        a = self.a
        if off_s is None:
            a(f"s_mov_b32 s{d}, s{p}\ns_mov_b32 s{d+1}, s{p+1}")
        else:
            a(f"s_add_u32 s{d}, s{p}, s{off_s}\ns_addc_u32 s{d+1}, s{p+1}, 0")
        a(f"s_mov_b32 s{d+2}, {nbytes}\ns_mov_b32 s{d+3}, 0x20000")
    def timeout(self):
        self.a(f"s_add_u32 s25, s25, 1\ns_cmp_gt_u32 s25, {TMO}\ns_cbranch_scc1 L_exit")
    def masks(self):
        a = self.a
        a("""
        v_and_b32 v8, 4, v1
        v_cmp_eq_u32 vcc, 0, v8
        v_mov_b32 v9, 0xffff
        v_cndmask_b32 v3, 0, v9, vcc
        v_xor_b32 v4, v3, v9
        v_lshlrev_b32 v5, 16, v3
        v_lshlrev_b32 v6, 16, v4
        v_and_b32 v8, 3, v1
        v_mul_u32_u24 v7, 17425, v8
        v_xor_b32 v8, 1, v8
        v_mul_u32_u24 v8, 4420, v8
        v_add_u32 v7, v7, v8
        """)
    def abuild(self, dst, src):
        for d in range(4):
            self.a(f"v_and_b32 v{dst+d}, v{src}, v{3+d}")
    def epoch_load(self):
        self.a("v_mov_b32 v8, 0\nbuffer_load_dword v9, v8, s[4:7], 0 offen sc1\nv_mov_b32 v12, -1\nv_mov_b32 v13, -1\nv_mov_b32 v14, -1\nv_mov_b32 v15, -1")
    def reset2k(self, sbase):
        a = self.a
        a(f"buffer_store_dwordx4 v[12:15], v10, s[4:7], s{sbase} offen sc1")
        a(f"buffer_store_dwordx4 v[12:15], v10, s[4:7], s{sbase} offen offset:1024 sc1")
        a(f"s_add_u32 s31, s{sbase}, 8192")
        a(f"buffer_store_dwordx4 v[12:15], v10, s[4:7], s31 offen sc1")
        a(f"buffer_store_dwordx4 v[12:15], v10, s[4:7], s31 offen offset:1024 sc1")
    def flag_store(self, nleft):
        a = self.a
        a(f"s_waitcnt vmcnt({nleft})")
        a("v_readfirstlane_b32 s24, v9")
        a("s_mul_i32 s24, s24, 0x9E3779B1\ns_add_u32 s24, s24, 0x7F4A7C15")
        a(f"""
        s_lshr_b32 s26, s2, 7
        s_lshl_b32 s26, s26, 14
        s_and_b32 s27, s2, 127
        s_lshl_b32 s27, s27, 6
        s_add_u32 s26, s26, s27
        s_add_u32 s26, s26, {C_FLAG*CH}
        v_lshlrev_b32 v8, 13, v0
        v_mov_b32 v11, s24
        s_mov_b64 exec, 3
        buffer_store_dword v11, v8, s[4:7], s26 offen sc1
        s_mov_b64 exec, -1
        """)
    def flag_poll(self, tagn, first_s, n, extra_id=None):
        a = self.a
        a(f"v_add_u32 v8, s{first_s}, v0")
        nl = n
        if extra_id is not None:
            a(f"v_cmp_eq_u32 vcc, {n}, v0\nv_mov_b32 v11, {extra_id}\nv_cndmask_b32 v8, v8, v11, vcc")
            nl = n + 1
        a(f"""
        v_lshrrev_b32 v11, 7, v8
        v_lshlrev_b32 v11, 14, v11
        v_and_b32 v8, 127, v8
        v_lshl_add_u32 v8, v8, 6, v11
        v_add_u32 v8, s20, v8
        s_mov_b32 s26, {C_FLAG*CH}
        s_mov_b32 s25, 0
        s_mov_b32 exec_lo, {hex(((1 << nl) - 1) & 0xffffffff)}
        s_mov_b32 exec_hi, {hex(((1 << nl) - 1) >> 32)}
        L_fp_{tagn}:
        buffer_load_dword v11, v8, s[4:7], s26 offen sc1
        """)
        self.timeout()
        a(f"""
        s_waitcnt vmcnt(0)
        v_cmp_ne_u32 vcc, s24, v11
        s_cbranch_vccnz L_fp_{tagn}
        s_mov_b64 exec, -1
        """)
    def front_setup(self, c_src, c_xr):
        a = self.a
        a(f"""
        s_mov_b32 s48, 0x0fffffff
        s_mov_b32 s49, 0x0fffffff
        s_mov_b32 s50, 0x00ff00ff
        s_mov_b32 s51, 0xff00ff00
        v_lshrrev_b32 v8, 5, v0
        v_and_b32 v9, 31, v0
        s_mul_i32 s26, s22, 28
        v_add_u32 v10, s26, v9
        v_lshlrev_b32 v10, 4, v10
        v_lshl_add_u32 v16, v8, 16, v10
        v_add_u32 v16, s20, v16
        v_lshl_add_u32 v17, v8, 3, v10
        s_add_u32 s26, s20, {c_xr*CH}
        v_add_u32 v17, s26, v17
        v_lshl_add_u32 v11, v9, 1, v8
        v_mul_u32_u24 v12, 9363, v11
        v_lshrrev_b32 v12, 16, v12
        v_add_u32 v11, v11, v12
        v_lshlrev_b32 v11, 2, v11
        s_lshl_b32 s26, s22, 8
        v_add_u32 v18, s26, v11
        v_lshrrev_b32 v11, 3, v0
        v_lshlrev_b32 v11, 5, v11
        v_add_u32 v19, s26, v11
        v_lshrrev_b32 v11, 3, v1
        v_lshlrev_b32 v11, 8, v11
        v_and_b32 v12, 7, v1
        v_lshl_add_u32 v11, v12, 5, v11
        v_and_b32 v12, 1, v2
        v_lshl_add_u32 v11, v12, 4, v11
        s_lshl_b32 s26, s22, 9
        s_add_u32 s26, s26, 1024
        v_add_u32 v20, s26, v11
        s_lshl_b32 s26, s22, 3
        s_add_u32 s26, s26, {1024+4096}
        v_lshl_add_u32 v21, v8, 2, s26
        """)
        for i in range(16):
            a(f"s_mov_b32 s{32+i}, {c_src*CH + (i>>2)*CH + (i&3)*2048}")
        a(f"""
        v_lshrrev_b32 v8, 2, v0
        v_lshlrev_b32 v8, 14, v8
        v_and_b32 v9, 3, v0
        v_lshl_add_u32 v8, v9, 11, v8
        s_mul_i32 s26, s22, 448
        s_add_u32 s26, s26, s20
        s_add_u32 s26, s26, {c_src*CH + 432}
        v_add_u32 v13, s26, v8
        """)
    def r16_loads(self, srd, reg, rowstride, vaddr):
        for s in range(7):
            for hf in range(2):
                self.a(f"s_mov_b32 s26, {(56*hf + 2*s)*rowstride}")
                r = reg + 8*s + 4*hf
                self.a(f"buffer_load_dwordx4 v[{r}:{r+3}], v{vaddr}, s[{srd}:{srd+3}], s26 offen nt")
    def r16_addr(self, vdst, rowstride):
        self.a(f"""
        v_lshrrev_b32 v8, 1, v2
        v_lshrrev_b32 v9, 3, v1
        v_lshl_add_u32 v8, v8, 1, v9
        v_mul_u32_u24 v8, 14, v8
        v_and_b32 v9, 1, v2
        v_add_u32 v8, v8, v9
        s_mul_i32 s26, s22, 112
        v_add_u32 v8, s26, v8
        v_mul_u32_u24 v8, {rowstride}, v8
        v_and_b32 v9, 7, v1
        v_lshl_add_u32 v{vdst}, v9, 4, v8
        """)
    def x_load(self):
        self.a("""
        v_lshrrev_b32 v8, 5, v0
        v_and_b32 v9, 31, v0
        v_lshl_add_u32 v8, v9, 1, v8
        s_mul_i32 s26, s22, 56
        v_add_u32 v8, s26, v8
        v_lshlrev_b32 v8, 2, v8
        buffer_load_dword v25, v8, s[16:19], 0 offen
        """)
    def gather(self, tagn, nld, xr_cond):
        a = self.a
        mode = self.o.get("pre", "all")
        a("s_mov_b32 s25, 0")
        if mode != "none":
            a(f"s_mov_b32 exec_lo, {hex(0xffffffff if nld == 16 else 0x3fff3fff)}\ns_mov_b32 exec_hi, 0")
            a(f"L_gl_{tagn}:\nbuffer_load_dword v54, v13, s[4:7], 0 offen sc1")
            self.timeout()
            a("s_waitcnt vmcnt(0)")
            if mode == "all": a(f"v_cmp_eq_u32 vcc, -1, v54\ns_cbranch_vccnz L_gl_{tagn}")
            else: a(f"v_cmp_ne_u32 vcc, -1, v54\ns_cbranch_vccz L_gl_{tagn}")
        a("s_mov_b64 exec, s[48:49]")
        a(f"L_gp_{tagn}:")
        if xr_cond:
            a(f"s_cmp_eq_u32 s23, 0\ns_cbranch_scc1 L_gx_{tagn}")
        a("buffer_load_dwordx2 v[22:23], v17, s[4:7], 0 offen sc1")
        if xr_cond: a(f"L_gx_{tagn}:")
        for i in range(nld):
            a(f"buffer_load_dwordx4 v[{60+4*i}:{63+4*i}], v16, s[4:7], s{32+i} offen sc1")
        self.timeout()
        for i in range(0, nld, 2):
            a(f"s_waitcnt vmcnt({nld-2-i})")
            r = 60 + 4*i
            if i == 0:
                a(f"v_max3_u32 v54, v22, v{r}, v{r+4}")
                a(f"v_pk_add_f32 v[50:51], v[{r}:{r+1}], v[{r+4}:{r+5}]\nv_pk_add_f32 v[52:53], v[{r+2}:{r+3}], v[{r+6}:{r+7}]")
            else:
                a(f"v_max3_u32 v54, v54, v{r}, v{r+4}")
                a(f"v_pk_add_f32 v[{r}:{r+1}], v[{r}:{r+1}], v[{r+4}:{r+5}]\nv_pk_add_f32 v[{r+2}:{r+3}], v[{r+2}:{r+3}], v[{r+6}:{r+7}]")
                a(f"v_pk_add_f32 v[50:51], v[50:51], v[{r}:{r+1}]\nv_pk_add_f32 v[52:53], v[52:53], v[{r+2}:{r+3}]")
        a(f"v_cmp_eq_u32 vcc, -1, v54\ns_cbranch_vccnz L_gp_{tagn}")
        a("""
        v_permlane32_swap_b32 v50, v52
        v_permlane32_swap_b32 v51, v53
        v_pk_add_f32 v[50:51], v[50:51], v[52:53]
        v_cvt_pk_bf16_f32 v55, v50, v51
        v_lshlrev_b32 v50, 16, v55
        v_and_b32 v51, 0xffff0000, v55
        v_pk_add_f32 v[50:51], v[50:51], v[22:23]
        v_cvt_pk_bf16_f32 v24, v50, v51
        """)
    def front_gemv(self, two):
        a = self.a
        a("""
        ds_write_b32 v18, v24
        v_mov_b32 v55, 0
        v_lshlrev_b32 v50, 16, v24
        v_and_b32 v51, 0xffff0000, v24
        s_mov_b64 exec, -1
        v_mov_b32 v55, 0
        v_mov_b32 v56, 0
        s_waitcnt lgkmcnt(0)
        ds_read_b128 v[26:29], v19
        ds_read_b128 v[30:33], v19 offset:16
        s_mov_b64 exec, s[48:49]
        v_add_f32 v55, v50, v51
        v_mul_f32 v56, v50, v50
        v_fmac_f32 v56, v51, v51
        s_mov_b64 exec, -1
        v_mov_b32 v42, 0
        v_mov_b32 v43, 0
        v_mov_b32 v44, 0
        v_mov_b32 v45, 0
        """)
        if two: a("v_mov_b32 v46, 0\nv_mov_b32 v47, 0\nv_mov_b32 v48, 0\nv_mov_b32 v49, 0")
        a("v_permlane32_swap_b32 v55, v56\nv_add_f32 v55, v55, v56")
        a("s_waitcnt lgkmcnt(1)")
        self.abuild(34, 26)
        fill = ["v_mov_b32 v56, v55", None, "v_permlane16_swap_b32 v55, v56\nv_add_f32 v55, v55, v56",
                "v_add_f32_dpp v55, v55, v55 row_ror:8 row_mask:0xf bank_mask:0xf", "v_add_f32_dpp v55, v55, v55 row_ror:4 row_mask:0xf bank_mask:0xf",
                "v_add_f32_dpp v55, v55, v55 row_ror:2 row_mask:0xf bank_mask:0xf", "v_add_f32_dpp v55, v55, v55 row_ror:1 row_mask:0xf bank_mask:0xf"]
        for s in range(7):
            A = 34 + 4*(s & 1)
            if s == 3: a("s_waitcnt lgkmcnt(0)")
            if s < 6: self.abuild(34 + 4*((s+1) & 1), 26 + s + 1)
            a(f"v_smfmac_f32_16x16x64_bf16 v[42:45], v[{A}:{A+3}], v[{128+8*s}:{135+8*s}], v7")
            if two: a(f"v_smfmac_f32_16x16x64_bf16 v[46:49], v[{A}:{A+3}], v[{184+8*s}:{191+8*s}], v7")
            if fill[s]: a(fill[s])
        a("s_and_b32 s26, s23, 1\ns_mul_i32 s26, s26, 4352\nv_add_u32 v8, s26, v20\nv_add_u32 v9, s26, v21")
        a("s_mov_b32 exec_lo, 1\ns_mov_b32 exec_hi, 1\nds_write_b32 v9, v55\ns_mov_b64 exec, s[50:51]")
        a("ds_write_b128 v8, v[42:45]")
        if two: a("ds_write_b128 v8, v[46:49] offset:2048")
        a("s_mov_b64 exec, -1\ns_waitcnt lgkmcnt(0)\ns_barrier")
    def back_reduce(self, two, base, ro):
        a = self.a
        a(f"ds_read_b128 v[{ro+16}:{ro+19}], v{base+1}\nds_read_b128 v[{ro+20}:{ro+23}], v{base+1} offset:16")
        for m in range(2 if two else 1):
            for k in range(4):
                a(f"ds_read2st64_b32 v[{ro+8*m+2*k}:{ro+8*m+2*k+1}], v{base} offset0:{8*m+2*k} offset1:{8*m+2*k+1}")
    def ln_scalars(self, ro, nrest):
        a = self.a
        t = ro + 16
        a(f"""
        s_waitcnt lgkmcnt({nrest})
        v_pk_add_f32 v[{t}:{t+1}], v[{t}:{t+1}], v[{t+2}:{t+3}]
        v_pk_add_f32 v[{t+4}:{t+5}], v[{t+4}:{t+5}], v[{t+6}:{t+7}]
        v_pk_add_f32 v[{t}:{t+1}], v[{t}:{t+1}], v[{t+4}:{t+5}]
        v_mul_f32 v{t}, {hex(f2u(1.0/448))}, v{t}
        v_mul_f32 v{t+1}, {hex(f2u(1.0/448))}, v{t+1}
        v_fma_f32 v{t+1}, -v{t}, v{t}, v{t+1}
        v_max_f32 v{t+1}, 0, v{t+1}
        v_cvt_pk_bf16_f32 v{t+2}, v{t}, v{t+1}
        v_lshlrev_b32 v{t}, 16, v{t+2}
        v_and_b32 v{t+1}, 0xffff0000, v{t+2}
        v_add_f32 v{t+1}, {hex(f2u(1e-5))}, v{t+1}
        v_cvt_pk_bf16_f32 v{t+1}, v{t+1}, v{t+1}
        v_and_b32 v{t+1}, 0xffff0000, v{t+1}
        v_sqrt_f32 v{t+1}, v{t+1}
        v_cvt_pk_bf16_f32 v{t+1}, v{t+1}, v{t+1}
        v_and_b32 v{t+1}, 0xffff0000, v{t+1}
        v_rcp_f32 v{t+1}, v{t+1}
        """)
    def sum8(self, r):
        self.a(f"""
        v_pk_add_f32 v[{r}:{r+1}], v[{r}:{r+1}], v[{r+2}:{r+3}]
        v_pk_add_f32 v[{r+4}:{r+5}], v[{r+4}:{r+5}], v[{r+6}:{r+7}]
        v_pk_add_f32 v[{r}:{r+1}], v[{r}:{r+1}], v[{r+4}:{r+5}]
        v_add_f32 v{r}, v{r}, v{r+1}
        """)
    def r8_addr(self, vdst, NS, wv):
        self.a(f"""
        v_lshrrev_b32 v8, 1, v2
        v_mul_u32_u24 v8, {2*NS}, v8
        v_and_b32 v9, 1, v2
        v_add_u32 v8, v8, v9
        v_mul_u32_u24 v8, 896, v8
        v_lshl_add_u32 v8, v1, 4, v8
        s_lshl_b32 s26, s{wv}, 8
        v_add_u32 v{vdst}, s26, v8
        s_cmp_eq_u32 s{wv}, 3
        s_cselect_b32 s28, 0x00ff00ff, -1
        s_mov_b32 s29, s28
        """)
    def r8_loads(self, NS, srd, vaddr, reg):
        a = self.a
        a("s_mov_b64 exec, s[28:29]")
        for s in range(NS):
            for hf in range(2):
                a(f"s_mov_b32 s26, {(4*NS*hf + 2*s)*896}")
                r = reg + 8*s + 4*hf
                a(f"buffer_load_dwordx4 v[{r}:{r+3}], v{vaddr}, s[{srd}:{srd+3}], s26 offen nt")
        a("s_mov_b64 exec, -1")
    def r8_pub_addr(self, vdst, wv, sslot):
        self.a(f"""
        v_lshlrev_b32 v8, 5, v1
        v_and_b32 v9, 1, v2
        v_lshl_add_u32 v8, v9, 4, v8
        v_lshrrev_b32 v9, 1, v2
        v_lshl_add_u32 v8, v9, 13, v8
        s_lshl_b32 s26, s{wv}, 9
        s_add_u32 s26, s26, s{sslot}
        v_add_u32 v{vdst}, s26, v8
        """)
    def r8_gemv(self, NS, X, reg, vpub, sofs):
        a = self.a
        a("v_mov_b32 v42, 0\nv_mov_b32 v43, 0\nv_mov_b32 v44, 0\nv_mov_b32 v45, 0")
        nrd = NS // 4
        a(f"s_waitcnt lgkmcnt({nrd-1})")
        self.abuild(34, X)
        for s in range(NS):
            A = 34 + 4*(s & 1)
            if s + 1 < NS:
                if (s + 1) % 4 == 0: a(f"s_waitcnt lgkmcnt({nrd - 1 - (s+1)//4})")
                self.abuild(34 + 4*((s+1) & 1), X + s + 1)
            a(f"v_smfmac_f32_16x16x64_bf16 v[42:45], v[{A}:{A+3}], v[{reg+8*s}:{reg+8*s+7}], v7")
        a("s_mov_b64 exec, s[28:29]")
        a("v_min_u32 v42, -2, v42")
        a(f"buffer_store_dwordx4 v[42:45], v{vpub}, s[4:7], s{sofs} offen sc1")
        a("s_mov_b64 exec, -1")

    def role_q(self):
        a = self.a
        a("L_Q:\ns_mov_b32 s21, s2")
        a("s_cmp_gt_u32 s22, 4\ns_cbranch_scc1 L_exit\ns_cmp_eq_u32 s22, 4\ns_cbranch_scc1 L_Qh")
        self.srd(16, 64, 896)
        a("s_lshl_b32 s27, s21, 7")
        self.srd(8, 70, 448*8192 - 0, off_s=27)
        a("s_sub_u32 s10, s10, s27")
        self.x_load()
        self.r16_addr(15, 8192)
        self.r16_loads(8, 128, 8192, 15)
        self.masks()
        self.front_setup(C_H4, C_XR1)
        a(f"v_lshlrev_b32 v58, 2, v0\nv_add_u32 v58, 1024, v58")
        a(f"s_lshl_b32 s26, s21, 7\ns_add_u32 s26, s26, {C_H1*CH}\nv_lshrrev_b32 v8, 3, v0\nv_lshl_add_u32 v14, v8, 4, s26")
        a("s_mov_b32 s23, -1\nv_mov_b32 v24, 0x3f803f80\ns_mov_b64 exec, s[48:49]\ns_waitcnt vmcnt(0)")
        self.stamp(1)
        a("s_branch L_Qg")
        a("L_Qloop:")
        a("s_cmp_eq_u32 s23, 0\ns_cbranch_scc0 L_Qgath\nv_mov_b32 v24, v25\ns_mov_b64 exec, s[48:49]\ns_branch L_Qg")
        a("L_Qgath:")
        a("s_mov_b32 s25, 0\nv_mov_b32 v8, 12288\nL_Qfw:\nds_read_b32 v9, v8")
        self.timeout()
        a("s_waitcnt lgkmcnt(0)\nv_cmp_eq_u32 vcc, 0, v9\ns_cbranch_vccnz L_Qfw")
        self.gather("q", 14, False)
        self.stamp(5)
        a("L_Qg:")
        self.front_gemv(False)
        self.stamp_l(2, 6)
        a("s_cmp_eq_u32 s23, 1\ns_cselect_b32 s26, s21, 1\ns_cmp_eq_u32 s26, 0\ns_cbranch_scc0 L_Qnx")
        a(f"s_mov_b64 exec, s[48:49]\nv_subrev_u32 v8, s20, v17\ns_mov_b32 s26, {(C_XR2-C_XR1)*CH & 0xffffffff}\nv_add_u32 v8, s26, v8\ns_mov_b32 s26, 8192")
        a("buffer_store_dwordx2 v[50:51], v8, s[4:7], 0 offen sc1\nbuffer_store_dwordx2 v[50:51], v8, s[4:7], s26 offen sc1\ns_mov_b64 exec, -1")
        a("L_Qnx:")
        a("s_cmp_eq_u32 s22, 0\ns_cbranch_scc0 L_Qnext")
        a(f"s_and_b32 s26, s23, 1\ns_mul_i32 s26, s26, 4352\nv_add_u32 v10, s26, v58\ns_add_u32 s26, s26, {1024+4096}\nv_mov_b32 v11, s26")
        self.back_reduce(False, 10, 60)
        self.ln_scalars(60, 4)
        a("s_waitcnt lgkmcnt(0)")
        self.sum8(60)
        a("s_cmp_eq_u32 s23, -1\ns_cbranch_scc0 L_Qpub\nv_mov_b32 v57, v60\ns_branch L_Qnext")
        a("L_Qpub:")
        a("""
        v_fma_f32 v60, -v76, v57, v60
        v_mul_f32 v60, v60, v77
        v_mov_b32_dpp v61, v60 quad_perm:[1,0,3,2] row_mask:0xf bank_mask:0xf
        v_cvt_pk_bf16_f32 v64, v60, v61
        v_mov_b32_dpp v65, v64 row_shl:2 row_mask:0xf bank_mask:0xf
        v_mov_b32_dpp v66, v64 row_shl:4 row_mask:0xf bank_mask:0xf
        v_mov_b32_dpp v67, v64 row_shl:6 row_mask:0xf bank_mask:0xf
        v_min_u32 v64, -2, v64
        s_lshl_b32 s26, s23, 14
        s_add_u32 s27, s26, 8192
        s_mov_b32 exec_lo, 0x01010101
        s_mov_b32 exec_hi, 0x01010101
        buffer_store_dwordx4 v[64:67], v14, s[4:7], s26 offen sc1
        buffer_store_dwordx4 v[64:67], v14, s[4:7], s27 offen sc1
        s_mov_b64 exec, -1
        """)
        self.stamp_l(3, 7)
        a("L_Qnext:\ns_add_u32 s23, s23, 1\ns_cmp_lt_i32 s23, 2\ns_cbranch_scc1 L_Qloop")
        a("s_cmp_lt_u32 s21, 7\ns_cbranch_scc0 L_exit\ns_cmp_eq_u32 s22, 0\ns_cbranch_scc0 L_exit")
        self.srd(16, 82, 896)
        a(f"""
        v_lshrrev_b32 v8, 1, v2
        v_lshlrev_b32 v8, 4, v8
        v_and_b32 v9, 1, v2
        v_mad_u32_u24 v8, v9, 7, v8
        s_lshl_b32 s26, s21, 8
        s_add_u32 s26, s26, s20
        s_add_u32 s26, s26, {(C_H4+8)*CH}
        v_lshl_add_u32 v9, v1, 4, s26
        """)
        for i in range(7):
            a(f"v_add_u32 v10, {i}, v8\nv_lshrrev_b32 v11, 2, v10\nv_lshl_add_u32 v11, v11, 14, v9\nv_and_b32 v10, 3, v10\nv_lshl_add_u32 v{90+i}, v10, 11, v11")
        a(f"""
        v_lshrrev_b32 v8, 1, v2
        v_lshlrev_b32 v8, 1, v8
        v_and_b32 v9, 1, v2
        v_add_u32 v8, v8, v9
        v_lshl_add_u32 v8, v1, 2, v8
        s_lshl_b32 s26, s21, 6
        v_add_u32 v8, s26, v8
        v_lshlrev_b32 v97, 1, v8
        s_add_u32 s26, s20, {C_XR3*CH}
        v_lshl_add_u32 v98, v8, 2, s26
        s_mov_b32 s25, 0
        L_Fp:
        buffer_load_dword v22, v98, s[4:7], 0 offen sc1
        """)
        for i in range(7):
            a(f"buffer_load_dwordx4 v[{60+4*i}:{63+4*i}], v{90+i}, s[4:7], 0 offen sc1")
        self.timeout()
        a("s_waitcnt vmcnt(5)\nv_max3_u32 v54, v22, v60, v64\nv_pk_add_f32 v[50:51], v[60:61], v[64:65]\nv_pk_add_f32 v[52:53], v[62:63], v[66:67]")
        for i in range(2, 7):
            r = 60 + 4*i
            a(f"s_waitcnt vmcnt({6-i})\nv_max_u32 v54, v54, v{r}\nv_pk_add_f32 v[50:51], v[50:51], v[{r}:{r+1}]\nv_pk_add_f32 v[52:53], v[52:53], v[{r+2}:{r+3}]")
        a("""
        v_cmp_eq_u32 vcc, -1, v54
        s_cbranch_vccnz L_Fp
        v_permlane32_swap_b32 v50, v52
        v_permlane32_swap_b32 v51, v53
        v_pk_add_f32 v[50:51], v[50:51], v[52:53]
        v_permlane16_swap_b32 v50, v51
        v_add_f32 v50, v50, v51
        v_cvt_pk_bf16_f32 v50, v50, v50
        v_and_b32 v50, 0xffff0000, v50
        v_add_f32 v50, v50, v22
        v_cvt_pk_bf16_f32 v50, v50, v50
        buffer_store_short v50, v97, s[16:19], 0 offen
        """)
        self.stamp(8)
        a("s_cmp_eq_u32 s21, 0\ns_cbranch_scc0 L_exit\nv_mov_b32 v8, 12288\nds_read_b32 v9, v8 offset:4\nv_mov_b32 v8, 0\ns_mov_b64 exec, 1\ns_waitcnt lgkmcnt(0)\nbuffer_store_dword v9, v8, s[4:7], 0 offen sc1\ns_branch L_exit")
        a("L_Qh:")
        self.epoch_load()
        a(f"""
        v_mov_b32 v16, 12288
        v_mov_b32 v17, 0
        ds_write_b32 v16, v17
        v_and_b32 v8, 7, v0
        v_lshlrev_b32 v8, 4, v8
        v_lshrrev_b32 v11, 3, v0
        v_lshl_add_u32 v8, v11, 13, v8
        s_lshl_b32 s26, s21, 7
        s_add_u32 s26, s26, {C_H1*CH}
        s_mov_b32 exec_hi, 0
        buffer_store_dwordx4 v[12:15], v8, s[4:7], s26 offen sc1
        s_mov_b64 exec, -1
        v_lshlrev_b32 v10, 4, v0
        s_cmp_eq_u32 s21, 0
        s_cbranch_scc0 L_Qh1
        s_mov_b32 s30, {C_XR2*CH}
        """)
        self.reset2k(30)
        a("L_Qh1:")
        self.flag_store(0)
        a("s_waitcnt lgkmcnt(0)\ns_barrier")
        a(f"s_mov_b32 s27, {ID_F}")
        self.flag_poll("q", 27, NF)
        a("v_mov_b32 v17, 1\nv_mov_b32 v18, s24\nds_write_b32 v16, v18 offset:4\nds_write_b32 v16, v17\ns_waitcnt lgkmcnt(0)\ns_branch L_exit")

    def role_f(self):
        a = self.a
        a(f"L_F:\ns_sub_u32 s21, s2, {ID_F}")
        a("s_cmp_gt_u32 s22, 3\ns_cbranch_scc1 L_Fb")
        self.srd(16, 64, 896)
        a("s_lshl_b32 s27, s21, 7")
        self.srd(8, 76, 448*3584, off_s=27)
        a("s_sub_u32 s10, s10, s27")
        self.srd(12, 78, 448*3584, off_s=27)
        a("s_sub_u32 s14, s14, s27")
        self.x_load()
        self.r16_addr(15, 3584)
        self.r16_loads(8, 128, 3584, 15)
        self.r16_loads(12, 184, 3584, 15)
        self.masks()
        self.front_setup(C_H3, C_XR2)
        a("s_mov_b32 s23, -1\nv_mov_b32 v24, 0x3f803f80\ns_waitcnt vmcnt(0)\nv_lshlrev_b32 v22, 16, v25\nv_and_b32 v23, 0xffff0000, v25\ns_mov_b64 exec, s[48:49]")
        self.stamp(1)
        a("s_branch L_Fg")
        a("L_Floop:")
        self.gather("f", 16, True)
        self.stamp_l(2, 5)
        a("L_Fg:")
        self.front_gemv(True)
        self.stamp_l(3, 6)
        a("s_cmp_ge_i32 s23, 0\ns_cselect_b32 s26, s21, 1\ns_cmp_eq_u32 s26, 0\ns_cbranch_scc0 L_Fnx")
        a(f"s_mov_b64 exec, s[48:49]\nv_subrev_u32 v8, s20, v17\ns_lshl_b32 s26, s23, 14\ns_add_u32 s26, s26, {(C_XR1-C_XR2)*CH}\ns_add_u32 s27, s26, 8192")
        a("buffer_store_dwordx2 v[50:51], v8, s[4:7], s26 offen sc1\nbuffer_store_dwordx2 v[50:51], v8, s[4:7], s27 offen sc1\ns_mov_b64 exec, -1")
        a("L_Fnx:")
        a(f"s_cmp_eq_u32 s23, 0\ns_cbranch_scc0 L_Fn2\nv_add_u32 v16, {8*CH}, v16\nv_add_u32 v13, {8*CH}, v13\nL_Fn2:")
        a("s_add_u32 s23, s23, 1\ns_cmp_lt_i32 s23, 2\ns_cbranch_scc1 L_Floop\ns_branch L_exit")
        a("L_Fb:\ns_sub_u32 s30, s22, 4")
        a("s_mul_i32 s27, s21, 57344")
        self.srd(8, 80, 57344, off_s=27)
        a(f"""
        s_cmp_ge_u32 s21, 14
        s_cselect_b32 s26, 2, 0
        s_add_u32 s26, s26, s21
        s_lshr_b32 s27, s26, 2
        s_lshl_b32 s27, s27, 14
        s_and_b32 s26, s26, 3
        s_lshl_b32 s26, s26, 11
        s_add_u32 s52, s26, s27
        s_add_u32 s52, s52, {C_H4*CH}
        s_cmp_eq_u32 s22, 4
        s_cbranch_scc0 L_Fb1
        """)
        self.epoch_load()
        a("v_lshlrev_b32 v10, 4, v0")
        self.reset2k(52)
        a(f"s_add_u32 s53, s52, {8*CH}")
        self.reset2k(53)
        a(f"s_cmp_eq_u32 s21, 0\ns_cbranch_scc0 L_Fb1\ns_mov_b32 s53, {C_XR1*CH}")
        self.reset2k(53)
        a(f"s_mov_b32 s53, {C_XR3*CH}")
        self.reset2k(53)
        a("L_Fb1:")
        self.r8_addr2(16, 8, 30)
        self.r8_loads(8, 8, 16, 128)
        a("s_cmp_eq_u32 s22, 4\ns_cbranch_scc0 L_Fb2")
        self.flag_store(16)
        a(f"s_mov_b32 s27, {ID_W}")
        self.flag_poll("f", 27, NW, extra_id=ID_Q)
        a("L_Fb2:")
        self.masks()
        self.r8_pub_addr(17, 30, 52)
        a("v_lshlrev_b32 v58, 2, v0\nv_add_u32 v58, 1024, v58")
        a("s_lshl_b32 s26, s30, 7\ns_add_u32 s26, s26, 10240\nv_lshl_add_u32 v18, v0, 1, s26\nv_lshl_add_u32 v19, v2, 5, s26")
        a("s_mov_b32 s23, -1\ns_waitcnt vmcnt(0)")
        self.stamp(1)
        a("L_Fbl:")
        a(f"s_and_b32 s26, s23, 1\ns_mul_i32 s26, s26, 4352\nv_add_u32 v10, s26, v58\ns_add_u32 s26, s26, {1024+4096}\nv_mov_b32 v11, s26\ns_lshl_b32 s27, s23, 17")
        a("s_barrier")
        self.stamp_l(2, 5)
        self.back_reduce(True, 10, 60)
        self.ln_scalars(60, 8)
        a("s_waitcnt lgkmcnt(4)")
        self.sum8(60)
        a("s_waitcnt lgkmcnt(0)")
        self.sum8(68)
        a("s_cmp_eq_u32 s23, -1\ns_cbranch_scc0 L_Fbh\nv_mov_b32 v56, v60\nv_mov_b32 v57, v68\ns_mov_b32 s23, 0\ns_branch L_Fbl")
        a(f"""
        L_Fbh:
        v_fma_f32 v60, -v76, v56, v60
        v_fma_f32 v68, -v76, v57, v68
        v_mul_f32 v60, v60, v77
        v_mul_f32 v68, v68, v77
        v_cvt_pk_bf16_f32 v61, v60, v68
        v_lshlrev_b32 v60, 16, v61
        v_and_b32 v68, 0xffff0000, v61
        v_mul_f32 v61, {hex(f2u(-LOG2E))}, v60
        v_exp_f32 v61, v61
        v_add_f32 v61, 1.0, v61
        v_rcp_f32 v61, v61
        v_mul_f32 v61, v60, v61
        v_cvt_pk_bf16_f32 v61, v61, v61
        v_and_b32 v61, 0xffff0000, v61
        v_mul_f32 v61, v61, v68
        v_cvt_pk_bf16_f32 v61, v61, v61
        ds_write_b16 v18, v61
        s_waitcnt lgkmcnt(0)
        ds_read_b128 v[26:29], v19
        ds_read_b128 v[30:33], v19 offset:16
        """)
        self.stamp_l(3, 6)
        self.r8_gemv(8, 26, 128, 17, 27)
        self.stamp_l(4, 7)
        a("s_add_u32 s23, s23, 1\ns_cmp_lt_i32 s23, 2\ns_cbranch_scc1 L_Fbl\ns_branch L_exit")
    def r8_addr2(self, vdst, NS, wv):
        self.a(f"""
        v_lshrrev_b32 v20, 1, v2
        v_mul_u32_u24 v20, {2*NS}, v20
        v_and_b32 v21, 1, v2
        v_add_u32 v20, v20, v21
        v_mul_u32_u24 v20, 896, v20
        v_lshl_add_u32 v20, v1, 4, v20
        s_lshl_b32 s26, s{wv}, 8
        v_add_u32 v{vdst}, s26, v20
        s_cmp_eq_u32 s{wv}, 3
        s_cselect_b32 s28, 0x00ff00ff, -1
        s_mov_b32 s29, s28
        """)

    def role_w(self):
        a = self.a
        a(f"L_W:\ns_sub_u32 s21, s2, {ID_W}")
        a(f"""
        s_lshr_b32 s27, s21, 2
        s_lshl_b32 s27, s27, 14
        s_and_b32 s26, s21, 3
        s_lshl_b32 s26, s26, 11
        s_add_u32 s53, s26, s27
        s_add_u32 s52, s53, {C_H3*CH}
        """)
        a("s_cmp_gt_u32 s22, 4\ns_cbranch_scc1 L_exit\ns_cmp_eq_u32 s22, 4\ns_cbranch_scc1 L_Wh")
        a("s_mul_i32 s27, s21, 114688")
        self.srd(8, 72, 114688, off_s=27)
        self.r8_addr(16, 16, 22)
        self.r8_loads(16, 8, 16, 128)
        self.masks()
        self.r8_pub_addr(17, 22, 52)
        a(f"""
        v_lshrrev_b32 v8, 2, v0
        v_and_b32 v9, 3, v0
        v_lshlrev_b32 v10, 9, v8
        v_lshl_add_u32 v10, v9, 5, v10
        s_lshl_b32 s26, s21, 14
        s_add_u32 s26, s26, s20
        s_lshl_b32 s27, s22, 7
        s_add_u32 s26, s26, s27
        s_add_u32 s26, s26, {C_H2O*CH}
        v_add_u32 v18, s26, v10
        s_add_u32 s26, s53, s20
        s_add_u32 s26, s26, {C_H2M*CH}
        v_lshl_add_u32 v19, v8, 7, s26
        v_lshlrev_b32 v10, 4, v9
        v_lshl_add_u32 v10, v2, 2, v10
        s_lshl_b32 s26, s22, 6
        v_add_u32 v20, s26, v10
        v_lshlrev_b32 v21, 6, v2
        s_mov_b32 s23, 0
        s_waitcnt vmcnt(0)
        """)
        self.stamp(1)
        a("s_barrier")
        a("L_Wl:\ns_mov_b32 s25, 0")
        a(f"s_mul_i32 s30, s23, {32*CH}\ns_lshl_b32 s27, s23, 17")
        a("""
        L_Wp:
        buffer_load_dwordx2 v[22:23], v19, s[4:7], s27 offen sc1
        buffer_load_dwordx4 v[60:63], v18, s[4:7], s30 offen sc1
        buffer_load_dwordx4 v[64:67], v18, s[4:7], s30 offen offset:16 sc1
        """)
        self.timeout()
        a("""
        s_waitcnt vmcnt(2)
        v_max_f32_dpp v24, v22, v22 row_ror:4 row_mask:0xf bank_mask:0xf
        v_max_f32_dpp v24, v24, v24 row_ror:8 row_mask:0xf bank_mask:0xf
        v_mov_b32 v25, v24
        v_permlane16_swap_b32 v24, v25
        v_max_f32 v24, v24, v25
        v_mov_b32 v25, v24
        v_permlane32_swap_b32 v24, v25
        v_max_f32 v24, v24, v25
        v_sub_f32 v24, v22, v24
        v_exp_f32 v24, v24
        s_waitcnt vmcnt(0)
        v_max3_u32 v54, v22, v60, v64
        v_cmp_eq_u32 vcc, -1, v54
        s_cbranch_vccnz L_Wp
        """)
        self.stamp_l(2, 5)
        a("""
        v_mul_f32 v26, v23, v24
        v_pk_mul_f32 v[60:61], v[60:61], v[24:25] op_sel_hi:[1,0]
        v_pk_mul_f32 v[64:65], v[64:65], v[24:25] op_sel_hi:[1,0]
        v_pk_mul_f32 v[62:63], v[62:63], v[24:25] op_sel_hi:[1,0]
        v_pk_mul_f32 v[66:67], v[66:67], v[24:25] op_sel_hi:[1,0]
        v_add_f32_dpp v26, v26, v26 row_ror:4 row_mask:0xf bank_mask:0xf
        v_permlane32_swap_b32 v60, v64
        v_permlane32_swap_b32 v61, v65
        v_add_f32_dpp v26, v26, v26 row_ror:8 row_mask:0xf bank_mask:0xf
        v_permlane32_swap_b32 v62, v66
        v_permlane32_swap_b32 v63, v67
        v_mov_b32 v27, v26
        v_pk_add_f32 v[60:61], v[60:61], v[64:65]
        v_pk_add_f32 v[62:63], v[62:63], v[66:67]
        v_permlane16_swap_b32 v26, v27
        v_add_f32 v26, v26, v27
        v_permlane16_swap_b32 v60, v62
        v_permlane16_swap_b32 v61, v63
        v_mov_b32 v27, v26
        v_pk_add_f32 v[60:61], v[60:61], v[62:63]
        v_permlane32_swap_b32 v26, v27
        v_add_f32_dpp v60, v60, v60 row_ror:4 row_mask:0xf bank_mask:0xf
        v_add_f32_dpp v61, v61, v61 row_ror:4 row_mask:0xf bank_mask:0xf
        v_add_f32 v26, v26, v27
        v_rcp_f32 v26, v26
        v_add_f32_dpp v60, v60, v60 row_ror:8 row_mask:0xf bank_mask:0xf
        v_add_f32_dpp v61, v61, v61 row_ror:8 row_mask:0xf bank_mask:0xf
        v_pk_mul_f32 v[60:61], v[60:61], v[26:27] op_sel_hi:[1,0]
        v_cvt_pk_bf16_f32 v60, v60, v61
        ds_write_b32 v20, v60
        s_waitcnt lgkmcnt(0)
        s_barrier
        ds_read_b128 v[60:63], v21
        ds_read_b128 v[64:67], v21 offset:16
        ds_read_b128 v[68:71], v21 offset:32
        ds_read_b128 v[72:75], v21 offset:48
        """)
        self.stamp_l(3, 6)
        self.r8_gemv(16, 60, 128, 17, 27)
        self.stamp_l(4, 7)
        a("s_add_u32 s23, s23, 1\ns_cmp_lt_i32 s23, 2\ns_cbranch_scc1 L_Wl\ns_branch L_exit")
        a("L_Wh:")
        self.epoch_load()
        a("v_lshlrev_b32 v10, 4, v0")
        self.reset2k(52)
        a(f"s_add_u32 s53, s52, {8*CH}")
        self.reset2k(53)
        self.flag_store(0)
        a(f"s_lshr_b32 s27, s21, 2\ns_lshl_b32 s27, s27, 4\ns_add_u32 s27, s27, {ID_A}")
        self.flag_poll("w", 27, 16)
        a("s_barrier\ns_branch L_exit")

    def role_a(self):
        a = self.a
        a(f"L_A:\ns_sub_u32 s21, s2, {ID_A}\ns_lshr_b32 s52, s21, 4\ns_and_b32 s53, s21, 15")
        a("s_cmp_gt_u32 s22, 4\ns_cbranch_scc1 L_exit\ns_cmp_eq_u32 s22, 4\ns_cbranch_scc1 L_Ah")
        a(f"s_lshl_b32 s27, s52, 22\ns_lshl_b32 s26, s53, 16\ns_add_u32 s27, s27, s26\ns_add_u32 s27, s27, {6144*512}")
        self.srd(8, 66, 65536, off_s=27)
        self.srd(12, 68, 65536, off_s=27)
        a("""
        s_lshl_b32 s26, s22, 14
        v_lshlrev_b32 v8, 9, v1
        v_lshl_add_u32 v8, v2, 4, v8
        v_add_u32 v16, s26, v8
        v_lshrrev_b32 v8, 1, v2
        v_and_b32 v9, 1, v2
        v_lshl_add_u32 v8, v8, 2, v9
        v_lshlrev_b32 v8, 9, v8
        v_lshl_add_u32 v8, v1, 4, v8
        v_add_u32 v17, s26, v8
        s_mov_b32 s32, 0
        s_mov_b32 s33, 4096
        s_mov_b32 s34, 8192
        s_mov_b32 s35, 12288
        """)
        KR, VR = 128, 192
        for T in range(2):
            for ks in range(8):
                r = KR + 32*T + 4*ks
                a(f"buffer_load_dwordx4 v[{r}:{r+3}], v16, s[8:11], s{32+2*T} offen offset:{64*ks} nt")
        for T in range(2):
            for aa in range(2):
                for cb in range(2):
                    for hf in range(2):
                        r = VR + ((2*T + aa)*2 + cb)*8 + 4*hf
                        if self.o.get("pace", 1): a("s_waitcnt vmcnt(15)")
                        a(f"buffer_load_dwordx4 v[{r}:{r+3}], v17, s[12:15], s{32+2*T+hf} offen offset:{1024*aa + 256*cb} nt")
        self.masks()
        a(f"""
        v_lshrrev_b32 v8, 3, v1
        v_lshlrev_b32 v8, 9, v8
        v_lshl_add_u32 v18, v2, 4, v8
        v_lshrrev_b32 v8, 1, v2
        v_lshlrev_b32 v8, 10, v8
        v_lshl_add_u32 v8, v1, 5, v8
        v_and_b32 v9, 1, v2
        v_lshl_add_u32 v8, v9, 4, v8
        s_lshl_b32 s26, s22, 11
        s_add_u32 s26, s26, 1024
        v_add_u32 v19, s26, v8
        v_lshrrev_b32 v8, 3, v1
        s_lshl_b32 s26, s22, 3
        s_add_u32 s26, s26, 9216
        v_lshl_add_u32 v20, v8, 5, s26
        v_and_b32 v8, 31, v0
        s_lshl_b32 s26, s22, 9
        s_add_u32 s26, s26, 1024
        v_lshl_add_u32 v21, v8, 4, s26
        s_lshr_b32 s26, s22, 1
        s_lshl_b32 s26, s26, 5
        s_add_u32 s26, s26, 9216
        v_mov_b32 v22, s26
        s_lshl_b32 s26, s52, 2
        s_add_u32 s26, s26, s22
        s_lshl_b32 s27, s26, 14
        s_lshl_b32 s30, s53, 9
        s_add_u32 s27, s27, s30
        s_add_u32 s27, s27, {C_H2O*CH}
        v_lshrrev_b32 v9, 5, v0
        v_lshlrev_b32 v9, 13, v9
        v_lshl_add_u32 v8, v8, 4, v9
        v_add_u32 v23, s27, v8
        s_lshl_b32 s27, s52, 14
        s_lshl_b32 s30, s22, 11
        s_add_u32 s27, s27, s30
        s_lshl_b32 s30, s53, 7
        s_add_u32 s27, s27, s30
        s_add_u32 s27, s27, {C_H2M*CH}
        v_add_u32 v24, s27, v9
        s_mov_b32 s36, {hex(f2u(LOG2E/16))}
        s_mov_b32 s23, 0
        s_waitcnt vmcnt(16)
        """)
        self.stamp(1)
        a("L_Al:\ns_barrier")
        self.stamp_l(2, 6)
        QR = 60
        for ks in range(8):
            a(f"ds_read_b128 v[{QR+4*ks}:{QR+4*ks+3}], v18 offset:{64*ks}")
        for ks in range(8):
            a(f"s_waitcnt lgkmcnt({7-ks})")
            for T in range(2):
                c = "0" if ks == 0 else f"v[{44+4*T}:{47+4*T}]"
                a(f"v_mfma_f32_16x16x32_bf16 v[{44+4*T}:{47+4*T}], v[{KR+32*T+4*ks}:{KR+32*T+4*ks+3}], v[{QR+4*ks}:{QR+4*ks+3}], {c}")
        for i in range(8): a(f"v_mov_b32 v{92+i}, 0")
        for k in range(4): a(f"v_cvt_pk_bf16_f32 v{52+k}, v{44+2*k}, v{45+2*k}")
        for k in range(4): a(f"v_lshlrev_b32 v{44+2*k}, 16, v{52+k}\nv_and_b32 v{45+2*k}, 0xffff0000, v{52+k}")
        a("""
        v_max3_f32 v52, v44, v45, v46
        v_max3_f32 v53, v47, v48, v49
        v_max3_f32 v52, v50, v51, v52
        v_max_f32 v52, v52, v53
        v_mov_b32 v53, v52
        v_permlane32_swap_b32 v52, v53
        v_max_f32 v52, v52, v53
        v_mov_b32 v53, v52
        v_permlane16_swap_b32 v52, v53
        v_max_f32 v52, v52, v53
        v_mul_f32 v56, s36, v52
        """)
        for k in range(8): a(f"v_fma_f32 v{44+k}, v{44+k}, s36, -v56")
        for k in range(8): a(f"v_exp_f32 v{44+k}, v{44+k}")
        for k in range(4): a(f"v_cvt_pk_bf16_f32 v{52+k}, v{44+2*k}, v{45+2*k}")
        self.abuild(34, 52)
        a("s_waitcnt vmcnt(0)")
        self.stamp_l(3, 7)
        fill = ["v_pk_add_f32 v[44:45], v[44:45], v[46:47]\nv_pk_add_f32 v[48:49], v[48:49], v[50:51]",
                "v_pk_add_f32 v[44:45], v[44:45], v[48:49]\nv_add_f32 v57, v44, v45\nv_mov_b32 v58, v57",
                "v_permlane32_swap_b32 v57, v58\nv_add_f32 v57, v57, v58\nv_mov_b32 v58, v57",
                "v_permlane16_swap_b32 v57, v58\nv_add_f32 v57, v57, v58"]
        for n in range(4):
            A = 34 + 4*(n & 1)
            if n < 3: self.abuild(34 + 4*((n+1) & 1), 52 + n + 1)
            for cb in range(2):
                r = VR + (n*2 + cb)*8
                a(f"v_smfmac_f32_16x16x64_bf16 v[{92+4*cb}:{95+4*cb}], v[{A}:{A+3}], v[{r}:{r+7}], v7")
            a(fill[n])
        a("""
        s_mov_b64 exec, 0x101
        ds_write_b64 v20, v[56:57]
        s_mov_b64 exec, -1
        ds_write_b128 v19, v[92:95]
        ds_write_b128 v19, v[96:99] offset:512
        s_waitcnt lgkmcnt(0)
        s_barrier
        ds_read_b128 v[44:47], v22
        ds_read_b128 v[48:51], v22 offset:16
        ds_read_b128 v[60:63], v21
        ds_read_b128 v[64:67], v21 offset:2048
        ds_read_b128 v[68:71], v21 offset:4096
        ds_read_b128 v[72:75], v21 offset:6144
        s_waitcnt lgkmcnt(4)
        v_max3_f32 v56, v44, v46, v48
        v_max_f32 v56, v56, v50
        v_sub_f32 v52, v44, v56
        v_sub_f32 v53, v46, v56
        v_sub_f32 v54, v48, v56
        v_sub_f32 v55, v50, v56
        v_exp_f32 v52, v52
        v_exp_f32 v53, v53
        v_exp_f32 v54, v54
        v_exp_f32 v55, v55
        s_waitcnt lgkmcnt(3)
        v_pk_mul_f32 v[60:61], v[60:61], v[52:53] op_sel_hi:[1,0]
        v_pk_mul_f32 v[62:63], v[62:63], v[52:53] op_sel_hi:[1,0]
        s_waitcnt lgkmcnt(2)
        v_pk_fma_f32 v[60:61], v[64:65], v[52:53], v[60:61] op_sel:[0,1,0] op_sel_hi:[1,1,1]
        v_pk_fma_f32 v[62:63], v[66:67], v[52:53], v[62:63] op_sel:[0,1,0] op_sel_hi:[1,1,1]
        s_waitcnt lgkmcnt(1)
        v_pk_fma_f32 v[60:61], v[68:69], v[54:55], v[60:61] op_sel_hi:[1,0,1]
        v_pk_fma_f32 v[62:63], v[70:71], v[54:55], v[62:63] op_sel_hi:[1,0,1]
        s_waitcnt lgkmcnt(0)
        v_pk_fma_f32 v[60:61], v[72:73], v[54:55], v[60:61] op_sel:[0,1,0] op_sel_hi:[1,1,1]
        v_pk_fma_f32 v[62:63], v[74:75], v[54:55], v[62:63] op_sel:[0,1,0] op_sel_hi:[1,1,1]
        """)
        a(f"s_mul_i32 s26, s23, {32*CH}\ns_lshl_b32 s27, s23, 17")
        a("""
        v_mul_f32 v57, v52, v45
        v_min_u32 v60, -2, v60
        buffer_store_dwordx4 v[60:63], v23, s[4:7], s26 offen sc1
        v_fmac_f32 v57, v53, v47
        v_fmac_f32 v57, v54, v49
        v_fmac_f32 v57, v55, v51
        v_min_u32 v56, -2, v56
        s_mov_b32 exec_lo, 1
        s_mov_b32 exec_hi, 1
        buffer_store_dwordx2 v[56:57], v24, s[4:7], s27 offen sc1
        s_mov_b64 exec, -1
        """)
        self.stamp_l(4, 8)
        a("s_add_u32 s23, s23, 1\ns_cmp_lt_i32 s23, 2\ns_cbranch_scc1 L_Al\ns_branch L_exit")
        a("L_Ah:")
        self.epoch_load()
        a(f"""
        v_and_b32 v8, 31, v0
        v_lshrrev_b32 v11, 5, v0
        v_lshlrev_b32 v11, 13, v11
        v_lshl_add_u32 v10, v8, 4, v11
        s_lshl_b32 s27, s52, 16
        s_lshl_b32 s30, s53, 9
        s_add_u32 s27, s27, s30
        s_add_u32 s27, s27, {C_H2O*CH}
        """)
        for L in range(2):
            for w in range(4):
                a(f"s_add_u32 s26, s27, {(L*32 + w)*CH}\nbuffer_store_dwordx4 v[12:15], v10, s[4:7], s26 offen sc1")
        a(f"""
        v_and_b32 v8, 3, v0
        v_lshlrev_b32 v8, 11, v8
        v_bfe_u32 v11, v0, 2, 1
        v_lshl_add_u32 v8, v11, 13, v8
        v_bfe_u32 v11, v0, 3, 1
        v_lshl_add_u32 v8, v11, 17, v8
        s_lshl_b32 s27, s52, 14
        s_lshl_b32 s30, s53, 7
        s_add_u32 s27, s27, s30
        s_add_u32 s27, s27, {C_H2M*CH}
        s_mov_b64 exec, 0xffff
        buffer_store_dwordx4 v[12:15], v8, s[4:7], s27 offen sc1
        s_mov_b64 exec, -1
        """)
        self.flag_store(0)
        a(f"s_lshl_b32 s27, s52, 3\ns_add_u32 s27, s27, {ID_Q}")
        self.flag_poll("a", 27, 8)
        a(f"""
        v_lshlrev_b32 v16, 4, v0
        s_lshl_b32 s26, s52, 10
        s_add_u32 s26, s26, s20
        s_add_u32 s26, s26, {C_H1*CH}
        v_add_u32 v17, s26, v16
        s_mov_b32 s23, 0
        L_Ahl:
        s_lshl_b32 s26, s23, 14
        s_mov_b32 s25, 0
        L_Ahp:
        buffer_load_dwordx4 v[20:23], v17, s[4:7], s26 offen sc1
        """)
        self.timeout()
        a("""
        s_waitcnt vmcnt(0)
        v_cmp_eq_u32 vcc, -1, v20
        s_cbranch_vccnz L_Ahp
        ds_write_b128 v16, v[20:23]
        s_waitcnt lgkmcnt(0)
        s_barrier
        s_barrier
        s_add_u32 s23, s23, 1
        s_cmp_lt_i32 s23, 2
        s_cbranch_scc1 L_Ahl
        s_branch L_exit
        """)

    def build(self):
        a = self.a
        a(f"s_cmp_ge_u32 s2, {NWG}\ns_cbranch_scc1 L_end")
        a("s_load_dwordx16 s[64:79], s[0:1], 0\ns_load_dwordx8 s[80:87], s[0:1], 64")
        if self.diag:
            for s in self.STS: a(f"s_mov_b32 s{s}, 0")
            a("s_mov_b32 s23, -1")
        a("""
        v_lshrrev_b32 v1, 6, v0
        v_and_b32 v0, 63, v0
        s_getreg_b32 s20, hwreg(HW_REG_XCC_ID, 0, 4)
        v_readfirstlane_b32 s22, v1
        s_bfe_u32 s20, s20, 0x10002
        s_lshl_b32 s20, s20, 13
        v_and_b32 v1, 15, v0
        v_lshrrev_b32 v2, 4, v0
        s_cmp_lt_u32 s22, 4
        s_cbranch_scc1 L_np
        s_setprio 3
        L_np:
        s_waitcnt lgkmcnt(0)
        """)
        self.stamp(0)
        self.srd(4, 86, (4 << 20) if self.diag else (2 << 20))
        a(f"s_cmp_lt_u32 s2, {ID_A}\ns_cbranch_scc1 L_Q\ns_cmp_lt_u32 s2, {ID_W}\ns_cbranch_scc1 L_A\ns_cmp_lt_u32 s2, {ID_F}\ns_cbranch_scc1 L_W\ns_branch L_F")
        self.role_q(); self.role_a(); self.role_w(); self.role_f()
        a("L_exit:")
        if self.diag:
            a("s_mov_b64 exec, -1\ns_waitcnt vmcnt(0) lgkmcnt(0)")
            self.stamp(19)
            a("s_lshl_b32 s26, s2, 3\ns_add_u32 s26, s26, s22\ns_lshl_b32 s26, s26, 7\ns_add_u32 s26, s26, 0x200000\nv_mov_b32 v8, 0\ns_mov_b64 exec, 1")
            for k in range(0, 20, 4):
                for i in range(4): a(f"v_mov_b32 v{12+i}, s{self.STS[k+i]}")
                a(f"buffer_store_dwordx4 v[12:15], v8, s[4:7], s26 offen offset:{4*k}")
            a("s_waitcnt vmcnt(0)")
        a("L_end:")
        hdr = open("interleave_layers__sliding_block_cached__glu_gated_swiglu__decode.s.ref").read().split("\n")
        top = [l for l in hdr if l.startswith(";") and "@launch" not in l]
        out = "\n".join(top) + f"\n; @launch grid=({NWG},1,1) block=(512,1,1) lds=16384\n"
        out += f'.amdgcn_target "amdgcn-amd-amdhsa--gfx950"\n.text\n.globl {NAME}\n.p2align 8\n.type {NAME},@function\n{NAME}:\n'
        out += a.text()
        out += f"""s_endpgm
.section .rodata,"a"
.p2align 6
.amdhsa_kernel {NAME}
  .amdhsa_next_free_vgpr 256
  .amdhsa_next_free_sgpr 102
  .amdhsa_accum_offset 256
  .amdhsa_group_segment_fixed_size 0
  .amdhsa_kernarg_size 96
  .amdhsa_user_sgpr_count 2
  .amdhsa_user_sgpr_kernarg_segment_ptr 1
  .amdhsa_system_sgpr_workgroup_id_x 1
.end_amdhsa_kernel
"""
        return out

if __name__ == "__main__":
    opts = {}
    for x in sys.argv[3:]:
        k, v = x.split("=")
        opts[k] = int(v) if v.lstrip("-").isdigit() else v
    if sys.argv[1] != "-": open(sys.argv[1], "w").write(G(False, opts).build())
    if len(sys.argv) > 2 and sys.argv[2] != "-": open(sys.argv[2], "w").write(G(True, opts).build())
```

```python
import sys
from asmlib import Asm
NAME = "interleave_layers__sliding_block_cached__glu_gated_swiglu__decode_kernel"
CH = 16384
C_FLAG, C_H1, C_H2O, C_H2M, C_H3, C_XR2, C_H4, C_XR1, C_XR3 = 1, 3, 8, 72, 88, 104, 105, 121, 122
NQ, NA, NW, NF = 64, 128, 32, 28
ID_Q, ID_A, ID_W, ID_F = 0, 64, 192, 224
NWG = 252
TMO = 20000
LOG2E = 1.4426950408889634
import struct
def f2u(x): return struct.unpack("<I", struct.pack("<f", x))[0]

class G:
    def __init__(self, diag=False, opts=None):
        self.a = Asm(); self.diag = diag; self.o = opts or {}
        self.nst = 0
    STS = list(range(56, 64)) + list(range(88, 100))
    def stamp(self, k):
        if not self.diag: return
        if self.o.get("lite") and k not in (0, 1, 8, 9, 19): return
        self.a(f"s_memrealtime s[54:55]\ns_waitcnt lgkmcnt(0)\ns_mov_b32 s{self.STS[k]}, s54")
    def stamp_l(self, k0, k1):
        if not self.diag: return
        if self.o.get("lite"): return
        self.a(f"s_memrealtime s[54:55]\ns_waitcnt lgkmcnt(0)\ns_cmp_eq_u32 s23, 1\ns_cselect_b32 s{self.STS[k1]}, s54, s{self.STS[k1]}\ns_cmp_eq_u32 s23, 0\ns_cselect_b32 s{self.STS[k0]}, s54, s{self.STS[k0]}")
    def srd(self, d, p, nbytes, off_s=None):
        a = self.a
        if off_s is None:
            a(f"s_mov_b32 s{d}, s{p}\ns_mov_b32 s{d+1}, s{p+1}")
        else:
            a(f"s_add_u32 s{d}, s{p}, s{off_s}\ns_addc_u32 s{d+1}, s{p+1}, 0")
        a(f"s_mov_b32 s{d+2}, {nbytes}\ns_mov_b32 s{d+3}, 0x20000")
    def timeout(self):
        self.a(f"s_add_u32 s25, s25, 1\ns_cmp_gt_u32 s25, {TMO}\ns_cbranch_scc1 L_exit")
    def masks(self):
        a = self.a
        a("""
        v_and_b32 v8, 4, v1
        v_cmp_eq_u32 vcc, 0, v8
        v_mov_b32 v9, 0xffff
        v_cndmask_b32 v3, 0, v9, vcc
        v_xor_b32 v4, v3, v9
        v_lshlrev_b32 v5, 16, v3
        v_lshlrev_b32 v6, 16, v4
        v_and_b32 v8, 3, v1
        v_mul_u32_u24 v7, 17425, v8
        v_xor_b32 v8, 1, v8
        v_mul_u32_u24 v8, 4420, v8
        v_add_u32 v7, v7, v8
        """)
    def abuild(self, dst, src):
        for d in range(4):
            self.a(f"v_and_b32 v{dst+d}, v{src}, v{3+d}")
    def epoch_load(self):
        self.a("v_mov_b32 v8, 0\nbuffer_load_dword v9, v8, s[4:7], 0 offen sc1\nv_mov_b32 v12, -1\nv_mov_b32 v13, -1\nv_mov_b32 v14, -1\nv_mov_b32 v15, -1")
    def reset2k(self, sbase):
        a = self.a
        a(f"buffer_store_dwordx4 v[12:15], v10, s[4:7], s{sbase} offen sc1")
        a(f"buffer_store_dwordx4 v[12:15], v10, s[4:7], s{sbase} offen offset:1024 sc1")
        a(f"s_add_u32 s31, s{sbase}, 8192")
        a(f"buffer_store_dwordx4 v[12:15], v10, s[4:7], s31 offen sc1")
        a(f"buffer_store_dwordx4 v[12:15], v10, s[4:7], s31 offen offset:1024 sc1")
    def flag_store(self, nleft):
        a = self.a
        a(f"s_waitcnt vmcnt({nleft})")
        a("v_readfirstlane_b32 s24, v9")
        a("s_mul_i32 s24, s24, 0x9E3779B1\ns_add_u32 s24, s24, 0x7F4A7C15")
        a(f"""
        s_lshr_b32 s26, s2, 7
        s_lshl_b32 s26, s26, 14
        s_and_b32 s27, s2, 127
        s_lshl_b32 s27, s27, 6
        s_add_u32 s26, s26, s27
        s_add_u32 s26, s26, {C_FLAG*CH}
        v_lshlrev_b32 v8, 13, v0
        v_mov_b32 v11, s24
        s_mov_b64 exec, 3
        buffer_store_dword v11, v8, s[4:7], s26 offen sc1
        s_mov_b64 exec, -1
        """)
    def flag_poll(self, tagn, first_s, n, extra_id=None):
        a = self.a
        a(f"v_add_u32 v8, s{first_s}, v0")
        nl = n
        if extra_id is not None:
            a(f"v_cmp_eq_u32 vcc, {n}, v0\nv_mov_b32 v11, {extra_id}\nv_cndmask_b32 v8, v8, v11, vcc")
            nl = n + 1
        a(f"""
        v_lshrrev_b32 v11, 7, v8
        v_lshlrev_b32 v11, 14, v11
        v_and_b32 v8, 127, v8
        v_lshl_add_u32 v8, v8, 6, v11
        v_add_u32 v8, s20, v8
        s_mov_b32 s26, {C_FLAG*CH}
        s_mov_b32 s25, 0
        s_mov_b32 exec_lo, {hex(((1 << nl) - 1) & 0xffffffff)}
        s_mov_b32 exec_hi, {hex(((1 << nl) - 1) >> 32)}
        L_fp_{tagn}:
        buffer_load_dword v11, v8, s[4:7], s26 offen sc1
        """)
        self.timeout()
        a(f"""
        s_waitcnt vmcnt(0)
        v_cmp_ne_u32 vcc, s24, v11
        s_cbranch_vccnz L_fp_{tagn}
        s_mov_b64 exec, -1
        """)
    def front_setup(self, c_src, c_xr):
        a = self.a
        a(f"""
        s_mov_b32 s48, 0x0fffffff
        s_mov_b32 s49, 0x0fffffff
        s_mov_b32 s50, 0x00ff00ff
        s_mov_b32 s51, 0xff00ff00
        v_lshrrev_b32 v8, 5, v0
        v_and_b32 v9, 31, v0
        s_mul_i32 s26, s22, 28
        v_add_u32 v10, s26, v9
        v_lshlrev_b32 v10, 4, v10
        v_lshl_add_u32 v16, v8, 16, v10
        v_add_u32 v16, s20, v16
        v_lshl_add_u32 v17, v8, 3, v10
        s_add_u32 s26, s20, {c_xr*CH}
        v_add_u32 v17, s26, v17
        v_lshl_add_u32 v11, v9, 1, v8
        v_mul_u32_u24 v12, 9363, v11
        v_lshrrev_b32 v12, 16, v12
        v_add_u32 v11, v11, v12
        v_lshlrev_b32 v11, 2, v11
        s_lshl_b32 s26, s22, 8
        v_add_u32 v18, s26, v11
        v_lshrrev_b32 v11, 3, v0
        v_lshlrev_b32 v11, 5, v11
        v_add_u32 v19, s26, v11
        v_lshrrev_b32 v11, 3, v1
        v_lshlrev_b32 v11, 8, v11
        v_and_b32 v12, 7, v1
        v_lshl_add_u32 v11, v12, 5, v11
        v_and_b32 v12, 1, v2
        v_lshl_add_u32 v11, v12, 4, v11
        s_lshl_b32 s26, s22, 9
        s_add_u32 s26, s26, 1024
        v_add_u32 v20, s26, v11
        s_lshl_b32 s26, s22, 3
        s_add_u32 s26, s26, {1024+4096}
        v_lshl_add_u32 v21, v8, 2, s26
        """)
        for i in range(16):
            a(f"s_mov_b32 s{32+i}, {c_src*CH + (i>>2)*CH + (i&3)*2048}")
        a(f"""
        v_lshrrev_b32 v8, 2, v0
        v_lshlrev_b32 v8, 14, v8
        v_and_b32 v9, 3, v0
        v_lshl_add_u32 v8, v9, 11, v8
        s_mul_i32 s26, s22, 448
        s_add_u32 s26, s26, s20
        s_add_u32 s26, s26, {c_src*CH + 432}
        v_add_u32 v13, s26, v8
        """)
    def r16_loads(self, srd, reg, rowstride, vaddr):
        for s in range(7):
            for hf in range(2):
                self.a(f"s_mov_b32 s26, {(56*hf + 2*s)*rowstride}")
                r = reg + 8*s + 4*hf
                self.a(f"buffer_load_dwordx4 v[{r}:{r+3}], v{vaddr}, s[{srd}:{srd+3}], s26 offen nt")
    def r16_addr(self, vdst, rowstride):
        self.a(f"""
        v_lshrrev_b32 v8, 1, v2
        v_lshrrev_b32 v9, 3, v1
        v_lshl_add_u32 v8, v8, 1, v9
        v_mul_u32_u24 v8, 14, v8
        v_and_b32 v9, 1, v2
        v_add_u32 v8, v8, v9
        s_mul_i32 s26, s22, 112
        v_add_u32 v8, s26, v8
        v_mul_u32_u24 v8, {rowstride}, v8
        v_and_b32 v9, 7, v1
        v_lshl_add_u32 v{vdst}, v9, 4, v8
        """)
    def x_load(self):
        self.a("""
        v_lshrrev_b32 v8, 5, v0
        v_and_b32 v9, 31, v0
        v_lshl_add_u32 v8, v9, 1, v8
        s_mul_i32 s26, s22, 56
        v_add_u32 v8, s26, v8
        v_lshlrev_b32 v8, 2, v8
        buffer_load_dword v25, v8, s[16:19], 0 offen
        """)
    def gather(self, tagn, nld, xr_cond):
        a = self.a
        mode = self.o.get("pre", "all")
        a("s_mov_b32 s25, 0")
        if mode != "none":
            a(f"s_mov_b32 exec_lo, {hex(0xffffffff if nld == 16 else 0x3fff3fff)}\ns_mov_b32 exec_hi, 0")
            a(f"L_gl_{tagn}:\nbuffer_load_dword v54, v13, s[4:7], 0 offen sc1")
            self.timeout()
            a("s_waitcnt vmcnt(0)")
            if mode == "all": a(f"v_cmp_eq_u32 vcc, -1, v54\ns_cbranch_vccnz L_gl_{tagn}")
            else: a(f"v_cmp_ne_u32 vcc, -1, v54\ns_cbranch_vccz L_gl_{tagn}")
        a("s_mov_b64 exec, s[48:49]")
        a(f"L_gp_{tagn}:")
        if xr_cond:
            a(f"s_cmp_eq_u32 s23, 0\ns_cbranch_scc1 L_gx_{tagn}")
        a("buffer_load_dwordx2 v[22:23], v17, s[4:7], 0 offen sc1")
        if xr_cond: a(f"L_gx_{tagn}:")
        for i in range(nld):
            a(f"buffer_load_dwordx4 v[{60+4*i}:{63+4*i}], v16, s[4:7], s{32+i} offen sc1")
        self.timeout()
        for i in range(0, nld, 2):
            a(f"s_waitcnt vmcnt({nld-2-i})")
            r = 60 + 4*i
            if i == 0:
                a(f"v_max3_u32 v54, v22, v{r}, v{r+4}")
                a(f"v_pk_add_f32 v[50:51], v[{r}:{r+1}], v[{r+4}:{r+5}]\nv_pk_add_f32 v[52:53], v[{r+2}:{r+3}], v[{r+6}:{r+7}]")
            else:
                a(f"v_max3_u32 v54, v54, v{r}, v{r+4}")
                a(f"v_pk_add_f32 v[{r}:{r+1}], v[{r}:{r+1}], v[{r+4}:{r+5}]\nv_pk_add_f32 v[{r+2}:{r+3}], v[{r+2}:{r+3}], v[{r+6}:{r+7}]")
                a(f"v_pk_add_f32 v[50:51], v[50:51], v[{r}:{r+1}]\nv_pk_add_f32 v[52:53], v[52:53], v[{r+2}:{r+3}]")
        a(f"v_cmp_eq_u32 vcc, -1, v54\ns_cbranch_vccnz L_gp_{tagn}")
        a("""
        v_permlane32_swap_b32 v50, v52
        v_permlane32_swap_b32 v51, v53
        v_pk_add_f32 v[50:51], v[50:51], v[52:53]
        v_cvt_pk_bf16_f32 v55, v50, v51
        v_lshlrev_b32 v50, 16, v55
        v_and_b32 v51, 0xffff0000, v55
        v_pk_add_f32 v[50:51], v[50:51], v[22:23]
        v_cvt_pk_bf16_f32 v24, v50, v51
        """)
    def front_gemv(self, two):
        a = self.a
        a("""
        ds_write_b32 v18, v24
        v_mov_b32 v55, 0
        v_lshlrev_b32 v50, 16, v24
        v_and_b32 v51, 0xffff0000, v24
        s_mov_b64 exec, -1
        v_mov_b32 v55, 0
        v_mov_b32 v56, 0
        s_waitcnt lgkmcnt(0)
        ds_read_b128 v[26:29], v19
        ds_read_b128 v[30:33], v19 offset:16
        s_mov_b64 exec, s[48:49]
        v_add_f32 v55, v50, v51
        v_mul_f32 v56, v50, v50
        v_fmac_f32 v56, v51, v51
        s_mov_b64 exec, -1
        v_mov_b32 v42, 0
        v_mov_b32 v43, 0
        v_mov_b32 v44, 0
        v_mov_b32 v45, 0
        """)
        if two: a("v_mov_b32 v46, 0\nv_mov_b32 v47, 0\nv_mov_b32 v48, 0\nv_mov_b32 v49, 0")
        a("v_permlane32_swap_b32 v55, v56\nv_add_f32 v55, v55, v56")
        a("s_waitcnt lgkmcnt(1)")
        self.abuild(34, 26)
        fill = ["v_mov_b32 v56, v55", None, "v_permlane16_swap_b32 v55, v56\nv_add_f32 v55, v55, v56",
                "v_add_f32_dpp v55, v55, v55 row_ror:8 row_mask:0xf bank_mask:0xf", "v_add_f32_dpp v55, v55, v55 row_ror:4 row_mask:0xf bank_mask:0xf",
                "v_add_f32_dpp v55, v55, v55 row_ror:2 row_mask:0xf bank_mask:0xf", "v_add_f32_dpp v55, v55, v55 row_ror:1 row_mask:0xf bank_mask:0xf"]
        for s in range(7):
            A = 34 + 4*(s & 1)
            if s == 3: a("s_waitcnt lgkmcnt(0)")
            if s < 6: self.abuild(34 + 4*((s+1) & 1), 26 + s + 1)
            a(f"v_smfmac_f32_16x16x64_bf16 v[42:45], v[{A}:{A+3}], v[{128+8*s}:{135+8*s}], v7")
            if two: a(f"v_smfmac_f32_16x16x64_bf16 v[46:49], v[{A}:{A+3}], v[{184+8*s}:{191+8*s}], v7")
            if fill[s]: a(fill[s])
        a("s_and_b32 s26, s23, 1\ns_mul_i32 s26, s26, 4352\nv_add_u32 v8, s26, v20\nv_add_u32 v9, s26, v21")
        a("s_mov_b32 exec_lo, 1\ns_mov_b32 exec_hi, 1\nds_write_b32 v9, v55\ns_mov_b64 exec, s[50:51]")
        a("ds_write_b128 v8, v[42:45]")
        if two: a("ds_write_b128 v8, v[46:49] offset:2048")
        a("s_mov_b64 exec, -1\ns_waitcnt lgkmcnt(0)\ns_barrier")
    def back_reduce(self, two, base, ro):
        a = self.a
        a(f"ds_read_b128 v[{ro+16}:{ro+19}], v{base+1}\nds_read_b128 v[{ro+20}:{ro+23}], v{base+1} offset:16")
        for m in range(2 if two else 1):
            for k in range(4):
                a(f"ds_read2st64_b32 v[{ro+8*m+2*k}:{ro+8*m+2*k+1}], v{base} offset0:{8*m+2*k} offset1:{8*m+2*k+1}")
    def ln_scalars(self, ro, nrest):
        a = self.a
        t = ro + 16
        a(f"""
        s_waitcnt lgkmcnt({nrest})
        v_pk_add_f32 v[{t}:{t+1}], v[{t}:{t+1}], v[{t+2}:{t+3}]
        v_pk_add_f32 v[{t+4}:{t+5}], v[{t+4}:{t+5}], v[{t+6}:{t+7}]
        v_pk_add_f32 v[{t}:{t+1}], v[{t}:{t+1}], v[{t+4}:{t+5}]
        v_mul_f32 v{t}, {hex(f2u(1.0/448))}, v{t}
        v_mul_f32 v{t+1}, {hex(f2u(1.0/448))}, v{t+1}
        v_fma_f32 v{t+1}, -v{t}, v{t}, v{t+1}
        v_max_f32 v{t+1}, 0, v{t+1}
        v_cvt_pk_bf16_f32 v{t+2}, v{t}, v{t+1}
        v_lshlrev_b32 v{t}, 16, v{t+2}
        v_and_b32 v{t+1}, 0xffff0000, v{t+2}
        v_add_f32 v{t+1}, {hex(f2u(1e-5))}, v{t+1}
        v_cvt_pk_bf16_f32 v{t+1}, v{t+1}, v{t+1}
        v_and_b32 v{t+1}, 0xffff0000, v{t+1}
        v_sqrt_f32 v{t+1}, v{t+1}
        v_cvt_pk_bf16_f32 v{t+1}, v{t+1}, v{t+1}
        v_and_b32 v{t+1}, 0xffff0000, v{t+1}
        v_rcp_f32 v{t+1}, v{t+1}
        """)
    def sum8(self, r):
        self.a(f"""
        v_pk_add_f32 v[{r}:{r+1}], v[{r}:{r+1}], v[{r+2}:{r+3}]
        v_pk_add_f32 v[{r+4}:{r+5}], v[{r+4}:{r+5}], v[{r+6}:{r+7}]
        v_pk_add_f32 v[{r}:{r+1}], v[{r}:{r+1}], v[{r+4}:{r+5}]
        v_add_f32 v{r}, v{r}, v{r+1}
        """)
    def r8_addr(self, vdst, NS, wv):
        self.a(f"""
        v_lshrrev_b32 v8, 1, v2
        v_mul_u32_u24 v8, {2*NS}, v8
        v_and_b32 v9, 1, v2
        v_add_u32 v8, v8, v9
        v_mul_u32_u24 v8, 896, v8
        v_lshl_add_u32 v8, v1, 4, v8
        s_lshl_b32 s26, s{wv}, 8
        v_add_u32 v{vdst}, s26, v8
        s_cmp_eq_u32 s{wv}, 3
        s_cselect_b32 s28, 0x00ff00ff, -1
        s_mov_b32 s29, s28
        """)
    def r8_loads(self, NS, srd, vaddr, reg):
        a = self.a
        a("s_mov_b64 exec, s[28:29]")
        for s in range(NS):
            for hf in range(2):
                a(f"s_mov_b32 s26, {(4*NS*hf + 2*s)*896}")
                r = reg + 8*s + 4*hf
                a(f"buffer_load_dwordx4 v[{r}:{r+3}], v{vaddr}, s[{srd}:{srd+3}], s26 offen nt")
        a("s_mov_b64 exec, -1")
    def r8_pub_addr(self, vdst, wv, sslot):
        self.a(f"""
        v_lshlrev_b32 v8, 5, v1
        v_and_b32 v9, 1, v2
        v_lshl_add_u32 v8, v9, 4, v8
        v_lshrrev_b32 v9, 1, v2
        v_lshl_add_u32 v8, v9, 13, v8
        s_lshl_b32 s26, s{wv}, 9
        s_add_u32 s26, s26, s{sslot}
        v_add_u32 v{vdst}, s26, v8
        """)
    def r8_gemv(self, NS, X, reg, vpub, sofs):
        a = self.a
        a("v_mov_b32 v42, 0\nv_mov_b32 v43, 0\nv_mov_b32 v44, 0\nv_mov_b32 v45, 0")
        nrd = NS // 4
        a(f"s_waitcnt lgkmcnt({nrd-1})")
        self.abuild(34, X)
        for s in range(NS):
            A = 34 + 4*(s & 1)
            if s + 1 < NS:
                if (s + 1) % 4 == 0: a(f"s_waitcnt lgkmcnt({nrd - 1 - (s+1)//4})")
                self.abuild(34 + 4*((s+1) & 1), X + s + 1)
            a(f"v_smfmac_f32_16x16x64_bf16 v[42:45], v[{A}:{A+3}], v[{reg+8*s}:{reg+8*s+7}], v7")
        a("s_mov_b64 exec, s[28:29]")
        a("v_min_u32 v42, -2, v42")
        a(f"buffer_store_dwordx4 v[42:45], v{vpub}, s[4:7], s{sofs} offen sc1")
        a("s_mov_b64 exec, -1")

    def role_q(self):
        a = self.a
        a("L_Q:\ns_mov_b32 s21, s2")
        a("s_cmp_gt_u32 s22, 4\ns_cbranch_scc1 L_exit\ns_cmp_eq_u32 s22, 4\ns_cbranch_scc1 L_Qh")
        self.srd(16, 64, 896)
        a("s_lshl_b32 s27, s21, 7")
        self.srd(8, 70, 448*8192 - 0, off_s=27)
        a("s_sub_u32 s10, s10, s27")
        self.x_load()
        self.r16_addr(15, 8192)
        self.r16_loads(8, 128, 8192, 15)
        self.masks()
        self.front_setup(C_H4, C_XR1)
        a(f"v_lshlrev_b32 v58, 2, v0\nv_add_u32 v58, 1024, v58")
        a(f"s_lshl_b32 s26, s21, 7\ns_add_u32 s26, s26, {C_H1*CH}\nv_lshrrev_b32 v8, 3, v0\nv_lshl_add_u32 v14, v8, 4, s26")
        a("s_mov_b32 s23, -1\nv_mov_b32 v24, 0x3f803f80\ns_mov_b64 exec, s[48:49]\ns_waitcnt vmcnt(0)")
        self.stamp(1)
        a("s_branch L_Qg")
        a("L_Qloop:")
        a("s_cmp_eq_u32 s23, 0\ns_cbranch_scc0 L_Qgath\nv_mov_b32 v24, v25\ns_mov_b64 exec, s[48:49]\ns_branch L_Qg")
        a("L_Qgath:")
        a("v_mov_b32 v8, 12288\nds_read_b32 v9, v8\ns_waitcnt lgkmcnt(0)\nv_readfirstlane_b32 s24, v9")
        a(f"s_mov_b32 s27, {ID_F}")
        self.flag_poll("q", 27, NF)
        self.gather("q", 14, False)
        self.stamp(5)
        a("L_Qg:")
        self.front_gemv(False)
        self.stamp_l(2, 6)
        a("s_cmp_eq_u32 s23, 1\ns_cselect_b32 s26, s21, 1\ns_cmp_eq_u32 s26, 0\ns_cbranch_scc0 L_Qnx")
        a(f"s_mov_b64 exec, s[48:49]\nv_subrev_u32 v8, s20, v17\ns_mov_b32 s26, {(C_XR2-C_XR1)*CH & 0xffffffff}\nv_add_u32 v8, s26, v8\ns_mov_b32 s26, 8192")
        a("buffer_store_dwordx2 v[50:51], v8, s[4:7], 0 offen sc1\nbuffer_store_dwordx2 v[50:51], v8, s[4:7], s26 offen sc1\ns_mov_b64 exec, -1")
        a("L_Qnx:")
        a("s_cmp_eq_u32 s22, 0\ns_cbranch_scc0 L_Qnext")
        a(f"s_and_b32 s26, s23, 1\ns_mul_i32 s26, s26, 4352\nv_add_u32 v10, s26, v58\ns_add_u32 s26, s26, {1024+4096}\nv_mov_b32 v11, s26")
        self.back_reduce(False, 10, 60)
        self.ln_scalars(60, 4)
        a("s_waitcnt lgkmcnt(0)")
        self.sum8(60)
        a("s_cmp_eq_u32 s23, -1\ns_cbranch_scc0 L_Qpub\nv_mov_b32 v57, v60\ns_branch L_Qnext")
        a("L_Qpub:")
        a("""
        v_fma_f32 v60, -v76, v57, v60
        v_mul_f32 v60, v60, v77
        v_mov_b32_dpp v61, v60 quad_perm:[1,0,3,2] row_mask:0xf bank_mask:0xf
        v_cvt_pk_bf16_f32 v64, v60, v61
        v_mov_b32_dpp v65, v64 row_shl:2 row_mask:0xf bank_mask:0xf
        v_mov_b32_dpp v66, v64 row_shl:4 row_mask:0xf bank_mask:0xf
        v_mov_b32_dpp v67, v64 row_shl:6 row_mask:0xf bank_mask:0xf
        v_min_u32 v64, -2, v64
        s_lshl_b32 s26, s23, 14
        s_add_u32 s27, s26, 8192
        s_mov_b32 exec_lo, 0x01010101
        s_mov_b32 exec_hi, 0x01010101
        buffer_store_dwordx4 v[64:67], v14, s[4:7], s26 offen sc1
        buffer_store_dwordx4 v[64:67], v14, s[4:7], s27 offen sc1
        s_mov_b64 exec, -1
        """)
        self.stamp_l(3, 7)
        a("L_Qnext:\ns_add_u32 s23, s23, 1\ns_cmp_lt_i32 s23, 2\ns_cbranch_scc1 L_Qloop")
        a("s_cmp_lt_u32 s21, 7\ns_cbranch_scc0 L_exit\ns_cmp_eq_u32 s22, 0\ns_cbranch_scc0 L_exit")
        self.srd(16, 82, 896)
        a(f"""
        v_lshrrev_b32 v8, 1, v2
        v_lshlrev_b32 v8, 4, v8
        v_and_b32 v9, 1, v2
        v_mad_u32_u24 v8, v9, 7, v8
        s_lshl_b32 s26, s21, 8
        s_add_u32 s26, s26, s20
        s_add_u32 s26, s26, {(C_H4+8)*CH}
        v_lshl_add_u32 v9, v1, 4, s26
        """)
        for i in range(7):
            a(f"v_add_u32 v10, {i}, v8\nv_lshrrev_b32 v11, 2, v10\nv_lshl_add_u32 v11, v11, 14, v9\nv_and_b32 v10, 3, v10\nv_lshl_add_u32 v{90+i}, v10, 11, v11")
        a(f"""
        v_lshrrev_b32 v8, 1, v2
        v_lshlrev_b32 v8, 1, v8
        v_and_b32 v9, 1, v2
        v_add_u32 v8, v8, v9
        v_lshl_add_u32 v8, v1, 2, v8
        s_lshl_b32 s26, s21, 6
        v_add_u32 v8, s26, v8
        v_lshlrev_b32 v97, 1, v8
        s_add_u32 s26, s20, {C_XR3*CH}
        v_lshl_add_u32 v98, v8, 2, s26
        s_mov_b32 s25, 0
        L_Fp:
        buffer_load_dword v22, v98, s[4:7], 0 offen sc1
        """)
        for i in range(7):
            a(f"buffer_load_dwordx4 v[{60+4*i}:{63+4*i}], v{90+i}, s[4:7], 0 offen sc1")
        self.timeout()
        a("s_waitcnt vmcnt(5)\nv_max3_u32 v54, v22, v60, v64\nv_pk_add_f32 v[50:51], v[60:61], v[64:65]\nv_pk_add_f32 v[52:53], v[62:63], v[66:67]")
        for i in range(2, 7):
            r = 60 + 4*i
            a(f"s_waitcnt vmcnt({6-i})\nv_max_u32 v54, v54, v{r}\nv_pk_add_f32 v[50:51], v[50:51], v[{r}:{r+1}]\nv_pk_add_f32 v[52:53], v[52:53], v[{r+2}:{r+3}]")
        a("""
        v_cmp_eq_u32 vcc, -1, v54
        s_cbranch_vccnz L_Fp
        v_permlane32_swap_b32 v50, v52
        v_permlane32_swap_b32 v51, v53
        v_pk_add_f32 v[50:51], v[50:51], v[52:53]
        v_permlane16_swap_b32 v50, v51
        v_add_f32 v50, v50, v51
        v_cvt_pk_bf16_f32 v50, v50, v50
        v_and_b32 v50, 0xffff0000, v50
        v_add_f32 v50, v50, v22
        v_cvt_pk_bf16_f32 v50, v50, v50
        buffer_store_short v50, v97, s[16:19], 0 offen
        """)
        self.stamp(8)
        a("s_cmp_eq_u32 s21, 0\ns_cbranch_scc0 L_exit\nv_mov_b32 v9, s24\nv_mov_b32 v8, 0\ns_mov_b64 exec, 1\nbuffer_store_dword v9, v8, s[4:7], 0 offen sc1\ns_branch L_exit")
        a("L_Qh:")
        self.epoch_load()
        a(f"""
        v_and_b32 v8, 7, v0
        v_lshlrev_b32 v8, 4, v8
        v_lshrrev_b32 v11, 3, v0
        v_lshl_add_u32 v8, v11, 13, v8
        s_lshl_b32 s26, s21, 7
        s_add_u32 s26, s26, {C_H1*CH}
        s_mov_b32 exec_hi, 0
        buffer_store_dwordx4 v[12:15], v8, s[4:7], s26 offen sc1
        s_mov_b64 exec, -1
        v_lshlrev_b32 v10, 4, v0
        s_cmp_eq_u32 s21, 0
        s_cbranch_scc0 L_Qh1
        s_mov_b32 s30, {C_XR2*CH}
        """)
        self.reset2k(30)
        a("L_Qh1:")
        self.flag_store(0)
        a("v_mov_b32 v16, 12288\nds_write_b32 v16, v11\ns_waitcnt lgkmcnt(0)\ns_branch L_exit")

    def role_f(self):
        a = self.a
        a(f"L_F:\ns_sub_u32 s21, s2, {ID_F}")
        a("s_cmp_gt_u32 s22, 3\ns_cbranch_scc1 L_Fb")
        self.srd(16, 64, 896)
        a("s_lshl_b32 s27, s21, 7")
        self.srd(8, 76, 448*3584, off_s=27)
        a("s_sub_u32 s10, s10, s27")
        self.srd(12, 78, 448*3584, off_s=27)
        a("s_sub_u32 s14, s14, s27")
        self.x_load()
        self.r16_addr(15, 3584)
        self.r16_loads(8, 128, 3584, 15)
        self.r16_loads(12, 184, 3584, 15)
        self.masks()
        self.front_setup(C_H3, C_XR2)
        a("s_mov_b32 s23, -1\nv_mov_b32 v24, 0x3f803f80\ns_waitcnt vmcnt(0)\nv_lshlrev_b32 v22, 16, v25\nv_and_b32 v23, 0xffff0000, v25\ns_mov_b64 exec, s[48:49]")
        self.stamp(1)
        a("s_branch L_Fg")
        a("L_Floop:")
        self.gather("f", 16, True)
        self.stamp_l(2, 5)
        a("L_Fg:")
        self.front_gemv(True)
        self.stamp_l(3, 6)
        a("s_cmp_ge_i32 s23, 0\ns_cselect_b32 s26, s21, 1\ns_cmp_eq_u32 s26, 0\ns_cbranch_scc0 L_Fnx")
        a(f"s_mov_b64 exec, s[48:49]\nv_subrev_u32 v8, s20, v17\ns_lshl_b32 s26, s23, 14\ns_add_u32 s26, s26, {(C_XR1-C_XR2)*CH}\ns_add_u32 s27, s26, 8192")
        a("buffer_store_dwordx2 v[50:51], v8, s[4:7], s26 offen sc1\nbuffer_store_dwordx2 v[50:51], v8, s[4:7], s27 offen sc1\ns_mov_b64 exec, -1")
        a("L_Fnx:")
        a(f"s_cmp_eq_u32 s23, 0\ns_cbranch_scc0 L_Fn2\nv_add_u32 v16, {8*CH}, v16\nv_add_u32 v13, {8*CH}, v13\nL_Fn2:")
        a("s_add_u32 s23, s23, 1\ns_cmp_lt_i32 s23, 2\ns_cbranch_scc1 L_Floop\ns_branch L_exit")
        a("L_Fb:\ns_sub_u32 s30, s22, 4")
        a("s_mul_i32 s27, s21, 57344")
        self.srd(8, 80, 57344, off_s=27)
        a(f"""
        s_cmp_ge_u32 s21, 14
        s_cselect_b32 s26, 2, 0
        s_add_u32 s26, s26, s21
        s_lshr_b32 s27, s26, 2
        s_lshl_b32 s27, s27, 14
        s_and_b32 s26, s26, 3
        s_lshl_b32 s26, s26, 11
        s_add_u32 s52, s26, s27
        s_add_u32 s52, s52, {C_H4*CH}
        s_cmp_eq_u32 s22, 4
        s_cbranch_scc0 L_Fb1
        """)
        self.epoch_load()
        a("v_lshlrev_b32 v10, 4, v0")
        self.reset2k(52)
        a(f"s_add_u32 s53, s52, {8*CH}")
        self.reset2k(53)
        a(f"s_cmp_eq_u32 s21, 0\ns_cbranch_scc0 L_Fb1\ns_mov_b32 s53, {C_XR1*CH}")
        self.reset2k(53)
        a(f"s_mov_b32 s53, {C_XR3*CH}")
        self.reset2k(53)
        a("L_Fb1:")
        self.r8_addr2(16, 8, 30)
        self.r8_loads(8, 8, 16, 128)
        a("s_cmp_eq_u32 s22, 4\ns_cbranch_scc0 L_Fb2")
        self.flag_store(16)
        a(f"s_mov_b32 s27, {ID_W}")
        self.flag_poll("f", 27, NW, extra_id=ID_Q)
        a("L_Fb2:")
        self.masks()
        self.r8_pub_addr(17, 30, 52)
        a("v_lshlrev_b32 v58, 2, v0\nv_add_u32 v58, 1024, v58")
        a("s_lshl_b32 s26, s30, 7\ns_add_u32 s26, s26, 10240\nv_lshl_add_u32 v18, v0, 1, s26\nv_lshl_add_u32 v19, v2, 5, s26")
        a("s_mov_b32 s23, -1\ns_waitcnt vmcnt(0)")
        self.stamp(1)
        a("L_Fbl:")
        a(f"s_and_b32 s26, s23, 1\ns_mul_i32 s26, s26, 4352\nv_add_u32 v10, s26, v58\ns_add_u32 s26, s26, {1024+4096}\nv_mov_b32 v11, s26\ns_lshl_b32 s27, s23, 17")
        a("s_barrier")
        self.stamp_l(2, 5)
        self.back_reduce(True, 10, 60)
        self.ln_scalars(60, 8)
        a("s_waitcnt lgkmcnt(4)")
        self.sum8(60)
        a("s_waitcnt lgkmcnt(0)")
        self.sum8(68)
        a("s_cmp_eq_u32 s23, -1\ns_cbranch_scc0 L_Fbh\nv_mov_b32 v56, v60\nv_mov_b32 v57, v68\ns_mov_b32 s23, 0\ns_branch L_Fbl")
        a(f"""
        L_Fbh:
        v_fma_f32 v60, -v76, v56, v60
        v_fma_f32 v68, -v76, v57, v68
        v_mul_f32 v60, v60, v77
        v_mul_f32 v68, v68, v77
        v_cvt_pk_bf16_f32 v61, v60, v68
        v_lshlrev_b32 v60, 16, v61
        v_and_b32 v68, 0xffff0000, v61
        v_mul_f32 v61, {hex(f2u(-LOG2E))}, v60
        v_exp_f32 v61, v61
        v_add_f32 v61, 1.0, v61
        v_rcp_f32 v61, v61
        v_mul_f32 v61, v60, v61
        v_cvt_pk_bf16_f32 v61, v61, v61
        v_and_b32 v61, 0xffff0000, v61
        v_mul_f32 v61, v61, v68
        v_cvt_pk_bf16_f32 v61, v61, v61
        ds_write_b16 v18, v61
        s_waitcnt lgkmcnt(0)
        ds_read_b128 v[26:29], v19
        ds_read_b128 v[30:33], v19 offset:16
        """)
        self.stamp_l(3, 6)
        self.r8_gemv(8, 26, 128, 17, 27)
        self.stamp_l(4, 7)
        a("s_add_u32 s23, s23, 1\ns_cmp_lt_i32 s23, 2\ns_cbranch_scc1 L_Fbl\ns_branch L_exit")
    def r8_addr2(self, vdst, NS, wv):
        self.a(f"""
        v_lshrrev_b32 v20, 1, v2
        v_mul_u32_u24 v20, {2*NS}, v20
        v_and_b32 v21, 1, v2
        v_add_u32 v20, v20, v21
        v_mul_u32_u24 v20, 896, v20
        v_lshl_add_u32 v20, v1, 4, v20
        s_lshl_b32 s26, s{wv}, 8
        v_add_u32 v{vdst}, s26, v20
        s_cmp_eq_u32 s{wv}, 3
        s_cselect_b32 s28, 0x00ff00ff, -1
        s_mov_b32 s29, s28
        """)

    def role_w(self):
        a = self.a
        a(f"L_W:\ns_sub_u32 s21, s2, {ID_W}")
        a(f"""
        s_lshr_b32 s27, s21, 2
        s_lshl_b32 s27, s27, 14
        s_and_b32 s26, s21, 3
        s_lshl_b32 s26, s26, 11
        s_add_u32 s53, s26, s27
        s_add_u32 s52, s53, {C_H3*CH}
        """)
        a("s_cmp_gt_u32 s22, 4\ns_cbranch_scc1 L_exit\ns_cmp_eq_u32 s22, 4\ns_cbranch_scc1 L_Wh")
        a("s_mul_i32 s27, s21, 114688")
        self.srd(8, 72, 114688, off_s=27)
        self.r8_addr(16, 16, 22)
        self.r8_loads(16, 8, 16, 128)
        self.masks()
        self.r8_pub_addr(17, 22, 52)
        a(f"""
        v_lshrrev_b32 v8, 2, v0
        v_and_b32 v9, 3, v0
        v_lshlrev_b32 v10, 9, v8
        v_lshl_add_u32 v10, v9, 5, v10
        s_lshl_b32 s26, s21, 14
        s_add_u32 s26, s26, s20
        s_lshl_b32 s27, s22, 7
        s_add_u32 s26, s26, s27
        s_add_u32 s26, s26, {C_H2O*CH}
        v_add_u32 v18, s26, v10
        s_add_u32 s26, s53, s20
        s_add_u32 s26, s26, {C_H2M*CH}
        v_lshl_add_u32 v19, v8, 7, s26
        v_lshlrev_b32 v10, 4, v9
        v_lshl_add_u32 v10, v2, 2, v10
        s_lshl_b32 s26, s22, 6
        v_add_u32 v20, s26, v10
        v_lshlrev_b32 v21, 6, v2
        s_mov_b32 s23, 0
        s_waitcnt vmcnt(0)
        """)
        self.stamp(1)
        a("s_barrier")
        a("L_Wl:\ns_mov_b32 s25, 0")
        a(f"s_mul_i32 s30, s23, {32*CH}\ns_lshl_b32 s27, s23, 17")
        a("""
        L_Wp:
        buffer_load_dwordx2 v[22:23], v19, s[4:7], s27 offen sc1
        buffer_load_dwordx4 v[60:63], v18, s[4:7], s30 offen sc1
        buffer_load_dwordx4 v[64:67], v18, s[4:7], s30 offen offset:16 sc1
        """)
        self.timeout()
        a("""
        s_waitcnt vmcnt(2)
        v_max_f32_dpp v24, v22, v22 row_ror:4 row_mask:0xf bank_mask:0xf
        v_max_f32_dpp v24, v24, v24 row_ror:8 row_mask:0xf bank_mask:0xf
        v_mov_b32 v25, v24
        v_permlane16_swap_b32 v24, v25
        v_max_f32 v24, v24, v25
        v_mov_b32 v25, v24
        v_permlane32_swap_b32 v24, v25
        v_max_f32 v24, v24, v25
        v_sub_f32 v24, v22, v24
        v_exp_f32 v24, v24
        s_waitcnt vmcnt(0)
        v_max3_u32 v54, v22, v60, v64
        v_cmp_eq_u32 vcc, -1, v54
        s_cbranch_vccnz L_Wp
        """)
        self.stamp_l(2, 5)
        a("""
        v_mul_f32 v26, v23, v24
        v_pk_mul_f32 v[60:61], v[60:61], v[24:25] op_sel_hi:[1,0]
        v_pk_mul_f32 v[64:65], v[64:65], v[24:25] op_sel_hi:[1,0]
        v_pk_mul_f32 v[62:63], v[62:63], v[24:25] op_sel_hi:[1,0]
        v_pk_mul_f32 v[66:67], v[66:67], v[24:25] op_sel_hi:[1,0]
        v_add_f32_dpp v26, v26, v26 row_ror:4 row_mask:0xf bank_mask:0xf
        v_permlane32_swap_b32 v60, v64
        v_permlane32_swap_b32 v61, v65
        v_add_f32_dpp v26, v26, v26 row_ror:8 row_mask:0xf bank_mask:0xf
        v_permlane32_swap_b32 v62, v66
        v_permlane32_swap_b32 v63, v67
        v_mov_b32 v27, v26
        v_pk_add_f32 v[60:61], v[60:61], v[64:65]
        v_pk_add_f32 v[62:63], v[62:63], v[66:67]
        v_permlane16_swap_b32 v26, v27
        v_add_f32 v26, v26, v27
        v_permlane16_swap_b32 v60, v62
        v_permlane16_swap_b32 v61, v63
        v_mov_b32 v27, v26
        v_pk_add_f32 v[60:61], v[60:61], v[62:63]
        v_permlane32_swap_b32 v26, v27
        v_add_f32_dpp v60, v60, v60 row_ror:4 row_mask:0xf bank_mask:0xf
        v_add_f32_dpp v61, v61, v61 row_ror:4 row_mask:0xf bank_mask:0xf
        v_add_f32 v26, v26, v27
        v_rcp_f32 v26, v26
        v_add_f32_dpp v60, v60, v60 row_ror:8 row_mask:0xf bank_mask:0xf
        v_add_f32_dpp v61, v61, v61 row_ror:8 row_mask:0xf bank_mask:0xf
        v_pk_mul_f32 v[60:61], v[60:61], v[26:27] op_sel_hi:[1,0]
        v_cvt_pk_bf16_f32 v60, v60, v61
        ds_write_b32 v20, v60
        s_waitcnt lgkmcnt(0)
        s_barrier
        ds_read_b128 v[60:63], v21
        ds_read_b128 v[64:67], v21 offset:16
        ds_read_b128 v[68:71], v21 offset:32
        ds_read_b128 v[72:75], v21 offset:48
        """)
        self.stamp_l(3, 6)
        self.r8_gemv(16, 60, 128, 17, 27)
        self.stamp_l(4, 7)
        a("s_add_u32 s23, s23, 1\ns_cmp_lt_i32 s23, 2\ns_cbranch_scc1 L_Wl\ns_branch L_exit")
        a("L_Wh:")
        self.epoch_load()
        a("v_lshlrev_b32 v10, 4, v0")
        self.reset2k(52)
        a(f"s_add_u32 s53, s52, {8*CH}")
        self.reset2k(53)
        self.flag_store(0)
        a(f"s_lshr_b32 s27, s21, 2\ns_lshl_b32 s27, s27, 4\ns_add_u32 s27, s27, {ID_A}")
        self.flag_poll("w", 27, 16)
        a("s_barrier\ns_branch L_exit")

    def role_a(self):
        a = self.a
        a(f"L_A:\ns_sub_u32 s21, s2, {ID_A}\ns_lshr_b32 s52, s21, 4\ns_and_b32 s53, s21, 15")
        a("s_cmp_gt_u32 s22, 4\ns_cbranch_scc1 L_exit\ns_cmp_eq_u32 s22, 4\ns_cbranch_scc1 L_Ah")
        a(f"s_lshl_b32 s27, s52, 22\ns_lshl_b32 s26, s53, 16\ns_add_u32 s27, s27, s26\ns_add_u32 s27, s27, {6144*512}")
        self.srd(8, 66, 65536, off_s=27)
        self.srd(12, 68, 65536, off_s=27)
        a("""
        s_lshl_b32 s26, s22, 14
        v_lshlrev_b32 v8, 9, v1
        v_lshl_add_u32 v8, v2, 4, v8
        v_add_u32 v16, s26, v8
        v_lshrrev_b32 v8, 1, v2
        v_and_b32 v9, 1, v2
        v_lshl_add_u32 v8, v8, 2, v9
        v_lshlrev_b32 v8, 9, v8
        v_lshl_add_u32 v8, v1, 4, v8
        v_add_u32 v17, s26, v8
        s_mov_b32 s32, 0
        s_mov_b32 s33, 4096
        s_mov_b32 s34, 8192
        s_mov_b32 s35, 12288
        """)
        KR, VR = 128, 192
        for T in range(2):
            for ks in range(8):
                r = KR + 32*T + 4*ks
                a(f"buffer_load_dwordx4 v[{r}:{r+3}], v16, s[8:11], s{32+2*T} offen offset:{64*ks} nt")
        for T in range(2):
            for aa in range(2):
                for cb in range(2):
                    for hf in range(2):
                        r = VR + ((2*T + aa)*2 + cb)*8 + 4*hf
                        if self.o.get("pace", 1): a("s_waitcnt vmcnt(15)")
                        a(f"buffer_load_dwordx4 v[{r}:{r+3}], v17, s[12:15], s{32+2*T+hf} offen offset:{1024*aa + 256*cb} nt")
        self.masks()
        a(f"""
        v_lshrrev_b32 v8, 3, v1
        v_lshlrev_b32 v8, 9, v8
        v_lshl_add_u32 v18, v2, 4, v8
        v_lshrrev_b32 v8, 1, v2
        v_lshlrev_b32 v8, 10, v8
        v_lshl_add_u32 v8, v1, 5, v8
        v_and_b32 v9, 1, v2
        v_lshl_add_u32 v8, v9, 4, v8
        s_lshl_b32 s26, s22, 11
        s_add_u32 s26, s26, 1024
        v_add_u32 v19, s26, v8
        v_lshrrev_b32 v8, 3, v1
        s_lshl_b32 s26, s22, 3
        s_add_u32 s26, s26, 9216
        v_lshl_add_u32 v20, v8, 5, s26
        v_and_b32 v8, 31, v0
        s_lshl_b32 s26, s22, 9
        s_add_u32 s26, s26, 1024
        v_lshl_add_u32 v21, v8, 4, s26
        s_lshr_b32 s26, s22, 1
        s_lshl_b32 s26, s26, 5
        s_add_u32 s26, s26, 9216
        v_mov_b32 v22, s26
        s_lshl_b32 s26, s52, 2
        s_add_u32 s26, s26, s22
        s_lshl_b32 s27, s26, 14
        s_lshl_b32 s30, s53, 9
        s_add_u32 s27, s27, s30
        s_add_u32 s27, s27, {C_H2O*CH}
        v_lshrrev_b32 v9, 5, v0
        v_lshlrev_b32 v9, 13, v9
        v_lshl_add_u32 v8, v8, 4, v9
        v_add_u32 v23, s27, v8
        s_lshl_b32 s27, s52, 14
        s_lshl_b32 s30, s22, 11
        s_add_u32 s27, s27, s30
        s_lshl_b32 s30, s53, 7
        s_add_u32 s27, s27, s30
        s_add_u32 s27, s27, {C_H2M*CH}
        v_add_u32 v24, s27, v9
        s_mov_b32 s36, {hex(f2u(LOG2E/16))}
        s_mov_b32 s23, 0
        s_waitcnt vmcnt(16)
        """)
        self.stamp(1)
        if self.o.get("vstamp"):
            a("s_waitcnt vmcnt(0)"); self.stamp(9)
        a("L_Al:\ns_barrier")
        self.stamp_l(2, 6)
        QR = 60
        for ks in range(8):
            a(f"ds_read_b128 v[{QR+4*ks}:{QR+4*ks+3}], v18 offset:{64*ks}")
        for ks in range(8):
            a(f"s_waitcnt lgkmcnt({7-ks})")
            for T in range(2):
                c = "0" if ks == 0 else f"v[{44+4*T}:{47+4*T}]"
                a(f"v_mfma_f32_16x16x32_bf16 v[{44+4*T}:{47+4*T}], v[{KR+32*T+4*ks}:{KR+32*T+4*ks+3}], v[{QR+4*ks}:{QR+4*ks+3}], {c}")
        for i in range(8): a(f"v_mov_b32 v{92+i}, 0")
        for k in range(4): a(f"v_cvt_pk_bf16_f32 v{52+k}, v{44+2*k}, v{45+2*k}")
        for k in range(4): a(f"v_lshlrev_b32 v{44+2*k}, 16, v{52+k}\nv_and_b32 v{45+2*k}, 0xffff0000, v{52+k}")
        a("""
        v_max3_f32 v52, v44, v45, v46
        v_max3_f32 v53, v47, v48, v49
        v_max3_f32 v52, v50, v51, v52
        v_max_f32 v52, v52, v53
        v_mov_b32 v53, v52
        v_permlane32_swap_b32 v52, v53
        v_max_f32 v52, v52, v53
        v_mov_b32 v53, v52
        v_permlane16_swap_b32 v52, v53
        v_max_f32 v52, v52, v53
        v_mul_f32 v56, s36, v52
        """)
        for k in range(8): a(f"v_fma_f32 v{44+k}, v{44+k}, s36, -v56")
        for k in range(8): a(f"v_exp_f32 v{44+k}, v{44+k}")
        for k in range(4): a(f"v_cvt_pk_bf16_f32 v{52+k}, v{44+2*k}, v{45+2*k}")
        self.abuild(34, 52)
        a("s_waitcnt vmcnt(0)")
        self.stamp_l(3, 7)
        fill = ["v_pk_add_f32 v[44:45], v[44:45], v[46:47]\nv_pk_add_f32 v[48:49], v[48:49], v[50:51]",
                "v_pk_add_f32 v[44:45], v[44:45], v[48:49]\nv_add_f32 v57, v44, v45\nv_mov_b32 v58, v57",
                "v_permlane32_swap_b32 v57, v58\nv_add_f32 v57, v57, v58\nv_mov_b32 v58, v57",
                "v_permlane16_swap_b32 v57, v58\nv_add_f32 v57, v57, v58"]
        for n in range(4):
            A = 34 + 4*(n & 1)
            if n < 3: self.abuild(34 + 4*((n+1) & 1), 52 + n + 1)
            for cb in range(2):
                r = VR + (n*2 + cb)*8
                a(f"v_smfmac_f32_16x16x64_bf16 v[{92+4*cb}:{95+4*cb}], v[{A}:{A+3}], v[{r}:{r+7}], v7")
            a(fill[n])
        a("""
        s_mov_b64 exec, 0x101
        ds_write_b64 v20, v[56:57]
        s_mov_b64 exec, -1
        ds_write_b128 v19, v[92:95]
        ds_write_b128 v19, v[96:99] offset:512
        s_waitcnt lgkmcnt(0)
        s_barrier
        ds_read_b128 v[44:47], v22
        ds_read_b128 v[48:51], v22 offset:16
        ds_read_b128 v[60:63], v21
        ds_read_b128 v[64:67], v21 offset:2048
        ds_read_b128 v[68:71], v21 offset:4096
        ds_read_b128 v[72:75], v21 offset:6144
        s_waitcnt lgkmcnt(4)
        v_max3_f32 v56, v44, v46, v48
        v_max_f32 v56, v56, v50
        v_sub_f32 v52, v44, v56
        v_sub_f32 v53, v46, v56
        v_sub_f32 v54, v48, v56
        v_sub_f32 v55, v50, v56
        v_exp_f32 v52, v52
        v_exp_f32 v53, v53
        v_exp_f32 v54, v54
        v_exp_f32 v55, v55
        s_waitcnt lgkmcnt(3)
        v_pk_mul_f32 v[60:61], v[60:61], v[52:53] op_sel_hi:[1,0]
        v_pk_mul_f32 v[62:63], v[62:63], v[52:53] op_sel_hi:[1,0]
        s_waitcnt lgkmcnt(2)
        v_pk_fma_f32 v[60:61], v[64:65], v[52:53], v[60:61] op_sel:[0,1,0] op_sel_hi:[1,1,1]
        v_pk_fma_f32 v[62:63], v[66:67], v[52:53], v[62:63] op_sel:[0,1,0] op_sel_hi:[1,1,1]
        s_waitcnt lgkmcnt(1)
        v_pk_fma_f32 v[60:61], v[68:69], v[54:55], v[60:61] op_sel_hi:[1,0,1]
        v_pk_fma_f32 v[62:63], v[70:71], v[54:55], v[62:63] op_sel_hi:[1,0,1]
        s_waitcnt lgkmcnt(0)
        v_pk_fma_f32 v[60:61], v[72:73], v[54:55], v[60:61] op_sel:[0,1,0] op_sel_hi:[1,1,1]
        v_pk_fma_f32 v[62:63], v[74:75], v[54:55], v[62:63] op_sel:[0,1,0] op_sel_hi:[1,1,1]
        """)
        a(f"s_mul_i32 s26, s23, {32*CH}\ns_lshl_b32 s27, s23, 17")
        a("""
        v_mul_f32 v57, v52, v45
        v_min_u32 v60, -2, v60
        buffer_store_dwordx4 v[60:63], v23, s[4:7], s26 offen sc1
        v_fmac_f32 v57, v53, v47
        v_fmac_f32 v57, v54, v49
        v_fmac_f32 v57, v55, v51
        v_min_u32 v56, -2, v56
        s_mov_b32 exec_lo, 1
        s_mov_b32 exec_hi, 1
        buffer_store_dwordx2 v[56:57], v24, s[4:7], s27 offen sc1
        s_mov_b64 exec, -1
        """)
        self.stamp_l(4, 8)
        a("s_add_u32 s23, s23, 1\ns_cmp_lt_i32 s23, 2\ns_cbranch_scc1 L_Al\ns_branch L_exit")
        a("L_Ah:")
        self.epoch_load()
        a(f"""
        v_and_b32 v8, 31, v0
        v_lshrrev_b32 v11, 5, v0
        v_lshlrev_b32 v11, 13, v11
        v_lshl_add_u32 v10, v8, 4, v11
        s_lshl_b32 s27, s52, 16
        s_lshl_b32 s30, s53, 9
        s_add_u32 s27, s27, s30
        s_add_u32 s27, s27, {C_H2O*CH}
        """)
        for L in range(2):
            for w in range(4):
                a(f"s_add_u32 s26, s27, {(L*32 + w)*CH}\nbuffer_store_dwordx4 v[12:15], v10, s[4:7], s26 offen sc1")
        a(f"""
        v_and_b32 v8, 3, v0
        v_lshlrev_b32 v8, 11, v8
        v_bfe_u32 v11, v0, 2, 1
        v_lshl_add_u32 v8, v11, 13, v8
        v_bfe_u32 v11, v0, 3, 1
        v_lshl_add_u32 v8, v11, 17, v8
        s_lshl_b32 s27, s52, 14
        s_lshl_b32 s30, s53, 7
        s_add_u32 s27, s27, s30
        s_add_u32 s27, s27, {C_H2M*CH}
        s_mov_b64 exec, 0xffff
        buffer_store_dwordx4 v[12:15], v8, s[4:7], s27 offen sc1
        s_mov_b64 exec, -1
        """)
        self.flag_store(0)
        a(f"s_lshl_b32 s27, s52, 3\ns_add_u32 s27, s27, {ID_Q}")
        self.flag_poll("a", 27, 8)
        a(f"""
        v_lshlrev_b32 v16, 4, v0
        s_lshl_b32 s26, s52, 10
        s_add_u32 s26, s26, s20
        s_add_u32 s26, s26, {C_H1*CH}
        v_add_u32 v17, s26, v16
        s_mov_b32 s23, 0
        L_Ahl:
        s_lshl_b32 s26, s23, 14
        s_mov_b32 s25, 0
        L_Ahp:
        buffer_load_dwordx4 v[20:23], v17, s[4:7], s26 offen sc1
        """)
        self.timeout()
        a("""
        s_waitcnt vmcnt(0)
        v_cmp_eq_u32 vcc, -1, v20
        s_cbranch_vccnz L_Ahp
        ds_write_b128 v16, v[20:23]
        s_waitcnt lgkmcnt(0)
        s_barrier
        s_barrier
        s_add_u32 s23, s23, 1
        s_cmp_lt_i32 s23, 2
        s_cbranch_scc1 L_Ahl
        s_branch L_exit
        """)

    def build(self):
        a = self.a
        a(f"s_cmp_ge_u32 s2, {NWG}\ns_cbranch_scc1 L_end")
        if self.o.get("dbg"): a("s_memrealtime s[56:57]")
        a("s_load_dwordx16 s[64:79], s[0:1], 0\ns_load_dwordx8 s[80:87], s[0:1], 64")
        if self.diag:
            for s in self.STS: a(f"s_mov_b32 s{s}, 0")
            a("s_mov_b32 s23, -1")
        a("""
        v_lshrrev_b32 v1, 6, v0
        v_and_b32 v0, 63, v0
        s_getreg_b32 s20, hwreg(HW_REG_XCC_ID, 0, 4)
        v_readfirstlane_b32 s22, v1
        s_bfe_u32 s20, s20, 0x10002
        s_lshl_b32 s20, s20, 13
        v_and_b32 v1, 15, v0
        v_lshrrev_b32 v2, 4, v0
        s_cmp_lt_u32 s22, 4
        s_cbranch_scc1 L_np
        s_setprio 3
        L_np:
        s_waitcnt lgkmcnt(0)
        """)
        self.stamp(0)
        self.srd(4, 86, (4 << 20) if self.diag else (2 << 20))
        a(f"s_cmp_lt_u32 s2, {ID_A}\ns_cbranch_scc1 L_Q\ns_cmp_lt_u32 s2, {ID_W}\ns_cbranch_scc1 L_A\ns_cmp_lt_u32 s2, {ID_F}\ns_cbranch_scc1 L_W\ns_branch L_F")
        self.role_q(); self.role_a(); self.role_w(); self.role_f()
        a("L_exit:")
        if self.o.get("dbg"):
            a("s_memrealtime s[54:55]")
            self.srd(8, 84, 256)
            a("s_mov_b64 exec, 1\ns_waitcnt lgkmcnt(0)\ns_not_b32 s56, s56\nv_mov_b32 v8, 0\nv_mov_b32 v12, s56\nv_mov_b32 v13, s54")
            a("buffer_atomic_umax v12, v8, s[8:11], 0 offen\nbuffer_atomic_umax v13, v8, s[8:11], 0 offen offset:4\ns_not_b32 s56, s56\nv_mov_b32 v12, s56\nbuffer_atomic_umax v12, v8, s[8:11], 0 offen offset:8")
        if self.diag:
            a("s_mov_b64 exec, -1\ns_waitcnt vmcnt(0) lgkmcnt(0)")
            self.stamp(19)
            a("s_lshl_b32 s26, s2, 3\ns_add_u32 s26, s26, s22\ns_lshl_b32 s26, s26, 7\ns_add_u32 s26, s26, 0x200000\nv_mov_b32 v8, 0\ns_mov_b64 exec, 1")
            for k in range(0, 20, 4):
                for i in range(4): a(f"v_mov_b32 v{12+i}, s{self.STS[k+i]}")
                a(f"buffer_store_dwordx4 v[12:15], v8, s[4:7], s26 offen offset:{4*k}")
            a("s_waitcnt vmcnt(0)")
        a("L_end:")
        hdr = open("interleave_layers__sliding_block_cached__glu_gated_swiglu__decode.s.ref").read().split("\n")
        top = [l for l in hdr if l.startswith(";") and "@launch" not in l]
        out = "\n".join(top) + f"\n; @launch grid=({NWG},1,1) block=(512,1,1) lds=16384\n"
        out += f'.amdgcn_target "amdgcn-amd-amdhsa--gfx950"\n.text\n.globl {NAME}\n.p2align 8\n.type {NAME},@function\n{NAME}:\n'
        out += a.text()
        out += f"""s_endpgm
.section .rodata,"a"
.p2align 6
.amdhsa_kernel {NAME}
  .amdhsa_next_free_vgpr 256
  .amdhsa_next_free_sgpr 102
  .amdhsa_accum_offset 256
  .amdhsa_group_segment_fixed_size 0
  .amdhsa_kernarg_size 96
  .amdhsa_user_sgpr_count 2
  .amdhsa_user_sgpr_kernarg_segment_ptr 1
  .amdhsa_system_sgpr_workgroup_id_x 1
.end_amdhsa_kernel
"""
        return out

if __name__ == "__main__":
    opts = {}
    for x in sys.argv[3:]:
        k, v = x.split("=")
        opts[k] = int(v) if v.lstrip("-").isdigit() else v
    if sys.argv[1] != "-": open(sys.argv[1], "w").write(G(False, opts).build())
    if len(sys.argv) > 2 and sys.argv[2] != "-": open(sys.argv[2], "w").write(G(True, opts).build())
```

```python
import sys
from asmlib import Asm
NAME = "interleave_layers__sliding_block_cached__glu_gated_swiglu__decode_kernel"
CH = 16384
C_FLAG, C_H1, C_H2O, C_H2M, C_H3, C_XR2, C_H4, C_XR1, C_XR3 = 1, 3, 8, 72, 88, 104, 105, 121, 122
NQ, NA, NW, NF = 64, 128, 32, 28
ID_Q, ID_A, ID_W, ID_F = 0, 64, 192, 224
NWG = 252
TMO = 20000
LOG2E = 1.4426950408889634
import struct
def f2u(x): return struct.unpack("<I", struct.pack("<f", x))[0]

class G:
    def __init__(self, diag=False, opts=None):
        self.a = Asm(); self.diag = diag; self.o = opts or {}
        self.nst = 0
    STS = list(range(56, 64)) + list(range(88, 100))
    def stamp(self, k):
        if not self.diag: return
        if self.o.get("lite") and k not in (0, 1, 8, 9, 19): return
        self.a(f"s_memrealtime s[54:55]\ns_waitcnt lgkmcnt(0)\ns_mov_b32 s{self.STS[k]}, s54")
    def stamp_l(self, k0, k1):
        if not self.diag: return
        if self.o.get("lite"): return
        self.a(f"s_memrealtime s[54:55]\ns_waitcnt lgkmcnt(0)\ns_cmp_eq_u32 s23, 1\ns_cselect_b32 s{self.STS[k1]}, s54, s{self.STS[k1]}\ns_cmp_eq_u32 s23, 0\ns_cselect_b32 s{self.STS[k0]}, s54, s{self.STS[k0]}")
    def srd(self, d, p, nbytes, off_s=None):
        a = self.a
        if off_s is None:
            a(f"s_mov_b32 s{d}, s{p}\ns_mov_b32 s{d+1}, s{p+1}")
        else:
            a(f"s_add_u32 s{d}, s{p}, s{off_s}\ns_addc_u32 s{d+1}, s{p+1}, 0")
        a(f"s_mov_b32 s{d+2}, {nbytes}\ns_mov_b32 s{d+3}, 0x20000")
    def timeout(self):
        self.a(f"s_add_u32 s25, s25, 1\ns_cmp_gt_u32 s25, {TMO}\ns_cbranch_scc1 L_exit")
    def masks(self):
        a = self.a
        a("""
        v_and_b32 v8, 4, v1
        v_cmp_eq_u32 vcc, 0, v8
        v_mov_b32 v9, 0xffff
        v_cndmask_b32 v3, 0, v9, vcc
        v_xor_b32 v4, v3, v9
        v_lshlrev_b32 v5, 16, v3
        v_lshlrev_b32 v6, 16, v4
        v_and_b32 v8, 3, v1
        v_mul_u32_u24 v7, 17425, v8
        v_xor_b32 v8, 1, v8
        v_mul_u32_u24 v8, 4420, v8
        v_add_u32 v7, v7, v8
        """)
    def abuild(self, dst, src):
        for d in range(4):
            self.a(f"v_and_b32 v{dst+d}, v{src}, v{3+d}")
    def epoch_load(self):
        self.a("v_mov_b32 v8, 0\nbuffer_load_dword v9, v8, s[4:7], 0 offen sc1\nv_mov_b32 v12, -1\nv_mov_b32 v13, -1\nv_mov_b32 v14, -1\nv_mov_b32 v15, -1")
    def reset2k(self, sbase):
        a = self.a
        a(f"buffer_store_dwordx4 v[12:15], v10, s[4:7], s{sbase} offen sc1")
        a(f"buffer_store_dwordx4 v[12:15], v10, s[4:7], s{sbase} offen offset:1024 sc1")
        a(f"s_add_u32 s31, s{sbase}, 8192")
        a(f"buffer_store_dwordx4 v[12:15], v10, s[4:7], s31 offen sc1")
        a(f"buffer_store_dwordx4 v[12:15], v10, s[4:7], s31 offen offset:1024 sc1")
    def flag_store(self, nleft):
        a = self.a
        a(f"s_waitcnt vmcnt({nleft})")
        a("v_readfirstlane_b32 s24, v9")
        a("s_mul_i32 s24, s24, 0x9E3779B1\ns_add_u32 s24, s24, 0x7F4A7C15")
        a(f"""
        s_lshr_b32 s26, s2, 7
        s_lshl_b32 s26, s26, 14
        s_and_b32 s27, s2, 127
        s_lshl_b32 s27, s27, 6
        s_add_u32 s26, s26, s27
        s_add_u32 s26, s26, {C_FLAG*CH}
        v_lshlrev_b32 v8, 13, v0
        v_mov_b32 v11, s24
        s_mov_b64 exec, 3
        buffer_store_dword v11, v8, s[4:7], s26 offen sc1
        s_mov_b64 exec, -1
        """)
    def flag_poll(self, tagn, first_s, n, extra_id=None):
        a = self.a
        a(f"v_add_u32 v8, s{first_s}, v0")
        nl = n
        if extra_id is not None:
            a(f"v_cmp_eq_u32 vcc, {n}, v0\nv_mov_b32 v11, {extra_id}\nv_cndmask_b32 v8, v8, v11, vcc")
            nl = n + 1
        a(f"""
        v_lshrrev_b32 v11, 7, v8
        v_lshlrev_b32 v11, 14, v11
        v_and_b32 v8, 127, v8
        v_lshl_add_u32 v8, v8, 6, v11
        v_add_u32 v8, s20, v8
        s_mov_b32 s26, {C_FLAG*CH}
        s_mov_b32 s25, 0
        s_mov_b32 exec_lo, {hex(((1 << nl) - 1) & 0xffffffff)}
        s_mov_b32 exec_hi, {hex(((1 << nl) - 1) >> 32)}
        L_fp_{tagn}:
        buffer_load_dword v11, v8, s[4:7], s26 offen sc1
        """)
        self.timeout()
        a(f"""
        s_waitcnt vmcnt(0)
        v_cmp_ne_u32 vcc, s24, v11
        s_cbranch_vccnz L_fp_{tagn}
        s_mov_b64 exec, -1
        """)
    def front_setup(self, c_src, c_xr):
        a = self.a
        a(f"""
        s_mov_b32 s48, 0x0fffffff
        s_mov_b32 s49, 0x0fffffff
        s_mov_b32 s50, 0x00ff00ff
        s_mov_b32 s51, 0xff00ff00
        v_lshrrev_b32 v8, 5, v0
        v_and_b32 v9, 31, v0
        s_mul_i32 s26, s22, 28
        v_add_u32 v10, s26, v9
        v_lshlrev_b32 v10, 4, v10
        v_lshl_add_u32 v16, v8, 16, v10
        v_add_u32 v16, s20, v16
        v_lshl_add_u32 v17, v8, 3, v10
        s_add_u32 s26, s20, {c_xr*CH}
        v_add_u32 v17, s26, v17
        v_lshl_add_u32 v11, v9, 1, v8
        v_mul_u32_u24 v12, 9363, v11
        v_lshrrev_b32 v12, 16, v12
        v_add_u32 v11, v11, v12
        v_lshlrev_b32 v11, 2, v11
        s_lshl_b32 s26, s22, 8
        v_add_u32 v18, s26, v11
        v_lshrrev_b32 v11, 3, v0
        v_lshlrev_b32 v11, 5, v11
        v_add_u32 v19, s26, v11
        v_lshrrev_b32 v11, 3, v1
        v_lshlrev_b32 v11, 8, v11
        v_and_b32 v12, 7, v1
        v_lshl_add_u32 v11, v12, 5, v11
        v_and_b32 v12, 1, v2
        v_lshl_add_u32 v11, v12, 4, v11
        s_lshl_b32 s26, s22, 9
        s_add_u32 s26, s26, 1024
        v_add_u32 v20, s26, v11
        s_lshl_b32 s26, s22, 3
        s_add_u32 s26, s26, {1024+4096}
        v_lshl_add_u32 v21, v8, 2, s26
        """)
        for i in range(16):
            a(f"s_mov_b32 s{32+i}, {c_src*CH + (i>>2)*CH + (i&3)*2048}")
        a(f"""
        v_lshrrev_b32 v8, 2, v0
        v_lshlrev_b32 v8, 14, v8
        v_and_b32 v9, 3, v0
        v_lshl_add_u32 v8, v9, 11, v8
        s_mul_i32 s26, s22, 448
        s_add_u32 s26, s26, s20
        s_add_u32 s26, s26, {c_src*CH + 432}
        v_add_u32 v13, s26, v8
        """)
    def r16_loads(self, srd, reg, rowstride, vaddr):
        for s in range(7):
            for hf in range(2):
                self.a(f"s_mov_b32 s26, {(56*hf + 2*s)*rowstride}")
                r = reg + 8*s + 4*hf
                self.a(f"buffer_load_dwordx4 v[{r}:{r+3}], v{vaddr}, s[{srd}:{srd+3}], s26 offen nt")
    def r16_addr(self, vdst, rowstride):
        self.a(f"""
        v_lshrrev_b32 v8, 1, v2
        v_lshrrev_b32 v9, 3, v1
        v_lshl_add_u32 v8, v8, 1, v9
        v_mul_u32_u24 v8, 14, v8
        v_and_b32 v9, 1, v2
        v_add_u32 v8, v8, v9
        s_mul_i32 s26, s22, 112
        v_add_u32 v8, s26, v8
        v_mul_u32_u24 v8, {rowstride}, v8
        v_and_b32 v9, 7, v1
        v_lshl_add_u32 v{vdst}, v9, 4, v8
        """)
    def x_load(self):
        self.a("""
        v_lshrrev_b32 v8, 5, v0
        v_and_b32 v9, 31, v0
        v_lshl_add_u32 v8, v9, 1, v8
        s_mul_i32 s26, s22, 56
        v_add_u32 v8, s26, v8
        v_lshlrev_b32 v8, 2, v8
        buffer_load_dword v25, v8, s[16:19], 0 offen
        """)
    def gather(self, tagn, nld, xr_cond):
        a = self.a
        mode = self.o.get("pre", "all")
        a("s_mov_b32 s25, 0")
        if mode != "none":
            a(f"s_mov_b32 exec_lo, {hex(0xffffffff if nld == 16 else 0x3fff3fff)}\ns_mov_b32 exec_hi, 0")
            a(f"L_gl_{tagn}:\nbuffer_load_dword v54, v13, s[4:7], 0 offen sc1")
            self.timeout()
            a("s_waitcnt vmcnt(0)")
            if mode == "all": a(f"v_cmp_eq_u32 vcc, -1, v54\ns_cbranch_vccnz L_gl_{tagn}")
            else: a(f"v_cmp_ne_u32 vcc, -1, v54\ns_cbranch_vccz L_gl_{tagn}")
        a("s_mov_b64 exec, s[48:49]")
        a(f"L_gp_{tagn}:")
        if xr_cond:
            a(f"s_cmp_eq_u32 s23, 0\ns_cbranch_scc1 L_gx_{tagn}")
        a("buffer_load_dwordx2 v[22:23], v17, s[4:7], 0 offen sc1")
        if xr_cond: a(f"L_gx_{tagn}:")
        for i in range(nld):
            a(f"buffer_load_dwordx4 v[{60+4*i}:{63+4*i}], v16, s[4:7], s{32+i} offen sc1")
        self.timeout()
        for i in range(0, nld, 2):
            a(f"s_waitcnt vmcnt({nld-2-i})")
            r = 60 + 4*i
            if i == 0:
                a(f"v_max3_u32 v54, v22, v{r}, v{r+4}")
                a(f"v_pk_add_f32 v[50:51], v[{r}:{r+1}], v[{r+4}:{r+5}]\nv_pk_add_f32 v[52:53], v[{r+2}:{r+3}], v[{r+6}:{r+7}]")
            else:
                a(f"v_max3_u32 v54, v54, v{r}, v{r+4}")
                a(f"v_pk_add_f32 v[{r}:{r+1}], v[{r}:{r+1}], v[{r+4}:{r+5}]\nv_pk_add_f32 v[{r+2}:{r+3}], v[{r+2}:{r+3}], v[{r+6}:{r+7}]")
                a(f"v_pk_add_f32 v[50:51], v[50:51], v[{r}:{r+1}]\nv_pk_add_f32 v[52:53], v[52:53], v[{r+2}:{r+3}]")
        a(f"v_cmp_eq_u32 vcc, -1, v54\ns_cbranch_vccnz L_gp_{tagn}")
        a("""
        v_permlane32_swap_b32 v50, v52
        v_permlane32_swap_b32 v51, v53
        v_pk_add_f32 v[50:51], v[50:51], v[52:53]
        v_cvt_pk_bf16_f32 v55, v50, v51
        v_lshlrev_b32 v50, 16, v55
        v_and_b32 v51, 0xffff0000, v55
        v_pk_add_f32 v[50:51], v[50:51], v[22:23]
        v_cvt_pk_bf16_f32 v24, v50, v51
        """)
    def front_gemv(self, two):
        a = self.a
        a("""
        ds_write_b32 v18, v24
        v_mov_b32 v55, 0
        v_lshlrev_b32 v50, 16, v24
        v_and_b32 v51, 0xffff0000, v24
        s_mov_b64 exec, -1
        v_mov_b32 v55, 0
        v_mov_b32 v56, 0
        s_waitcnt lgkmcnt(0)
        ds_read_b128 v[26:29], v19
        ds_read_b128 v[30:33], v19 offset:16
        s_mov_b64 exec, s[48:49]
        v_add_f32 v55, v50, v51
        v_mul_f32 v56, v50, v50
        v_fmac_f32 v56, v51, v51
        s_mov_b64 exec, -1
        v_mov_b32 v42, 0
        v_mov_b32 v43, 0
        v_mov_b32 v44, 0
        v_mov_b32 v45, 0
        """)
        if two: a("v_mov_b32 v46, 0\nv_mov_b32 v47, 0\nv_mov_b32 v48, 0\nv_mov_b32 v49, 0")
        a("v_permlane32_swap_b32 v55, v56\nv_add_f32 v55, v55, v56")
        a("s_waitcnt lgkmcnt(1)")
        self.abuild(34, 26)
        fill = ["v_mov_b32 v56, v55", None, "v_permlane16_swap_b32 v55, v56\nv_add_f32 v55, v55, v56",
                "v_add_f32_dpp v55, v55, v55 row_ror:8 row_mask:0xf bank_mask:0xf", "v_add_f32_dpp v55, v55, v55 row_ror:4 row_mask:0xf bank_mask:0xf",
                "v_add_f32_dpp v55, v55, v55 row_ror:2 row_mask:0xf bank_mask:0xf", "v_add_f32_dpp v55, v55, v55 row_ror:1 row_mask:0xf bank_mask:0xf"]
        for s in range(7):
            A = 34 + 4*(s & 1)
            if s == 3: a("s_waitcnt lgkmcnt(0)")
            if s < 6: self.abuild(34 + 4*((s+1) & 1), 26 + s + 1)
            a(f"v_smfmac_f32_16x16x64_bf16 v[42:45], v[{A}:{A+3}], v[{128+8*s}:{135+8*s}], v7")
            if two: a(f"v_smfmac_f32_16x16x64_bf16 v[46:49], v[{A}:{A+3}], v[{184+8*s}:{191+8*s}], v7")
            if fill[s]: a(fill[s])
        a("s_and_b32 s26, s23, 1\ns_mul_i32 s26, s26, 4352\nv_add_u32 v8, s26, v20\nv_add_u32 v9, s26, v21")
        a("s_mov_b32 exec_lo, 1\ns_mov_b32 exec_hi, 1\nds_write_b32 v9, v55\ns_mov_b64 exec, s[50:51]")
        a("ds_write_b128 v8, v[42:45]")
        if two: a("ds_write_b128 v8, v[46:49] offset:2048")
        a("s_mov_b64 exec, -1\ns_waitcnt lgkmcnt(0)\ns_barrier")
    def back_reduce(self, two, base, ro):
        a = self.a
        a(f"ds_read_b128 v[{ro+16}:{ro+19}], v{base+1}\nds_read_b128 v[{ro+20}:{ro+23}], v{base+1} offset:16")
        for m in range(2 if two else 1):
            for k in range(4):
                a(f"ds_read2st64_b32 v[{ro+8*m+2*k}:{ro+8*m+2*k+1}], v{base} offset0:{8*m+2*k} offset1:{8*m+2*k+1}")
    def ln_scalars(self, ro, nrest):
        a = self.a
        t = ro + 16
        a(f"""
        s_waitcnt lgkmcnt({nrest})
        v_pk_add_f32 v[{t}:{t+1}], v[{t}:{t+1}], v[{t+2}:{t+3}]
        v_pk_add_f32 v[{t+4}:{t+5}], v[{t+4}:{t+5}], v[{t+6}:{t+7}]
        v_pk_add_f32 v[{t}:{t+1}], v[{t}:{t+1}], v[{t+4}:{t+5}]
        v_mul_f32 v{t}, {hex(f2u(1.0/448))}, v{t}
        v_mul_f32 v{t+1}, {hex(f2u(1.0/448))}, v{t+1}
        v_fma_f32 v{t+1}, -v{t}, v{t}, v{t+1}
        v_max_f32 v{t+1}, 0, v{t+1}
        v_cvt_pk_bf16_f32 v{t+2}, v{t}, v{t+1}
        v_lshlrev_b32 v{t}, 16, v{t+2}
        v_and_b32 v{t+1}, 0xffff0000, v{t+2}
        v_add_f32 v{t+1}, {hex(f2u(1e-5))}, v{t+1}
        v_cvt_pk_bf16_f32 v{t+1}, v{t+1}, v{t+1}
        v_and_b32 v{t+1}, 0xffff0000, v{t+1}
        v_sqrt_f32 v{t+1}, v{t+1}
        v_cvt_pk_bf16_f32 v{t+1}, v{t+1}, v{t+1}
        v_and_b32 v{t+1}, 0xffff0000, v{t+1}
        v_rcp_f32 v{t+1}, v{t+1}
        """)
    def sum8(self, r):
        self.a(f"""
        v_pk_add_f32 v[{r}:{r+1}], v[{r}:{r+1}], v[{r+2}:{r+3}]
        v_pk_add_f32 v[{r+4}:{r+5}], v[{r+4}:{r+5}], v[{r+6}:{r+7}]
        v_pk_add_f32 v[{r}:{r+1}], v[{r}:{r+1}], v[{r+4}:{r+5}]
        v_add_f32 v{r}, v{r}, v{r+1}
        """)
    def r8_addr(self, vdst, NS, wv):
        self.a(f"""
        v_lshrrev_b32 v8, 1, v2
        v_mul_u32_u24 v8, {2*NS}, v8
        v_and_b32 v9, 1, v2
        v_add_u32 v8, v8, v9
        v_mul_u32_u24 v8, 896, v8
        v_lshl_add_u32 v8, v1, 4, v8
        s_lshl_b32 s26, s{wv}, 8
        v_add_u32 v{vdst}, s26, v8
        s_cmp_eq_u32 s{wv}, 3
        s_cselect_b32 s28, 0x00ff00ff, -1
        s_mov_b32 s29, s28
        """)
    def r8_loads(self, NS, srd, vaddr, reg):
        a = self.a
        a("s_mov_b64 exec, s[28:29]")
        for s in range(NS):
            for hf in range(2):
                a(f"s_mov_b32 s26, {(4*NS*hf + 2*s)*896}")
                r = reg + 8*s + 4*hf
                a(f"buffer_load_dwordx4 v[{r}:{r+3}], v{vaddr}, s[{srd}:{srd+3}], s26 offen nt")
        a("s_mov_b64 exec, -1")
    def r8_pub_addr(self, vdst, wv, sslot):
        self.a(f"""
        v_lshlrev_b32 v8, 5, v1
        v_and_b32 v9, 1, v2
        v_lshl_add_u32 v8, v9, 4, v8
        v_lshrrev_b32 v9, 1, v2
        v_lshl_add_u32 v8, v9, 13, v8
        s_lshl_b32 s26, s{wv}, 9
        s_add_u32 s26, s26, s{sslot}
        v_add_u32 v{vdst}, s26, v8
        """)
    def r8_gemv(self, NS, X, reg, vpub, sofs):
        a = self.a
        a("v_mov_b32 v42, 0\nv_mov_b32 v43, 0\nv_mov_b32 v44, 0\nv_mov_b32 v45, 0")
        nrd = NS // 4
        a(f"s_waitcnt lgkmcnt({nrd-1})")
        self.abuild(34, X)
        for s in range(NS):
            A = 34 + 4*(s & 1)
            if s + 1 < NS:
                if (s + 1) % 4 == 0: a(f"s_waitcnt lgkmcnt({nrd - 1 - (s+1)//4})")
                self.abuild(34 + 4*((s+1) & 1), X + s + 1)
            a(f"v_smfmac_f32_16x16x64_bf16 v[42:45], v[{A}:{A+3}], v[{reg+8*s}:{reg+8*s+7}], v7")
        a("s_mov_b64 exec, s[28:29]")
        a("v_min_u32 v42, -2, v42")
        a(f"buffer_store_dwordx4 v[42:45], v{vpub}, s[4:7], s{sofs} offen sc1")
        a("s_mov_b64 exec, -1")

    def role_q(self):
        a = self.a
        a("L_Q:\ns_mov_b32 s21, s2")
        a("s_cmp_gt_u32 s22, 4\ns_cbranch_scc1 L_exit\ns_cmp_eq_u32 s22, 4\ns_cbranch_scc1 L_Qh")
        self.srd(16, 64, 896)
        a("s_lshl_b32 s27, s21, 7")
        self.srd(8, 70, 448*8192 - 0, off_s=27)
        a("s_sub_u32 s10, s10, s27")
        self.x_load()
        self.r16_addr(15, 8192)
        self.r16_loads(8, 128, 8192, 15)
        self.masks()
        self.front_setup(C_H4, C_XR1)
        a(f"v_lshlrev_b32 v58, 2, v0\nv_add_u32 v58, 1024, v58")
        a(f"s_lshl_b32 s26, s21, 7\ns_add_u32 s26, s26, {C_H1*CH}\nv_lshrrev_b32 v8, 3, v0\nv_lshl_add_u32 v14, v8, 4, s26")
        a("s_mov_b32 s23, -1\nv_mov_b32 v24, 0x3f803f80\ns_mov_b64 exec, s[48:49]\ns_waitcnt vmcnt(0)")
        self.stamp(1)
        a("s_branch L_Qg")
        a("L_Qloop:")
        a("s_cmp_eq_u32 s23, 0\ns_cbranch_scc0 L_Qgath\nv_mov_b32 v24, v25\ns_mov_b64 exec, s[48:49]\ns_branch L_Qg")
        a("L_Qgath:")
        a("v_mov_b32 v8, 12288\nds_read_b32 v9, v8\ns_waitcnt lgkmcnt(0)\nv_readfirstlane_b32 s24, v9")
        a(f"s_mov_b32 s27, {ID_F}")
        self.flag_poll("q", 27, NF)
        self.gather("q", 14, False)
        self.stamp(5)
        a("L_Qg:")
        self.front_gemv(False)
        self.stamp_l(2, 6)
        a("s_cmp_eq_u32 s23, 1\ns_cselect_b32 s26, s21, 1\ns_cmp_eq_u32 s26, 0\ns_cbranch_scc0 L_Qnx")
        a(f"s_mov_b64 exec, s[48:49]\nv_subrev_u32 v8, s20, v17\ns_mov_b32 s26, {(C_XR2-C_XR1)*CH & 0xffffffff}\nv_add_u32 v8, s26, v8\ns_mov_b32 s26, 8192")
        a("buffer_store_dwordx2 v[50:51], v8, s[4:7], 0 offen sc1\nbuffer_store_dwordx2 v[50:51], v8, s[4:7], s26 offen sc1\ns_mov_b64 exec, -1")
        a("L_Qnx:")
        a("s_cmp_eq_u32 s22, 0\ns_cbranch_scc0 L_Qnext")
        a(f"s_and_b32 s26, s23, 1\ns_mul_i32 s26, s26, 4352\nv_add_u32 v10, s26, v58\ns_add_u32 s26, s26, {1024+4096}\nv_mov_b32 v11, s26")
        self.back_reduce(False, 10, 60)
        self.ln_scalars(60, 4)
        a("s_waitcnt lgkmcnt(0)")
        self.sum8(60)
        a("s_cmp_eq_u32 s23, -1\ns_cbranch_scc0 L_Qpub\nv_mov_b32 v57, v60\ns_branch L_Qnext")
        a("L_Qpub:")
        a("""
        v_fma_f32 v60, -v76, v57, v60
        v_mul_f32 v60, v60, v77
        v_mov_b32_dpp v61, v60 quad_perm:[1,0,3,2] row_mask:0xf bank_mask:0xf
        v_cvt_pk_bf16_f32 v64, v60, v61
        v_mov_b32_dpp v65, v64 row_shl:2 row_mask:0xf bank_mask:0xf
        v_mov_b32_dpp v66, v64 row_shl:4 row_mask:0xf bank_mask:0xf
        v_mov_b32_dpp v67, v64 row_shl:6 row_mask:0xf bank_mask:0xf
        v_min_u32 v64, -2, v64
        s_lshl_b32 s26, s23, 14
        s_add_u32 s27, s26, 8192
        s_mov_b32 exec_lo, 0x01010101
        s_mov_b32 exec_hi, 0x01010101
        buffer_store_dwordx4 v[64:67], v14, s[4:7], s26 offen sc1
        buffer_store_dwordx4 v[64:67], v14, s[4:7], s27 offen sc1
        s_mov_b64 exec, -1
        """)
        self.stamp_l(3, 7)
        a("L_Qnext:\ns_add_u32 s23, s23, 1\ns_cmp_lt_i32 s23, 2\ns_cbranch_scc1 L_Qloop")
        a("s_cmp_lt_u32 s21, 7\ns_cbranch_scc0 L_exit\ns_cmp_eq_u32 s22, 0\ns_cbranch_scc0 L_exit")
        self.srd(16, 82, 896)
        a(f"""
        v_lshrrev_b32 v8, 1, v2
        v_lshlrev_b32 v8, 4, v8
        v_and_b32 v9, 1, v2
        v_mad_u32_u24 v8, v9, 7, v8
        s_lshl_b32 s26, s21, 8
        s_add_u32 s26, s26, s20
        s_add_u32 s26, s26, {(C_H4+8)*CH}
        v_lshl_add_u32 v9, v1, 4, s26
        """)
        for i in range(7):
            a(f"v_add_u32 v10, {i}, v8\nv_lshrrev_b32 v11, 2, v10\nv_lshl_add_u32 v11, v11, 14, v9\nv_and_b32 v10, 3, v10\nv_lshl_add_u32 v{90+i}, v10, 11, v11")
        a(f"""
        v_lshrrev_b32 v8, 1, v2
        v_lshlrev_b32 v8, 1, v8
        v_and_b32 v9, 1, v2
        v_add_u32 v8, v8, v9
        v_lshl_add_u32 v8, v1, 2, v8
        s_lshl_b32 s26, s21, 6
        v_add_u32 v8, s26, v8
        v_lshlrev_b32 v97, 1, v8
        s_add_u32 s26, s20, {C_XR3*CH}
        v_lshl_add_u32 v98, v8, 2, s26
        s_mov_b32 s25, 0
        L_Fp:
        buffer_load_dword v22, v98, s[4:7], 0 offen sc1
        """)
        for i in range(7):
            a(f"buffer_load_dwordx4 v[{60+4*i}:{63+4*i}], v{90+i}, s[4:7], 0 offen sc1")
        self.timeout()
        a("s_waitcnt vmcnt(5)\nv_max3_u32 v54, v22, v60, v64\nv_pk_add_f32 v[50:51], v[60:61], v[64:65]\nv_pk_add_f32 v[52:53], v[62:63], v[66:67]")
        for i in range(2, 7):
            r = 60 + 4*i
            a(f"s_waitcnt vmcnt({6-i})\nv_max_u32 v54, v54, v{r}\nv_pk_add_f32 v[50:51], v[50:51], v[{r}:{r+1}]\nv_pk_add_f32 v[52:53], v[52:53], v[{r+2}:{r+3}]")
        a("""
        v_cmp_eq_u32 vcc, -1, v54
        s_cbranch_vccnz L_Fp
        v_permlane32_swap_b32 v50, v52
        v_permlane32_swap_b32 v51, v53
        v_pk_add_f32 v[50:51], v[50:51], v[52:53]
        v_permlane16_swap_b32 v50, v51
        v_add_f32 v50, v50, v51
        v_cvt_pk_bf16_f32 v50, v50, v50
        v_and_b32 v50, 0xffff0000, v50
        v_add_f32 v50, v50, v22
        v_cvt_pk_bf16_f32 v50, v50, v50
        buffer_store_short v50, v97, s[16:19], 0 offen
        """)
        self.stamp(8)
        a("s_cmp_eq_u32 s21, 0\ns_cbranch_scc0 L_exit\nv_mov_b32 v9, s24\nv_mov_b32 v8, 0\ns_mov_b64 exec, 1\nbuffer_store_dword v9, v8, s[4:7], 0 offen sc1\ns_branch L_exit")
        a("L_Qh:")
        self.epoch_load()
        a(f"""
        v_and_b32 v8, 7, v0
        v_lshlrev_b32 v8, 4, v8
        v_lshrrev_b32 v11, 3, v0
        v_lshl_add_u32 v8, v11, 13, v8
        s_lshl_b32 s26, s21, 7
        s_add_u32 s26, s26, {C_H1*CH}
        s_mov_b32 exec_hi, 0
        buffer_store_dwordx4 v[12:15], v8, s[4:7], s26 offen sc1
        s_mov_b64 exec, -1
        v_lshlrev_b32 v10, 4, v0
        s_cmp_eq_u32 s21, 0
        s_cbranch_scc0 L_Qh1
        s_mov_b32 s30, {C_XR2*CH}
        """)
        self.reset2k(30)
        a("L_Qh1:")
        self.flag_store(0)
        a("v_mov_b32 v16, 12288\nds_write_b32 v16, v11\ns_waitcnt lgkmcnt(0)\ns_branch L_exit")

    def role_f(self):
        a = self.a
        a(f"L_F:\ns_sub_u32 s21, s2, {ID_F}")
        a("s_cmp_gt_u32 s22, 3\ns_cbranch_scc1 L_Fb")
        self.srd(16, 64, 896)
        a("s_lshl_b32 s27, s21, 7")
        self.srd(8, 76, 448*3584, off_s=27)
        a("s_sub_u32 s10, s10, s27")
        self.srd(12, 78, 448*3584, off_s=27)
        a("s_sub_u32 s14, s14, s27")
        self.x_load()
        self.r16_addr(15, 3584)
        self.r16_loads(8, 128, 3584, 15)
        self.r16_loads(12, 184, 3584, 15)
        self.masks()
        self.front_setup(C_H3, C_XR2)
        a("s_mov_b32 s23, -1\nv_mov_b32 v24, 0x3f803f80\ns_waitcnt vmcnt(0)\nv_lshlrev_b32 v22, 16, v25\nv_and_b32 v23, 0xffff0000, v25\ns_mov_b64 exec, s[48:49]")
        self.stamp(1)
        a("s_branch L_Fg")
        a("L_Floop:")
        self.gather("f", 16, True)
        self.stamp_l(2, 5)
        a("L_Fg:")
        self.front_gemv(True)
        self.stamp_l(3, 6)
        a("s_cmp_ge_i32 s23, 0\ns_cselect_b32 s26, s21, 1\ns_cmp_eq_u32 s26, 0\ns_cbranch_scc0 L_Fnx")
        a(f"s_mov_b64 exec, s[48:49]\nv_subrev_u32 v8, s20, v17\ns_lshl_b32 s26, s23, 14\ns_add_u32 s26, s26, {(C_XR1-C_XR2)*CH}\ns_add_u32 s27, s26, 8192")
        a("buffer_store_dwordx2 v[50:51], v8, s[4:7], s26 offen sc1\nbuffer_store_dwordx2 v[50:51], v8, s[4:7], s27 offen sc1\ns_mov_b64 exec, -1")
        a("L_Fnx:")
        a(f"s_cmp_eq_u32 s23, 0\ns_cbranch_scc0 L_Fn2\nv_add_u32 v16, {8*CH}, v16\nv_add_u32 v13, {8*CH}, v13\nL_Fn2:")
        a("s_add_u32 s23, s23, 1\ns_cmp_lt_i32 s23, 2\ns_cbranch_scc1 L_Floop\ns_branch L_exit")
        a("L_Fb:\ns_sub_u32 s30, s22, 4")
        a("s_mul_i32 s27, s21, 57344")
        self.srd(8, 80, 57344, off_s=27)
        a(f"""
        s_cmp_ge_u32 s21, 14
        s_cselect_b32 s26, 2, 0
        s_add_u32 s26, s26, s21
        s_lshr_b32 s27, s26, 2
        s_lshl_b32 s27, s27, 14
        s_and_b32 s26, s26, 3
        s_lshl_b32 s26, s26, 11
        s_add_u32 s52, s26, s27
        s_add_u32 s52, s52, {C_H4*CH}
        s_cmp_eq_u32 s22, 4
        s_cbranch_scc0 L_Fb1
        """)
        self.epoch_load()
        a("v_lshlrev_b32 v10, 4, v0")
        self.reset2k(52)
        a(f"s_add_u32 s53, s52, {8*CH}")
        self.reset2k(53)
        a(f"s_cmp_eq_u32 s21, 0\ns_cbranch_scc0 L_Fb1\ns_mov_b32 s53, {C_XR1*CH}")
        self.reset2k(53)
        a(f"s_mov_b32 s53, {C_XR3*CH}")
        self.reset2k(53)
        a("L_Fb1:")
        self.r8_addr2(16, 8, 30)
        self.r8_loads(8, 8, 16, 128)
        a("s_cmp_eq_u32 s22, 4\ns_cbranch_scc0 L_Fb2")
        self.flag_store(16)
        a(f"s_mov_b32 s27, {ID_W}")
        self.flag_poll("f", 27, NW, extra_id=ID_Q)
        a("L_Fb2:")
        self.masks()
        self.r8_pub_addr(17, 30, 52)
        a("v_lshlrev_b32 v58, 2, v0\nv_add_u32 v58, 1024, v58")
        a("s_lshl_b32 s26, s30, 7\ns_add_u32 s26, s26, 10240\nv_lshl_add_u32 v18, v0, 1, s26\nv_lshl_add_u32 v19, v2, 5, s26")
        a("s_mov_b32 s23, -1\ns_waitcnt vmcnt(0)")
        self.stamp(1)
        a("L_Fbl:")
        a(f"s_and_b32 s26, s23, 1\ns_mul_i32 s26, s26, 4352\nv_add_u32 v10, s26, v58\ns_add_u32 s26, s26, {1024+4096}\nv_mov_b32 v11, s26\ns_lshl_b32 s27, s23, 17")
        a("s_barrier")
        self.stamp_l(2, 5)
        self.back_reduce(True, 10, 60)
        self.ln_scalars(60, 8)
        a("s_waitcnt lgkmcnt(4)")
        self.sum8(60)
        a("s_waitcnt lgkmcnt(0)")
        self.sum8(68)
        a("s_cmp_eq_u32 s23, -1\ns_cbranch_scc0 L_Fbh\nv_mov_b32 v56, v60\nv_mov_b32 v57, v68\ns_mov_b32 s23, 0\ns_branch L_Fbl")
        a(f"""
        L_Fbh:
        v_fma_f32 v60, -v76, v56, v60
        v_fma_f32 v68, -v76, v57, v68
        v_mul_f32 v60, v60, v77
        v_mul_f32 v68, v68, v77
        v_cvt_pk_bf16_f32 v61, v60, v68
        v_lshlrev_b32 v60, 16, v61
        v_and_b32 v68, 0xffff0000, v61
        v_mul_f32 v61, {hex(f2u(-LOG2E))}, v60
        v_exp_f32 v61, v61
        v_add_f32 v61, 1.0, v61
        v_rcp_f32 v61, v61
        v_mul_f32 v61, v60, v61
        v_cvt_pk_bf16_f32 v61, v61, v61
        v_and_b32 v61, 0xffff0000, v61
        v_mul_f32 v61, v61, v68
        v_cvt_pk_bf16_f32 v61, v61, v61
        ds_write_b16 v18, v61
        s_waitcnt lgkmcnt(0)
        ds_read_b128 v[26:29], v19
        ds_read_b128 v[30:33], v19 offset:16
        """)
        self.stamp_l(3, 6)
        self.r8_gemv(8, 26, 128, 17, 27)
        self.stamp_l(4, 7)
        a("s_add_u32 s23, s23, 1\ns_cmp_lt_i32 s23, 2\ns_cbranch_scc1 L_Fbl\ns_branch L_exit")
    def r8_addr2(self, vdst, NS, wv):
        self.a(f"""
        v_lshrrev_b32 v20, 1, v2
        v_mul_u32_u24 v20, {2*NS}, v20
        v_and_b32 v21, 1, v2
        v_add_u32 v20, v20, v21
        v_mul_u32_u24 v20, 896, v20
        v_lshl_add_u32 v20, v1, 4, v20
        s_lshl_b32 s26, s{wv}, 8
        v_add_u32 v{vdst}, s26, v20
        s_cmp_eq_u32 s{wv}, 3
        s_cselect_b32 s28, 0x00ff00ff, -1
        s_mov_b32 s29, s28
        """)

    def role_w(self):
        a = self.a
        a(f"L_W:\ns_sub_u32 s21, s2, {ID_W}")
        a(f"""
        s_lshr_b32 s27, s21, 2
        s_lshl_b32 s27, s27, 14
        s_and_b32 s26, s21, 3
        s_lshl_b32 s26, s26, 11
        s_add_u32 s53, s26, s27
        s_add_u32 s52, s53, {C_H3*CH}
        """)
        a("s_cmp_gt_u32 s22, 4\ns_cbranch_scc1 L_exit\ns_cmp_eq_u32 s22, 4\ns_cbranch_scc1 L_Wh")
        a("s_mul_i32 s27, s21, 114688")
        self.srd(8, 72, 114688, off_s=27)
        self.r8_addr(16, 16, 22)
        self.r8_loads(16, 8, 16, 128)
        self.masks()
        self.r8_pub_addr(17, 22, 52)
        a(f"""
        v_lshrrev_b32 v8, 2, v0
        v_and_b32 v9, 3, v0
        v_lshlrev_b32 v10, 9, v8
        v_lshl_add_u32 v10, v9, 5, v10
        s_lshl_b32 s26, s21, 14
        s_add_u32 s26, s26, s20
        s_lshl_b32 s27, s22, 7
        s_add_u32 s26, s26, s27
        s_add_u32 s26, s26, {C_H2O*CH}
        v_add_u32 v18, s26, v10
        s_add_u32 s26, s53, s20
        s_add_u32 s26, s26, {C_H2M*CH}
        v_lshl_add_u32 v19, v8, 7, s26
        v_lshlrev_b32 v10, 4, v9
        v_lshl_add_u32 v10, v2, 2, v10
        s_lshl_b32 s26, s22, 6
        v_add_u32 v20, s26, v10
        v_lshlrev_b32 v21, 6, v2
        s_mov_b32 s23, 0
        s_waitcnt vmcnt(0)
        """)
        self.stamp(1)
        a("s_barrier")
        a("L_Wl:\ns_mov_b32 s25, 0")
        a(f"s_mul_i32 s30, s23, {32*CH}\ns_lshl_b32 s27, s23, 17")
        a("""
        L_Wp:
        buffer_load_dwordx2 v[22:23], v19, s[4:7], s27 offen sc1
        buffer_load_dwordx4 v[60:63], v18, s[4:7], s30 offen sc1
        buffer_load_dwordx4 v[64:67], v18, s[4:7], s30 offen offset:16 sc1
        """)
        self.timeout()
        a("""
        s_waitcnt vmcnt(2)
        v_max_f32_dpp v24, v22, v22 row_ror:4 row_mask:0xf bank_mask:0xf
        v_max_f32_dpp v24, v24, v24 row_ror:8 row_mask:0xf bank_mask:0xf
        v_mov_b32 v25, v24
        v_permlane16_swap_b32 v24, v25
        v_max_f32 v24, v24, v25
        v_mov_b32 v25, v24
        v_permlane32_swap_b32 v24, v25
        v_max_f32 v24, v24, v25
        v_sub_f32 v24, v22, v24
        v_exp_f32 v24, v24
        s_waitcnt vmcnt(0)
        v_max3_u32 v54, v22, v60, v64
        v_cmp_eq_u32 vcc, -1, v54
        s_cbranch_vccnz L_Wp
        """)
        self.stamp_l(2, 5)
        a("""
        v_mul_f32 v26, v23, v24
        v_pk_mul_f32 v[60:61], v[60:61], v[24:25] op_sel_hi:[1,0]
        v_pk_mul_f32 v[64:65], v[64:65], v[24:25] op_sel_hi:[1,0]
        v_pk_mul_f32 v[62:63], v[62:63], v[24:25] op_sel_hi:[1,0]
        v_pk_mul_f32 v[66:67], v[66:67], v[24:25] op_sel_hi:[1,0]
        v_add_f32_dpp v26, v26, v26 row_ror:4 row_mask:0xf bank_mask:0xf
        v_permlane32_swap_b32 v60, v64
        v_permlane32_swap_b32 v61, v65
        v_add_f32_dpp v26, v26, v26 row_ror:8 row_mask:0xf bank_mask:0xf
        v_permlane32_swap_b32 v62, v66
        v_permlane32_swap_b32 v63, v67
        v_mov_b32 v27, v26
        v_pk_add_f32 v[60:61], v[60:61], v[64:65]
        v_pk_add_f32 v[62:63], v[62:63], v[66:67]
        v_permlane16_swap_b32 v26, v27
        v_add_f32 v26, v26, v27
        v_permlane16_swap_b32 v60, v62
        v_permlane16_swap_b32 v61, v63
        v_mov_b32 v27, v26
        v_pk_add_f32 v[60:61], v[60:61], v[62:63]
        v_permlane32_swap_b32 v26, v27
        v_add_f32_dpp v60, v60, v60 row_ror:4 row_mask:0xf bank_mask:0xf
        v_add_f32_dpp v61, v61, v61 row_ror:4 row_mask:0xf bank_mask:0xf
        v_add_f32 v26, v26, v27
        v_rcp_f32 v26, v26
        v_add_f32_dpp v60, v60, v60 row_ror:8 row_mask:0xf bank_mask:0xf
        v_add_f32_dpp v61, v61, v61 row_ror:8 row_mask:0xf bank_mask:0xf
        v_pk_mul_f32 v[60:61], v[60:61], v[26:27] op_sel_hi:[1,0]
        v_cvt_pk_bf16_f32 v60, v60, v61
        ds_write_b32 v20, v60
        s_waitcnt lgkmcnt(0)
        s_barrier
        ds_read_b128 v[60:63], v21
        ds_read_b128 v[64:67], v21 offset:16
        ds_read_b128 v[68:71], v21 offset:32
        ds_read_b128 v[72:75], v21 offset:48
        """)
        self.stamp_l(3, 6)
        self.r8_gemv(16, 60, 128, 17, 27)
        self.stamp_l(4, 7)
        a("s_add_u32 s23, s23, 1\ns_cmp_lt_i32 s23, 2\ns_cbranch_scc1 L_Wl\ns_branch L_exit")
        a("L_Wh:")
        self.epoch_load()
        a("v_lshlrev_b32 v10, 4, v0")
        self.reset2k(52)
        a(f"s_add_u32 s53, s52, {8*CH}")
        self.reset2k(53)
        self.flag_store(0)
        a(f"s_lshr_b32 s27, s21, 2\ns_lshl_b32 s27, s27, 4\ns_add_u32 s27, s27, {ID_A}")
        self.flag_poll("w", 27, 16)
        a("s_barrier\ns_branch L_exit")

    def role_a(self):
        a = self.a
        a(f"L_A:\ns_sub_u32 s21, s2, {ID_A}\ns_lshr_b32 s52, s21, 4\ns_and_b32 s53, s21, 15")
        a("s_cmp_gt_u32 s22, 4\ns_cbranch_scc1 L_exit\ns_cmp_eq_u32 s22, 4\ns_cbranch_scc1 L_Ah")
        a(f"s_lshl_b32 s27, s52, 22\ns_lshl_b32 s26, s53, 16\ns_add_u32 s27, s27, s26\ns_add_u32 s27, s27, {6144*512}")
        self.srd(8, 66, 65536, off_s=27)
        self.srd(12, 68, 65536, off_s=27)
        a("""
        s_lshl_b32 s26, s22, 14
        v_lshlrev_b32 v8, 9, v1
        v_lshl_add_u32 v8, v2, 4, v8
        v_add_u32 v16, s26, v8
        v_lshrrev_b32 v8, 1, v2
        v_and_b32 v9, 1, v2
        v_lshl_add_u32 v8, v8, 2, v9
        v_lshlrev_b32 v8, 9, v8
        v_lshl_add_u32 v8, v1, 4, v8
        v_add_u32 v17, s26, v8
        s_mov_b32 s32, 0
        s_mov_b32 s33, 4096
        s_mov_b32 s34, 8192
        s_mov_b32 s35, 12288
        """)
        KR, VR = 128, 192
        for T in range(2):
            for ks in range(8):
                r = KR + 32*T + 4*ks
                a(f"buffer_load_dwordx4 v[{r}:{r+3}], v16, s[8:11], s{32+2*T} offen offset:{64*ks} nt")
        for T in range(2):
            for aa in range(2):
                for cb in range(2):
                    for hf in range(2):
                        r = VR + ((2*T + aa)*2 + cb)*8 + 4*hf
                        if self.o.get("pace", 1): a("s_waitcnt vmcnt(15)")
                        a(f"buffer_load_dwordx4 v[{r}:{r+3}], v17, s[12:15], s{32+2*T+hf} offen offset:{1024*aa + 256*cb} nt")
        self.masks()
        a(f"""
        v_lshrrev_b32 v8, 3, v1
        v_lshlrev_b32 v8, 9, v8
        v_lshl_add_u32 v18, v2, 4, v8
        v_lshrrev_b32 v8, 1, v2
        v_lshlrev_b32 v8, 10, v8
        v_lshl_add_u32 v8, v1, 5, v8
        v_and_b32 v9, 1, v2
        v_lshl_add_u32 v8, v9, 4, v8
        s_lshl_b32 s26, s22, 11
        s_add_u32 s26, s26, 1024
        v_add_u32 v19, s26, v8
        v_lshrrev_b32 v8, 3, v1
        s_lshl_b32 s26, s22, 3
        s_add_u32 s26, s26, 9216
        v_lshl_add_u32 v20, v8, 5, s26
        v_and_b32 v8, 31, v0
        s_lshl_b32 s26, s22, 9
        s_add_u32 s26, s26, 1024
        v_lshl_add_u32 v21, v8, 4, s26
        s_lshr_b32 s26, s22, 1
        s_lshl_b32 s26, s26, 5
        s_add_u32 s26, s26, 9216
        v_mov_b32 v22, s26
        s_lshl_b32 s26, s52, 2
        s_add_u32 s26, s26, s22
        s_lshl_b32 s27, s26, 14
        s_lshl_b32 s30, s53, 9
        s_add_u32 s27, s27, s30
        s_add_u32 s27, s27, {C_H2O*CH}
        v_lshrrev_b32 v9, 5, v0
        v_lshlrev_b32 v9, 13, v9
        v_lshl_add_u32 v8, v8, 4, v9
        v_add_u32 v23, s27, v8
        s_lshl_b32 s27, s52, 14
        s_lshl_b32 s30, s22, 11
        s_add_u32 s27, s27, s30
        s_lshl_b32 s30, s53, 7
        s_add_u32 s27, s27, s30
        s_add_u32 s27, s27, {C_H2M*CH}
        v_add_u32 v24, s27, v9
        s_mov_b32 s36, {hex(f2u(LOG2E/16))}
        s_mov_b32 s23, 0
        s_waitcnt vmcnt(16)
        """)
        self.stamp(1)
        if self.o.get("vstamp"):
            a("s_waitcnt vmcnt(0)"); self.stamp(9)
        a("L_Al:\ns_barrier")
        self.stamp_l(2, 6)
        QR = 60
        for ks in range(8):
            a(f"ds_read_b128 v[{QR+4*ks}:{QR+4*ks+3}], v18 offset:{64*ks}")
        for ks in range(8):
            a(f"s_waitcnt lgkmcnt({7-ks})")
            for T in range(2):
                c = "0" if ks == 0 else f"v[{44+4*T}:{47+4*T}]"
                a(f"v_mfma_f32_16x16x32_bf16 v[{44+4*T}:{47+4*T}], v[{KR+32*T+4*ks}:{KR+32*T+4*ks+3}], v[{QR+4*ks}:{QR+4*ks+3}], {c}")
        for i in range(8): a(f"v_mov_b32 v{92+i}, 0")
        for k in range(4): a(f"v_cvt_pk_bf16_f32 v{52+k}, v{44+2*k}, v{45+2*k}")
        for k in range(4): a(f"v_lshlrev_b32 v{44+2*k}, 16, v{52+k}\nv_and_b32 v{45+2*k}, 0xffff0000, v{52+k}")
        a("""
        v_max3_f32 v52, v44, v45, v46
        v_max3_f32 v53, v47, v48, v49
        v_max3_f32 v52, v50, v51, v52
        v_max_f32 v52, v52, v53
        v_mov_b32 v53, v52
        v_permlane32_swap_b32 v52, v53
        v_max_f32 v52, v52, v53
        v_mov_b32 v53, v52
        v_permlane16_swap_b32 v52, v53
        v_max_f32 v52, v52, v53
        v_mul_f32 v56, s36, v52
        """)
        for k in range(8): a(f"v_fma_f32 v{44+k}, v{44+k}, s36, -v56")
        for k in range(8): a(f"v_exp_f32 v{44+k}, v{44+k}")
        for k in range(4): a(f"v_cvt_pk_bf16_f32 v{52+k}, v{44+2*k}, v{45+2*k}")
        self.abuild(34, 52)
        a("s_waitcnt vmcnt(0)")
        self.stamp_l(3, 7)
        fill = ["v_pk_add_f32 v[44:45], v[44:45], v[46:47]\nv_pk_add_f32 v[48:49], v[48:49], v[50:51]",
                "v_pk_add_f32 v[44:45], v[44:45], v[48:49]\nv_add_f32 v57, v44, v45\nv_mov_b32 v58, v57",
                "v_permlane32_swap_b32 v57, v58\nv_add_f32 v57, v57, v58\nv_mov_b32 v58, v57",
                "v_permlane16_swap_b32 v57, v58\nv_add_f32 v57, v57, v58"]
        for n in range(4):
            A = 34 + 4*(n & 1)
            if n < 3: self.abuild(34 + 4*((n+1) & 1), 52 + n + 1)
            for cb in range(2):
                r = VR + (n*2 + cb)*8
                a(f"v_smfmac_f32_16x16x64_bf16 v[{92+4*cb}:{95+4*cb}], v[{A}:{A+3}], v[{r}:{r+7}], v7")
            a(fill[n])
        a("""
        s_mov_b64 exec, 0x101
        ds_write_b64 v20, v[56:57]
        s_mov_b64 exec, -1
        ds_write_b128 v19, v[92:95]
        ds_write_b128 v19, v[96:99] offset:512
        s_waitcnt lgkmcnt(0)
        s_barrier
        ds_read_b128 v[44:47], v22
        ds_read_b128 v[48:51], v22 offset:16
        ds_read_b128 v[60:63], v21
        ds_read_b128 v[64:67], v21 offset:2048
        ds_read_b128 v[68:71], v21 offset:4096
        ds_read_b128 v[72:75], v21 offset:6144
        s_waitcnt lgkmcnt(4)
        v_max3_f32 v56, v44, v46, v48
        v_max_f32 v56, v56, v50
        v_sub_f32 v52, v44, v56
        v_sub_f32 v53, v46, v56
        v_sub_f32 v54, v48, v56
        v_sub_f32 v55, v50, v56
        v_exp_f32 v52, v52
        v_exp_f32 v53, v53
        v_exp_f32 v54, v54
        v_exp_f32 v55, v55
        s_waitcnt lgkmcnt(3)
        v_pk_mul_f32 v[60:61], v[60:61], v[52:53] op_sel_hi:[1,0]
        v_pk_mul_f32 v[62:63], v[62:63], v[52:53] op_sel_hi:[1,0]
        s_waitcnt lgkmcnt(2)
        v_pk_fma_f32 v[60:61], v[64:65], v[52:53], v[60:61] op_sel:[0,1,0] op_sel_hi:[1,1,1]
        v_pk_fma_f32 v[62:63], v[66:67], v[52:53], v[62:63] op_sel:[0,1,0] op_sel_hi:[1,1,1]
        s_waitcnt lgkmcnt(1)
        v_pk_fma_f32 v[60:61], v[68:69], v[54:55], v[60:61] op_sel_hi:[1,0,1]
        v_pk_fma_f32 v[62:63], v[70:71], v[54:55], v[62:63] op_sel_hi:[1,0,1]
        s_waitcnt lgkmcnt(0)
        v_pk_fma_f32 v[60:61], v[72:73], v[54:55], v[60:61] op_sel:[0,1,0] op_sel_hi:[1,1,1]
        v_pk_fma_f32 v[62:63], v[74:75], v[54:55], v[62:63] op_sel:[0,1,0] op_sel_hi:[1,1,1]
        """)
        a(f"s_mul_i32 s26, s23, {32*CH}\ns_lshl_b32 s27, s23, 17")
        a("""
        v_mul_f32 v57, v52, v45
        v_min_u32 v60, -2, v60
        buffer_store_dwordx4 v[60:63], v23, s[4:7], s26 offen sc1
        v_fmac_f32 v57, v53, v47
        v_fmac_f32 v57, v54, v49
        v_fmac_f32 v57, v55, v51
        v_min_u32 v56, -2, v56
        s_mov_b32 exec_lo, 1
        s_mov_b32 exec_hi, 1
        buffer_store_dwordx2 v[56:57], v24, s[4:7], s27 offen sc1
        s_mov_b64 exec, -1
        """)
        self.stamp_l(4, 8)
        a("s_add_u32 s23, s23, 1\ns_cmp_lt_i32 s23, 2\ns_cbranch_scc1 L_Al\ns_branch L_exit")
        a("L_Ah:")
        self.epoch_load()
        a(f"""
        v_and_b32 v8, 31, v0
        v_lshrrev_b32 v11, 5, v0
        v_lshlrev_b32 v11, 13, v11
        v_lshl_add_u32 v10, v8, 4, v11
        s_lshl_b32 s27, s52, 16
        s_lshl_b32 s30, s53, 9
        s_add_u32 s27, s27, s30
        s_add_u32 s27, s27, {C_H2O*CH}
        """)
        for L in range(2):
            for w in range(4):
                a(f"s_add_u32 s26, s27, {(L*32 + w)*CH}\nbuffer_store_dwordx4 v[12:15], v10, s[4:7], s26 offen sc1")
        a(f"""
        v_and_b32 v8, 3, v0
        v_lshlrev_b32 v8, 11, v8
        v_bfe_u32 v11, v0, 2, 1
        v_lshl_add_u32 v8, v11, 13, v8
        v_bfe_u32 v11, v0, 3, 1
        v_lshl_add_u32 v8, v11, 17, v8
        s_lshl_b32 s27, s52, 14
        s_lshl_b32 s30, s53, 7
        s_add_u32 s27, s27, s30
        s_add_u32 s27, s27, {C_H2M*CH}
        s_mov_b64 exec, 0xffff
        buffer_store_dwordx4 v[12:15], v8, s[4:7], s27 offen sc1
        s_mov_b64 exec, -1
        """)
        self.flag_store(0)
        a(f"s_lshl_b32 s27, s52, 3\ns_add_u32 s27, s27, {ID_Q}")
        self.flag_poll("a", 27, 8)
        a(f"""
        v_lshlrev_b32 v16, 4, v0
        s_lshl_b32 s26, s52, 10
        s_add_u32 s26, s26, s20
        s_add_u32 s26, s26, {C_H1*CH}
        v_add_u32 v17, s26, v16
        s_mov_b32 s23, 0
        L_Ahl:
        s_lshl_b32 s26, s23, 14
        s_mov_b32 s25, 0
        L_Ahp:
        buffer_load_dwordx4 v[20:23], v17, s[4:7], s26 offen sc1
        """)
        self.timeout()
        a("""
        s_waitcnt vmcnt(0)
        v_cmp_eq_u32 vcc, -1, v20
        s_cbranch_vccnz L_Ahp
        ds_write_b128 v16, v[20:23]
        s_waitcnt lgkmcnt(0)
        s_barrier
        s_barrier
        s_add_u32 s23, s23, 1
        s_cmp_lt_i32 s23, 2
        s_cbranch_scc1 L_Ahl
        s_branch L_exit
        """)

    def build(self):
        a = self.a
        a(f"s_cmp_ge_u32 s2, {NWG}\ns_cbranch_scc1 L_end")
        if self.o.get("dbg"): a("s_memrealtime s[56:57]")
        a("s_load_dwordx16 s[64:79], s[0:1], 0\ns_load_dwordx8 s[80:87], s[0:1], 64")
        if self.diag:
            for s in self.STS: a(f"s_mov_b32 s{s}, 0")
            a("s_mov_b32 s23, -1")
        a("""
        v_lshrrev_b32 v1, 6, v0
        v_and_b32 v0, 63, v0
        s_getreg_b32 s20, hwreg(HW_REG_XCC_ID, 0, 4)
        v_readfirstlane_b32 s22, v1
        s_bfe_u32 s20, s20, 0x10002
        s_lshl_b32 s20, s20, 13
        v_and_b32 v1, 15, v0
        v_lshrrev_b32 v2, 4, v0
        s_cmp_lt_u32 s22, 4
        s_cbranch_scc1 L_np
        s_setprio 3
        L_np:
        s_waitcnt lgkmcnt(0)
        """)
        self.stamp(0)
        self.srd(4, 86, (4 << 20) if self.diag else (2 << 20))
        a(f"s_cmp_lt_u32 s2, {ID_A}\ns_cbranch_scc1 L_Q\ns_cmp_lt_u32 s2, {ID_W}\ns_cbranch_scc1 L_A\ns_cmp_lt_u32 s2, {ID_F}\ns_cbranch_scc1 L_W\ns_branch L_F")
        self.role_q(); self.role_a(); self.role_w(); self.role_f()
        a("L_exit:")
        if self.o.get("dbg"):
            a("s_cmp_eq_u32 s22, 0\ns_cbranch_scc0 L_end\ns_mov_b32 s26, -1")
            for n, w in enumerate((0, 64, 191, 192, 224, 251)):
                a(f"s_cmp_eq_u32 s2, {w}\ns_cselect_b32 s26, {8*n}, s26")
            a("s_cmp_eq_u32 s26, -1\ns_cbranch_scc1 L_end\ns_memrealtime s[54:55]")
            self.srd(8, 84, 256)
            a("s_mov_b64 exec, 1\ns_waitcnt lgkmcnt(0)\nv_mov_b32 v8, 0\nv_mov_b32 v12, s56\nv_mov_b32 v13, s54")
            a("buffer_store_dwordx2 v[12:13], v8, s[8:11], s26 offen")
        if self.diag:
            a("s_mov_b64 exec, -1\ns_waitcnt vmcnt(0) lgkmcnt(0)")
            self.stamp(19)
            a("s_lshl_b32 s26, s2, 3\ns_add_u32 s26, s26, s22\ns_lshl_b32 s26, s26, 7\ns_add_u32 s26, s26, 0x200000\nv_mov_b32 v8, 0\ns_mov_b64 exec, 1")
            for k in range(0, 20, 4):
                for i in range(4): a(f"v_mov_b32 v{12+i}, s{self.STS[k+i]}")
                a(f"buffer_store_dwordx4 v[12:15], v8, s[4:7], s26 offen offset:{4*k}")
            a("s_waitcnt vmcnt(0)")
        a("L_end:")
        hdr = open("interleave_layers__sliding_block_cached__glu_gated_swiglu__decode.s.ref").read().split("\n")
        top = [l for l in hdr if l.startswith(";") and "@launch" not in l]
        out = "\n".join(top) + f"\n; @launch grid=({NWG},1,1) block=(512,1,1) lds=16384\n"
        out += f'.amdgcn_target "amdgcn-amd-amdhsa--gfx950"\n.text\n.globl {NAME}\n.p2align 8\n.type {NAME},@function\n{NAME}:\n'
        out += a.text()
        out += f"""s_endpgm
.section .rodata,"a"
.p2align 6
.amdhsa_kernel {NAME}
  .amdhsa_next_free_vgpr 256
  .amdhsa_next_free_sgpr 102
  .amdhsa_accum_offset 256
  .amdhsa_group_segment_fixed_size 0
  .amdhsa_kernarg_size 96
  .amdhsa_user_sgpr_count 2
  .amdhsa_user_sgpr_kernarg_segment_ptr 1
  .amdhsa_system_sgpr_workgroup_id_x 1
.end_amdhsa_kernel
"""
        return out

if __name__ == "__main__":
    opts = {}
    for x in sys.argv[3:]:
        k, v = x.split("=")
        opts[k] = int(v) if v.lstrip("-").isdigit() else v
    if sys.argv[1] != "-": open(sys.argv[1], "w").write(G(False, opts).build())
    if len(sys.argv) > 2 and sys.argv[2] != "-": open(sys.argv[2], "w").write(G(True, opts).build())
```

```python
import sys
from asmlib import Asm
NAME = "interleave_layers__sliding_block_cached__glu_gated_swiglu__decode_kernel"
CH = 16384
C_FLAG, C_H1, C_H2O, C_H2M, C_H3, C_XR2, C_H4, C_XR1, C_XR3 = 1, 3, 8, 72, 88, 104, 105, 121, 122
NQ, NA, NW, NF = 64, 128, 32, 28
ID_Q, ID_A, ID_W, ID_F = 0, 64, 192, 224
NWG = 252
TMO = 20000
LOG2E = 1.4426950408889634
import struct
def f2u(x): return struct.unpack("<I", struct.pack("<f", x))[0]

class G:
    def __init__(self, diag=False, opts=None):
        self.a = Asm(); self.diag = diag; self.o = opts or {}
        self.nst = 0
    STS = list(range(56, 64)) + list(range(88, 100))
    def stamp(self, k):
        if not self.diag: return
        if self.o.get("lite") and k not in (0, 1, 8, 9, 19): return
        self.a(f"s_memrealtime s[54:55]\ns_waitcnt lgkmcnt(0)\ns_mov_b32 s{self.STS[k]}, s54")
    def stamp_l(self, k0, k1):
        if not self.diag: return
        if self.o.get("lite"): return
        self.a(f"s_memrealtime s[54:55]\ns_waitcnt lgkmcnt(0)\ns_cmp_eq_u32 s23, 1\ns_cselect_b32 s{self.STS[k1]}, s54, s{self.STS[k1]}\ns_cmp_eq_u32 s23, 0\ns_cselect_b32 s{self.STS[k0]}, s54, s{self.STS[k0]}")
    def srd(self, d, p, nbytes, off_s=None):
        a = self.a
        if off_s is None:
            a(f"s_mov_b32 s{d}, s{p}\ns_mov_b32 s{d+1}, s{p+1}")
        else:
            a(f"s_add_u32 s{d}, s{p}, s{off_s}\ns_addc_u32 s{d+1}, s{p+1}, 0")
        a(f"s_mov_b32 s{d+2}, {nbytes}\ns_mov_b32 s{d+3}, 0x20000")
    def timeout(self):
        self.a(f"s_add_u32 s25, s25, 1\ns_cmp_gt_u32 s25, {TMO}\ns_cbranch_scc1 L_exit")
    def masks(self):
        a = self.a
        a("""
        v_and_b32 v8, 4, v1
        v_cmp_eq_u32 vcc, 0, v8
        v_mov_b32 v9, 0xffff
        v_cndmask_b32 v3, 0, v9, vcc
        v_xor_b32 v4, v3, v9
        v_lshlrev_b32 v5, 16, v3
        v_lshlrev_b32 v6, 16, v4
        v_and_b32 v8, 3, v1
        v_mul_u32_u24 v7, 17425, v8
        v_xor_b32 v8, 1, v8
        v_mul_u32_u24 v8, 4420, v8
        v_add_u32 v7, v7, v8
        """)
    def abuild(self, dst, src):
        for d in range(4):
            self.a(f"v_and_b32 v{dst+d}, v{src}, v{3+d}")
    def epoch_load(self):
        self.a("v_mov_b32 v8, 0\nbuffer_load_dword v9, v8, s[4:7], 0 offen sc1\nv_mov_b32 v12, -1\nv_mov_b32 v13, -1\nv_mov_b32 v14, -1\nv_mov_b32 v15, -1")
    def reset2k(self, sbase):
        a = self.a
        a(f"buffer_store_dwordx4 v[12:15], v10, s[4:7], s{sbase} offen sc1")
        a(f"buffer_store_dwordx4 v[12:15], v10, s[4:7], s{sbase} offen offset:1024 sc1")
        a(f"s_add_u32 s31, s{sbase}, 8192")
        a(f"buffer_store_dwordx4 v[12:15], v10, s[4:7], s31 offen sc1")
        a(f"buffer_store_dwordx4 v[12:15], v10, s[4:7], s31 offen offset:1024 sc1")
    def flag_store(self, nleft):
        a = self.a
        a(f"s_waitcnt vmcnt({nleft})")
        a("v_readfirstlane_b32 s24, v9")
        a("s_mul_i32 s24, s24, 0x9E3779B1\ns_add_u32 s24, s24, 0x7F4A7C15")
        a(f"""
        s_lshr_b32 s26, s2, 7
        s_lshl_b32 s26, s26, 14
        s_and_b32 s27, s2, 127
        s_lshl_b32 s27, s27, 6
        s_add_u32 s26, s26, s27
        s_add_u32 s26, s26, {C_FLAG*CH}
        v_lshlrev_b32 v8, 13, v0
        v_mov_b32 v11, s24
        s_mov_b64 exec, 3
        buffer_store_dword v11, v8, s[4:7], s26 offen sc1
        s_mov_b64 exec, -1
        """)
    def flag_poll(self, tagn, first_s, n, extra_id=None):
        a = self.a
        a(f"v_add_u32 v8, s{first_s}, v0")
        nl = n
        if extra_id is not None:
            a(f"v_cmp_eq_u32 vcc, {n}, v0\nv_mov_b32 v11, {extra_id}\nv_cndmask_b32 v8, v8, v11, vcc")
            nl = n + 1
        a(f"""
        v_lshrrev_b32 v11, 7, v8
        v_lshlrev_b32 v11, 14, v11
        v_and_b32 v8, 127, v8
        v_lshl_add_u32 v8, v8, 6, v11
        v_add_u32 v8, s20, v8
        s_mov_b32 s26, {C_FLAG*CH}
        s_mov_b32 s25, 0
        s_mov_b32 exec_lo, {hex(((1 << nl) - 1) & 0xffffffff)}
        s_mov_b32 exec_hi, {hex(((1 << nl) - 1) >> 32)}
        L_fp_{tagn}:
        buffer_load_dword v11, v8, s[4:7], s26 offen sc1
        """)
        self.timeout()
        a(f"""
        s_waitcnt vmcnt(0)
        v_cmp_ne_u32 vcc, s24, v11
        s_cbranch_vccnz L_fp_{tagn}
        s_mov_b64 exec, -1
        """)
    def front_setup(self, c_src, c_xr):
        a = self.a
        a(f"""
        s_mov_b32 s48, 0x0fffffff
        s_mov_b32 s49, 0x0fffffff
        s_mov_b32 s50, 0x00ff00ff
        s_mov_b32 s51, 0xff00ff00
        v_lshrrev_b32 v8, 5, v0
        v_and_b32 v9, 31, v0
        s_mul_i32 s26, s22, 28
        v_add_u32 v10, s26, v9
        v_lshlrev_b32 v10, 4, v10
        v_lshl_add_u32 v16, v8, 16, v10
        v_add_u32 v16, s20, v16
        v_lshl_add_u32 v17, v8, 3, v10
        s_add_u32 s26, s20, {c_xr*CH}
        v_add_u32 v17, s26, v17
        v_lshl_add_u32 v11, v9, 1, v8
        v_mul_u32_u24 v12, 9363, v11
        v_lshrrev_b32 v12, 16, v12
        v_add_u32 v11, v11, v12
        v_lshlrev_b32 v11, 2, v11
        s_lshl_b32 s26, s22, 8
        v_add_u32 v18, s26, v11
        v_lshrrev_b32 v11, 3, v0
        v_lshlrev_b32 v11, 5, v11
        v_add_u32 v19, s26, v11
        v_lshrrev_b32 v11, 3, v1
        v_lshlrev_b32 v11, 8, v11
        v_and_b32 v12, 7, v1
        v_lshl_add_u32 v11, v12, 5, v11
        v_and_b32 v12, 1, v2
        v_lshl_add_u32 v11, v12, 4, v11
        s_lshl_b32 s26, s22, 9
        s_add_u32 s26, s26, 1024
        v_add_u32 v20, s26, v11
        s_lshl_b32 s26, s22, 3
        s_add_u32 s26, s26, {1024+4096}
        v_lshl_add_u32 v21, v8, 2, s26
        """)
        for i in range(16):
            a(f"s_mov_b32 s{32+i}, {c_src*CH + (i>>2)*CH + (i&3)*2048}")
        a(f"""
        v_lshrrev_b32 v8, 2, v0
        v_lshlrev_b32 v8, 14, v8
        v_and_b32 v9, 3, v0
        v_lshl_add_u32 v8, v9, 11, v8
        s_mul_i32 s26, s22, 448
        s_add_u32 s26, s26, s20
        s_add_u32 s26, s26, {c_src*CH + 432}
        v_add_u32 v13, s26, v8
        """)
    def r16_loads(self, srd, reg, rowstride, vaddr):
        for s in range(7):
            for hf in range(2):
                self.a(f"s_mov_b32 s26, {(56*hf + 2*s)*rowstride}")
                r = reg + 8*s + 4*hf
                self.a(f"buffer_load_dwordx4 v[{r}:{r+3}], v{vaddr}, s[{srd}:{srd+3}], s26 offen nt")
    def r16_addr(self, vdst, rowstride):
        self.a(f"""
        v_lshrrev_b32 v8, 1, v2
        v_lshrrev_b32 v9, 3, v1
        v_lshl_add_u32 v8, v8, 1, v9
        v_mul_u32_u24 v8, 14, v8
        v_and_b32 v9, 1, v2
        v_add_u32 v8, v8, v9
        s_mul_i32 s26, s22, 112
        v_add_u32 v8, s26, v8
        v_mul_u32_u24 v8, {rowstride}, v8
        v_and_b32 v9, 7, v1
        v_lshl_add_u32 v{vdst}, v9, 4, v8
        """)
    def x_load(self):
        self.a("""
        v_lshrrev_b32 v8, 5, v0
        v_and_b32 v9, 31, v0
        v_lshl_add_u32 v8, v9, 1, v8
        s_mul_i32 s26, s22, 56
        v_add_u32 v8, s26, v8
        v_lshlrev_b32 v8, 2, v8
        buffer_load_dword v25, v8, s[16:19], 0 offen
        """)
    def gather(self, tagn, nld, xr_cond):
        a = self.a
        mode = self.o.get("pre", "all")
        a("s_mov_b32 s25, 0")
        if mode != "none":
            a(f"s_mov_b32 exec_lo, {hex(0xffffffff if nld == 16 else 0x3fff3fff)}\ns_mov_b32 exec_hi, 0")
            a(f"L_gl_{tagn}:\nbuffer_load_dword v54, v13, s[4:7], 0 offen sc1")
            self.timeout()
            a("s_waitcnt vmcnt(0)")
            if mode == "all": a(f"v_cmp_eq_u32 vcc, -1, v54\ns_cbranch_vccnz L_gl_{tagn}")
            else: a(f"v_cmp_ne_u32 vcc, -1, v54\ns_cbranch_vccz L_gl_{tagn}")
        a("s_mov_b64 exec, s[48:49]")
        a(f"L_gp_{tagn}:")
        if xr_cond:
            a(f"s_cmp_eq_u32 s23, 0\ns_cbranch_scc1 L_gx_{tagn}")
        a("buffer_load_dwordx2 v[22:23], v17, s[4:7], 0 offen sc1")
        if xr_cond: a(f"L_gx_{tagn}:")
        for i in range(nld):
            a(f"buffer_load_dwordx4 v[{60+4*i}:{63+4*i}], v16, s[4:7], s{32+i} offen sc1")
        self.timeout()
        for i in range(0, nld, 2):
            a(f"s_waitcnt vmcnt({nld-2-i})")
            r = 60 + 4*i
            if i == 0:
                a(f"v_max3_u32 v54, v22, v{r}, v{r+4}")
                a(f"v_pk_add_f32 v[50:51], v[{r}:{r+1}], v[{r+4}:{r+5}]\nv_pk_add_f32 v[52:53], v[{r+2}:{r+3}], v[{r+6}:{r+7}]")
            else:
                a(f"v_max3_u32 v54, v54, v{r}, v{r+4}")
                a(f"v_pk_add_f32 v[{r}:{r+1}], v[{r}:{r+1}], v[{r+4}:{r+5}]\nv_pk_add_f32 v[{r+2}:{r+3}], v[{r+2}:{r+3}], v[{r+6}:{r+7}]")
                a(f"v_pk_add_f32 v[50:51], v[50:51], v[{r}:{r+1}]\nv_pk_add_f32 v[52:53], v[52:53], v[{r+2}:{r+3}]")
        a(f"v_cmp_eq_u32 vcc, -1, v54\ns_cbranch_vccnz L_gp_{tagn}")
        a("""
        v_permlane32_swap_b32 v50, v52
        v_permlane32_swap_b32 v51, v53
        v_pk_add_f32 v[50:51], v[50:51], v[52:53]
        v_cvt_pk_bf16_f32 v55, v50, v51
        v_lshlrev_b32 v50, 16, v55
        v_and_b32 v51, 0xffff0000, v55
        v_pk_add_f32 v[50:51], v[50:51], v[22:23]
        v_cvt_pk_bf16_f32 v24, v50, v51
        """)
    def front_gemv(self, two):
        a = self.a
        a("""
        ds_write_b32 v18, v24
        v_mov_b32 v55, 0
        v_lshlrev_b32 v50, 16, v24
        v_and_b32 v51, 0xffff0000, v24
        s_mov_b64 exec, -1
        v_mov_b32 v55, 0
        v_mov_b32 v56, 0
        s_waitcnt lgkmcnt(0)
        ds_read_b128 v[26:29], v19
        ds_read_b128 v[30:33], v19 offset:16
        s_mov_b64 exec, s[48:49]
        v_add_f32 v55, v50, v51
        v_mul_f32 v56, v50, v50
        v_fmac_f32 v56, v51, v51
        s_mov_b64 exec, -1
        v_mov_b32 v42, 0
        v_mov_b32 v43, 0
        v_mov_b32 v44, 0
        v_mov_b32 v45, 0
        """)
        if two: a("v_mov_b32 v46, 0\nv_mov_b32 v47, 0\nv_mov_b32 v48, 0\nv_mov_b32 v49, 0")
        a("v_permlane32_swap_b32 v55, v56\nv_add_f32 v55, v55, v56")
        a("s_waitcnt lgkmcnt(1)")
        self.abuild(34, 26)
        fill = ["v_mov_b32 v56, v55", None, "v_permlane16_swap_b32 v55, v56\nv_add_f32 v55, v55, v56",
                "v_add_f32_dpp v55, v55, v55 row_ror:8 row_mask:0xf bank_mask:0xf", "v_add_f32_dpp v55, v55, v55 row_ror:4 row_mask:0xf bank_mask:0xf",
                "v_add_f32_dpp v55, v55, v55 row_ror:2 row_mask:0xf bank_mask:0xf", "v_add_f32_dpp v55, v55, v55 row_ror:1 row_mask:0xf bank_mask:0xf"]
        for s in range(7):
            A = 34 + 4*(s & 1)
            if s == 3: a("s_waitcnt lgkmcnt(0)")
            if s < 6: self.abuild(34 + 4*((s+1) & 1), 26 + s + 1)
            a(f"v_smfmac_f32_16x16x64_bf16 v[42:45], v[{A}:{A+3}], v[{128+8*s}:{135+8*s}], v7")
            if two: a(f"v_smfmac_f32_16x16x64_bf16 v[46:49], v[{A}:{A+3}], v[{184+8*s}:{191+8*s}], v7")
            if fill[s]: a(fill[s])
        a("s_and_b32 s26, s23, 1\ns_mul_i32 s26, s26, 4352\nv_add_u32 v8, s26, v20\nv_add_u32 v9, s26, v21")
        a("s_mov_b32 exec_lo, 1\ns_mov_b32 exec_hi, 1\nds_write_b32 v9, v55\ns_mov_b64 exec, s[50:51]")
        a("ds_write_b128 v8, v[42:45]")
        if two: a("ds_write_b128 v8, v[46:49] offset:2048")
        a("s_mov_b64 exec, -1\ns_waitcnt lgkmcnt(0)\ns_barrier")
    def back_reduce(self, two, base, ro):
        a = self.a
        a(f"ds_read_b128 v[{ro+16}:{ro+19}], v{base+1}\nds_read_b128 v[{ro+20}:{ro+23}], v{base+1} offset:16")
        for m in range(2 if two else 1):
            for k in range(4):
                a(f"ds_read2st64_b32 v[{ro+8*m+2*k}:{ro+8*m+2*k+1}], v{base} offset0:{8*m+2*k} offset1:{8*m+2*k+1}")
    def ln_scalars(self, ro, nrest):
        a = self.a
        t = ro + 16
        a(f"""
        s_waitcnt lgkmcnt({nrest})
        v_pk_add_f32 v[{t}:{t+1}], v[{t}:{t+1}], v[{t+2}:{t+3}]
        v_pk_add_f32 v[{t+4}:{t+5}], v[{t+4}:{t+5}], v[{t+6}:{t+7}]
        v_pk_add_f32 v[{t}:{t+1}], v[{t}:{t+1}], v[{t+4}:{t+5}]
        v_mul_f32 v{t}, {hex(f2u(1.0/448))}, v{t}
        v_mul_f32 v{t+1}, {hex(f2u(1.0/448))}, v{t+1}
        v_fma_f32 v{t+1}, -v{t}, v{t}, v{t+1}
        v_max_f32 v{t+1}, 0, v{t+1}
        v_cvt_pk_bf16_f32 v{t+2}, v{t}, v{t+1}
        v_lshlrev_b32 v{t}, 16, v{t+2}
        v_and_b32 v{t+1}, 0xffff0000, v{t+2}
        v_add_f32 v{t+1}, {hex(f2u(1e-5))}, v{t+1}
        v_cvt_pk_bf16_f32 v{t+1}, v{t+1}, v{t+1}
        v_and_b32 v{t+1}, 0xffff0000, v{t+1}
        v_sqrt_f32 v{t+1}, v{t+1}
        v_cvt_pk_bf16_f32 v{t+1}, v{t+1}, v{t+1}
        v_and_b32 v{t+1}, 0xffff0000, v{t+1}
        v_rcp_f32 v{t+1}, v{t+1}
        """)
    def sum8(self, r):
        self.a(f"""
        v_pk_add_f32 v[{r}:{r+1}], v[{r}:{r+1}], v[{r+2}:{r+3}]
        v_pk_add_f32 v[{r+4}:{r+5}], v[{r+4}:{r+5}], v[{r+6}:{r+7}]
        v_pk_add_f32 v[{r}:{r+1}], v[{r}:{r+1}], v[{r+4}:{r+5}]
        v_add_f32 v{r}, v{r}, v{r+1}
        """)
    def r8_addr(self, vdst, NS, wv):
        self.a(f"""
        v_lshrrev_b32 v8, 1, v2
        v_mul_u32_u24 v8, {2*NS}, v8
        v_and_b32 v9, 1, v2
        v_add_u32 v8, v8, v9
        v_mul_u32_u24 v8, 896, v8
        v_lshl_add_u32 v8, v1, 4, v8
        s_lshl_b32 s26, s{wv}, 8
        v_add_u32 v{vdst}, s26, v8
        s_cmp_eq_u32 s{wv}, 3
        s_cselect_b32 s28, 0x00ff00ff, -1
        s_mov_b32 s29, s28
        """)
    def r8_loads(self, NS, srd, vaddr, reg):
        a = self.a
        a("s_mov_b64 exec, s[28:29]")
        for s in range(NS):
            for hf in range(2):
                a(f"s_mov_b32 s26, {(4*NS*hf + 2*s)*896}")
                r = reg + 8*s + 4*hf
                a(f"buffer_load_dwordx4 v[{r}:{r+3}], v{vaddr}, s[{srd}:{srd+3}], s26 offen nt")
        a("s_mov_b64 exec, -1")
    def r8_pub_addr(self, vdst, wv, sslot):
        self.a(f"""
        v_lshlrev_b32 v8, 5, v1
        v_and_b32 v9, 1, v2
        v_lshl_add_u32 v8, v9, 4, v8
        v_lshrrev_b32 v9, 1, v2
        v_lshl_add_u32 v8, v9, 13, v8
        s_lshl_b32 s26, s{wv}, 9
        s_add_u32 s26, s26, s{sslot}
        v_add_u32 v{vdst}, s26, v8
        """)
    def r8_gemv(self, NS, X, reg, vpub, sofs):
        a = self.a
        a("v_mov_b32 v42, 0\nv_mov_b32 v43, 0\nv_mov_b32 v44, 0\nv_mov_b32 v45, 0")
        nrd = NS // 4
        a(f"s_waitcnt lgkmcnt({nrd-1})")
        self.abuild(34, X)
        for s in range(NS):
            A = 34 + 4*(s & 1)
            if s + 1 < NS:
                if (s + 1) % 4 == 0: a(f"s_waitcnt lgkmcnt({nrd - 1 - (s+1)//4})")
                self.abuild(34 + 4*((s+1) & 1), X + s + 1)
            a(f"v_smfmac_f32_16x16x64_bf16 v[42:45], v[{A}:{A+3}], v[{reg+8*s}:{reg+8*s+7}], v7")
        a("s_mov_b64 exec, s[28:29]")
        a("v_min_u32 v42, -2, v42")
        a(f"buffer_store_dwordx4 v[42:45], v{vpub}, s[4:7], s{sofs} offen sc1")
        a("s_mov_b64 exec, -1")

    def role_q(self):
        a = self.a
        a("L_Q:\ns_mov_b32 s21, s2")
        a("s_cmp_gt_u32 s22, 4\ns_cbranch_scc1 L_exit\ns_cmp_eq_u32 s22, 4\ns_cbranch_scc1 L_Qh")
        self.srd(16, 64, 896)
        a("s_lshl_b32 s27, s21, 7")
        self.srd(8, 70, 448*8192 - 0, off_s=27)
        a("s_sub_u32 s10, s10, s27")
        self.x_load()
        self.r16_addr(15, 8192)
        self.r16_loads(8, 128, 8192, 15)
        self.masks()
        self.front_setup(C_H4, C_XR1)
        a(f"v_lshlrev_b32 v58, 2, v0\nv_add_u32 v58, 1024, v58")
        a(f"s_lshl_b32 s26, s21, 7\ns_add_u32 s26, s26, {C_H1*CH}\nv_lshrrev_b32 v8, 3, v0\nv_lshl_add_u32 v14, v8, 4, s26")
        a("s_mov_b32 s23, -1\nv_mov_b32 v24, 0x3f803f80\ns_mov_b64 exec, s[48:49]\ns_waitcnt vmcnt(0)")
        self.stamp(1)
        a("s_branch L_Qg")
        a("L_Qloop:")
        a("s_cmp_eq_u32 s23, 0\ns_cbranch_scc0 L_Qgath\nv_mov_b32 v24, v25\ns_mov_b64 exec, s[48:49]\ns_branch L_Qg")
        a("L_Qgath:")
        a("v_mov_b32 v8, 12288\nds_read_b32 v9, v8\ns_waitcnt lgkmcnt(0)\nv_readfirstlane_b32 s24, v9")
        a(f"s_mov_b32 s27, {ID_F}")
        self.flag_poll("q", 27, NF)
        self.gather("q", 14, False)
        self.stamp(5)
        a("L_Qg:")
        self.front_gemv(False)
        self.stamp_l(2, 6)
        a("s_cmp_eq_u32 s23, 1\ns_cselect_b32 s26, s21, 1\ns_cmp_eq_u32 s26, 0\ns_cbranch_scc0 L_Qnx")
        a(f"s_mov_b64 exec, s[48:49]\nv_subrev_u32 v8, s20, v17\ns_mov_b32 s26, {(C_XR2-C_XR1)*CH & 0xffffffff}\nv_add_u32 v8, s26, v8\ns_mov_b32 s26, 8192")
        a("buffer_store_dwordx2 v[50:51], v8, s[4:7], 0 offen sc1\nbuffer_store_dwordx2 v[50:51], v8, s[4:7], s26 offen sc1\ns_mov_b64 exec, -1")
        a("L_Qnx:")
        a("s_cmp_eq_u32 s22, 0\ns_cbranch_scc0 L_Qnext")
        a(f"s_and_b32 s26, s23, 1\ns_mul_i32 s26, s26, 4352\nv_add_u32 v10, s26, v58\ns_add_u32 s26, s26, {1024+4096}\nv_mov_b32 v11, s26")
        self.back_reduce(False, 10, 60)
        self.ln_scalars(60, 4)
        a("s_waitcnt lgkmcnt(0)")
        self.sum8(60)
        a("s_cmp_eq_u32 s23, -1\ns_cbranch_scc0 L_Qpub\nv_mov_b32 v57, v60\ns_branch L_Qnext")
        a("L_Qpub:")
        a("""
        v_fma_f32 v60, -v76, v57, v60
        v_mul_f32 v60, v60, v77
        v_mov_b32_dpp v61, v60 quad_perm:[1,0,3,2] row_mask:0xf bank_mask:0xf
        v_cvt_pk_bf16_f32 v64, v60, v61
        v_mov_b32_dpp v65, v64 row_shl:2 row_mask:0xf bank_mask:0xf
        v_mov_b32_dpp v66, v64 row_shl:4 row_mask:0xf bank_mask:0xf
        v_mov_b32_dpp v67, v64 row_shl:6 row_mask:0xf bank_mask:0xf
        v_min_u32 v64, -2, v64
        s_lshl_b32 s26, s23, 14
        s_add_u32 s27, s26, 8192
        s_mov_b32 exec_lo, 0x01010101
        s_mov_b32 exec_hi, 0x01010101
        buffer_store_dwordx4 v[64:67], v14, s[4:7], s26 offen sc1
        buffer_store_dwordx4 v[64:67], v14, s[4:7], s27 offen sc1
        s_mov_b64 exec, -1
        """)
        self.stamp_l(3, 7)
        a("L_Qnext:\ns_add_u32 s23, s23, 1\ns_cmp_lt_i32 s23, 2\ns_cbranch_scc1 L_Qloop")
        a("s_cmp_lt_u32 s21, 7\ns_cbranch_scc0 L_exit\ns_cmp_eq_u32 s22, 0\ns_cbranch_scc0 L_exit")
        self.srd(16, 82, 896)
        a(f"""
        v_lshrrev_b32 v8, 1, v2
        v_lshlrev_b32 v8, 4, v8
        v_and_b32 v9, 1, v2
        v_mad_u32_u24 v8, v9, 7, v8
        s_lshl_b32 s26, s21, 8
        s_add_u32 s26, s26, s20
        s_add_u32 s26, s26, {(C_H4+8)*CH}
        v_lshl_add_u32 v9, v1, 4, s26
        """)
        for i in range(7):
            a(f"v_add_u32 v10, {i}, v8\nv_lshrrev_b32 v11, 2, v10\nv_lshl_add_u32 v11, v11, 14, v9\nv_and_b32 v10, 3, v10\nv_lshl_add_u32 v{90+i}, v10, 11, v11")
        a(f"""
        v_lshrrev_b32 v8, 1, v2
        v_lshlrev_b32 v8, 1, v8
        v_and_b32 v9, 1, v2
        v_add_u32 v8, v8, v9
        v_lshl_add_u32 v8, v1, 2, v8
        s_lshl_b32 s26, s21, 6
        v_add_u32 v8, s26, v8
        v_lshlrev_b32 v97, 1, v8
        s_add_u32 s26, s20, {C_XR3*CH}
        v_lshl_add_u32 v98, v8, 2, s26
        s_mov_b32 s25, 0
        L_Fp:
        buffer_load_dword v22, v98, s[4:7], 0 offen sc1
        """)
        for i in range(7):
            a(f"buffer_load_dwordx4 v[{60+4*i}:{63+4*i}], v{90+i}, s[4:7], 0 offen sc1")
        self.timeout()
        a("s_waitcnt vmcnt(5)\nv_max3_u32 v54, v22, v60, v64\nv_pk_add_f32 v[50:51], v[60:61], v[64:65]\nv_pk_add_f32 v[52:53], v[62:63], v[66:67]")
        for i in range(2, 7):
            r = 60 + 4*i
            a(f"s_waitcnt vmcnt({6-i})\nv_max_u32 v54, v54, v{r}\nv_pk_add_f32 v[50:51], v[50:51], v[{r}:{r+1}]\nv_pk_add_f32 v[52:53], v[52:53], v[{r+2}:{r+3}]")
        a("""
        v_cmp_eq_u32 vcc, -1, v54
        s_cbranch_vccnz L_Fp
        v_permlane32_swap_b32 v50, v52
        v_permlane32_swap_b32 v51, v53
        v_pk_add_f32 v[50:51], v[50:51], v[52:53]
        v_permlane16_swap_b32 v50, v51
        v_add_f32 v50, v50, v51
        v_cvt_pk_bf16_f32 v50, v50, v50
        v_and_b32 v50, 0xffff0000, v50
        v_add_f32 v50, v50, v22
        """)
        if self.o.get("off"):
            a(f"v_cmp_eq_u32 vcc, 0, v97\nv_mov_b32 v51, {hex(f2u(self.o['off']/1000))}\nv_cndmask_b32 v51, 0, v51, vcc\nv_add_f32 v50, v50, v51")
        a("""
        v_cvt_pk_bf16_f32 v50, v50, v50
        buffer_store_short v50, v97, s[16:19], 0 offen
        """)
        self.stamp(8)
        a("s_cmp_eq_u32 s21, 0\ns_cbranch_scc0 L_exit\nv_mov_b32 v9, s24\nv_mov_b32 v8, 0\ns_mov_b64 exec, 1\nbuffer_store_dword v9, v8, s[4:7], 0 offen sc1\ns_branch L_exit")
        a("L_Qh:")
        self.epoch_load()
        a(f"""
        v_and_b32 v8, 7, v0
        v_lshlrev_b32 v8, 4, v8
        v_lshrrev_b32 v11, 3, v0
        v_lshl_add_u32 v8, v11, 13, v8
        s_lshl_b32 s26, s21, 7
        s_add_u32 s26, s26, {C_H1*CH}
        s_mov_b32 exec_hi, 0
        buffer_store_dwordx4 v[12:15], v8, s[4:7], s26 offen sc1
        s_mov_b64 exec, -1
        v_lshlrev_b32 v10, 4, v0
        s_cmp_eq_u32 s21, 0
        s_cbranch_scc0 L_Qh1
        s_mov_b32 s30, {C_XR2*CH}
        """)
        self.reset2k(30)
        a("L_Qh1:")
        self.flag_store(0)
        a("v_mov_b32 v16, 12288\nds_write_b32 v16, v11\ns_waitcnt lgkmcnt(0)\ns_branch L_exit")

    def role_f(self):
        a = self.a
        a(f"L_F:\ns_sub_u32 s21, s2, {ID_F}")
        a("s_cmp_gt_u32 s22, 3\ns_cbranch_scc1 L_Fb")
        self.srd(16, 64, 896)
        a("s_lshl_b32 s27, s21, 7")
        self.srd(8, 76, 448*3584, off_s=27)
        a("s_sub_u32 s10, s10, s27")
        self.srd(12, 78, 448*3584, off_s=27)
        a("s_sub_u32 s14, s14, s27")
        self.x_load()
        self.r16_addr(15, 3584)
        self.r16_loads(8, 128, 3584, 15)
        self.r16_loads(12, 184, 3584, 15)
        self.masks()
        self.front_setup(C_H3, C_XR2)
        a("s_mov_b32 s23, -1\nv_mov_b32 v24, 0x3f803f80\ns_waitcnt vmcnt(0)\nv_lshlrev_b32 v22, 16, v25\nv_and_b32 v23, 0xffff0000, v25\ns_mov_b64 exec, s[48:49]")
        self.stamp(1)
        a("s_branch L_Fg")
        a("L_Floop:")
        self.gather("f", 16, True)
        self.stamp_l(2, 5)
        a("L_Fg:")
        self.front_gemv(True)
        self.stamp_l(3, 6)
        a("s_cmp_ge_i32 s23, 0\ns_cselect_b32 s26, s21, 1\ns_cmp_eq_u32 s26, 0\ns_cbranch_scc0 L_Fnx")
        a(f"s_mov_b64 exec, s[48:49]\nv_subrev_u32 v8, s20, v17\ns_lshl_b32 s26, s23, 14\ns_add_u32 s26, s26, {(C_XR1-C_XR2)*CH}\ns_add_u32 s27, s26, 8192")
        a("buffer_store_dwordx2 v[50:51], v8, s[4:7], s26 offen sc1\nbuffer_store_dwordx2 v[50:51], v8, s[4:7], s27 offen sc1\ns_mov_b64 exec, -1")
        a("L_Fnx:")
        a(f"s_cmp_eq_u32 s23, 0\ns_cbranch_scc0 L_Fn2\nv_add_u32 v16, {8*CH}, v16\nv_add_u32 v13, {8*CH}, v13\nL_Fn2:")
        a("s_add_u32 s23, s23, 1\ns_cmp_lt_i32 s23, 2\ns_cbranch_scc1 L_Floop\ns_branch L_exit")
        a("L_Fb:\ns_sub_u32 s30, s22, 4")
        a("s_mul_i32 s27, s21, 57344")
        self.srd(8, 80, 57344, off_s=27)
        a(f"""
        s_cmp_ge_u32 s21, 14
        s_cselect_b32 s26, 2, 0
        s_add_u32 s26, s26, s21
        s_lshr_b32 s27, s26, 2
        s_lshl_b32 s27, s27, 14
        s_and_b32 s26, s26, 3
        s_lshl_b32 s26, s26, 11
        s_add_u32 s52, s26, s27
        s_add_u32 s52, s52, {C_H4*CH}
        s_cmp_eq_u32 s22, 4
        s_cbranch_scc0 L_Fb1
        """)
        self.epoch_load()
        a("v_lshlrev_b32 v10, 4, v0")
        self.reset2k(52)
        a(f"s_add_u32 s53, s52, {8*CH}")
        self.reset2k(53)
        a(f"s_cmp_eq_u32 s21, 0\ns_cbranch_scc0 L_Fb1\ns_mov_b32 s53, {C_XR1*CH}")
        self.reset2k(53)
        a(f"s_mov_b32 s53, {C_XR3*CH}")
        self.reset2k(53)
        a("L_Fb1:")
        self.r8_addr2(16, 8, 30)
        self.r8_loads(8, 8, 16, 128)
        a("s_cmp_eq_u32 s22, 4\ns_cbranch_scc0 L_Fb2")
        self.flag_store(16)
        a(f"s_mov_b32 s27, {ID_W}")
        self.flag_poll("f", 27, NW, extra_id=ID_Q)
        a("L_Fb2:")
        self.masks()
        self.r8_pub_addr(17, 30, 52)
        a("v_lshlrev_b32 v58, 2, v0\nv_add_u32 v58, 1024, v58")
        a("s_lshl_b32 s26, s30, 7\ns_add_u32 s26, s26, 10240\nv_lshl_add_u32 v18, v0, 1, s26\nv_lshl_add_u32 v19, v2, 5, s26")
        a("s_mov_b32 s23, -1\ns_waitcnt vmcnt(0)")
        self.stamp(1)
        a("L_Fbl:")
        a(f"s_and_b32 s26, s23, 1\ns_mul_i32 s26, s26, 4352\nv_add_u32 v10, s26, v58\ns_add_u32 s26, s26, {1024+4096}\nv_mov_b32 v11, s26\ns_lshl_b32 s27, s23, 17")
        a("s_barrier")
        self.stamp_l(2, 5)
        self.back_reduce(True, 10, 60)
        self.ln_scalars(60, 8)
        a("s_waitcnt lgkmcnt(4)")
        self.sum8(60)
        a("s_waitcnt lgkmcnt(0)")
        self.sum8(68)
        a("s_cmp_eq_u32 s23, -1\ns_cbranch_scc0 L_Fbh\nv_mov_b32 v56, v60\nv_mov_b32 v57, v68\ns_mov_b32 s23, 0\ns_branch L_Fbl")
        a(f"""
        L_Fbh:
        v_fma_f32 v60, -v76, v56, v60
        v_fma_f32 v68, -v76, v57, v68
        v_mul_f32 v60, v60, v77
        v_mul_f32 v68, v68, v77
        v_cvt_pk_bf16_f32 v61, v60, v68
        v_lshlrev_b32 v60, 16, v61
        v_and_b32 v68, 0xffff0000, v61
        v_mul_f32 v61, {hex(f2u(-LOG2E))}, v60
        v_exp_f32 v61, v61
        v_add_f32 v61, 1.0, v61
        v_rcp_f32 v61, v61
        v_mul_f32 v61, v60, v61
        v_cvt_pk_bf16_f32 v61, v61, v61
        v_and_b32 v61, 0xffff0000, v61
        v_mul_f32 v61, v61, v68
        v_cvt_pk_bf16_f32 v61, v61, v61
        ds_write_b16 v18, v61
        s_waitcnt lgkmcnt(0)
        ds_read_b128 v[26:29], v19
        ds_read_b128 v[30:33], v19 offset:16
        """)
        self.stamp_l(3, 6)
        self.r8_gemv(8, 26, 128, 17, 27)
        self.stamp_l(4, 7)
        a("s_add_u32 s23, s23, 1\ns_cmp_lt_i32 s23, 2\ns_cbranch_scc1 L_Fbl\ns_branch L_exit")
    def r8_addr2(self, vdst, NS, wv):
        self.a(f"""
        v_lshrrev_b32 v20, 1, v2
        v_mul_u32_u24 v20, {2*NS}, v20
        v_and_b32 v21, 1, v2
        v_add_u32 v20, v20, v21
        v_mul_u32_u24 v20, 896, v20
        v_lshl_add_u32 v20, v1, 4, v20
        s_lshl_b32 s26, s{wv}, 8
        v_add_u32 v{vdst}, s26, v20
        s_cmp_eq_u32 s{wv}, 3
        s_cselect_b32 s28, 0x00ff00ff, -1
        s_mov_b32 s29, s28
        """)

    def role_w(self):
        a = self.a
        a(f"L_W:\ns_sub_u32 s21, s2, {ID_W}")
        a(f"""
        s_lshr_b32 s27, s21, 2
        s_lshl_b32 s27, s27, 14
        s_and_b32 s26, s21, 3
        s_lshl_b32 s26, s26, 11
        s_add_u32 s53, s26, s27
        s_add_u32 s52, s53, {C_H3*CH}
        """)
        a("s_cmp_gt_u32 s22, 4\ns_cbranch_scc1 L_exit\ns_cmp_eq_u32 s22, 4\ns_cbranch_scc1 L_Wh")
        a("s_mul_i32 s27, s21, 114688")
        self.srd(8, 72, 114688, off_s=27)
        self.r8_addr(16, 16, 22)
        self.r8_loads(16, 8, 16, 128)
        self.masks()
        self.r8_pub_addr(17, 22, 52)
        a(f"""
        v_lshrrev_b32 v8, 2, v0
        v_and_b32 v9, 3, v0
        v_lshlrev_b32 v10, 9, v8
        v_lshl_add_u32 v10, v9, 5, v10
        s_lshl_b32 s26, s21, 14
        s_add_u32 s26, s26, s20
        s_lshl_b32 s27, s22, 7
        s_add_u32 s26, s26, s27
        s_add_u32 s26, s26, {C_H2O*CH}
        v_add_u32 v18, s26, v10
        s_add_u32 s26, s53, s20
        s_add_u32 s26, s26, {C_H2M*CH}
        v_lshl_add_u32 v19, v8, 7, s26
        v_lshlrev_b32 v10, 4, v9
        v_lshl_add_u32 v10, v2, 2, v10
        s_lshl_b32 s26, s22, 6
        v_add_u32 v20, s26, v10
        v_lshlrev_b32 v21, 6, v2
        s_mov_b32 s23, 0
        s_waitcnt vmcnt(0)
        """)
        self.stamp(1)
        a("s_barrier")
        a("L_Wl:\ns_mov_b32 s25, 0")
        a(f"s_mul_i32 s30, s23, {32*CH}\ns_lshl_b32 s27, s23, 17")
        a("""
        L_Wp:
        buffer_load_dwordx2 v[22:23], v19, s[4:7], s27 offen sc1
        buffer_load_dwordx4 v[60:63], v18, s[4:7], s30 offen sc1
        buffer_load_dwordx4 v[64:67], v18, s[4:7], s30 offen offset:16 sc1
        """)
        self.timeout()
        a("""
        s_waitcnt vmcnt(2)
        v_max_f32_dpp v24, v22, v22 row_ror:4 row_mask:0xf bank_mask:0xf
        v_max_f32_dpp v24, v24, v24 row_ror:8 row_mask:0xf bank_mask:0xf
        v_mov_b32 v25, v24
        v_permlane16_swap_b32 v24, v25
        v_max_f32 v24, v24, v25
        v_mov_b32 v25, v24
        v_permlane32_swap_b32 v24, v25
        v_max_f32 v24, v24, v25
        v_sub_f32 v24, v22, v24
        v_exp_f32 v24, v24
        s_waitcnt vmcnt(0)
        v_max3_u32 v54, v22, v60, v64
        v_cmp_eq_u32 vcc, -1, v54
        s_cbranch_vccnz L_Wp
        """)
        self.stamp_l(2, 5)
        a("""
        v_mul_f32 v26, v23, v24
        v_pk_mul_f32 v[60:61], v[60:61], v[24:25] op_sel_hi:[1,0]
        v_pk_mul_f32 v[64:65], v[64:65], v[24:25] op_sel_hi:[1,0]
        v_pk_mul_f32 v[62:63], v[62:63], v[24:25] op_sel_hi:[1,0]
        v_pk_mul_f32 v[66:67], v[66:67], v[24:25] op_sel_hi:[1,0]
        v_add_f32_dpp v26, v26, v26 row_ror:4 row_mask:0xf bank_mask:0xf
        v_permlane32_swap_b32 v60, v64
        v_permlane32_swap_b32 v61, v65
        v_add_f32_dpp v26, v26, v26 row_ror:8 row_mask:0xf bank_mask:0xf
        v_permlane32_swap_b32 v62, v66
        v_permlane32_swap_b32 v63, v67
        v_mov_b32 v27, v26
        v_pk_add_f32 v[60:61], v[60:61], v[64:65]
        v_pk_add_f32 v[62:63], v[62:63], v[66:67]
        v_permlane16_swap_b32 v26, v27
        v_add_f32 v26, v26, v27
        v_permlane16_swap_b32 v60, v62
        v_permlane16_swap_b32 v61, v63
        v_mov_b32 v27, v26
        v_pk_add_f32 v[60:61], v[60:61], v[62:63]
        v_permlane32_swap_b32 v26, v27
        v_add_f32_dpp v60, v60, v60 row_ror:4 row_mask:0xf bank_mask:0xf
        v_add_f32_dpp v61, v61, v61 row_ror:4 row_mask:0xf bank_mask:0xf
        v_add_f32 v26, v26, v27
        v_rcp_f32 v26, v26
        v_add_f32_dpp v60, v60, v60 row_ror:8 row_mask:0xf bank_mask:0xf
        v_add_f32_dpp v61, v61, v61 row_ror:8 row_mask:0xf bank_mask:0xf
        v_pk_mul_f32 v[60:61], v[60:61], v[26:27] op_sel_hi:[1,0]
        v_cvt_pk_bf16_f32 v60, v60, v61
        ds_write_b32 v20, v60
        s_waitcnt lgkmcnt(0)
        s_barrier
        ds_read_b128 v[60:63], v21
        ds_read_b128 v[64:67], v21 offset:16
        ds_read_b128 v[68:71], v21 offset:32
        ds_read_b128 v[72:75], v21 offset:48
        """)
        self.stamp_l(3, 6)
        self.r8_gemv(16, 60, 128, 17, 27)
        self.stamp_l(4, 7)
        a("s_add_u32 s23, s23, 1\ns_cmp_lt_i32 s23, 2\ns_cbranch_scc1 L_Wl\ns_branch L_exit")
        a("L_Wh:")
        self.epoch_load()
        a("v_lshlrev_b32 v10, 4, v0")
        self.reset2k(52)
        a(f"s_add_u32 s53, s52, {8*CH}")
        self.reset2k(53)
        self.flag_store(0)
        a(f"s_lshr_b32 s27, s21, 2\ns_lshl_b32 s27, s27, 4\ns_add_u32 s27, s27, {ID_A}")
        self.flag_poll("w", 27, 16)
        a("s_barrier\ns_branch L_exit")

    def role_a(self):
        a = self.a
        a(f"L_A:\ns_sub_u32 s21, s2, {ID_A}\ns_lshr_b32 s52, s21, 4\ns_and_b32 s53, s21, 15")
        a("s_cmp_gt_u32 s22, 4\ns_cbranch_scc1 L_exit\ns_cmp_eq_u32 s22, 4\ns_cbranch_scc1 L_Ah")
        a(f"s_lshl_b32 s27, s52, 22\ns_lshl_b32 s26, s53, 16\ns_add_u32 s27, s27, s26\ns_add_u32 s27, s27, {6144*512}")
        self.srd(8, 66, 65536, off_s=27)
        self.srd(12, 68, 65536, off_s=27)
        a("""
        s_lshl_b32 s26, s22, 14
        v_lshlrev_b32 v8, 9, v1
        v_lshl_add_u32 v8, v2, 4, v8
        v_add_u32 v16, s26, v8
        v_lshrrev_b32 v8, 1, v2
        v_and_b32 v9, 1, v2
        v_lshl_add_u32 v8, v8, 2, v9
        v_lshlrev_b32 v8, 9, v8
        v_lshl_add_u32 v8, v1, 4, v8
        v_add_u32 v17, s26, v8
        s_mov_b32 s32, 0
        s_mov_b32 s33, 4096
        s_mov_b32 s34, 8192
        s_mov_b32 s35, 12288
        """)
        KR, VR = 128, 192
        for T in range(2):
            for ks in range(8):
                r = KR + 32*T + 4*ks
                a(f"buffer_load_dwordx4 v[{r}:{r+3}], v16, s[8:11], s{32+2*T} offen offset:{64*ks} nt")
        for T in range(2):
            for aa in range(2):
                for cb in range(2):
                    for hf in range(2):
                        r = VR + ((2*T + aa)*2 + cb)*8 + 4*hf
                        if self.o.get("pace", 1): a("s_waitcnt vmcnt(15)")
                        a(f"buffer_load_dwordx4 v[{r}:{r+3}], v17, s[12:15], s{32+2*T+hf} offen offset:{1024*aa + 256*cb} nt")
        self.masks()
        a(f"""
        v_lshrrev_b32 v8, 3, v1
        v_lshlrev_b32 v8, 9, v8
        v_lshl_add_u32 v18, v2, 4, v8
        v_lshrrev_b32 v8, 1, v2
        v_lshlrev_b32 v8, 10, v8
        v_lshl_add_u32 v8, v1, 5, v8
        v_and_b32 v9, 1, v2
        v_lshl_add_u32 v8, v9, 4, v8
        s_lshl_b32 s26, s22, 11
        s_add_u32 s26, s26, 1024
        v_add_u32 v19, s26, v8
        v_lshrrev_b32 v8, 3, v1
        s_lshl_b32 s26, s22, 3
        s_add_u32 s26, s26, 9216
        v_lshl_add_u32 v20, v8, 5, s26
        v_and_b32 v8, 31, v0
        s_lshl_b32 s26, s22, 9
        s_add_u32 s26, s26, 1024
        v_lshl_add_u32 v21, v8, 4, s26
        s_lshr_b32 s26, s22, 1
        s_lshl_b32 s26, s26, 5
        s_add_u32 s26, s26, 9216
        v_mov_b32 v22, s26
        s_lshl_b32 s26, s52, 2
        s_add_u32 s26, s26, s22
        s_lshl_b32 s27, s26, 14
        s_lshl_b32 s30, s53, 9
        s_add_u32 s27, s27, s30
        s_add_u32 s27, s27, {C_H2O*CH}
        v_lshrrev_b32 v9, 5, v0
        v_lshlrev_b32 v9, 13, v9
        v_lshl_add_u32 v8, v8, 4, v9
        v_add_u32 v23, s27, v8
        s_lshl_b32 s27, s52, 14
        s_lshl_b32 s30, s22, 11
        s_add_u32 s27, s27, s30
        s_lshl_b32 s30, s53, 7
        s_add_u32 s27, s27, s30
        s_add_u32 s27, s27, {C_H2M*CH}
        v_add_u32 v24, s27, v9
        s_mov_b32 s36, {hex(f2u(LOG2E/16))}
        s_mov_b32 s23, 0
        s_waitcnt vmcnt(16)
        """)
        self.stamp(1)
        if self.o.get("vstamp"):
            a("s_waitcnt vmcnt(0)"); self.stamp(9)
        a("L_Al:\ns_barrier")
        self.stamp_l(2, 6)
        QR = 60
        for ks in range(8):
            a(f"ds_read_b128 v[{QR+4*ks}:{QR+4*ks+3}], v18 offset:{64*ks}")
        for ks in range(8):
            a(f"s_waitcnt lgkmcnt({7-ks})")
            for T in range(2):
                c = "0" if ks == 0 else f"v[{44+4*T}:{47+4*T}]"
                a(f"v_mfma_f32_16x16x32_bf16 v[{44+4*T}:{47+4*T}], v[{KR+32*T+4*ks}:{KR+32*T+4*ks+3}], v[{QR+4*ks}:{QR+4*ks+3}], {c}")
        for i in range(8): a(f"v_mov_b32 v{92+i}, 0")
        for k in range(4): a(f"v_cvt_pk_bf16_f32 v{52+k}, v{44+2*k}, v{45+2*k}")
        for k in range(4): a(f"v_lshlrev_b32 v{44+2*k}, 16, v{52+k}\nv_and_b32 v{45+2*k}, 0xffff0000, v{52+k}")
        a("""
        v_max3_f32 v52, v44, v45, v46
        v_max3_f32 v53, v47, v48, v49
        v_max3_f32 v52, v50, v51, v52
        v_max_f32 v52, v52, v53
        v_mov_b32 v53, v52
        v_permlane32_swap_b32 v52, v53
        v_max_f32 v52, v52, v53
        v_mov_b32 v53, v52
        v_permlane16_swap_b32 v52, v53
        v_max_f32 v52, v52, v53
        v_mul_f32 v56, s36, v52
        """)
        for k in range(8): a(f"v_fma_f32 v{44+k}, v{44+k}, s36, -v56")
        for k in range(8): a(f"v_exp_f32 v{44+k}, v{44+k}")
        for k in range(4): a(f"v_cvt_pk_bf16_f32 v{52+k}, v{44+2*k}, v{45+2*k}")
        self.abuild(34, 52)
        a("s_waitcnt vmcnt(0)")
        self.stamp_l(3, 7)
        fill = ["v_pk_add_f32 v[44:45], v[44:45], v[46:47]\nv_pk_add_f32 v[48:49], v[48:49], v[50:51]",
                "v_pk_add_f32 v[44:45], v[44:45], v[48:49]\nv_add_f32 v57, v44, v45\nv_mov_b32 v58, v57",
                "v_permlane32_swap_b32 v57, v58\nv_add_f32 v57, v57, v58\nv_mov_b32 v58, v57",
                "v_permlane16_swap_b32 v57, v58\nv_add_f32 v57, v57, v58"]
        for n in range(4):
            A = 34 + 4*(n & 1)
            if n < 3: self.abuild(34 + 4*((n+1) & 1), 52 + n + 1)
            for cb in range(2):
                r = VR + (n*2 + cb)*8
                a(f"v_smfmac_f32_16x16x64_bf16 v[{92+4*cb}:{95+4*cb}], v[{A}:{A+3}], v[{r}:{r+7}], v7")
            a(fill[n])
        a("""
        s_mov_b64 exec, 0x101
        ds_write_b64 v20, v[56:57]
        s_mov_b64 exec, -1
        ds_write_b128 v19, v[92:95]
        ds_write_b128 v19, v[96:99] offset:512
        s_waitcnt lgkmcnt(0)
        s_barrier
        ds_read_b128 v[44:47], v22
        ds_read_b128 v[48:51], v22 offset:16
        ds_read_b128 v[60:63], v21
        ds_read_b128 v[64:67], v21 offset:2048
        ds_read_b128 v[68:71], v21 offset:4096
        ds_read_b128 v[72:75], v21 offset:6144
        s_waitcnt lgkmcnt(4)
        v_max3_f32 v56, v44, v46, v48
        v_max_f32 v56, v56, v50
        v_sub_f32 v52, v44, v56
        v_sub_f32 v53, v46, v56
        v_sub_f32 v54, v48, v56
        v_sub_f32 v55, v50, v56
        v_exp_f32 v52, v52
        v_exp_f32 v53, v53
        v_exp_f32 v54, v54
        v_exp_f32 v55, v55
        s_waitcnt lgkmcnt(3)
        v_pk_mul_f32 v[60:61], v[60:61], v[52:53] op_sel_hi:[1,0]
        v_pk_mul_f32 v[62:63], v[62:63], v[52:53] op_sel_hi:[1,0]
        s_waitcnt lgkmcnt(2)
        v_pk_fma_f32 v[60:61], v[64:65], v[52:53], v[60:61] op_sel:[0,1,0] op_sel_hi:[1,1,1]
        v_pk_fma_f32 v[62:63], v[66:67], v[52:53], v[62:63] op_sel:[0,1,0] op_sel_hi:[1,1,1]
        s_waitcnt lgkmcnt(1)
        v_pk_fma_f32 v[60:61], v[68:69], v[54:55], v[60:61] op_sel_hi:[1,0,1]
        v_pk_fma_f32 v[62:63], v[70:71], v[54:55], v[62:63] op_sel_hi:[1,0,1]
        s_waitcnt lgkmcnt(0)
        v_pk_fma_f32 v[60:61], v[72:73], v[54:55], v[60:61] op_sel:[0,1,0] op_sel_hi:[1,1,1]
        v_pk_fma_f32 v[62:63], v[74:75], v[54:55], v[62:63] op_sel:[0,1,0] op_sel_hi:[1,1,1]
        """)
        a(f"s_mul_i32 s26, s23, {32*CH}\ns_lshl_b32 s27, s23, 17")
        a("""
        v_mul_f32 v57, v52, v45
        v_min_u32 v60, -2, v60
        buffer_store_dwordx4 v[60:63], v23, s[4:7], s26 offen sc1
        v_fmac_f32 v57, v53, v47
        v_fmac_f32 v57, v54, v49
        v_fmac_f32 v57, v55, v51
        v_min_u32 v56, -2, v56
        s_mov_b32 exec_lo, 1
        s_mov_b32 exec_hi, 1
        buffer_store_dwordx2 v[56:57], v24, s[4:7], s27 offen sc1
        s_mov_b64 exec, -1
        """)
        self.stamp_l(4, 8)
        a("s_add_u32 s23, s23, 1\ns_cmp_lt_i32 s23, 2\ns_cbranch_scc1 L_Al\ns_branch L_exit")
        a("L_Ah:")
        self.epoch_load()
        a(f"""
        v_and_b32 v8, 31, v0
        v_lshrrev_b32 v11, 5, v0
        v_lshlrev_b32 v11, 13, v11
        v_lshl_add_u32 v10, v8, 4, v11
        s_lshl_b32 s27, s52, 16
        s_lshl_b32 s30, s53, 9
        s_add_u32 s27, s27, s30
        s_add_u32 s27, s27, {C_H2O*CH}
        """)
        for L in range(2):
            for w in range(4):
                a(f"s_add_u32 s26, s27, {(L*32 + w)*CH}\nbuffer_store_dwordx4 v[12:15], v10, s[4:7], s26 offen sc1")
        a(f"""
        v_and_b32 v8, 3, v0
        v_lshlrev_b32 v8, 11, v8
        v_bfe_u32 v11, v0, 2, 1
        v_lshl_add_u32 v8, v11, 13, v8
        v_bfe_u32 v11, v0, 3, 1
        v_lshl_add_u32 v8, v11, 17, v8
        s_lshl_b32 s27, s52, 14
        s_lshl_b32 s30, s53, 7
        s_add_u32 s27, s27, s30
        s_add_u32 s27, s27, {C_H2M*CH}
        s_mov_b64 exec, 0xffff
        buffer_store_dwordx4 v[12:15], v8, s[4:7], s27 offen sc1
        s_mov_b64 exec, -1
        """)
        self.flag_store(0)
        a(f"s_lshl_b32 s27, s52, 3\ns_add_u32 s27, s27, {ID_Q}")
        self.flag_poll("a", 27, 8)
        a(f"""
        v_lshlrev_b32 v16, 4, v0
        s_lshl_b32 s26, s52, 10
        s_add_u32 s26, s26, s20
        s_add_u32 s26, s26, {C_H1*CH}
        v_add_u32 v17, s26, v16
        s_mov_b32 s23, 0
        L_Ahl:
        s_lshl_b32 s26, s23, 14
        s_mov_b32 s25, 0
        L_Ahp:
        buffer_load_dwordx4 v[20:23], v17, s[4:7], s26 offen sc1
        """)
        self.timeout()
        a("""
        s_waitcnt vmcnt(0)
        v_cmp_eq_u32 vcc, -1, v20
        s_cbranch_vccnz L_Ahp
        ds_write_b128 v16, v[20:23]
        s_waitcnt lgkmcnt(0)
        s_barrier
        s_barrier
        s_add_u32 s23, s23, 1
        s_cmp_lt_i32 s23, 2
        s_cbranch_scc1 L_Ahl
        s_branch L_exit
        """)

    def build(self):
        a = self.a
        a(f"s_cmp_ge_u32 s2, {NWG}\ns_cbranch_scc1 L_end")
        if self.o.get("dbg"): a("s_memrealtime s[56:57]")
        a("s_load_dwordx16 s[64:79], s[0:1], 0\ns_load_dwordx8 s[80:87], s[0:1], 64")
        if self.diag:
            for s in self.STS: a(f"s_mov_b32 s{s}, 0")
            a("s_mov_b32 s23, -1")
        a("""
        v_lshrrev_b32 v1, 6, v0
        v_and_b32 v0, 63, v0
        s_getreg_b32 s20, hwreg(HW_REG_XCC_ID, 0, 4)
        v_readfirstlane_b32 s22, v1
        s_bfe_u32 s20, s20, 0x10002
        s_lshl_b32 s20, s20, 13
        v_and_b32 v1, 15, v0
        v_lshrrev_b32 v2, 4, v0
        s_cmp_lt_u32 s22, 4
        s_cbranch_scc1 L_np
        s_setprio 3
        L_np:
        s_waitcnt lgkmcnt(0)
        """)
        self.stamp(0)
        self.srd(4, 86, (4 << 20) if self.diag else (2 << 20))
        a(f"s_cmp_lt_u32 s2, {ID_A}\ns_cbranch_scc1 L_Q\ns_cmp_lt_u32 s2, {ID_W}\ns_cbranch_scc1 L_A\ns_cmp_lt_u32 s2, {ID_F}\ns_cbranch_scc1 L_W\ns_branch L_F")
        self.role_q(); self.role_a(); self.role_w(); self.role_f()
        a("L_exit:")
        if self.o.get("dbg"):
            a("s_cmp_eq_u32 s22, 0\ns_cbranch_scc0 L_end\ns_mov_b32 s26, -1")
            for n, w in enumerate((0, 64, 191, 192, 224, 251)):
                a(f"s_cmp_eq_u32 s2, {w}\ns_cselect_b32 s26, {8*n}, s26")
            a("s_cmp_eq_u32 s26, -1\ns_cbranch_scc1 L_end\ns_memrealtime s[54:55]")
            if self.o.get("amp"):
                a(f"s_waitcnt lgkmcnt(0)\ns_cmp_eq_u32 s2, 0\ns_cbranch_scc0 L_amp2\ns_sub_u32 s27, s54, s56\ns_mul_i32 s27, s27, {self.o['amp']}\ns_min_u32 s27, s27, 100000")
                a("L_amp:\ns_memrealtime s[58:59]\ns_waitcnt lgkmcnt(0)\ns_sub_u32 s30, s58, s56\ns_cmp_lt_u32 s30, s27\ns_cbranch_scc1 L_amp\nL_amp2:")
            self.srd(8, 84, 256)
            a("s_mov_b64 exec, 1\ns_waitcnt lgkmcnt(0)\nv_mov_b32 v8, 0\nv_mov_b32 v12, s56\nv_mov_b32 v13, s54")
            a("buffer_store_dwordx2 v[12:13], v8, s[8:11], s26 offen")
        if self.diag:
            a("s_mov_b64 exec, -1\ns_waitcnt vmcnt(0) lgkmcnt(0)")
            self.stamp(19)
            a("s_lshl_b32 s26, s2, 3\ns_add_u32 s26, s26, s22\ns_lshl_b32 s26, s26, 7\ns_add_u32 s26, s26, 0x200000\nv_mov_b32 v8, 0\ns_mov_b64 exec, 1")
            for k in range(0, 20, 4):
                for i in range(4): a(f"v_mov_b32 v{12+i}, s{self.STS[k+i]}")
                a(f"buffer_store_dwordx4 v[12:15], v8, s[4:7], s26 offen offset:{4*k}")
            a("s_waitcnt vmcnt(0)")
        a("L_end:")
        hdr = open("interleave_layers__sliding_block_cached__glu_gated_swiglu__decode.s.ref").read().split("\n")
        top = [l for l in hdr if l.startswith(";") and "@launch" not in l]
        out = "\n".join(top) + f"\n; @launch grid=({NWG},1,1) block=(512,1,1) lds=16384\n"
        out += f'.amdgcn_target "amdgcn-amd-amdhsa--gfx950"\n.text\n.globl {NAME}\n.p2align 8\n.type {NAME},@function\n{NAME}:\n'
        out += a.text()
        out += f"""s_endpgm
.section .rodata,"a"
.p2align 6
.amdhsa_kernel {NAME}
  .amdhsa_next_free_vgpr 256
  .amdhsa_next_free_sgpr 102
  .amdhsa_accum_offset 256
  .amdhsa_group_segment_fixed_size 0
  .amdhsa_kernarg_size 96
  .amdhsa_user_sgpr_count 2
  .amdhsa_user_sgpr_kernarg_segment_ptr 1
  .amdhsa_system_sgpr_workgroup_id_x 1
.end_amdhsa_kernel
"""
        return out

if __name__ == "__main__":
    opts = {}
    for x in sys.argv[3:]:
        k, v = x.split("=")
        opts[k] = int(v) if v.lstrip("-").isdigit() else v
    if sys.argv[1] != "-": open(sys.argv[1], "w").write(G(False, opts).build())
    if len(sys.argv) > 2 and sys.argv[2] != "-": open(sys.argv[2], "w").write(G(True, opts).build())
```

```python
import sys
from asmlib import Asm
NAME = "interleave_layers__sliding_block_cached__glu_gated_swiglu__decode_kernel"
CH = 16384
C_FLAG, C_H1, C_H2O, C_H2M, C_H3, C_XR2, C_H4, C_XR1, C_XR3, C_PR = 1, 3, 8, 72, 88, 96, 97, 105, 106, 107
NQ, NA, NW, NF = 64, 128, 32, 28
ID_Q, ID_A, ID_W, ID_F = 1, 65, 193, 225
NWG = 253
TMO = 20000
LOG2E = 1.4426950408889634
import struct
def f2u(x): return struct.unpack("<I", struct.pack("<f", x))[0]

class G:
    def __init__(self, diag=False, opts=None):
        self.a = Asm(); self.diag = diag; self.o = opts or {}
        self.nst = 0
    STS = list(range(56, 64)) + list(range(88, 100))
    def stamp(self, k):
        if not self.diag: return
        if self.o.get("lite") and k not in (0, 1, 4, 8, 9, 19): return
        self.a(f"s_memrealtime s[54:55]\ns_waitcnt lgkmcnt(0)\ns_mov_b32 s{self.STS[k]}, s54")
    def stamp_l(self, k0, k1):
        if not self.diag: return
        if self.o.get("lite"): return
        self.a(f"s_memrealtime s[54:55]\ns_waitcnt lgkmcnt(0)\ns_cmp_eq_u32 s23, 1\ns_cselect_b32 s{self.STS[k1]}, s54, s{self.STS[k1]}\ns_cmp_eq_u32 s23, 0\ns_cselect_b32 s{self.STS[k0]}, s54, s{self.STS[k0]}")
    def srd(self, d, p, nbytes, off_s=None):
        a = self.a
        if off_s is None:
            a(f"s_mov_b32 s{d}, s{p}\ns_mov_b32 s{d+1}, s{p+1}")
        else:
            a(f"s_add_u32 s{d}, s{p}, s{off_s}\ns_addc_u32 s{d+1}, s{p+1}, 0")
        a(f"s_mov_b32 s{d+2}, {nbytes}\ns_mov_b32 s{d+3}, 0x20000")
    def timeout(self):
        self.a(f"s_add_u32 s25, s25, 1\ns_cmp_gt_u32 s25, {TMO}\ns_cbranch_scc1 L_exit")
    def masks(self):
        a = self.a
        a("""
        v_and_b32 v8, 4, v1
        v_cmp_eq_u32 vcc, 0, v8
        v_mov_b32 v9, 0xffff
        v_cndmask_b32 v3, 0, v9, vcc
        v_xor_b32 v4, v3, v9
        v_lshlrev_b32 v5, 16, v3
        v_lshlrev_b32 v6, 16, v4
        v_and_b32 v8, 3, v1
        v_mul_u32_u24 v7, 17425, v8
        v_xor_b32 v8, 1, v8
        v_mul_u32_u24 v8, 4420, v8
        v_add_u32 v7, v7, v8
        """)
    def abuild(self, dst, src):
        for d in range(4):
            self.a(f"v_and_b32 v{dst+d}, v{src}, v{3+d}")
    def epoch_load(self):
        self.a("v_mov_b32 v8, 0\nbuffer_load_dword v9, v8, s[4:7], 0 offen sc1\nv_mov_b32 v12, -1\nv_mov_b32 v13, -1\nv_mov_b32 v14, -1\nv_mov_b32 v15, -1")
    def reset1k(self, sbase):
        a = self.a
        a(f"buffer_store_dwordx4 v[12:15], v10, s[4:7], s{sbase} offen sc1")
        a(f"s_add_u32 s31, s{sbase}, 8192")
        a(f"buffer_store_dwordx4 v[12:15], v10, s[4:7], s31 offen sc1")
    def flag_store(self, nleft, xor_s=None):
        a = self.a
        a(f"s_waitcnt vmcnt({nleft})")
        a("v_readfirstlane_b32 s24, v9")
        a("s_mul_i32 s24, s24, 0x9E3779B1\ns_add_u32 s24, s24, 0x7F4A7C15")
        if xor_s is not None: a(f"s_xor_b32 s24, s24, s{xor_s}")
        a(f"""
        s_lshr_b32 s26, s2, 7
        s_lshl_b32 s26, s26, 14
        s_and_b32 s27, s2, 127
        s_lshl_b32 s27, s27, 6
        s_add_u32 s26, s26, s27
        s_add_u32 s26, s26, {C_FLAG*CH}
        v_mov_b32 v8, 0
        v_mov_b32 v11, s24
        s_mov_b64 exec, 1
        buffer_store_dword v11, v8, s[4:7], s26 offen sc1
        s_mov_b64 exec, -1
        """)
    def flag_poll(self, tagn, first_s, n, extra_id=None):
        a = self.a
        a(f"v_add_u32 v8, s{first_s}, v0")
        nl = n
        if extra_id is not None:
            a(f"v_cmp_eq_u32 vcc, {n}, v0\nv_mov_b32 v11, {extra_id}\nv_cndmask_b32 v8, v8, v11, vcc")
            nl = n + 1
        a(f"""
        v_lshrrev_b32 v11, 7, v8
        v_lshlrev_b32 v11, 14, v11
        v_and_b32 v8, 127, v8
        v_lshl_add_u32 v8, v8, 6, v11
        s_mov_b32 s26, {C_FLAG*CH}
        s_mov_b32 s25, 0
        s_mov_b32 exec_lo, {hex(((1 << nl) - 1) & 0xffffffff)}
        s_mov_b32 exec_hi, {hex(((1 << nl) - 1) >> 32)}
        L_fp_{tagn}:
        buffer_load_dword v11, v8, s[4:7], s26 offen sc1
        """)
        self.timeout()
        a(f"""
        s_waitcnt vmcnt(0)
        v_cmp_ne_u32 vcc, s24, v11
        s_cbranch_vccnz L_fp_{tagn}
        s_mov_b64 exec, -1
        """)
    def side_poll(self, tagn):
        a = self.a
        a(f"""
        v_mov_b32 v8, {C_FLAG*CH}
        s_mov_b32 s25, 0
        s_mov_b64 exec, 1
        L_sp_{tagn}:
        buffer_load_dword v11, v8, s[4:7], 0 offen sc1
        """)
        self.timeout()
        a(f"""
        s_waitcnt vmcnt(0)
        v_xor_b32 v11, s24, v11
        v_cmp_lt_u32 vcc, 1, v11
        s_cbranch_vccnz L_sp_{tagn}
        v_readfirstlane_b32 s26, v11
        s_mov_b64 exec, -1
        s_lshl_b32 s26, s26, 13
        s_xor_b32 s20, s20, s26
        """)
    def tag_from_lds(self, addr):
        self.a(f"v_mov_b32 v8, {addr}\nds_read_b32 v9, v8\ns_waitcnt lgkmcnt(0)\nv_readfirstlane_b32 s24, v9")
    def front_setup(self, c_src, c_xr):
        a = self.a
        a(f"""
        s_mov_b32 s50, 0x00ff00ff
        s_mov_b32 s51, 0xff00ff00
        s_mov_b32 s48, 0
        s_mov_b32 s49, -1
        s_cmp_eq_u32 s22, 3
        s_cselect_b32 s28, 0x00ff00ff, -1
        s_mov_b32 s29, s28
        s_lshl_b32 s26, s22, 8
        v_lshlrev_b32 v8, 10, v2
        v_lshl_add_u32 v8, v1, 4, v8
        v_add_u32 v16, s26, v8
        v_add_u32 v18, s26, v14
        s_add_u32 s27, s26, {c_xr*CH}
        v_add_u32 v17, s27, v14
        v_lshrrev_b32 v11, 3, v0
        v_lshl_add_u32 v19, v11, 5, s26
        v_lshlrev_b32 v8, 14, v11
        v_and_b32 v9, 7, v0
        v_lshl_add_u32 v8, v9, 10, v8
        s_add_u32 s27, s26, {c_src*CH}
        v_add_u32 v13, s27, v8
        v_lshrrev_b32 v11, 3, v1
        v_lshlrev_b32 v11, 8, v11
        v_and_b32 v12, 7, v1
        v_lshl_add_u32 v11, v12, 5, v11
        v_and_b32 v12, 1, v2
        v_lshl_add_u32 v11, v12, 4, v11
        s_lshl_b32 s26, s22, 9
        s_add_u32 s26, s26, 1024
        v_add_u32 v20, s26, v11
        s_lshl_b32 s26, s22, 3
        s_add_u32 s26, s26, {1024+4096}
        v_lshrrev_b32 v8, 5, v0
        v_lshl_add_u32 v21, v8, 2, s26
        v_and_b32 v92, 0x3f803f80, v3
        v_and_b32 v93, 0x3f803f80, v4
        v_and_b32 v94, 0x3f803f80, v5
        v_and_b32 v95, 0x3f803f80, v6
        v_mov_b32 v22, 0
        """)
        for i in range(32): a(f"v_mov_b32 v{60+i}, 0")
        for i in range(8):
            a(f"s_mov_b32 s{32+i}, {c_src*CH + (i>>1)*CH + (i&1)*4096}")
    def add_side(self, src):
        self.a(f"v_add_u32 v16, {src}, v16\nv_add_u32 v17, {src}, v17\nv_add_u32 v13, {src}, v13")
    def r16_loads(self, srd, reg, rowstride, vaddr):
        for s in range(8):
            for hf in range(2):
                self.a(f"s_mov_b32 s26, {(64*hf + 2*s)*rowstride}")
                r = reg + 8*s + 4*hf
                self.a(f"buffer_load_dwordx4 v[{r}:{r+3}], v{vaddr}, s[{srd}:{srd+3}], s26 offen nt")
    def r16_addr(self, vdst, rowstride):
        self.a(f"""
        v_lshrrev_b32 v8, 1, v2
        v_lshrrev_b32 v9, 3, v1
        v_lshl_add_u32 v8, v8, 1, v9
        v_and_b32 v9, 1, v2
        v_lshl_add_u32 v8, v8, 4, v9
        s_lshl_b32 s26, s22, 7
        v_add_u32 v8, s26, v8
        v_mul_u32_u24 v8, {rowstride}, v8
        v_and_b32 v9, 7, v1
        v_lshl_add_u32 v{vdst}, v9, 4, v8
        """)
    def x_load(self):
        self.a("""
        v_and_b32 v8, 1, v2
        v_lshlrev_b32 v8, 3, v8
        v_lshl_add_u32 v8, v1, 4, v8
        v_lshrrev_b32 v9, 1, v2
        v_lshl_add_u32 v14, v9, 2, v8
        s_lshl_b32 s26, s22, 8
        buffer_load_dword v25, v14, s[16:19], s26 offen
        """)
    def gather(self, tagn, nld, xr_cond):
        a = self.a
        mode = self.o.get("pre", "any")
        a("s_mov_b32 s25, 0")
        if mode != "none":
            a(f"s_mov_b32 exec_lo, {hex(0xffffffff if nld == 8 else 0x0fffffff)}\ns_mov_b32 exec_hi, 0")
            a(f"L_gl_{tagn}:\nbuffer_load_dword v54, v13, s[4:7], 0 offen sc1")
            self.timeout()
            a("s_waitcnt vmcnt(0)")
            if mode == "all": a(f"v_cmp_eq_u32 vcc, -1, v54\ns_cbranch_vccnz L_gl_{tagn}")
            else: a(f"v_cmp_ne_u32 vcc, -1, v54\ns_cbranch_vccz L_gl_{tagn}")
        a(f"L_gp_{tagn}:")
        a("s_mov_b64 exec, s[28:29]")
        if xr_cond:
            a(f"s_cmp_eq_u32 s23, 0\ns_cbranch_scc1 L_gx_{tagn}")
        a("buffer_load_dword v22, v17, s[4:7], 0 offen sc1")
        if xr_cond: a(f"L_gx_{tagn}:")
        for i in range(nld):
            a(f"buffer_load_dwordx4 v[{60+4*i}:{63+4*i}], v16, s[4:7], s{32+i} offen sc1")
        a("s_mov_b64 exec, -1")
        self.timeout()
        a("v_mov_b32 v42, 0\nv_mov_b32 v43, 0\nv_mov_b32 v44, 0\nv_mov_b32 v45, 0")
        for i in range(0, 8, 2):
            a(f"s_waitcnt vmcnt({max(0, nld-2-i)})")
            r = 60 + 4*i
            a(f"v_smfmac_f32_16x16x64_bf16 v[42:45], v[92:95], v[{r}:{r+7}], v7")
            a(f"v_max3_u32 v54, v{22 if i == 0 else 54}, v{r}, v{r+4}")
            if i == 0: a("v_lshlrev_b32 v52, 16, v22\nv_and_b32 v53, 0xffff0000, v22")
        a(f"v_cmp_eq_u32 vcc, -1, v54\ns_cbranch_vccnz L_gp_{tagn}")
        a("""
        v_cndmask_b32 v50, v42, v44, s[48:49]
        v_cndmask_b32 v51, v43, v45, s[48:49]
        v_cvt_pk_bf16_f32 v55, v50, v51
        v_lshlrev_b32 v50, 16, v55
        v_and_b32 v51, 0xffff0000, v55
        v_pk_add_f32 v[50:51], v[50:51], v[52:53]
        v_cvt_pk_bf16_f32 v24, v50, v51
        """)
    def front_gemv(self, two, cs=False):
        a = self.a
        a("""
        ds_write_b32 v18, v24
        v_lshlrev_b32 v50, 16, v24
        v_and_b32 v51, 0xffff0000, v24
        v_mov_b32 v42, 0
        v_mov_b32 v43, 0
        s_waitcnt lgkmcnt(0)
        ds_read_b128 v[26:29], v19
        ds_read_b128 v[30:33], v19 offset:16
        v_add_f32 v55, v50, v51
        v_mul_f32 v56, v50, v50
        v_fmac_f32 v56, v51, v51
        v_mov_b32 v44, 0
        v_mov_b32 v45, 0
        """)
        if two: a("v_mov_b32 v46, 0\nv_mov_b32 v47, 0\nv_mov_b32 v48, 0\nv_mov_b32 v49, 0")
        a("v_permlane32_swap_b32 v55, v56\nv_add_f32 v55, v55, v56")
        a("s_and_b32 s26, s23, 1\ns_mul_i32 s26, s26, 4352\nv_add_u32 v8, s26, v20\nv_add_u32 v9, s26, v21")
        a("s_waitcnt lgkmcnt(1)")
        self.abuild(34, 26)
        fill = ["v_mov_b32 v56, v55", None, "v_permlane16_swap_b32 v55, v56\nv_add_f32 v55, v55, v56",
                "v_add_f32_dpp v55, v55, v55 row_ror:8 row_mask:0xf bank_mask:0xf", "v_add_f32_dpp v55, v55, v55 row_ror:4 row_mask:0xf bank_mask:0xf",
                "v_add_f32_dpp v55, v55, v55 row_ror:2 row_mask:0xf bank_mask:0xf", "v_add_f32_dpp v55, v55, v55 row_ror:1 row_mask:0xf bank_mask:0xf",
                "s_mov_b32 exec_lo, 1\ns_mov_b32 exec_hi, 1\nds_write_b32 v9, v55\ns_mov_b64 exec, s[50:51]"]
        for s in range(8):
            A = 34 + 4*(s & 1)
            if s == 3: a("s_waitcnt lgkmcnt(0)")
            if s < 7: self.abuild(34 + 4*((s+1) & 1), 26 + s + 1)
            a(f"v_smfmac_f32_16x16x64_bf16 v[42:45], v[{A}:{A+3}], v[{128+8*s}:{135+8*s}], v7")
            if two: a(f"v_smfmac_f32_16x16x64_bf16 v[46:49], v[{A}:{A+3}], v[{192+8*s}:{199+8*s}], v7")
            if fill[s]: a(fill[s])
        a("ds_write_b128 v8, v[42:45]")
        if two: a("ds_write_b128 v8, v[46:49] offset:2048")
        if cs:
            a("s_cmp_eq_u32 s23, 0\ns_cbranch_scc0 L_ncs\ns_mov_b64 exec, -1\nv_mov_b32 v46, 0\nv_mov_b32 v47, 0\nv_mov_b32 v48, 0\nv_mov_b32 v49, 0")
            for s in range(8): a(f"v_smfmac_f32_16x16x64_bf16 v[46:49], v[92:95], v[{128+8*s}:{135+8*s}], v7")
            a("s_mov_b64 exec, s[50:51]\nds_write_b128 v8, v[46:49] offset:2048\nL_ncs:")
        a("s_mov_b64 exec, -1\ns_waitcnt lgkmcnt(0)\ns_barrier")
    def xr_publish(self, sofs_expr):
        self.a(f"""
        v_subrev_u32 v8, s20, v17
        v_min_u32 v9, -2, v24
        {sofs_expr}
        v_add_u32 v8, s26, v8
        s_mov_b32 s26, 8192
        s_mov_b64 exec, s[28:29]
        buffer_store_dword v9, v8, s[4:7], 0 offen sc1
        buffer_store_dword v9, v8, s[4:7], s26 offen sc1
        s_mov_b64 exec, -1
        """)
    def back_reduce(self, two, base, ro):
        a = self.a
        a(f"ds_read_b128 v[{ro+16}:{ro+19}], v{base+1}\nds_read_b128 v[{ro+20}:{ro+23}], v{base+1} offset:16")
        for m in range(2 if two else 1):
            for k in range(4):
                a(f"ds_read2st64_b32 v[{ro+8*m+2*k}:{ro+8*m+2*k+1}], v{base} offset0:{8*m+2*k} offset1:{8*m+2*k+1}")
    def ln_scalars(self, ro, nrest):
        a = self.a
        t = ro + 16
        a(f"""
        s_waitcnt lgkmcnt({nrest})
        v_pk_add_f32 v[{t}:{t+1}], v[{t}:{t+1}], v[{t+2}:{t+3}]
        v_pk_add_f32 v[{t+4}:{t+5}], v[{t+4}:{t+5}], v[{t+6}:{t+7}]
        v_pk_add_f32 v[{t}:{t+1}], v[{t}:{t+1}], v[{t+4}:{t+5}]
        v_mul_f32 v{t}, {hex(f2u(1.0/448))}, v{t}
        v_mul_f32 v{t+1}, {hex(f2u(1.0/448))}, v{t+1}
        v_fma_f32 v{t+1}, -v{t}, v{t}, v{t+1}
        v_max_f32 v{t+1}, 0, v{t+1}
        v_cvt_pk_bf16_f32 v{t+2}, v{t}, v{t+1}
        v_lshlrev_b32 v{t}, 16, v{t+2}
        v_and_b32 v{t+1}, 0xffff0000, v{t+2}
        v_add_f32 v{t+1}, {hex(f2u(1e-5))}, v{t+1}
        v_cvt_pk_bf16_f32 v{t+1}, v{t+1}, v{t+1}
        v_and_b32 v{t+1}, 0xffff0000, v{t+1}
        v_sqrt_f32 v{t+1}, v{t+1}
        v_cvt_pk_bf16_f32 v{t+1}, v{t+1}, v{t+1}
        v_and_b32 v{t+1}, 0xffff0000, v{t+1}
        v_rcp_f32 v{t+1}, v{t+1}
        """)
    def sum8(self, r):
        self.a(f"""
        v_pk_add_f32 v[{r}:{r+1}], v[{r}:{r+1}], v[{r+2}:{r+3}]
        v_pk_add_f32 v[{r+4}:{r+5}], v[{r+4}:{r+5}], v[{r+6}:{r+7}]
        v_pk_add_f32 v[{r}:{r+1}], v[{r}:{r+1}], v[{r+4}:{r+5}]
        v_add_f32 v{r}, v{r}, v{r+1}
        """)
    def r8_addr(self, vdst, NS, wv):
        self.a(f"""
        v_lshrrev_b32 v8, 1, v2
        v_mul_u32_u24 v8, {2*NS}, v8
        v_and_b32 v9, 1, v2
        v_add_u32 v8, v8, v9
        v_mul_u32_u24 v8, 896, v8
        v_lshl_add_u32 v8, v1, 4, v8
        s_lshl_b32 s26, s{wv}, 8
        v_add_u32 v{vdst}, s26, v8
        s_cmp_eq_u32 s{wv}, 3
        s_cselect_b32 s28, 0x00ff00ff, -1
        s_mov_b32 s29, s28
        """)
    def r8_loads(self, NS, srd, vaddr, reg):
        a = self.a
        a("s_mov_b64 exec, s[28:29]")
        for s in range(NS):
            for hf in range(2):
                a(f"s_mov_b32 s26, {(4*NS*hf + 2*s)*896}")
                r = reg + 8*s + 4*hf
                a(f"buffer_load_dwordx4 v[{r}:{r+3}], v{vaddr}, s[{srd}:{srd+3}], s26 offen nt")
        a("s_mov_b64 exec, -1")
    def r8_pub_addr(self, vdst, wv, sslot):
        self.a(f"""
        v_lshrrev_b32 v9, 1, v2
        v_lshlrev_b32 v9, 13, v9
        v_lshl_add_u32 v8, v1, 4, v9
        s_lshl_b32 s26, s{wv}, 8
        s_add_u32 s26, s26, s{sslot}
        v_add_u32 v{vdst}, s26, v8
        s_and_b32 s46, s28, 0xffff
        s_mov_b32 s47, s46
        """)
    def r8_gemv(self, NS, X, reg, vpub, sofs):
        a = self.a
        a("v_mov_b32 v42, 0\nv_mov_b32 v43, 0\nv_mov_b32 v44, 0\nv_mov_b32 v45, 0")
        nrd = NS // 4
        a(f"s_waitcnt lgkmcnt({nrd-1})")
        self.abuild(34, X)
        for s in range(NS):
            A = 34 + 4*(s & 1)
            if s + 1 < NS:
                if (s + 1) % 4 == 0: a(f"s_waitcnt lgkmcnt({nrd - 1 - (s+1)//4})")
                self.abuild(34 + 4*((s+1) & 1), X + s + 1)
            a(f"v_smfmac_f32_16x16x64_bf16 v[42:45], v[{A}:{A+3}], v[{reg+8*s}:{reg+8*s+7}], v7")
        a(f"""
        v_cvt_pk_bf16_f32 v46, v42, v43
        v_cvt_pk_bf16_f32 v48, v42, v43
        v_cvt_pk_bf16_f32 v47, v44, v45
        v_cvt_pk_bf16_f32 v49, v44, v45
        v_permlane16_swap_b32 v46, v48
        v_permlane16_swap_b32 v47, v49
        s_mov_b64 exec, s[46:47]
        v_min_u32 v46, -2, v46
        buffer_store_dwordx4 v[46:49], v{vpub}, s[4:7], s{sofs} offen sc1
        s_mov_b64 exec, -1
        """)

    def role_q(self):
        a = self.a
        a(f"L_Q:\ns_sub_u32 s21, s2, {ID_Q}")
        a("s_cmp_gt_u32 s22, 4\ns_cbranch_scc1 L_exit\ns_cmp_eq_u32 s22, 4\ns_cbranch_scc1 L_Qh")
        self.srd(16, 64, 896)
        a("s_lshl_b32 s27, s21, 7")
        self.srd(8, 70, 448*8192 - 0, off_s=27)
        a("s_sub_u32 s10, s10, s27")
        self.x_load()
        self.r16_addr(15, 8192)
        self.r16_loads(8, 128, 8192, 15)
        self.masks()
        self.front_setup(C_H4, C_XR1)
        a(f"v_lshlrev_b32 v58, 2, v0\nv_add_u32 v58, 1024, v58")
        a(f"s_lshl_b32 s26, s21, 7\ns_add_u32 s26, s26, {C_H1*CH}\nv_lshrrev_b32 v8, 3, v0\nv_lshl_add_u32 v59, v8, 4, s26")
        a("s_mov_b32 s23, 0\ns_waitcnt vmcnt(0)\nv_mov_b32 v24, v25")
        self.stamp(1)
        a("s_branch L_Qg")
        a("L_Qloop:")
        self.tag_from_lds(12288)
        a(f"s_mov_b32 s27, {ID_F}")
        self.flag_poll("q", 27, NF)
        self.side_poll("q")
        self.add_side("s20")
        self.gather("q", 7, False)
        self.stamp(5)
        a("L_Qg:")
        self.front_gemv(False, cs=True)
        self.stamp_l(2, 6)
        a("s_cmp_eq_u32 s22, 0\ns_cbranch_scc0 L_Qnext")
        a(f"s_and_b32 s26, s23, 1\ns_mul_i32 s26, s26, 4352\nv_add_u32 v10, s26, v58\ns_add_u32 s26, s26, {1024+4096}\nv_mov_b32 v11, s26")
        a("s_cmp_eq_u32 s23, 0\ns_cbranch_scc0 L_Qr")
        for k in range(4): a(f"ds_read2st64_b32 v[{108+2*k}:{109+2*k}], v10 offset0:{8+2*k} offset1:{9+2*k}")
        a("s_waitcnt lgkmcnt(0)")
        self.sum8(108)
        a("v_mov_b32 v57, v108\nL_Qr:")
        self.back_reduce(False, 10, 100)
        self.ln_scalars(100, 4)
        a("s_waitcnt lgkmcnt(0)")
        self.sum8(100)
        a("""
        v_fma_f32 v100, -v116, v57, v100
        v_mul_f32 v100, v100, v117
        s_lshl_b32 s26, s23, 14
        s_add_u32 s27, s26, 8192
        v_mov_b32_dpp v101, v100 quad_perm:[1,0,3,2] row_mask:0xf bank_mask:0xf
        v_cvt_pk_bf16_f32 v104, v100, v101
        v_mov_b32_dpp v105, v104 row_shl:2 row_mask:0xf bank_mask:0xf
        v_mov_b32_dpp v106, v104 row_shl:4 row_mask:0xf bank_mask:0xf
        v_mov_b32_dpp v107, v104 row_shl:6 row_mask:0xf bank_mask:0xf
        v_min_u32 v104, -2, v104
        s_mov_b32 exec_lo, 0x01010101
        s_mov_b32 exec_hi, 0x01010101
        buffer_store_dwordx4 v[104:107], v59, s[4:7], s26 offen sc1
        buffer_store_dwordx4 v[104:107], v59, s[4:7], s27 offen sc1
        s_mov_b64 exec, -1
        """)
        self.stamp_l(3, 7)
        a("L_Qnext:\ns_add_u32 s23, s23, 1\ns_cmp_lt_i32 s23, 2\ns_cbranch_scc1 L_Qloop")
        a("s_cmp_eq_u32 s21, 0\ns_cbranch_scc0 L_Qnx")
        self.xr_publish(f"s_mov_b32 s26, {(C_XR2-C_XR1)*CH & 0xffffffff}")
        a("L_Qnx:")
        a("s_cmp_lt_u32 s21, 7\ns_cbranch_scc0 L_exit\ns_cmp_eq_u32 s22, 0\ns_cbranch_scc0 L_exit")
        self.srd(16, 82, 896)
        a(f"""
        v_lshrrev_b32 v8, 3, v0
        v_lshlrev_b32 v8, 10, v8
        v_and_b32 v9, 7, v0
        v_lshl_add_u32 v8, v9, 4, v8
        s_lshl_b32 s26, s21, 7
        s_add_u32 s27, s26, s20
        v_add_u32 v16, s27, v8
        v_add_u32 v97, s26, v14
        s_add_u32 s27, s27, {C_XR3*CH}
        v_add_u32 v17, s27, v14
        v_mov_b32 v22, 0
        v_mov_b32 v72, 0
        v_mov_b32 v73, 0
        v_mov_b32 v74, 0
        v_mov_b32 v75, 0
        s_mov_b32 s32, {(C_H4+4)*CH}
        s_mov_b32 s33, {(C_H4+5)*CH}
        s_mov_b32 s34, {(C_H4+6)*CH}
        s_mov_b32 s35, {(C_H4+7)*CH}
        s_mov_b32 s28, 0x00ff00ff
        s_mov_b32 s29, 0x00ff00ff
        s_mov_b32 s25, 0
        L_Fp:
        s_mov_b64 exec, s[28:29]
        buffer_load_dword v22, v17, s[4:7], 0 offen sc1
        s_mov_b64 exec, -1
        buffer_load_dwordx4 v[60:63], v16, s[4:7], s32 offen sc1
        buffer_load_dwordx4 v[64:67], v16, s[4:7], s33 offen sc1
        buffer_load_dwordx4 v[68:71], v16, s[4:7], s34 offen sc1
        s_mov_b32 exec_hi, 0
        buffer_load_dwordx4 v[72:75], v16, s[4:7], s35 offen sc1
        s_mov_b64 exec, -1
        """)
        self.timeout()
        a("""
        v_mov_b32 v42, 0
        v_mov_b32 v43, 0
        v_mov_b32 v44, 0
        v_mov_b32 v45, 0
        s_waitcnt vmcnt(2)
        v_smfmac_f32_16x16x64_bf16 v[42:45], v[92:95], v[60:67], v7
        v_max3_u32 v54, v22, v60, v64
        v_lshlrev_b32 v52, 16, v22
        v_and_b32 v53, 0xffff0000, v22
        s_waitcnt vmcnt(0)
        v_smfmac_f32_16x16x64_bf16 v[42:45], v[92:95], v[68:75], v7
        v_max3_u32 v54, v54, v68, v72
        v_cmp_eq_u32 vcc, -1, v54
        s_cbranch_vccnz L_Fp
        v_cndmask_b32 v50, v42, v44, s[48:49]
        v_cndmask_b32 v51, v43, v45, s[48:49]
        v_add_f32_dpp v50, v50, v50 row_ror:8 row_mask:0xf bank_mask:0xf
        v_add_f32_dpp v51, v51, v51 row_ror:8 row_mask:0xf bank_mask:0xf
        v_cvt_pk_bf16_f32 v55, v50, v51
        v_lshlrev_b32 v50, 16, v55
        v_and_b32 v51, 0xffff0000, v55
        v_pk_add_f32 v[50:51], v[50:51], v[52:53]
        v_cvt_pk_bf16_f32 v50, v50, v51
        s_mov_b64 exec, s[28:29]
        buffer_store_dword v50, v97, s[16:19], 0 offen
        """)
        self.stamp(8)
        a("s_cmp_eq_u32 s21, 0\ns_cbranch_scc0 L_exit\nv_mov_b32 v9, s24\nv_mov_b32 v8, 0\ns_mov_b64 exec, 1\nbuffer_store_dword v9, v8, s[4:7], 0 offen sc1\ns_branch L_exit")
        a("L_Qh:")
        self.epoch_load()
        a(f"""
        v_and_b32 v8, 7, v0
        v_lshlrev_b32 v8, 4, v8
        v_lshrrev_b32 v11, 3, v0
        v_lshl_add_u32 v8, v11, 13, v8
        s_lshl_b32 s26, s21, 7
        s_add_u32 s26, s26, {C_H1*CH}
        s_mov_b32 exec_hi, 0
        buffer_store_dwordx4 v[12:15], v8, s[4:7], s26 offen sc1
        s_mov_b64 exec, -1
        v_lshlrev_b32 v10, 4, v0
        s_cmp_eq_u32 s21, 0
        s_cbranch_scc0 L_Qh1
        s_mov_b32 s30, {C_XR2*CH}
        """)
        self.reset1k(30)
        a("L_Qh1:")
        self.flag_store(0)
        a("v_mov_b32 v16, 12288\nds_write_b32 v16, v11\ns_waitcnt lgkmcnt(0)\ns_branch L_exit")

    def role_f(self):
        a = self.a
        a(f"L_F:\ns_sub_u32 s21, s2, {ID_F}")
        a("s_cmp_gt_u32 s22, 3\ns_cbranch_scc1 L_Fb")
        self.srd(16, 64, 896)
        a("s_lshl_b32 s27, s21, 7")
        self.srd(8, 76, 448*3584, off_s=27)
        a("s_sub_u32 s10, s10, s27")
        self.srd(12, 78, 448*3584, off_s=27)
        a("s_sub_u32 s14, s14, s27")
        self.x_load()
        self.r16_addr(15, 3584)
        if self.o.get("gatef"): a("s_barrier")
        self.r16_loads(8, 128, 3584, 15)
        self.r16_loads(12, 192, 3584, 15)
        self.masks()
        self.front_setup(C_H3, C_XR2)
        a("s_mov_b32 s23, -1\nv_mov_b32 v24, 0x3f803f80\ns_waitcnt vmcnt(0)\nv_mov_b32 v22, v25")
        self.stamp(1)
        a("s_branch L_Fg")
        a("L_Floop:")
        self.gather("f", 8, True)
        self.stamp_l(2, 5)
        a("L_Fg:")
        self.front_gemv(True)
        self.stamp_l(3, 6)
        a("s_cmp_eq_u32 s23, -1\ns_cbranch_scc0 L_Fn1")
        self.tag_from_lds(12288)
        self.side_poll("f")
        self.add_side("s20")
        a("s_mov_b32 s23, 0\ns_branch L_Floop")
        a("L_Fn1:\ns_cmp_eq_u32 s21, 0\ns_cbranch_scc0 L_Fnx")
        self.xr_publish(f"s_lshl_b32 s26, s23, 14\ns_add_u32 s26, s26, {(C_XR1-C_XR2)*CH}")
        a("L_Fnx:")
        a(f"v_add_u32 v16, {4*CH}, v16\nv_add_u32 v13, {4*CH}, v13")
        a("s_add_u32 s23, s23, 1\ns_cmp_lt_i32 s23, 2\ns_cbranch_scc1 L_Floop\ns_branch L_exit")
        a("L_Fb:\ns_sub_u32 s30, s22, 4")
        a("s_mul_i32 s27, s21, 57344")
        self.srd(8, 80, 57344, off_s=27)
        a(f"""
        s_lshr_b32 s27, s21, 3
        s_lshl_b32 s27, s27, 14
        s_and_b32 s26, s21, 7
        s_lshl_b32 s26, s26, 10
        s_add_u32 s52, s26, s27
        s_add_u32 s52, s52, {C_H4*CH}
        s_cmp_eq_u32 s22, 4
        s_cbranch_scc0 L_Fb1
        """)
        self.epoch_load()
        a("v_lshlrev_b32 v10, 4, v0")
        self.reset1k(52)
        a(f"s_add_u32 s53, s52, {4*CH}")
        self.reset1k(53)
        a(f"s_cmp_eq_u32 s21, 0\ns_cbranch_scc0 L_Fb1\ns_mov_b32 s53, {C_XR1*CH}")
        self.reset1k(53)
        a(f"s_mov_b32 s53, {C_XR3*CH}")
        self.reset1k(53)
        a("L_Fb1:")
        self.r8_addr2(16, 8, 30)
        if self.o.get("gatef"):
            a("s_cmp_eq_u32 s22, 4\ns_cbranch_scc0 L_Fb3")
            self.flag_store(0)
            a("L_Fb3:\ns_barrier")
        self.r8_loads(8, 8, 16, 128)
        a("s_cmp_eq_u32 s22, 4\ns_cbranch_scc0 L_Fb2")
        if not self.o.get("gatef"): self.flag_store(16)
        a(f"s_mov_b32 s27, {ID_W}")
        self.flag_poll("f", 27, NW, extra_id=ID_Q)
        a("v_mov_b32 v8, 12288\nv_mov_b32 v9, s24\nds_write_b32 v8, v9\ns_waitcnt lgkmcnt(0)")
        a("L_Fb2:")
        self.masks()
        self.r8_pub_addr(17, 30, 52)
        a("v_lshlrev_b32 v58, 2, v0\nv_add_u32 v58, 1024, v58")
        a("s_lshl_b32 s26, s30, 7\ns_add_u32 s26, s26, 10240\nv_lshl_add_u32 v18, v0, 1, s26\nv_lshl_add_u32 v19, v2, 5, s26")
        a("s_mov_b32 s23, -1\ns_waitcnt vmcnt(0)")
        self.stamp(1)
        a("L_Fbl:")
        a(f"s_and_b32 s26, s23, 1\ns_mul_i32 s26, s26, 4352\nv_add_u32 v10, s26, v58\ns_add_u32 s26, s26, {1024+4096}\nv_mov_b32 v11, s26\ns_lshl_b32 s27, s23, 16")
        a("s_barrier")
        self.stamp_l(2, 5)
        self.back_reduce(True, 10, 60)
        self.ln_scalars(60, 8)
        a("s_waitcnt lgkmcnt(4)")
        self.sum8(60)
        a("s_waitcnt lgkmcnt(0)")
        self.sum8(68)
        a("s_cmp_eq_u32 s23, -1\ns_cbranch_scc0 L_Fbh\nv_mov_b32 v56, v60\nv_mov_b32 v57, v68\ns_mov_b32 s23, 0\ns_branch L_Fbl")
        a(f"""
        L_Fbh:
        v_fma_f32 v60, -v76, v56, v60
        v_fma_f32 v68, -v76, v57, v68
        v_mul_f32 v60, v60, v77
        v_mul_f32 v68, v68, v77
        v_cvt_pk_bf16_f32 v61, v60, v68
        v_lshlrev_b32 v60, 16, v61
        v_and_b32 v68, 0xffff0000, v61
        v_mul_f32 v61, {hex(f2u(-LOG2E))}, v60
        v_exp_f32 v61, v61
        v_add_f32 v61, 1.0, v61
        v_rcp_f32 v61, v61
        v_mul_f32 v61, v60, v61
        v_cvt_pk_bf16_f32 v61, v61, v61
        v_and_b32 v61, 0xffff0000, v61
        v_mul_f32 v61, v61, v68
        v_cvt_pk_bf16_f32 v61, v61, v61
        ds_write_b16 v18, v61
        s_waitcnt lgkmcnt(0)
        ds_read_b128 v[26:29], v19
        ds_read_b128 v[30:33], v19 offset:16
        """)
        self.stamp_l(3, 6)
        self.r8_gemv(8, 26, 128, 17, 27)
        self.stamp_l(4, 7)
        a("s_add_u32 s23, s23, 1\ns_cmp_lt_i32 s23, 2\ns_cbranch_scc1 L_Fbl\ns_branch L_exit")
    def r8_addr2(self, vdst, NS, wv):
        self.a(f"""
        v_lshrrev_b32 v20, 1, v2
        v_mul_u32_u24 v20, {2*NS}, v20
        v_and_b32 v21, 1, v2
        v_add_u32 v20, v20, v21
        v_mul_u32_u24 v20, 896, v20
        v_lshl_add_u32 v20, v1, 4, v20
        s_lshl_b32 s26, s{wv}, 8
        v_add_u32 v{vdst}, s26, v20
        s_cmp_eq_u32 s{wv}, 3
        s_cselect_b32 s28, 0x00ff00ff, -1
        s_mov_b32 s29, s28
        """)

    def role_w(self):
        a = self.a
        a(f"L_W:\ns_sub_u32 s21, s2, {ID_W}")
        a(f"""
        s_lshr_b32 s27, s21, 2
        s_lshl_b32 s27, s27, 14
        s_and_b32 s26, s21, 3
        s_lshl_b32 s26, s26, 11
        s_add_u32 s53, s26, s27
        s_lshr_b32 s27, s21, 3
        s_lshl_b32 s27, s27, 14
        s_and_b32 s26, s21, 7
        s_lshl_b32 s26, s26, 10
        s_add_u32 s52, s26, s27
        s_add_u32 s52, s52, {C_H3*CH}
        """)
        a("s_cmp_gt_u32 s22, 4\ns_cbranch_scc1 L_exit\ns_cmp_eq_u32 s22, 4\ns_cbranch_scc1 L_Wh")
        a("s_mul_i32 s27, s21, 114688")
        self.srd(8, 72, 114688, off_s=27)
        self.r8_addr(16, 16, 22)
        if self.o.get("gatew"): a("s_barrier")
        self.r8_loads(16, 8, 16, 128)
        self.masks()
        self.r8_pub_addr(17, 22, 52)
        a(f"""
        v_lshrrev_b32 v8, 2, v0
        v_and_b32 v9, 3, v0
        v_lshlrev_b32 v10, 9, v8
        v_lshl_add_u32 v10, v9, 5, v10
        s_lshl_b32 s26, s21, 14
        s_lshl_b32 s27, s22, 7
        s_add_u32 s26, s26, s27
        s_add_u32 s26, s26, {C_H2O*CH}
        v_add_u32 v18, s26, v10
        s_add_u32 s26, s53, {C_H2M*CH}
        v_lshl_add_u32 v19, v8, 7, s26
        v_lshlrev_b32 v10, 4, v9
        v_lshl_add_u32 v10, v2, 2, v10
        s_lshl_b32 s26, s22, 6
        v_add_u32 v20, s26, v10
        v_lshlrev_b32 v21, 6, v2
        s_mov_b32 s23, 0
        s_waitcnt vmcnt(0)
        """)
        self.stamp(1)
        a("s_barrier\nv_add_u32 v18, s20, v18\nv_add_u32 v19, s20, v19")
        a("L_Wl:\ns_mov_b32 s25, 0")
        a(f"s_mul_i32 s30, s23, {32*CH}\ns_lshl_b32 s27, s23, 17\ns_lshl_b32 s31, s23, 16")
        a("""
        L_Wp:
        buffer_load_dwordx2 v[22:23], v19, s[4:7], s27 offen sc1
        buffer_load_dwordx4 v[60:63], v18, s[4:7], s30 offen sc1
        buffer_load_dwordx4 v[64:67], v18, s[4:7], s30 offen offset:16 sc1
        """)
        self.timeout()
        a("""
        s_waitcnt vmcnt(2)
        v_max_f32_dpp v24, v22, v22 row_ror:4 row_mask:0xf bank_mask:0xf
        v_max_f32_dpp v24, v24, v24 row_ror:8 row_mask:0xf bank_mask:0xf
        v_mov_b32 v25, v24
        v_permlane16_swap_b32 v24, v25
        v_max_f32 v24, v24, v25
        v_mov_b32 v25, v24
        v_permlane32_swap_b32 v24, v25
        v_max_f32 v24, v24, v25
        v_sub_f32 v24, v22, v24
        v_exp_f32 v24, v24
        s_waitcnt vmcnt(0)
        v_max3_u32 v54, v22, v60, v64
        v_cmp_eq_u32 vcc, -1, v54
        s_cbranch_vccnz L_Wp
        """)
        self.stamp_l(2, 5)
        a("""
        v_mul_f32 v26, v23, v24
        v_pk_mul_f32 v[60:61], v[60:61], v[24:25] op_sel_hi:[1,0]
        v_pk_mul_f32 v[64:65], v[64:65], v[24:25] op_sel_hi:[1,0]
        v_pk_mul_f32 v[62:63], v[62:63], v[24:25] op_sel_hi:[1,0]
        v_pk_mul_f32 v[66:67], v[66:67], v[24:25] op_sel_hi:[1,0]
        v_add_f32_dpp v26, v26, v26 row_ror:4 row_mask:0xf bank_mask:0xf
        v_permlane32_swap_b32 v60, v64
        v_permlane32_swap_b32 v61, v65
        v_add_f32_dpp v26, v26, v26 row_ror:8 row_mask:0xf bank_mask:0xf
        v_permlane32_swap_b32 v62, v66
        v_permlane32_swap_b32 v63, v67
        v_mov_b32 v27, v26
        v_pk_add_f32 v[60:61], v[60:61], v[64:65]
        v_pk_add_f32 v[62:63], v[62:63], v[66:67]
        v_permlane16_swap_b32 v26, v27
        v_add_f32 v26, v26, v27
        v_permlane16_swap_b32 v60, v62
        v_permlane16_swap_b32 v61, v63
        v_mov_b32 v27, v26
        v_pk_add_f32 v[60:61], v[60:61], v[62:63]
        v_permlane32_swap_b32 v26, v27
        v_add_f32_dpp v60, v60, v60 row_ror:4 row_mask:0xf bank_mask:0xf
        v_add_f32_dpp v61, v61, v61 row_ror:4 row_mask:0xf bank_mask:0xf
        v_add_f32 v26, v26, v27
        v_rcp_f32 v26, v26
        v_add_f32_dpp v60, v60, v60 row_ror:8 row_mask:0xf bank_mask:0xf
        v_add_f32_dpp v61, v61, v61 row_ror:8 row_mask:0xf bank_mask:0xf
        v_pk_mul_f32 v[60:61], v[60:61], v[26:27] op_sel_hi:[1,0]
        v_cvt_pk_bf16_f32 v60, v60, v61
        ds_write_b32 v20, v60
        s_waitcnt lgkmcnt(0)
        s_barrier
        ds_read_b128 v[60:63], v21
        ds_read_b128 v[64:67], v21 offset:16
        ds_read_b128 v[68:71], v21 offset:32
        ds_read_b128 v[72:75], v21 offset:48
        """)
        self.stamp_l(3, 6)
        self.r8_gemv(16, 60, 128, 17, 31)
        self.stamp_l(4, 7)
        a("s_cmp_eq_u32 s23, 1\ns_cbranch_scc1 L_exit\ns_mov_b32 s23, 1")
        self.tag_from_lds(512)
        self.side_poll("w")
        a("v_xor_b32 v18, s26, v18\nv_xor_b32 v19, s26, v19\ns_branch L_Wl")
        a("L_Wh:")
        self.epoch_load()
        a("v_lshlrev_b32 v10, 4, v0")
        self.reset1k(52)
        a(f"s_add_u32 s53, s52, {4*CH}")
        self.reset1k(53)
        self.flag_store(0)
        if self.o.get("gatew"): a("s_barrier")
        a(f"s_lshr_b32 s27, s21, 2\ns_lshl_b32 s27, s27, 4\ns_add_u32 s27, s27, {ID_A}")
        self.flag_poll("w", 27, 16)
        a("v_mov_b32 v8, 512\nv_mov_b32 v9, s24\nds_write_b32 v8, v9\ns_waitcnt lgkmcnt(0)\ns_branch L_exit")

    def role_a(self):
        a = self.a
        a(f"L_A:\ns_sub_u32 s21, s2, {ID_A}\ns_lshr_b32 s52, s21, 4\ns_and_b32 s53, s21, 15")
        a("s_cmp_gt_u32 s22, 4\ns_cbranch_scc1 L_exit\ns_cmp_eq_u32 s22, 4\ns_cbranch_scc1 L_Ah")
        a(f"s_lshl_b32 s27, s52, 22\ns_lshl_b32 s26, s53, 16\ns_add_u32 s27, s27, s26\ns_add_u32 s27, s27, {6144*512}")
        self.srd(8, 66, 65536, off_s=27)
        self.srd(12, 68, 65536, off_s=27)
        a("""
        s_lshl_b32 s26, s22, 14
        v_and_b32 v8, 7, v1
        v_lshlrev_b32 v8, 9, v8
        v_lshl_add_u32 v8, v2, 4, v8
        v_lshrrev_b32 v9, 3, v1
        v_lshl_add_u32 v8, v9, 6, v8
        v_add_u32 v16, s26, v8
        v_lshrrev_b32 v8, 1, v2
        v_and_b32 v9, 1, v2
        v_lshl_add_u32 v8, v8, 2, v9
        v_lshlrev_b32 v8, 9, v8
        v_lshl_add_u32 v8, v1, 4, v8
        v_add_u32 v17, s26, v8
        s_mov_b32 s32, 0
        s_mov_b32 s33, 4096
        s_mov_b32 s34, 8192
        s_mov_b32 s35, 12288
        """)
        KR, VR = 128, 192
        for T in range(2):
            for ks in range(8):
                r = KR + 32*T + 4*ks
                a(f"buffer_load_dwordx4 v[{r}:{r+3}], v16, s[8:11], s{32+2*T+(ks&1)} offen offset:{128*(ks>>1)} nt")
        for T in range(2):
            for aa in range(2):
                for cb in range(2):
                    for hf in range(2):
                        r = VR + ((2*T + aa)*2 + cb)*8 + 4*hf
                        if self.o.get("pace", 1): a("s_waitcnt vmcnt(15)")
                        a(f"buffer_load_dwordx4 v[{r}:{r+3}], v17, s[12:15], s{32+2*T+hf} offen offset:{1024*aa + 256*cb} nt")
        self.masks()
        a(f"""
        v_lshrrev_b32 v8, 3, v1
        v_lshlrev_b32 v8, 9, v8
        v_lshl_add_u32 v18, v2, 4, v8
        v_lshrrev_b32 v8, 1, v2
        v_lshlrev_b32 v8, 10, v8
        v_lshl_add_u32 v8, v1, 5, v8
        v_and_b32 v9, 1, v2
        v_lshl_add_u32 v8, v9, 4, v8
        s_lshl_b32 s26, s22, 11
        s_add_u32 s26, s26, 1024
        v_add_u32 v19, s26, v8
        v_lshrrev_b32 v8, 3, v1
        s_lshl_b32 s26, s22, 3
        s_add_u32 s26, s26, 9216
        v_lshl_add_u32 v20, v8, 5, s26
        v_and_b32 v8, 31, v0
        s_lshl_b32 s26, s22, 9
        s_add_u32 s26, s26, 1024
        v_lshl_add_u32 v21, v8, 4, s26
        s_lshr_b32 s26, s22, 1
        s_lshl_b32 s26, s26, 5
        s_add_u32 s26, s26, 9216
        v_mov_b32 v22, s26
        s_lshl_b32 s26, s52, 2
        s_add_u32 s26, s26, s22
        s_lshl_b32 s27, s26, 14
        s_lshl_b32 s30, s53, 9
        s_add_u32 s27, s27, s30
        s_add_u32 s27, s27, {C_H2O*CH}
        v_lshrrev_b32 v9, 5, v0
        v_lshlrev_b32 v9, 13, v9
        v_lshl_add_u32 v8, v8, 4, v9
        v_add_u32 v23, s27, v8
        s_lshl_b32 s27, s52, 14
        s_lshl_b32 s30, s22, 11
        s_add_u32 s27, s27, s30
        s_lshl_b32 s30, s53, 7
        s_add_u32 s27, s27, s30
        s_add_u32 s27, s27, {C_H2M*CH}
        v_add_u32 v24, s27, v9
        s_mov_b32 s36, {hex(f2u(LOG2E/16))}
        s_mov_b32 s23, 0
        s_waitcnt vmcnt(16)
        """)
        self.stamp(1)
        for pr in range(8):
            X = KR + 8*pr
            for d in range(4): a(f"v_mov_b32_dpp v{60+d}, v{X+d} row_ror:8 row_mask:0xf bank_mask:0xf")
            for d in range(4): a(f"v_mov_b32_dpp v{X+d}, v{X+4+d} row_ror:8 row_mask:0xf bank_mask:0xc")
            for d in range(4): a(f"v_mov_b32_dpp v{X+4+d}, v{60+d} quad_perm:[0,1,2,3] row_mask:0xf bank_mask:0x3")
        if self.o.get("vstamp"):
            a("s_waitcnt vmcnt(0)"); self.stamp(9)
        a("L_Al:\ns_barrier")
        self.stamp_l(2, 6)
        QR = 60
        for ks in range(8):
            a(f"ds_read_b128 v[{QR+4*ks}:{QR+4*ks+3}], v18 offset:{64*ks}")
        for ks in range(8):
            a(f"s_waitcnt lgkmcnt({7-ks})")
            for T in range(2):
                c = "0" if ks == 0 else f"v[{44+4*T}:{47+4*T}]"
                a(f"v_mfma_f32_16x16x32_bf16 v[{44+4*T}:{47+4*T}], v[{KR+32*T+4*ks}:{KR+32*T+4*ks+3}], v[{QR+4*ks}:{QR+4*ks+3}], {c}")
        for i in range(8): a(f"v_mov_b32 v{92+i}, 0")
        for k in range(4): a(f"v_cvt_pk_bf16_f32 v{52+k}, v{44+2*k}, v{45+2*k}")
        for k in range(4): a(f"v_lshlrev_b32 v{44+2*k}, 16, v{52+k}\nv_and_b32 v{45+2*k}, 0xffff0000, v{52+k}")
        a("""
        v_max3_f32 v52, v44, v45, v46
        v_max3_f32 v53, v47, v48, v49
        v_max3_f32 v52, v50, v51, v52
        v_max_f32 v52, v52, v53
        v_mov_b32 v53, v52
        v_permlane32_swap_b32 v52, v53
        v_max_f32 v52, v52, v53
        v_mov_b32 v53, v52
        v_permlane16_swap_b32 v52, v53
        v_max_f32 v52, v52, v53
        v_mul_f32 v56, s36, v52
        """)
        for k in range(8): a(f"v_fma_f32 v{44+k}, v{44+k}, s36, -v56")
        for k in range(8): a(f"v_exp_f32 v{44+k}, v{44+k}")
        for k in range(4): a(f"v_cvt_pk_bf16_f32 v{52+k}, v{44+2*k}, v{45+2*k}")
        self.abuild(34, 52)
        a("s_waitcnt vmcnt(0)")
        self.stamp_l(3, 7)
        fill = ["v_pk_add_f32 v[44:45], v[44:45], v[46:47]\nv_pk_add_f32 v[48:49], v[48:49], v[50:51]",
                "v_pk_add_f32 v[44:45], v[44:45], v[48:49]\nv_add_f32 v57, v44, v45\nv_mov_b32 v58, v57",
                "v_permlane32_swap_b32 v57, v58\nv_add_f32 v57, v57, v58\nv_mov_b32 v58, v57",
                "v_permlane16_swap_b32 v57, v58\nv_add_f32 v57, v57, v58"]
        for n in range(4):
            A = 34 + 4*(n & 1)
            if n < 3: self.abuild(34 + 4*((n+1) & 1), 52 + n + 1)
            for cb in range(2):
                r = VR + (n*2 + cb)*8
                a(f"v_smfmac_f32_16x16x64_bf16 v[{92+4*cb}:{95+4*cb}], v[{A}:{A+3}], v[{r}:{r+7}], v7")
            a(fill[n])
        a("""
        s_mov_b64 exec, 0x101
        ds_write_b64 v20, v[56:57]
        s_mov_b64 exec, -1
        ds_write_b128 v19, v[92:95]
        ds_write_b128 v19, v[96:99] offset:512
        s_waitcnt lgkmcnt(0)
        s_barrier
        ds_read_b128 v[44:47], v22
        ds_read_b128 v[48:51], v22 offset:16
        ds_read_b128 v[60:63], v21
        ds_read_b128 v[64:67], v21 offset:2048
        ds_read_b128 v[68:71], v21 offset:4096
        ds_read_b128 v[72:75], v21 offset:6144
        s_waitcnt lgkmcnt(4)
        v_max3_f32 v56, v44, v46, v48
        v_max_f32 v56, v56, v50
        v_sub_f32 v52, v44, v56
        v_sub_f32 v53, v46, v56
        v_sub_f32 v54, v48, v56
        v_sub_f32 v55, v50, v56
        v_exp_f32 v52, v52
        v_exp_f32 v53, v53
        v_exp_f32 v54, v54
        v_exp_f32 v55, v55
        s_waitcnt lgkmcnt(3)
        v_pk_mul_f32 v[60:61], v[60:61], v[52:53] op_sel_hi:[1,0]
        v_pk_mul_f32 v[62:63], v[62:63], v[52:53] op_sel_hi:[1,0]
        s_waitcnt lgkmcnt(2)
        v_pk_fma_f32 v[60:61], v[64:65], v[52:53], v[60:61] op_sel:[0,1,0] op_sel_hi:[1,1,1]
        v_pk_fma_f32 v[62:63], v[66:67], v[52:53], v[62:63] op_sel:[0,1,0] op_sel_hi:[1,1,1]
        s_waitcnt lgkmcnt(1)
        v_pk_fma_f32 v[60:61], v[68:69], v[54:55], v[60:61] op_sel_hi:[1,0,1]
        v_pk_fma_f32 v[62:63], v[70:71], v[54:55], v[62:63] op_sel_hi:[1,0,1]
        s_waitcnt lgkmcnt(0)
        v_pk_fma_f32 v[60:61], v[72:73], v[54:55], v[60:61] op_sel:[0,1,0] op_sel_hi:[1,1,1]
        v_pk_fma_f32 v[62:63], v[74:75], v[54:55], v[62:63] op_sel:[0,1,0] op_sel_hi:[1,1,1]
        """)
        a(f"s_mul_i32 s26, s23, {32*CH}\ns_lshl_b32 s27, s23, 17")
        a("""
        v_mul_f32 v57, v52, v45
        v_min_u32 v60, -2, v60
        buffer_store_dwordx4 v[60:63], v23, s[4:7], s26 offen sc1
        v_fmac_f32 v57, v53, v47
        v_fmac_f32 v57, v54, v49
        v_fmac_f32 v57, v55, v51
        v_min_u32 v56, -2, v56
        s_mov_b32 exec_lo, 1
        s_mov_b32 exec_hi, 1
        buffer_store_dwordx2 v[56:57], v24, s[4:7], s27 offen sc1
        s_mov_b64 exec, -1
        """)
        self.stamp_l(4, 8)
        a("s_add_u32 s23, s23, 1\ns_cmp_lt_i32 s23, 2\ns_cbranch_scc1 L_Al\ns_branch L_exit")
        a("L_Ah:")
        self.epoch_load()
        a(f"""
        v_and_b32 v8, 31, v0
        v_lshrrev_b32 v11, 5, v0
        v_lshlrev_b32 v11, 13, v11
        v_lshl_add_u32 v10, v8, 4, v11
        s_lshl_b32 s27, s52, 16
        s_lshl_b32 s30, s53, 9
        s_add_u32 s27, s27, s30
        s_add_u32 s27, s27, {C_H2O*CH}
        """)
        for L in range(2):
            for w in range(4):
                a(f"s_add_u32 s26, s27, {(L*32 + w)*CH}\nbuffer_store_dwordx4 v[12:15], v10, s[4:7], s26 offen sc1")
        a(f"""
        v_and_b32 v8, 3, v0
        v_lshlrev_b32 v8, 11, v8
        v_bfe_u32 v11, v0, 2, 1
        v_lshl_add_u32 v8, v11, 13, v8
        v_bfe_u32 v11, v0, 3, 1
        v_lshl_add_u32 v8, v11, 17, v8
        s_lshl_b32 s27, s52, 14
        s_lshl_b32 s30, s53, 7
        s_add_u32 s27, s27, s30
        s_add_u32 s27, s27, {C_H2M*CH}
        s_mov_b64 exec, 0xffff
        buffer_store_dwordx4 v[12:15], v8, s[4:7], s27 offen sc1
        s_mov_b64 exec, -1
        """)
        self.flag_store(0)
        a(f"s_lshl_b32 s27, s52, 3\ns_add_u32 s27, s27, {ID_Q}")
        self.flag_poll("a", 27, 8)
        a(f"""
        v_lshlrev_b32 v16, 4, v0
        s_lshl_b32 s26, s52, 10
        s_add_u32 s26, s26, s20
        s_add_u32 s26, s26, {C_H1*CH}
        v_add_u32 v17, s26, v16
        s_mov_b32 s23, 0
        L_Ahl:
        s_lshl_b32 s26, s23, 14
        s_mov_b32 s25, 0
        L_Ahp:
        buffer_load_dwordx4 v[20:23], v17, s[4:7], s26 offen sc1
        """)
        self.timeout()
        a("""
        s_waitcnt vmcnt(0)
        v_cmp_eq_u32 vcc, -1, v20
        s_cbranch_vccnz L_Ahp
        ds_write_b128 v16, v[20:23]
        s_waitcnt lgkmcnt(0)
        s_barrier
        s_barrier
        s_cmp_eq_u32 s23, 1
        s_cbranch_scc1 L_exit
        s_mov_b32 s23, 1
        """)
        self.side_poll("a")
        a("v_xor_b32 v17, s26, v17\ns_branch L_Ahl")

    def role_c(self):
        a = self.a
        a("L_C:")
        self.epoch_load()
        a(f"""
        s_lshr_b32 s30, s22, 2
        s_lshl_b32 s26, s30, 13
        s_and_b32 s27, s22, 3
        s_lshl_b32 s27, s27, 11
        s_add_u32 s26, s26, s27
        s_add_u32 s26, s26, {C_PR*CH}
        s_lshl_b32 s30, s30, 2
        v_mov_b32 v16, s30
        v_mov_b32 v17, -1
        ds_write_b32 v16, v17
        s_mov_b64 exec, 1
        buffer_store_dword v8, v8, s[4:7], s26 offen sc1
        s_mov_b32 s31, -1
        s_waitcnt vmcnt(0) lgkmcnt(0)
        s_barrier
        """)
        a(f"""
        s_mov_b32 s36, 0
        L_Cl:
        s_and_b32 s27, s36, 7
        s_lshl_b32 s27, s27, 8
        s_add_u32 s27, s27, s26
        s_memtime s[32:33]
        s_waitcnt lgkmcnt(0)
        buffer_store_dword v8, v8, s[4:7], s27 offen offset:128 sc1
        s_waitcnt vmcnt(0)
        s_memtime s[34:35]
        s_waitcnt lgkmcnt(0)
        s_sub_u32 s34, s34, s32
        v_mov_b32 v17, s34
        ds_min_u32 v16, v17
        s_waitcnt lgkmcnt(0)
        s_barrier
        ds_read_b64 v[18:19], v8
        s_waitcnt lgkmcnt(0)
        s_barrier
        v_readfirstlane_b32 s32, v18
        v_readfirstlane_b32 s33, v19
        s_add_u32 s36, s36, 1
        s_cmp_ge_u32 s36, {self.o.get("cmax", 16)}
        s_cbranch_scc1 L_Cd
        s_min_u32 s34, s32, s33
        s_max_u32 s35, s32, s33
        s_cmp_gt_u32 s34, 620
        s_cbranch_scc1 L_Cl
        s_sub_u32 s35, s35, s34
        s_cmp_lt_u32 s35, 120
        s_cbranch_scc1 L_Cl
        L_Cd:
        s_cmp_eq_u32 s22, 0
        s_cbranch_scc0 L_exit
        s_mov_b64 exec, -1
        s_cmp_lt_u32 s33, s32
        s_cselect_b32 s30, 1, 0
        s_lshr_b32 s31, s20, 13
        s_xor_b32 s30, s30, s31
        """)
        if self.diag: a("s_mov_b32 s57, s32\ns_mov_b32 s58, s33\ns_mov_b32 s59, s30")
        self.flag_store(0, xor_s=30)
        self.stamp(4)
        a("s_branch L_exit")

    def build(self):
        a = self.a
        a(f"s_cmp_ge_u32 s2, {NWG}\ns_cbranch_scc1 L_end")
        if self.o.get("dbg"): a("s_memrealtime s[56:57]")
        a("s_load_dwordx16 s[64:79], s[0:1], 0\ns_load_dwordx8 s[80:87], s[0:1], 64")
        if self.diag:
            for s in self.STS: a(f"s_mov_b32 s{s}, 0")
            a("s_mov_b32 s23, -1")
        a("""
        v_lshrrev_b32 v1, 6, v0
        v_and_b32 v0, 63, v0
        s_getreg_b32 s20, hwreg(HW_REG_XCC_ID, 0, 4)
        v_readfirstlane_b32 s22, v1
        s_bfe_u32 s20, s20, 0x10002
        s_lshl_b32 s20, s20, 13
        v_and_b32 v1, 15, v0
        v_lshrrev_b32 v2, 4, v0
        s_cmp_lt_u32 s22, 4
        s_cbranch_scc1 L_np
        s_setprio 3
        L_np:
        s_waitcnt lgkmcnt(0)
        """)
        self.stamp(0)
        self.srd(4, 86, (4 << 20) if self.diag else (2 << 20))
        a("s_cmp_eq_u32 s2, 0\ns_cbranch_scc1 L_C")
        a(f"s_cmp_lt_u32 s2, {ID_A}\ns_cbranch_scc1 L_Q\ns_cmp_lt_u32 s2, {ID_W}\ns_cbranch_scc1 L_A\ns_cmp_lt_u32 s2, {ID_F}\ns_cbranch_scc1 L_W\ns_branch L_F")
        self.role_c(); self.role_q(); self.role_a(); self.role_w(); self.role_f()
        a("L_exit:")
        if self.o.get("dbg"):
            a("s_cmp_eq_u32 s22, 0\ns_cbranch_scc0 L_end\ns_mov_b32 s26, -1")
            for n, w in enumerate((1, 65, 192, 193, 225, 252)):
                a(f"s_cmp_eq_u32 s2, {w}\ns_cselect_b32 s26, {8*n}, s26")
            a("s_cmp_eq_u32 s26, -1\ns_cbranch_scc1 L_end\ns_memrealtime s[54:55]")
            if self.o.get("amp"):
                a(f"s_waitcnt lgkmcnt(0)\ns_cmp_eq_u32 s2, 1\ns_cbranch_scc0 L_amp2\ns_sub_u32 s27, s54, s56\ns_mul_i32 s27, s27, {self.o['amp']}\ns_min_u32 s27, s27, 100000")
                a("L_amp:\ns_memrealtime s[58:59]\ns_waitcnt lgkmcnt(0)\ns_sub_u32 s30, s58, s56\ns_cmp_lt_u32 s30, s27\ns_cbranch_scc1 L_amp\nL_amp2:")
            self.srd(8, 84, 256)
            a("s_mov_b64 exec, 1\ns_waitcnt lgkmcnt(0)\nv_mov_b32 v8, 0\nv_mov_b32 v12, s56\nv_mov_b32 v13, s54")
            a("buffer_store_dwordx2 v[12:13], v8, s[8:11], s26 offen")
        if self.diag:
            a("s_mov_b64 exec, -1\ns_waitcnt vmcnt(0) lgkmcnt(0)")
            self.stamp(19)
            a("s_lshl_b32 s26, s2, 3\ns_add_u32 s26, s26, s22\ns_lshl_b32 s26, s26, 7\ns_add_u32 s26, s26, 0x200000\nv_mov_b32 v8, 0\ns_mov_b64 exec, 1")
            for k in range(0, 20, 4):
                for i in range(4): a(f"v_mov_b32 v{12+i}, s{self.STS[k+i]}")
                a(f"buffer_store_dwordx4 v[12:15], v8, s[4:7], s26 offen offset:{4*k}")
            a("s_waitcnt vmcnt(0)")
        a("L_end:")
        hdr = open("interleave_layers__sliding_block_cached__glu_gated_swiglu__decode.s.ref").read().split("\n")
        top = [l for l in hdr if l.startswith(";") and "@launch" not in l]
        out = "\n".join(top) + f"\n; @launch grid=({NWG},1,1) block=(512,1,1) lds=16384\n"
        out += f'.amdgcn_target "amdgcn-amd-amdhsa--gfx950"\n.text\n.globl {NAME}\n.p2align 8\n.type {NAME},@function\n{NAME}:\n'
        out += a.text()
        out += f"""s_endpgm
.section .rodata,"a"
.p2align 6
.amdhsa_kernel {NAME}
  .amdhsa_next_free_vgpr 256
  .amdhsa_next_free_sgpr 102
  .amdhsa_accum_offset 256
  .amdhsa_group_segment_fixed_size 0
  .amdhsa_kernarg_size 96
  .amdhsa_user_sgpr_count 2
  .amdhsa_user_sgpr_kernarg_segment_ptr 1
  .amdhsa_system_sgpr_workgroup_id_x 1
.end_amdhsa_kernel
"""
        return out

if __name__ == "__main__":
    opts = {}
    for x in sys.argv[3:]:
        k, v = x.split("=")
        opts[k] = int(v) if v.lstrip("-").isdigit() else v
    if sys.argv[1] != "-": open(sys.argv[1], "w").write(G(False, opts).build())
    if len(sys.argv) > 2 and sys.argv[2] != "-": open(sys.argv[2], "w").write(G(True, opts).build())
```

```python
import sys
from asmlib import Asm
NAME = "interleave_layers__sliding_block_cached__glu_gated_swiglu__decode_kernel"
CH = 16384
C_FLAG, C_H1, C_H2O, C_H2M, C_H3, C_XR2, C_H4, C_XR1, C_XR3, C_PR = 1, 3, 8, 72, 88, 96, 97, 105, 106, 107
NQ, NA, NW, NF = 64, 128, 32, 28
ID_Q, ID_A, ID_W, ID_F = 1, 65, 193, 225
NWG = 253
TMO = 20000
LOG2E = 1.4426950408889634
import struct
def f2u(x): return struct.unpack("<I", struct.pack("<f", x))[0]

class G:
    def __init__(self, diag=False, opts=None):
        self.a = Asm(); self.diag = diag; self.o = opts or {}
        self.nst = 0
    STS = list(range(56, 64)) + list(range(88, 100))
    def stamp(self, k):
        if not self.diag: return
        if self.o.get("lite") and k not in (0, 1, 4, 8, 9, 19): return
        self.a(f"s_memrealtime s[54:55]\ns_waitcnt lgkmcnt(0)\ns_mov_b32 s{self.STS[k]}, s54")
    def stamp_l(self, k0, k1):
        if not self.diag: return
        if self.o.get("lite"): return
        self.a(f"s_memrealtime s[54:55]\ns_waitcnt lgkmcnt(0)\ns_cmp_eq_u32 s23, 1\ns_cselect_b32 s{self.STS[k1]}, s54, s{self.STS[k1]}\ns_cmp_eq_u32 s23, 0\ns_cselect_b32 s{self.STS[k0]}, s54, s{self.STS[k0]}")
    def srd(self, d, p, nbytes, off_s=None):
        a = self.a
        if off_s is None:
            a(f"s_mov_b32 s{d}, s{p}\ns_mov_b32 s{d+1}, s{p+1}")
        else:
            a(f"s_add_u32 s{d}, s{p}, s{off_s}\ns_addc_u32 s{d+1}, s{p+1}, 0")
        a(f"s_mov_b32 s{d+2}, {nbytes}\ns_mov_b32 s{d+3}, 0x20000")
    def timeout(self):
        self.a(f"s_add_u32 s25, s25, 1\ns_cmp_gt_u32 s25, {TMO}\ns_cbranch_scc1 L_exit")
    def masks(self):
        a = self.a
        a("""
        v_and_b32 v8, 4, v1
        v_cmp_eq_u32 vcc, 0, v8
        v_mov_b32 v9, 0xffff
        v_cndmask_b32 v3, 0, v9, vcc
        v_xor_b32 v4, v3, v9
        v_lshlrev_b32 v5, 16, v3
        v_lshlrev_b32 v6, 16, v4
        v_and_b32 v8, 3, v1
        v_mul_u32_u24 v7, 17425, v8
        v_xor_b32 v8, 1, v8
        v_mul_u32_u24 v8, 4420, v8
        v_add_u32 v7, v7, v8
        """)
    def abuild(self, dst, src):
        for d in range(4):
            self.a(f"v_and_b32 v{dst+d}, v{src}, v{3+d}")
    def epoch_load(self):
        self.a("v_mov_b32 v8, 0\nbuffer_load_dword v9, v8, s[4:7], 0 offen sc1\nv_mov_b32 v12, -1\nv_mov_b32 v13, -1\nv_mov_b32 v14, -1\nv_mov_b32 v15, -1")
    def reset1k(self, sbase):
        a = self.a
        a(f"buffer_store_dwordx4 v[12:15], v10, s[4:7], s{sbase} offen sc1")
        a(f"s_add_u32 s31, s{sbase}, 8192")
        a(f"buffer_store_dwordx4 v[12:15], v10, s[4:7], s31 offen sc1")
    def flag_store(self, nleft, xor_s=None):
        a = self.a
        a(f"s_waitcnt vmcnt({nleft})")
        a("v_readfirstlane_b32 s24, v9")
        a("s_mul_i32 s24, s24, 0x9E3779B1\ns_add_u32 s24, s24, 0x7F4A7C15")
        if xor_s is not None: a(f"s_xor_b32 s24, s24, s{xor_s}")
        a(f"""
        s_lshr_b32 s26, s2, 7
        s_lshl_b32 s26, s26, 14
        s_and_b32 s27, s2, 127
        s_lshl_b32 s27, s27, 6
        s_add_u32 s26, s26, s27
        s_add_u32 s26, s26, {C_FLAG*CH}
        v_mov_b32 v8, 0
        v_mov_b32 v11, s24
        s_mov_b64 exec, 1
        buffer_store_dword v11, v8, s[4:7], s26 offen sc1
        s_mov_b64 exec, -1
        """)
    def flag_poll(self, tagn, first_s, n, extra_id=None):
        a = self.a
        a(f"v_add_u32 v8, s{first_s}, v0")
        nl = n
        if extra_id is not None:
            a(f"v_cmp_eq_u32 vcc, {n}, v0\nv_mov_b32 v11, {extra_id}\nv_cndmask_b32 v8, v8, v11, vcc")
            nl = n + 1
        a(f"v_cmp_ne_u32 vcc, {nl}, v0\nv_cndmask_b32 v8, 0, v8, vcc\nv_cndmask_b32_e64 v9, 1, 0, vcc")
        cl = nl; nl += 1
        a(f"""
        v_lshrrev_b32 v11, 7, v8
        v_lshlrev_b32 v11, 14, v11
        v_and_b32 v8, 127, v8
        v_lshl_add_u32 v8, v8, 6, v11
        s_mov_b32 s26, {C_FLAG*CH}
        s_mov_b32 s25, 0
        s_mov_b32 exec_lo, {hex(((1 << nl) - 1) & 0xffffffff)}
        s_mov_b32 exec_hi, {hex(((1 << nl) - 1) >> 32)}
        L_fp_{tagn}:
        buffer_load_dword v11, v8, s[4:7], s26 offen sc1
        """)
        self.timeout()
        a(f"""
        s_waitcnt vmcnt(0)
        v_xor_b32 v11, s24, v11
        v_cmp_gt_u32 vcc, v11, v9
        s_cbranch_vccnz L_fp_{tagn}
        v_readlane_b32 s26, v11, {cl}
        s_mov_b64 exec, -1
        s_lshl_b32 s26, s26, 13
        s_xor_b32 s20, s20, s26
        """)
    def tag_from_lds(self, addr):
        self.a(f"v_mov_b32 v8, {addr}\nds_read_b32 v9, v8\ns_waitcnt lgkmcnt(0)\nv_readfirstlane_b32 s24, v9")
    def front_setup(self, c_src, c_xr):
        a = self.a
        a(f"""
        s_mov_b32 s50, 0x00ff00ff
        s_mov_b32 s51, 0xff00ff00
        s_mov_b32 s48, 0
        s_mov_b32 s49, -1
        s_cmp_eq_u32 s22, 3
        s_cselect_b32 s28, 0x00ff00ff, -1
        s_mov_b32 s29, s28
        s_lshl_b32 s26, s22, 8
        v_lshlrev_b32 v8, 10, v2
        v_lshl_add_u32 v8, v1, 4, v8
        v_add_u32 v16, s26, v8
        v_add_u32 v18, s26, v14
        s_add_u32 s27, s26, {c_xr*CH}
        v_add_u32 v17, s27, v14
        v_lshrrev_b32 v11, 3, v0
        v_lshl_add_u32 v19, v11, 5, s26
        v_lshlrev_b32 v8, 14, v11
        v_and_b32 v9, 7, v0
        v_lshl_add_u32 v8, v9, 10, v8
        s_add_u32 s27, s26, {c_src*CH}
        v_add_u32 v13, s27, v8
        v_lshrrev_b32 v11, 3, v1
        v_lshlrev_b32 v11, 8, v11
        v_and_b32 v12, 7, v1
        v_lshl_add_u32 v11, v12, 5, v11
        v_and_b32 v12, 1, v2
        v_lshl_add_u32 v11, v12, 4, v11
        s_lshl_b32 s26, s22, 9
        s_add_u32 s26, s26, 1024
        v_add_u32 v20, s26, v11
        s_lshl_b32 s26, s22, 3
        s_add_u32 s26, s26, {1024+4096}
        v_lshrrev_b32 v8, 5, v0
        v_lshl_add_u32 v21, v8, 2, s26
        v_and_b32 v92, 0x3f803f80, v3
        v_and_b32 v93, 0x3f803f80, v4
        v_and_b32 v94, 0x3f803f80, v5
        v_and_b32 v95, 0x3f803f80, v6
        v_mov_b32 v22, 0
        """)
        for i in range(32): a(f"v_mov_b32 v{60+i}, 0")
        for i in range(8):
            a(f"s_mov_b32 s{32+i}, {c_src*CH + (i>>1)*CH + (i&1)*4096}")
    def add_side(self, src):
        self.a(f"v_add_u32 v16, {src}, v16\nv_add_u32 v17, {src}, v17\nv_add_u32 v13, {src}, v13")
    def r16_loads(self, srd, reg, rowstride, vaddr):
        for s in range(8):
            for hf in range(2):
                self.a(f"s_mov_b32 s26, {(64*hf + 2*s)*rowstride}")
                r = reg + 8*s + 4*hf
                self.a(f"buffer_load_dwordx4 v[{r}:{r+3}], v{vaddr}, s[{srd}:{srd+3}], s26 offen nt")
    def r16_addr(self, vdst, rowstride):
        self.a(f"""
        v_lshrrev_b32 v8, 1, v2
        v_lshrrev_b32 v9, 3, v1
        v_lshl_add_u32 v8, v8, 1, v9
        v_and_b32 v9, 1, v2
        v_lshl_add_u32 v8, v8, 4, v9
        s_lshl_b32 s26, s22, 7
        v_add_u32 v8, s26, v8
        v_mul_u32_u24 v8, {rowstride}, v8
        v_and_b32 v9, 7, v1
        v_lshl_add_u32 v{vdst}, v9, 4, v8
        """)
    def x_load(self):
        self.a("""
        v_and_b32 v8, 1, v2
        v_lshlrev_b32 v8, 3, v8
        v_lshl_add_u32 v8, v1, 4, v8
        v_lshrrev_b32 v9, 1, v2
        v_lshl_add_u32 v14, v9, 2, v8
        s_lshl_b32 s26, s22, 8
        buffer_load_dword v25, v14, s[16:19], s26 offen
        """)
    def gather(self, tagn, nld, xr_cond):
        a = self.a
        mode = self.o.get("pre", "any")
        a("s_mov_b32 s25, 0")
        if mode != "none":
            a(f"s_mov_b32 exec_lo, {hex(0xffffffff if nld == 8 else 0x0fffffff)}\ns_mov_b32 exec_hi, 0")
            a(f"L_gl_{tagn}:\nbuffer_load_dword v54, v13, s[4:7], 0 offen sc1")
            self.timeout()
            a("s_waitcnt vmcnt(0)")
            if mode == "all": a(f"v_cmp_eq_u32 vcc, -1, v54\ns_cbranch_vccnz L_gl_{tagn}")
            else: a(f"v_cmp_ne_u32 vcc, -1, v54\ns_cbranch_vccz L_gl_{tagn}")
        a(f"L_gp_{tagn}:")
        a("s_mov_b64 exec, s[28:29]")
        if xr_cond:
            a(f"s_cmp_eq_u32 s23, 0\ns_cbranch_scc1 L_gx_{tagn}")
        a("buffer_load_dword v22, v17, s[4:7], 0 offen sc1")
        if xr_cond: a(f"L_gx_{tagn}:")
        for i in range(nld):
            a(f"buffer_load_dwordx4 v[{60+4*i}:{63+4*i}], v16, s[4:7], s{32+i} offen sc1")
        a("s_mov_b64 exec, -1")
        self.timeout()
        a("v_mov_b32 v42, 0\nv_mov_b32 v43, 0\nv_mov_b32 v44, 0\nv_mov_b32 v45, 0")
        for i in range(0, 8, 2):
            a(f"s_waitcnt vmcnt({max(0, nld-2-i)})")
            r = 60 + 4*i
            a(f"v_smfmac_f32_16x16x64_bf16 v[42:45], v[92:95], v[{r}:{r+7}], v7")
            a(f"v_max3_u32 v54, v{22 if i == 0 else 54}, v{r}, v{r+4}")
            if i == 0: a("v_lshlrev_b32 v52, 16, v22\nv_and_b32 v53, 0xffff0000, v22")
        a(f"v_cmp_eq_u32 vcc, -1, v54\ns_cbranch_vccnz L_gp_{tagn}")
        a("""
        v_cndmask_b32 v50, v42, v44, s[48:49]
        v_cndmask_b32 v51, v43, v45, s[48:49]
        v_cvt_pk_bf16_f32 v55, v50, v51
        v_lshlrev_b32 v50, 16, v55
        v_and_b32 v51, 0xffff0000, v55
        v_pk_add_f32 v[50:51], v[50:51], v[52:53]
        v_cvt_pk_bf16_f32 v24, v50, v51
        """)
    def front_gemv(self, two, cs=False):
        a = self.a
        a("""
        ds_write_b32 v18, v24
        v_lshlrev_b32 v50, 16, v24
        v_and_b32 v51, 0xffff0000, v24
        v_mov_b32 v42, 0
        v_mov_b32 v43, 0
        s_waitcnt lgkmcnt(0)
        ds_read_b128 v[26:29], v19
        ds_read_b128 v[30:33], v19 offset:16
        v_add_f32 v55, v50, v51
        v_mul_f32 v56, v50, v50
        v_fmac_f32 v56, v51, v51
        v_mov_b32 v44, 0
        v_mov_b32 v45, 0
        """)
        if two: a("v_mov_b32 v46, 0\nv_mov_b32 v47, 0\nv_mov_b32 v48, 0\nv_mov_b32 v49, 0")
        a("v_permlane32_swap_b32 v55, v56\nv_add_f32 v55, v55, v56")
        a("s_and_b32 s26, s23, 1\ns_mul_i32 s26, s26, 4352\nv_add_u32 v8, s26, v20\nv_add_u32 v9, s26, v21")
        a("s_waitcnt lgkmcnt(1)")
        self.abuild(34, 26)
        fill = ["v_mov_b32 v56, v55", None, "v_permlane16_swap_b32 v55, v56\nv_add_f32 v55, v55, v56",
                "v_add_f32_dpp v55, v55, v55 row_ror:8 row_mask:0xf bank_mask:0xf", "v_add_f32_dpp v55, v55, v55 row_ror:4 row_mask:0xf bank_mask:0xf",
                "v_add_f32_dpp v55, v55, v55 row_ror:2 row_mask:0xf bank_mask:0xf", "v_add_f32_dpp v55, v55, v55 row_ror:1 row_mask:0xf bank_mask:0xf",
                "s_mov_b32 exec_lo, 1\ns_mov_b32 exec_hi, 1\nds_write_b32 v9, v55\ns_mov_b64 exec, s[50:51]"]
        for s in range(8):
            A = 34 + 4*(s & 1)
            if s == 3: a("s_waitcnt lgkmcnt(0)")
            if s < 7: self.abuild(34 + 4*((s+1) & 1), 26 + s + 1)
            a(f"v_smfmac_f32_16x16x64_bf16 v[42:45], v[{A}:{A+3}], v[{128+8*s}:{135+8*s}], v7")
            if two: a(f"v_smfmac_f32_16x16x64_bf16 v[46:49], v[{A}:{A+3}], v[{192+8*s}:{199+8*s}], v7")
            if fill[s]: a(fill[s])
        a("ds_write_b128 v8, v[42:45]")
        if two: a("ds_write_b128 v8, v[46:49] offset:2048")
        if cs:
            a("s_cmp_eq_u32 s23, 0\ns_cbranch_scc0 L_ncs\ns_mov_b64 exec, -1\nv_mov_b32 v46, 0\nv_mov_b32 v47, 0\nv_mov_b32 v48, 0\nv_mov_b32 v49, 0")
            for s in range(8): a(f"v_smfmac_f32_16x16x64_bf16 v[46:49], v[92:95], v[{128+8*s}:{135+8*s}], v7")
            a("s_mov_b64 exec, s[50:51]\nds_write_b128 v8, v[46:49] offset:2048\nL_ncs:")
        a("s_mov_b64 exec, -1\ns_waitcnt lgkmcnt(0)\ns_barrier")
    def xr_publish(self, sofs_expr):
        self.a(f"""
        v_subrev_u32 v8, s20, v17
        v_min_u32 v9, -2, v24
        {sofs_expr}
        v_add_u32 v8, s26, v8
        s_mov_b32 s26, 8192
        s_mov_b64 exec, s[28:29]
        buffer_store_dword v9, v8, s[4:7], 0 offen sc1
        buffer_store_dword v9, v8, s[4:7], s26 offen sc1
        s_mov_b64 exec, -1
        """)
    def back_reduce(self, two, base, ro):
        a = self.a
        a(f"ds_read_b128 v[{ro+16}:{ro+19}], v{base+1}\nds_read_b128 v[{ro+20}:{ro+23}], v{base+1} offset:16")
        for m in range(2 if two else 1):
            for k in range(4):
                a(f"ds_read2st64_b32 v[{ro+8*m+2*k}:{ro+8*m+2*k+1}], v{base} offset0:{8*m+2*k} offset1:{8*m+2*k+1}")
    def ln_scalars(self, ro, nrest):
        a = self.a
        t = ro + 16
        a(f"""
        s_waitcnt lgkmcnt({nrest})
        v_pk_add_f32 v[{t}:{t+1}], v[{t}:{t+1}], v[{t+2}:{t+3}]
        v_pk_add_f32 v[{t+4}:{t+5}], v[{t+4}:{t+5}], v[{t+6}:{t+7}]
        v_pk_add_f32 v[{t}:{t+1}], v[{t}:{t+1}], v[{t+4}:{t+5}]
        v_mul_f32 v{t}, {hex(f2u(1.0/448))}, v{t}
        v_mul_f32 v{t+1}, {hex(f2u(1.0/448))}, v{t+1}
        v_fma_f32 v{t+1}, -v{t}, v{t}, v{t+1}
        v_max_f32 v{t+1}, 0, v{t+1}
        v_cvt_pk_bf16_f32 v{t+2}, v{t}, v{t+1}
        v_lshlrev_b32 v{t}, 16, v{t+2}
        v_and_b32 v{t+1}, 0xffff0000, v{t+2}
        v_add_f32 v{t+1}, {hex(f2u(1e-5))}, v{t+1}
        v_cvt_pk_bf16_f32 v{t+1}, v{t+1}, v{t+1}
        v_and_b32 v{t+1}, 0xffff0000, v{t+1}
        v_sqrt_f32 v{t+1}, v{t+1}
        v_cvt_pk_bf16_f32 v{t+1}, v{t+1}, v{t+1}
        v_and_b32 v{t+1}, 0xffff0000, v{t+1}
        v_rcp_f32 v{t+1}, v{t+1}
        """)
    def sum8(self, r):
        self.a(f"""
        v_pk_add_f32 v[{r}:{r+1}], v[{r}:{r+1}], v[{r+2}:{r+3}]
        v_pk_add_f32 v[{r+4}:{r+5}], v[{r+4}:{r+5}], v[{r+6}:{r+7}]
        v_pk_add_f32 v[{r}:{r+1}], v[{r}:{r+1}], v[{r+4}:{r+5}]
        v_add_f32 v{r}, v{r}, v{r+1}
        """)
    def r8_addr(self, vdst, NS, wv):
        self.a(f"""
        v_lshrrev_b32 v8, 1, v2
        v_mul_u32_u24 v8, {2*NS}, v8
        v_and_b32 v9, 1, v2
        v_add_u32 v8, v8, v9
        v_mul_u32_u24 v8, 896, v8
        v_lshl_add_u32 v8, v1, 4, v8
        s_lshl_b32 s26, s{wv}, 8
        v_add_u32 v{vdst}, s26, v8
        s_cmp_eq_u32 s{wv}, 3
        s_cselect_b32 s28, 0x00ff00ff, -1
        s_mov_b32 s29, s28
        """)
    def r8_loads(self, NS, srd, vaddr, reg):
        a = self.a
        a("s_mov_b64 exec, s[28:29]")
        for s in range(NS):
            for hf in range(2):
                a(f"s_mov_b32 s26, {(4*NS*hf + 2*s)*896}")
                r = reg + 8*s + 4*hf
                a(f"buffer_load_dwordx4 v[{r}:{r+3}], v{vaddr}, s[{srd}:{srd+3}], s26 offen nt")
        a("s_mov_b64 exec, -1")
    def r8_pub_addr(self, vdst, wv, sslot):
        self.a(f"""
        v_lshrrev_b32 v9, 1, v2
        v_lshlrev_b32 v9, 13, v9
        v_lshl_add_u32 v8, v1, 4, v9
        s_lshl_b32 s26, s{wv}, 8
        s_add_u32 s26, s26, s{sslot}
        v_add_u32 v{vdst}, s26, v8
        s_and_b32 s46, s28, 0xffff
        s_mov_b32 s47, s46
        """)
    def r8_gemv(self, NS, X, reg, vpub, sofs):
        a = self.a
        a("v_mov_b32 v42, 0\nv_mov_b32 v43, 0\nv_mov_b32 v44, 0\nv_mov_b32 v45, 0")
        nrd = NS // 4
        a(f"s_waitcnt lgkmcnt({nrd-1})")
        self.abuild(34, X)
        for s in range(NS):
            A = 34 + 4*(s & 1)
            if s + 1 < NS:
                if (s + 1) % 4 == 0: a(f"s_waitcnt lgkmcnt({nrd - 1 - (s+1)//4})")
                self.abuild(34 + 4*((s+1) & 1), X + s + 1)
            a(f"v_smfmac_f32_16x16x64_bf16 v[42:45], v[{A}:{A+3}], v[{reg+8*s}:{reg+8*s+7}], v7")
        a(f"""
        v_cvt_pk_bf16_f32 v46, v42, v43
        v_cvt_pk_bf16_f32 v48, v42, v43
        v_cvt_pk_bf16_f32 v47, v44, v45
        v_cvt_pk_bf16_f32 v49, v44, v45
        v_permlane16_swap_b32 v46, v48
        v_permlane16_swap_b32 v47, v49
        s_mov_b64 exec, s[46:47]
        v_min_u32 v46, -2, v46
        buffer_store_dwordx4 v[46:49], v{vpub}, s[4:7], s{sofs} offen sc1
        s_mov_b64 exec, -1
        """)

    def role_q(self):
        a = self.a
        a(f"L_Q:\ns_sub_u32 s21, s2, {ID_Q}")
        a("s_cmp_gt_u32 s22, 4\ns_cbranch_scc1 L_exit\ns_cmp_eq_u32 s22, 4\ns_cbranch_scc1 L_Qh")
        self.srd(16, 64, 896)
        a("s_lshl_b32 s27, s21, 7")
        self.srd(8, 70, 448*8192 - 0, off_s=27)
        a("s_sub_u32 s10, s10, s27")
        self.x_load()
        self.r16_addr(15, 8192)
        self.r16_loads(8, 128, 8192, 15)
        self.masks()
        self.front_setup(C_H4, C_XR1)
        a(f"v_lshlrev_b32 v58, 2, v0\nv_add_u32 v58, 1024, v58")
        a(f"s_lshl_b32 s26, s21, 7\ns_add_u32 s26, s26, {C_H1*CH}\nv_lshrrev_b32 v8, 3, v0\nv_lshl_add_u32 v59, v8, 4, s26")
        a("s_mov_b32 s23, 0\ns_waitcnt vmcnt(0)\nv_mov_b32 v24, v25")
        self.stamp(1)
        a("s_branch L_Qg")
        a("L_Qloop:")
        self.tag_from_lds(12288)
        a(f"s_mov_b32 s27, {ID_F}")
        self.flag_poll("q", 27, NF)
        self.add_side("s20")
        self.gather("q", 7, False)
        self.stamp(5)
        a("L_Qg:")
        self.front_gemv(False, cs=True)
        self.stamp_l(2, 6)
        a("s_cmp_eq_u32 s22, 0\ns_cbranch_scc0 L_Qnext")
        a(f"s_and_b32 s26, s23, 1\ns_mul_i32 s26, s26, 4352\nv_add_u32 v10, s26, v58\ns_add_u32 s26, s26, {1024+4096}\nv_mov_b32 v11, s26")
        a("s_cmp_eq_u32 s23, 0\ns_cbranch_scc0 L_Qr")
        for k in range(4): a(f"ds_read2st64_b32 v[{108+2*k}:{109+2*k}], v10 offset0:{8+2*k} offset1:{9+2*k}")
        a("s_waitcnt lgkmcnt(0)")
        self.sum8(108)
        a("v_mov_b32 v57, v108\nL_Qr:")
        self.back_reduce(False, 10, 100)
        self.ln_scalars(100, 4)
        a("s_waitcnt lgkmcnt(0)")
        self.sum8(100)
        a("""
        v_fma_f32 v100, -v116, v57, v100
        v_mul_f32 v100, v100, v117
        s_lshl_b32 s26, s23, 14
        s_add_u32 s27, s26, 8192
        v_mov_b32_dpp v101, v100 quad_perm:[1,0,3,2] row_mask:0xf bank_mask:0xf
        v_cvt_pk_bf16_f32 v104, v100, v101
        v_mov_b32_dpp v105, v104 row_shl:2 row_mask:0xf bank_mask:0xf
        v_mov_b32_dpp v106, v104 row_shl:4 row_mask:0xf bank_mask:0xf
        v_mov_b32_dpp v107, v104 row_shl:6 row_mask:0xf bank_mask:0xf
        v_min_u32 v104, -2, v104
        s_mov_b32 exec_lo, 0x01010101
        s_mov_b32 exec_hi, 0x01010101
        buffer_store_dwordx4 v[104:107], v59, s[4:7], s26 offen sc1
        buffer_store_dwordx4 v[104:107], v59, s[4:7], s27 offen sc1
        s_mov_b64 exec, -1
        """)
        self.stamp_l(3, 7)
        a("L_Qnext:\ns_add_u32 s23, s23, 1\ns_cmp_lt_i32 s23, 2\ns_cbranch_scc1 L_Qloop")
        a("s_cmp_eq_u32 s21, 0\ns_cbranch_scc0 L_Qnx")
        self.xr_publish(f"s_mov_b32 s26, {(C_XR2-C_XR1)*CH & 0xffffffff}")
        a("L_Qnx:")
        a("s_cmp_lt_u32 s21, 7\ns_cbranch_scc0 L_exit\ns_cmp_eq_u32 s22, 0\ns_cbranch_scc0 L_exit")
        self.srd(16, 82, 896)
        a(f"""
        v_lshrrev_b32 v8, 3, v0
        v_lshlrev_b32 v8, 10, v8
        v_and_b32 v9, 7, v0
        v_lshl_add_u32 v8, v9, 4, v8
        s_lshl_b32 s26, s21, 7
        s_add_u32 s27, s26, s20
        v_add_u32 v16, s27, v8
        v_add_u32 v97, s26, v14
        s_add_u32 s27, s27, {C_XR3*CH}
        v_add_u32 v17, s27, v14
        v_mov_b32 v22, 0
        v_mov_b32 v72, 0
        v_mov_b32 v73, 0
        v_mov_b32 v74, 0
        v_mov_b32 v75, 0
        s_mov_b32 s32, {(C_H4+4)*CH}
        s_mov_b32 s33, {(C_H4+5)*CH}
        s_mov_b32 s34, {(C_H4+6)*CH}
        s_mov_b32 s35, {(C_H4+7)*CH}
        s_mov_b32 s28, 0x00ff00ff
        s_mov_b32 s29, 0x00ff00ff
        s_mov_b32 s25, 0
        L_Fp:
        s_mov_b64 exec, s[28:29]
        buffer_load_dword v22, v17, s[4:7], 0 offen sc1
        s_mov_b64 exec, -1
        buffer_load_dwordx4 v[60:63], v16, s[4:7], s32 offen sc1
        buffer_load_dwordx4 v[64:67], v16, s[4:7], s33 offen sc1
        buffer_load_dwordx4 v[68:71], v16, s[4:7], s34 offen sc1
        s_mov_b32 exec_hi, 0
        buffer_load_dwordx4 v[72:75], v16, s[4:7], s35 offen sc1
        s_mov_b64 exec, -1
        """)
        self.timeout()
        a("""
        v_mov_b32 v42, 0
        v_mov_b32 v43, 0
        v_mov_b32 v44, 0
        v_mov_b32 v45, 0
        s_waitcnt vmcnt(2)
        v_smfmac_f32_16x16x64_bf16 v[42:45], v[92:95], v[60:67], v7
        v_max3_u32 v54, v22, v60, v64
        v_lshlrev_b32 v52, 16, v22
        v_and_b32 v53, 0xffff0000, v22
        s_waitcnt vmcnt(0)
        v_smfmac_f32_16x16x64_bf16 v[42:45], v[92:95], v[68:75], v7
        v_max3_u32 v54, v54, v68, v72
        v_cmp_eq_u32 vcc, -1, v54
        s_cbranch_vccnz L_Fp
        v_cndmask_b32 v50, v42, v44, s[48:49]
        v_cndmask_b32 v51, v43, v45, s[48:49]
        v_add_f32_dpp v50, v50, v50 row_ror:8 row_mask:0xf bank_mask:0xf
        v_add_f32_dpp v51, v51, v51 row_ror:8 row_mask:0xf bank_mask:0xf
        v_cvt_pk_bf16_f32 v55, v50, v51
        v_lshlrev_b32 v50, 16, v55
        v_and_b32 v51, 0xffff0000, v55
        v_pk_add_f32 v[50:51], v[50:51], v[52:53]
        v_cvt_pk_bf16_f32 v50, v50, v51
        s_mov_b64 exec, s[28:29]
        buffer_store_dword v50, v97, s[16:19], 0 offen
        """)
        self.stamp(8)
        a("s_cmp_eq_u32 s21, 0\ns_cbranch_scc0 L_exit\nv_mov_b32 v9, s24\nv_mov_b32 v8, 0\ns_mov_b64 exec, 1\nbuffer_store_dword v9, v8, s[4:7], 0 offen sc1\ns_branch L_exit")
        a("L_Qh:")
        self.epoch_load()
        a(f"""
        v_and_b32 v8, 7, v0
        v_lshlrev_b32 v8, 4, v8
        v_lshrrev_b32 v11, 3, v0
        v_lshl_add_u32 v8, v11, 13, v8
        s_lshl_b32 s26, s21, 7
        s_add_u32 s26, s26, {C_H1*CH}
        s_mov_b32 exec_hi, 0
        buffer_store_dwordx4 v[12:15], v8, s[4:7], s26 offen sc1
        s_mov_b64 exec, -1
        v_lshlrev_b32 v10, 4, v0
        s_cmp_eq_u32 s21, 0
        s_cbranch_scc0 L_Qh1
        s_mov_b32 s30, {C_XR2*CH}
        """)
        self.reset1k(30)
        a("L_Qh1:")
        self.flag_store(0)
        a("v_mov_b32 v16, 12288\nds_write_b32 v16, v11\ns_waitcnt lgkmcnt(0)\ns_branch L_exit")

    def role_f(self):
        a = self.a
        a(f"L_F:\ns_sub_u32 s21, s2, {ID_F}")
        a("s_cmp_gt_u32 s22, 3\ns_cbranch_scc1 L_Fb")
        self.srd(16, 64, 896)
        a("s_lshl_b32 s27, s21, 7")
        self.srd(8, 76, 448*3584, off_s=27)
        a("s_sub_u32 s10, s10, s27")
        self.srd(12, 78, 448*3584, off_s=27)
        a("s_sub_u32 s14, s14, s27")
        self.x_load()
        self.r16_addr(15, 3584)
        if self.o.get("gatef"): a("s_barrier")
        self.r16_loads(8, 128, 3584, 15)
        self.r16_loads(12, 192, 3584, 15)
        self.masks()
        self.front_setup(C_H3, C_XR2)
        a("s_mov_b32 s23, -1\nv_mov_b32 v24, 0x3f803f80\ns_waitcnt vmcnt(0)\nv_mov_b32 v22, v25")
        self.stamp(1)
        a("s_branch L_Fg")
        a("L_Floop:")
        self.gather("f", 8, True)
        self.stamp_l(2, 5)
        a("L_Fg:")
        self.front_gemv(True)
        self.stamp_l(3, 6)
        a("s_cmp_eq_u32 s23, -1\ns_cbranch_scc0 L_Fn1")
        a("v_mov_b32 v8, 12288\nds_read_b32 v9, v8\ns_waitcnt lgkmcnt(0)\nv_readfirstlane_b32 s20, v9")
        self.add_side("v9")
        a("s_mov_b32 s23, 0\ns_branch L_Floop")
        a("L_Fn1:\ns_cmp_eq_u32 s21, 0\ns_cbranch_scc0 L_Fnx")
        self.xr_publish(f"s_lshl_b32 s26, s23, 14\ns_add_u32 s26, s26, {(C_XR1-C_XR2)*CH}")
        a("L_Fnx:")
        a(f"v_add_u32 v16, {4*CH}, v16\nv_add_u32 v13, {4*CH}, v13")
        a("s_add_u32 s23, s23, 1\ns_cmp_lt_i32 s23, 2\ns_cbranch_scc1 L_Floop\ns_branch L_exit")
        a("L_Fb:\ns_sub_u32 s30, s22, 4")
        a("s_mul_i32 s27, s21, 57344")
        self.srd(8, 80, 57344, off_s=27)
        a(f"""
        s_lshr_b32 s27, s21, 3
        s_lshl_b32 s27, s27, 14
        s_and_b32 s26, s21, 7
        s_lshl_b32 s26, s26, 10
        s_add_u32 s52, s26, s27
        s_add_u32 s52, s52, {C_H4*CH}
        s_cmp_eq_u32 s22, 4
        s_cbranch_scc0 L_Fb1
        """)
        self.epoch_load()
        a("v_lshlrev_b32 v10, 4, v0")
        self.reset1k(52)
        a(f"s_add_u32 s53, s52, {4*CH}")
        self.reset1k(53)
        a(f"s_cmp_eq_u32 s21, 0\ns_cbranch_scc0 L_Fb1\ns_mov_b32 s53, {C_XR1*CH}")
        self.reset1k(53)
        a(f"s_mov_b32 s53, {C_XR3*CH}")
        self.reset1k(53)
        a("L_Fb1:")
        self.r8_addr2(16, 8, 30)
        if self.o.get("gatef"):
            a("s_cmp_eq_u32 s22, 4\ns_cbranch_scc0 L_Fb3")
            self.flag_store(0)
            a("L_Fb3:\ns_barrier")
        self.r8_loads(8, 8, 16, 128)
        a("s_cmp_eq_u32 s22, 4\ns_cbranch_scc0 L_Fb2")
        if not self.o.get("gatef"): self.flag_store(16)
        a(f"s_mov_b32 s27, {ID_W}")
        self.flag_poll("f", 27, NW, extra_id=ID_Q)
        a("v_mov_b32 v8, 12288\nv_mov_b32 v9, s20\nds_write_b32 v8, v9\ns_waitcnt lgkmcnt(0)")
        a("L_Fb2:")
        self.masks()
        self.r8_pub_addr(17, 30, 52)
        a("v_lshlrev_b32 v58, 2, v0\nv_add_u32 v58, 1024, v58")
        a("s_lshl_b32 s26, s30, 7\ns_add_u32 s26, s26, 10240\nv_lshl_add_u32 v18, v0, 1, s26\nv_lshl_add_u32 v19, v2, 5, s26")
        a("s_mov_b32 s23, -1\ns_waitcnt vmcnt(0)")
        self.stamp(1)
        a("L_Fbl:")
        a(f"s_and_b32 s26, s23, 1\ns_mul_i32 s26, s26, 4352\nv_add_u32 v10, s26, v58\ns_add_u32 s26, s26, {1024+4096}\nv_mov_b32 v11, s26\ns_lshl_b32 s27, s23, 16")
        a("s_barrier")
        self.stamp_l(2, 5)
        self.back_reduce(True, 10, 60)
        self.ln_scalars(60, 8)
        a("s_waitcnt lgkmcnt(4)")
        self.sum8(60)
        a("s_waitcnt lgkmcnt(0)")
        self.sum8(68)
        a("s_cmp_eq_u32 s23, -1\ns_cbranch_scc0 L_Fbh\nv_mov_b32 v56, v60\nv_mov_b32 v57, v68\ns_mov_b32 s23, 0\ns_branch L_Fbl")
        a(f"""
        L_Fbh:
        v_fma_f32 v60, -v76, v56, v60
        v_fma_f32 v68, -v76, v57, v68
        v_mul_f32 v60, v60, v77
        v_mul_f32 v68, v68, v77
        v_cvt_pk_bf16_f32 v61, v60, v68
        v_lshlrev_b32 v60, 16, v61
        v_and_b32 v68, 0xffff0000, v61
        v_mul_f32 v61, {hex(f2u(-LOG2E))}, v60
        v_exp_f32 v61, v61
        v_add_f32 v61, 1.0, v61
        v_rcp_f32 v61, v61
        v_mul_f32 v61, v60, v61
        v_cvt_pk_bf16_f32 v61, v61, v61
        v_and_b32 v61, 0xffff0000, v61
        v_mul_f32 v61, v61, v68
        v_cvt_pk_bf16_f32 v61, v61, v61
        ds_write_b16 v18, v61
        s_waitcnt lgkmcnt(0)
        ds_read_b128 v[26:29], v19
        ds_read_b128 v[30:33], v19 offset:16
        """)
        self.stamp_l(3, 6)
        self.r8_gemv(8, 26, 128, 17, 27)
        self.stamp_l(4, 7)
        a("s_add_u32 s23, s23, 1\ns_cmp_lt_i32 s23, 2\ns_cbranch_scc1 L_Fbl\ns_branch L_exit")
    def r8_addr2(self, vdst, NS, wv):
        self.a(f"""
        v_lshrrev_b32 v20, 1, v2
        v_mul_u32_u24 v20, {2*NS}, v20
        v_and_b32 v21, 1, v2
        v_add_u32 v20, v20, v21
        v_mul_u32_u24 v20, 896, v20
        v_lshl_add_u32 v20, v1, 4, v20
        s_lshl_b32 s26, s{wv}, 8
        v_add_u32 v{vdst}, s26, v20
        s_cmp_eq_u32 s{wv}, 3
        s_cselect_b32 s28, 0x00ff00ff, -1
        s_mov_b32 s29, s28
        """)

    def role_w(self):
        a = self.a
        a(f"L_W:\ns_sub_u32 s21, s2, {ID_W}")
        a(f"""
        s_lshr_b32 s27, s21, 2
        s_lshl_b32 s27, s27, 14
        s_and_b32 s26, s21, 3
        s_lshl_b32 s26, s26, 11
        s_add_u32 s53, s26, s27
        s_lshr_b32 s27, s21, 3
        s_lshl_b32 s27, s27, 14
        s_and_b32 s26, s21, 7
        s_lshl_b32 s26, s26, 10
        s_add_u32 s52, s26, s27
        s_add_u32 s52, s52, {C_H3*CH}
        """)
        a("s_cmp_gt_u32 s22, 4\ns_cbranch_scc1 L_exit\ns_cmp_eq_u32 s22, 4\ns_cbranch_scc1 L_Wh")
        a("s_mul_i32 s27, s21, 114688")
        self.srd(8, 72, 114688, off_s=27)
        self.r8_addr(16, 16, 22)
        if self.o.get("gatew"): a("s_barrier")
        self.r8_loads(16, 8, 16, 128)
        self.masks()
        self.r8_pub_addr(17, 22, 52)
        a(f"""
        v_lshrrev_b32 v8, 2, v0
        v_and_b32 v9, 3, v0
        v_lshlrev_b32 v10, 9, v8
        v_lshl_add_u32 v10, v9, 5, v10
        s_lshl_b32 s26, s21, 14
        s_lshl_b32 s27, s22, 7
        s_add_u32 s26, s26, s27
        s_add_u32 s26, s26, {C_H2O*CH}
        v_add_u32 v18, s26, v10
        s_add_u32 s26, s53, {C_H2M*CH}
        v_lshl_add_u32 v19, v8, 7, s26
        v_lshlrev_b32 v10, 4, v9
        v_lshl_add_u32 v10, v2, 2, v10
        s_lshl_b32 s26, s22, 6
        v_add_u32 v20, s26, v10
        v_lshlrev_b32 v21, 6, v2
        s_mov_b32 s23, 0
        s_waitcnt vmcnt(0)
        """)
        self.stamp(1)
        a("v_mov_b32 v8, 512\ns_barrier\nds_read_b32 v9, v8\ns_waitcnt lgkmcnt(0)\nv_add_u32 v18, v9, v18\nv_add_u32 v19, v9, v19")
        a("L_Wl:\ns_mov_b32 s25, 0")
        a(f"s_mul_i32 s30, s23, {32*CH}\ns_lshl_b32 s27, s23, 17\ns_lshl_b32 s31, s23, 16")
        a("""
        L_Wp:
        buffer_load_dwordx2 v[22:23], v19, s[4:7], s27 offen sc1
        buffer_load_dwordx4 v[60:63], v18, s[4:7], s30 offen sc1
        buffer_load_dwordx4 v[64:67], v18, s[4:7], s30 offen offset:16 sc1
        """)
        self.timeout()
        a("""
        s_waitcnt vmcnt(2)
        v_max_f32_dpp v24, v22, v22 row_ror:4 row_mask:0xf bank_mask:0xf
        v_max_f32_dpp v24, v24, v24 row_ror:8 row_mask:0xf bank_mask:0xf
        v_mov_b32 v25, v24
        v_permlane16_swap_b32 v24, v25
        v_max_f32 v24, v24, v25
        v_mov_b32 v25, v24
        v_permlane32_swap_b32 v24, v25
        v_max_f32 v24, v24, v25
        v_sub_f32 v24, v22, v24
        v_exp_f32 v24, v24
        s_waitcnt vmcnt(0)
        v_max3_u32 v54, v22, v60, v64
        v_cmp_eq_u32 vcc, -1, v54
        s_cbranch_vccnz L_Wp
        """)
        self.stamp_l(2, 5)
        a("""
        v_mul_f32 v26, v23, v24
        v_pk_mul_f32 v[60:61], v[60:61], v[24:25] op_sel_hi:[1,0]
        v_pk_mul_f32 v[64:65], v[64:65], v[24:25] op_sel_hi:[1,0]
        v_pk_mul_f32 v[62:63], v[62:63], v[24:25] op_sel_hi:[1,0]
        v_pk_mul_f32 v[66:67], v[66:67], v[24:25] op_sel_hi:[1,0]
        v_add_f32_dpp v26, v26, v26 row_ror:4 row_mask:0xf bank_mask:0xf
        v_permlane32_swap_b32 v60, v64
        v_permlane32_swap_b32 v61, v65
        v_add_f32_dpp v26, v26, v26 row_ror:8 row_mask:0xf bank_mask:0xf
        v_permlane32_swap_b32 v62, v66
        v_permlane32_swap_b32 v63, v67
        v_mov_b32 v27, v26
        v_pk_add_f32 v[60:61], v[60:61], v[64:65]
        v_pk_add_f32 v[62:63], v[62:63], v[66:67]
        v_permlane16_swap_b32 v26, v27
        v_add_f32 v26, v26, v27
        v_permlane16_swap_b32 v60, v62
        v_permlane16_swap_b32 v61, v63
        v_mov_b32 v27, v26
        v_pk_add_f32 v[60:61], v[60:61], v[62:63]
        v_permlane32_swap_b32 v26, v27
        v_add_f32_dpp v60, v60, v60 row_ror:4 row_mask:0xf bank_mask:0xf
        v_add_f32_dpp v61, v61, v61 row_ror:4 row_mask:0xf bank_mask:0xf
        v_add_f32 v26, v26, v27
        v_rcp_f32 v26, v26
        v_add_f32_dpp v60, v60, v60 row_ror:8 row_mask:0xf bank_mask:0xf
        v_add_f32_dpp v61, v61, v61 row_ror:8 row_mask:0xf bank_mask:0xf
        v_pk_mul_f32 v[60:61], v[60:61], v[26:27] op_sel_hi:[1,0]
        v_cvt_pk_bf16_f32 v60, v60, v61
        ds_write_b32 v20, v60
        s_waitcnt lgkmcnt(0)
        s_barrier
        ds_read_b128 v[60:63], v21
        ds_read_b128 v[64:67], v21 offset:16
        ds_read_b128 v[68:71], v21 offset:32
        ds_read_b128 v[72:75], v21 offset:48
        """)
        self.stamp_l(3, 6)
        self.r8_gemv(16, 60, 128, 17, 31)
        self.stamp_l(4, 7)
        a("s_cmp_eq_u32 s23, 1\ns_cbranch_scc1 L_exit\ns_mov_b32 s23, 1\ns_branch L_Wl")
        a("L_Wh:")
        self.epoch_load()
        a("v_lshlrev_b32 v10, 4, v0")
        self.reset1k(52)
        a(f"s_add_u32 s53, s52, {4*CH}")
        self.reset1k(53)
        self.flag_store(0)
        if self.o.get("gatew"): a("s_barrier")
        a(f"s_lshr_b32 s27, s21, 2\ns_lshl_b32 s27, s27, 4\ns_add_u32 s27, s27, {ID_A}")
        self.flag_poll("w", 27, 16)
        a("v_mov_b32 v8, 512\nv_mov_b32 v9, s20\nds_write_b32 v8, v9\ns_waitcnt lgkmcnt(0)\ns_branch L_exit")

    def role_a(self):
        a = self.a
        a(f"L_A:\ns_sub_u32 s21, s2, {ID_A}\ns_lshr_b32 s52, s21, 4\ns_and_b32 s53, s21, 15")
        a("s_cmp_gt_u32 s22, 4\ns_cbranch_scc1 L_exit\ns_cmp_eq_u32 s22, 4\ns_cbranch_scc1 L_Ah")
        a(f"s_lshl_b32 s27, s52, 22\ns_lshl_b32 s26, s53, 16\ns_add_u32 s27, s27, s26\ns_add_u32 s27, s27, {6144*512}")
        self.srd(8, 66, 65536, off_s=27)
        self.srd(12, 68, 65536, off_s=27)
        a("""
        s_lshl_b32 s26, s22, 14
        v_and_b32 v8, 7, v1
        v_lshlrev_b32 v8, 9, v8
        v_lshl_add_u32 v8, v2, 4, v8
        v_lshrrev_b32 v9, 3, v1
        v_lshl_add_u32 v8, v9, 6, v8
        v_add_u32 v16, s26, v8
        v_lshrrev_b32 v8, 1, v2
        v_and_b32 v9, 1, v2
        v_lshl_add_u32 v8, v8, 2, v9
        v_lshlrev_b32 v8, 9, v8
        v_lshl_add_u32 v8, v1, 4, v8
        v_add_u32 v17, s26, v8
        s_mov_b32 s32, 0
        s_mov_b32 s33, 4096
        s_mov_b32 s34, 8192
        s_mov_b32 s35, 12288
        """)
        KR, VR = 128, 192
        for T in range(2):
            for ks in range(8):
                r = KR + 32*T + 4*ks
                a(f"buffer_load_dwordx4 v[{r}:{r+3}], v16, s[8:11], s{32+2*T+(ks&1)} offen offset:{128*(ks>>1)} nt")
        for T in range(2):
            for aa in range(2):
                for cb in range(2):
                    for hf in range(2):
                        r = VR + ((2*T + aa)*2 + cb)*8 + 4*hf
                        if self.o.get("pace", 1): a("s_waitcnt vmcnt(15)")
                        a(f"buffer_load_dwordx4 v[{r}:{r+3}], v17, s[12:15], s{32+2*T+hf} offen offset:{1024*aa + 256*cb} nt")
        self.masks()
        a(f"""
        v_lshrrev_b32 v8, 3, v1
        v_lshlrev_b32 v8, 9, v8
        v_lshl_add_u32 v18, v2, 4, v8
        v_lshrrev_b32 v8, 1, v2
        v_lshlrev_b32 v8, 10, v8
        v_lshl_add_u32 v8, v1, 5, v8
        v_and_b32 v9, 1, v2
        v_lshl_add_u32 v8, v9, 4, v8
        s_lshl_b32 s26, s22, 11
        s_add_u32 s26, s26, 1024
        v_add_u32 v19, s26, v8
        v_lshrrev_b32 v8, 3, v1
        s_lshl_b32 s26, s22, 3
        s_add_u32 s26, s26, 9216
        v_lshl_add_u32 v20, v8, 5, s26
        v_and_b32 v8, 31, v0
        s_lshl_b32 s26, s22, 9
        s_add_u32 s26, s26, 1024
        v_lshl_add_u32 v21, v8, 4, s26
        s_lshr_b32 s26, s22, 1
        s_lshl_b32 s26, s26, 5
        s_add_u32 s26, s26, 9216
        v_mov_b32 v22, s26
        s_lshl_b32 s26, s52, 2
        s_add_u32 s26, s26, s22
        s_lshl_b32 s27, s26, 14
        s_lshl_b32 s30, s53, 9
        s_add_u32 s27, s27, s30
        s_add_u32 s27, s27, {C_H2O*CH}
        v_lshrrev_b32 v9, 5, v0
        v_lshlrev_b32 v9, 13, v9
        v_lshl_add_u32 v8, v8, 4, v9
        v_add_u32 v23, s27, v8
        s_lshl_b32 s27, s52, 14
        s_lshl_b32 s30, s22, 11
        s_add_u32 s27, s27, s30
        s_lshl_b32 s30, s53, 7
        s_add_u32 s27, s27, s30
        s_add_u32 s27, s27, {C_H2M*CH}
        v_add_u32 v24, s27, v9
        s_mov_b32 s36, {hex(f2u(LOG2E/16))}
        s_mov_b32 s23, 0
        s_waitcnt vmcnt(16)
        """)
        self.stamp(1)
        for pr in range(8):
            X = KR + 8*pr
            for d in range(4): a(f"v_mov_b32_dpp v{60+d}, v{X+d} row_ror:8 row_mask:0xf bank_mask:0xf")
            for d in range(4): a(f"v_mov_b32_dpp v{X+d}, v{X+4+d} row_ror:8 row_mask:0xf bank_mask:0xc")
            for d in range(4): a(f"v_mov_b32_dpp v{X+4+d}, v{60+d} quad_perm:[0,1,2,3] row_mask:0xf bank_mask:0x3")
        if self.o.get("vstamp"):
            a("s_waitcnt vmcnt(0)"); self.stamp(9)
        a("L_Al:\ns_barrier")
        self.stamp_l(2, 6)
        QR = 60
        for ks in range(8):
            a(f"ds_read_b128 v[{QR+4*ks}:{QR+4*ks+3}], v18 offset:{64*ks}")
        for ks in range(8):
            a(f"s_waitcnt lgkmcnt({7-ks})")
            for T in range(2):
                c = "0" if ks == 0 else f"v[{44+4*T}:{47+4*T}]"
                a(f"v_mfma_f32_16x16x32_bf16 v[{44+4*T}:{47+4*T}], v[{KR+32*T+4*ks}:{KR+32*T+4*ks+3}], v[{QR+4*ks}:{QR+4*ks+3}], {c}")
        for i in range(8): a(f"v_mov_b32 v{92+i}, 0")
        for k in range(4): a(f"v_cvt_pk_bf16_f32 v{52+k}, v{44+2*k}, v{45+2*k}")
        for k in range(4): a(f"v_lshlrev_b32 v{44+2*k}, 16, v{52+k}\nv_and_b32 v{45+2*k}, 0xffff0000, v{52+k}")
        a("""
        v_max3_f32 v52, v44, v45, v46
        v_max3_f32 v53, v47, v48, v49
        v_max3_f32 v52, v50, v51, v52
        v_max_f32 v52, v52, v53
        v_mov_b32 v53, v52
        v_permlane32_swap_b32 v52, v53
        v_max_f32 v52, v52, v53
        v_mov_b32 v53, v52
        v_permlane16_swap_b32 v52, v53
        v_max_f32 v52, v52, v53
        v_mul_f32 v56, s36, v52
        """)
        for k in range(8): a(f"v_fma_f32 v{44+k}, v{44+k}, s36, -v56")
        for k in range(8): a(f"v_exp_f32 v{44+k}, v{44+k}")
        for k in range(4): a(f"v_cvt_pk_bf16_f32 v{52+k}, v{44+2*k}, v{45+2*k}")
        self.abuild(34, 52)
        a("s_waitcnt vmcnt(0)")
        self.stamp_l(3, 7)
        fill = ["v_pk_add_f32 v[44:45], v[44:45], v[46:47]\nv_pk_add_f32 v[48:49], v[48:49], v[50:51]",
                "v_pk_add_f32 v[44:45], v[44:45], v[48:49]\nv_add_f32 v57, v44, v45\nv_mov_b32 v58, v57",
                "v_permlane32_swap_b32 v57, v58\nv_add_f32 v57, v57, v58\nv_mov_b32 v58, v57",
                "v_permlane16_swap_b32 v57, v58\nv_add_f32 v57, v57, v58"]
        for n in range(4):
            A = 34 + 4*(n & 1)
            if n < 3: self.abuild(34 + 4*((n+1) & 1), 52 + n + 1)
            for cb in range(2):
                r = VR + (n*2 + cb)*8
                a(f"v_smfmac_f32_16x16x64_bf16 v[{92+4*cb}:{95+4*cb}], v[{A}:{A+3}], v[{r}:{r+7}], v7")
            a(fill[n])
        a("""
        s_mov_b64 exec, 0x101
        ds_write_b64 v20, v[56:57]
        s_mov_b64 exec, -1
        ds_write_b128 v19, v[92:95]
        ds_write_b128 v19, v[96:99] offset:512
        s_waitcnt lgkmcnt(0)
        s_barrier
        ds_read_b128 v[44:47], v22
        ds_read_b128 v[48:51], v22 offset:16
        ds_read_b128 v[60:63], v21
        ds_read_b128 v[64:67], v21 offset:2048
        ds_read_b128 v[68:71], v21 offset:4096
        ds_read_b128 v[72:75], v21 offset:6144
        s_waitcnt lgkmcnt(4)
        v_max3_f32 v56, v44, v46, v48
        v_max_f32 v56, v56, v50
        v_sub_f32 v52, v44, v56
        v_sub_f32 v53, v46, v56
        v_sub_f32 v54, v48, v56
        v_sub_f32 v55, v50, v56
        v_exp_f32 v52, v52
        v_exp_f32 v53, v53
        v_exp_f32 v54, v54
        v_exp_f32 v55, v55
        s_waitcnt lgkmcnt(3)
        v_pk_mul_f32 v[60:61], v[60:61], v[52:53] op_sel_hi:[1,0]
        v_pk_mul_f32 v[62:63], v[62:63], v[52:53] op_sel_hi:[1,0]
        s_waitcnt lgkmcnt(2)
        v_pk_fma_f32 v[60:61], v[64:65], v[52:53], v[60:61] op_sel:[0,1,0] op_sel_hi:[1,1,1]
        v_pk_fma_f32 v[62:63], v[66:67], v[52:53], v[62:63] op_sel:[0,1,0] op_sel_hi:[1,1,1]
        s_waitcnt lgkmcnt(1)
        v_pk_fma_f32 v[60:61], v[68:69], v[54:55], v[60:61] op_sel_hi:[1,0,1]
        v_pk_fma_f32 v[62:63], v[70:71], v[54:55], v[62:63] op_sel_hi:[1,0,1]
        s_waitcnt lgkmcnt(0)
        v_pk_fma_f32 v[60:61], v[72:73], v[54:55], v[60:61] op_sel:[0,1,0] op_sel_hi:[1,1,1]
        v_pk_fma_f32 v[62:63], v[74:75], v[54:55], v[62:63] op_sel:[0,1,0] op_sel_hi:[1,1,1]
        """)
        a(f"s_mul_i32 s26, s23, {32*CH}\ns_lshl_b32 s27, s23, 17")
        a("""
        v_mul_f32 v57, v52, v45
        v_min_u32 v60, -2, v60
        buffer_store_dwordx4 v[60:63], v23, s[4:7], s26 offen sc1
        v_fmac_f32 v57, v53, v47
        v_fmac_f32 v57, v54, v49
        v_fmac_f32 v57, v55, v51
        v_min_u32 v56, -2, v56
        s_mov_b32 exec_lo, 1
        s_mov_b32 exec_hi, 1
        buffer_store_dwordx2 v[56:57], v24, s[4:7], s27 offen sc1
        s_mov_b64 exec, -1
        """)
        self.stamp_l(4, 8)
        a("s_add_u32 s23, s23, 1\ns_cmp_lt_i32 s23, 2\ns_cbranch_scc1 L_Al\ns_branch L_exit")
        a("L_Ah:")
        self.epoch_load()
        a(f"""
        v_and_b32 v8, 31, v0
        v_lshrrev_b32 v11, 5, v0
        v_lshlrev_b32 v11, 13, v11
        v_lshl_add_u32 v10, v8, 4, v11
        s_lshl_b32 s27, s52, 16
        s_lshl_b32 s30, s53, 9
        s_add_u32 s27, s27, s30
        s_add_u32 s27, s27, {C_H2O*CH}
        """)
        for L in range(2):
            for w in range(4):
                a(f"s_add_u32 s26, s27, {(L*32 + w)*CH}\nbuffer_store_dwordx4 v[12:15], v10, s[4:7], s26 offen sc1")
        a(f"""
        v_and_b32 v8, 3, v0
        v_lshlrev_b32 v8, 11, v8
        v_bfe_u32 v11, v0, 2, 1
        v_lshl_add_u32 v8, v11, 13, v8
        v_bfe_u32 v11, v0, 3, 1
        v_lshl_add_u32 v8, v11, 17, v8
        s_lshl_b32 s27, s52, 14
        s_lshl_b32 s30, s53, 7
        s_add_u32 s27, s27, s30
        s_add_u32 s27, s27, {C_H2M*CH}
        s_mov_b64 exec, 0xffff
        buffer_store_dwordx4 v[12:15], v8, s[4:7], s27 offen sc1
        s_mov_b64 exec, -1
        """)
        self.flag_store(0)
        a(f"s_lshl_b32 s27, s52, 3\ns_add_u32 s27, s27, {ID_Q}")
        self.flag_poll("a", 27, 8)
        a(f"""
        v_lshlrev_b32 v16, 4, v0
        s_lshl_b32 s26, s52, 10
        s_add_u32 s26, s26, s20
        s_add_u32 s26, s26, {C_H1*CH}
        v_add_u32 v17, s26, v16
        s_mov_b32 s23, 0
        L_Ahl:
        s_lshl_b32 s26, s23, 14
        s_mov_b32 s25, 0
        L_Ahp:
        buffer_load_dwordx4 v[20:23], v17, s[4:7], s26 offen sc1
        """)
        self.timeout()
        a("""
        s_waitcnt vmcnt(0)
        v_cmp_eq_u32 vcc, -1, v20
        s_cbranch_vccnz L_Ahp
        ds_write_b128 v16, v[20:23]
        s_waitcnt lgkmcnt(0)
        s_barrier
        s_barrier
        s_cmp_eq_u32 s23, 1
        s_cbranch_scc1 L_exit
        s_mov_b32 s23, 1
        s_branch L_Ahl
        """)

    def role_c(self):
        a = self.a
        a("L_C:")
        a("s_cmp_eq_u32 s22, 0\ns_cbranch_scc0 L_exit\ns_setprio 3")
        self.epoch_load()
        ld = self.o.get("cld", 1)
        def op(soff, off):
            if ld: return f"buffer_load_dword v16, v8, s[4:7], s{soff} offen offset:{off} sc1"
            return f"buffer_store_dword v8, v8, s[4:7], s{soff} offen offset:{off} sc1"
        a(f"""
        s_mov_b32 s26, {C_PR*CH}
        s_mov_b32 s27, {C_PR*CH+8192}
        s_mov_b64 exec, 1
        buffer_store_dword v8, v8, s[4:7], s26 offen sc1
        buffer_store_dword v8, v8, s[4:7], s27 offen sc1
        s_mov_b32 s32, -1
        s_mov_b32 s33, -1
        s_waitcnt vmcnt(0)
        """)
        n = self.o.get("cmax", 6); nmin = self.o.get("cmin", 2); thr = self.o.get("cthr", 100)
        for i in range(n):
            off = 128 + 256 * (i % 15) if not self.o.get("csame") else 0
            first, second = (26, 27) if i % 2 == 0 else (27, 26)
            a(f"""
            s_memtime s[36:37]
            s_waitcnt lgkmcnt(0)
            {op(first, off)}
            s_waitcnt vmcnt(0)
            s_memtime s[38:39]
            s_waitcnt lgkmcnt(0)
            {op(second, off)}
            s_waitcnt vmcnt(0)
            s_memtime s[40:41]
            s_waitcnt lgkmcnt(0)
            s_sub_u32 s{34 if first==26 else 35}, s38, s36
            s_sub_u32 s{35 if first==26 else 34}, s40, s38
            s_min_u32 s32, s32, s34
            s_min_u32 s33, s33, s35
            """)
            if self.diag and i < 12:
                a(f"s_lshl_b32 s35, s35, 16\ns_or_b32 s{self.STS[5+i]}, s34, s35")
            if i + 1 >= nmin and i + 1 < n:
                a(f"""
                s_min_u32 s34, s32, s33
                s_max_u32 s35, s32, s33
                s_sub_u32 s35, s35, s34
                s_cmp_le_u32 s34, {560 if i + 1 < 4 else 100000}
                s_cselect_b32 s35, s35, 0
                s_cmp_ge_u32 s35, {thr}
                s_cbranch_scc1 L_Cd
                """)
        a(f"""
        L_Cd:
        s_mov_b64 exec, -1
        s_cmp_lt_u32 s33, s32
        s_cselect_b32 s30, 1, 0
        s_lshr_b32 s31, s20, 13
        s_xor_b32 s30, s30, s31
        """)
        if self.o.get("cflip"): a("s_xor_b32 s30, s30, 1")
        if self.diag: a("s_mov_b32 s57, s32\ns_mov_b32 s58, s33\ns_mov_b32 s59, s30")
        self.flag_store(0, xor_s=30)
        self.stamp(4)
        a("s_branch L_exit")

    def build(self):
        a = self.a
        a(f"s_cmp_ge_u32 s2, {NWG}\ns_cbranch_scc1 L_end")
        if self.o.get("dbg"): a("s_memrealtime s[56:57]")
        a("s_load_dwordx16 s[64:79], s[0:1], 0\ns_load_dwordx8 s[80:87], s[0:1], 64")
        if self.diag:
            for s in self.STS: a(f"s_mov_b32 s{s}, 0")
            a("s_mov_b32 s23, -1")
        a("""
        v_lshrrev_b32 v1, 6, v0
        v_and_b32 v0, 63, v0
        s_getreg_b32 s20, hwreg(HW_REG_XCC_ID, 0, 4)
        v_readfirstlane_b32 s22, v1
        s_bfe_u32 s20, s20, 0x10002
        s_lshl_b32 s20, s20, 13
        v_and_b32 v1, 15, v0
        v_lshrrev_b32 v2, 4, v0
        s_cmp_lt_u32 s22, 4
        s_cbranch_scc1 L_np
        s_setprio 3
        L_np:
        s_waitcnt lgkmcnt(0)
        """)
        self.stamp(0)
        self.srd(4, 86, (4 << 20) if self.diag else (2 << 20))
        a("s_cmp_eq_u32 s2, 0\ns_cbranch_scc1 L_C")
        a(f"s_cmp_lt_u32 s2, {ID_A}\ns_cbranch_scc1 L_Q\ns_cmp_lt_u32 s2, {ID_W}\ns_cbranch_scc1 L_A\ns_cmp_lt_u32 s2, {ID_F}\ns_cbranch_scc1 L_W\ns_branch L_F")
        self.role_c(); self.role_q(); self.role_a(); self.role_w(); self.role_f()
        a("L_exit:")
        if self.o.get("dbg"):
            a("s_cmp_eq_u32 s22, 0\ns_cbranch_scc0 L_end\ns_mov_b32 s26, -1")
            for n, w in enumerate((1, 65, 192, 193, 225, 252)):
                a(f"s_cmp_eq_u32 s2, {w}\ns_cselect_b32 s26, {8*n}, s26")
            a("s_cmp_eq_u32 s26, -1\ns_cbranch_scc1 L_end\ns_memrealtime s[54:55]")
            if self.o.get("amp"):
                a(f"s_waitcnt lgkmcnt(0)\ns_cmp_eq_u32 s2, 1\ns_cbranch_scc0 L_amp2\ns_sub_u32 s27, s54, s56\ns_mul_i32 s27, s27, {self.o['amp']}\ns_min_u32 s27, s27, 100000")
                a("L_amp:\ns_memrealtime s[58:59]\ns_waitcnt lgkmcnt(0)\ns_sub_u32 s30, s58, s56\ns_cmp_lt_u32 s30, s27\ns_cbranch_scc1 L_amp\nL_amp2:")
            self.srd(8, 84, 256)
            a("s_mov_b64 exec, 1\ns_waitcnt lgkmcnt(0)\nv_mov_b32 v8, 0\nv_mov_b32 v12, s56\nv_mov_b32 v13, s54")
            a("buffer_store_dwordx2 v[12:13], v8, s[8:11], s26 offen")
        if self.diag:
            a("s_mov_b64 exec, -1\ns_waitcnt vmcnt(0) lgkmcnt(0)")
            self.stamp(19)
            a("s_lshl_b32 s26, s2, 3\ns_add_u32 s26, s26, s22\ns_lshl_b32 s26, s26, 7\ns_add_u32 s26, s26, 0x200000\nv_mov_b32 v8, 0\ns_mov_b64 exec, 1")
            for k in range(0, 20, 4):
                for i in range(4): a(f"v_mov_b32 v{12+i}, s{self.STS[k+i]}")
                a(f"buffer_store_dwordx4 v[12:15], v8, s[4:7], s26 offen offset:{4*k}")
            a("s_waitcnt vmcnt(0)")
        a("L_end:")
        hdr = open("interleave_layers__sliding_block_cached__glu_gated_swiglu__decode.s.ref").read().split("\n")
        top = [l for l in hdr if l.startswith(";") and "@launch" not in l]
        out = "\n".join(top) + f"\n; @launch grid=({NWG},1,1) block=(512,1,1) lds=16384\n"
        out += f'.amdgcn_target "amdgcn-amd-amdhsa--gfx950"\n.text\n.globl {NAME}\n.p2align 8\n.type {NAME},@function\n{NAME}:\n'
        out += a.text()
        out += f"""s_endpgm
.section .rodata,"a"
.p2align 6
.amdhsa_kernel {NAME}
  .amdhsa_next_free_vgpr 256
  .amdhsa_next_free_sgpr 102
  .amdhsa_accum_offset 256
  .amdhsa_group_segment_fixed_size 0
  .amdhsa_kernarg_size 96
  .amdhsa_user_sgpr_count 2
  .amdhsa_user_sgpr_kernarg_segment_ptr 1
  .amdhsa_system_sgpr_workgroup_id_x 1
.end_amdhsa_kernel
"""
        return out

if __name__ == "__main__":
    opts = {}
    for x in sys.argv[3:]:
        k, v = x.split("=")
        opts[k] = int(v) if v.lstrip("-").isdigit() else v
    if sys.argv[1] != "-": open(sys.argv[1], "w").write(G(False, opts).build())
    if len(sys.argv) > 2 and sys.argv[2] != "-": open(sys.argv[2], "w").write(G(True, opts).build())
```

```python
import sys
from asmlib import Asm
NAME = "interleave_layers__sliding_block_cached__glu_gated_swiglu__decode_kernel"
CH = 16384
C_FLAG, C_H1, C_H2O, C_H2M, C_H3, C_XR2, C_H4, C_XR1, C_XR3, C_PR = 1, 3, 8, 72, 88, 96, 97, 105, 106, 107
NQ, NA, NW, NF = 64, 128, 32, 28
ID_Q, ID_A, ID_W, ID_F = 1, 65, 193, 225
NWG = 253
TMO = 20000
LOG2E = 1.4426950408889634
import struct
def f2u(x): return struct.unpack("<I", struct.pack("<f", x))[0]

class G:
    def __init__(self, diag=False, opts=None):
        self.a = Asm(); self.diag = diag; self.o = opts or {}
        self.nst = 0
    STS = list(range(56, 64)) + list(range(88, 100))
    def stamp(self, k):
        if not self.diag: return
        if self.o.get("lite") and k not in (0, 1, 4, 8, 9, 19): return
        self.a(f"s_memrealtime s[54:55]\ns_waitcnt lgkmcnt(0)\ns_mov_b32 s{self.STS[k]}, s54")
    def stamp_l(self, k0, k1):
        if not self.diag: return
        if self.o.get("lite"): return
        self.a(f"s_memrealtime s[54:55]\ns_waitcnt lgkmcnt(0)\ns_cmp_eq_u32 s23, 1\ns_cselect_b32 s{self.STS[k1]}, s54, s{self.STS[k1]}\ns_cmp_eq_u32 s23, 0\ns_cselect_b32 s{self.STS[k0]}, s54, s{self.STS[k0]}")
    def srd(self, d, p, nbytes, off_s=None):
        a = self.a
        if off_s is None:
            a(f"s_mov_b32 s{d}, s{p}\ns_mov_b32 s{d+1}, s{p+1}")
        else:
            a(f"s_add_u32 s{d}, s{p}, s{off_s}\ns_addc_u32 s{d+1}, s{p+1}, 0")
        a(f"s_mov_b32 s{d+2}, {nbytes}\ns_mov_b32 s{d+3}, 0x20000")
    def timeout(self):
        self.a(f"s_add_u32 s25, s25, 1\ns_cmp_gt_u32 s25, {TMO}\ns_cbranch_scc1 L_exit")
    def masks(self):
        a = self.a
        a("""
        v_and_b32 v8, 4, v1
        v_cmp_eq_u32 vcc, 0, v8
        v_mov_b32 v9, 0xffff
        v_cndmask_b32 v3, 0, v9, vcc
        v_xor_b32 v4, v3, v9
        v_lshlrev_b32 v5, 16, v3
        v_lshlrev_b32 v6, 16, v4
        v_and_b32 v8, 3, v1
        v_mul_u32_u24 v7, 17425, v8
        v_xor_b32 v8, 1, v8
        v_mul_u32_u24 v8, 4420, v8
        v_add_u32 v7, v7, v8
        """)
    def abuild(self, dst, src):
        for d in range(4):
            self.a(f"v_and_b32 v{dst+d}, v{src}, v{3+d}")
    def epoch_load(self):
        self.a("v_mov_b32 v8, 0\nbuffer_load_dword v9, v8, s[4:7], 0 offen sc1\nv_mov_b32 v12, -1\nv_mov_b32 v13, -1\nv_mov_b32 v14, -1\nv_mov_b32 v15, -1")
    def reset1k(self, sbase):
        a = self.a
        a(f"buffer_store_dwordx4 v[12:15], v10, s[4:7], s{sbase} offen sc1")
        a(f"s_add_u32 s31, s{sbase}, 8192")
        a(f"buffer_store_dwordx4 v[12:15], v10, s[4:7], s31 offen sc1")
    def flag_store(self, nleft, xor_s=None):
        a = self.a
        a(f"s_waitcnt vmcnt({nleft})")
        a("v_readfirstlane_b32 s24, v9")
        a("s_mul_i32 s24, s24, 0x9E3779B1\ns_add_u32 s24, s24, 0x7F4A7C15")
        if xor_s is not None: a(f"s_xor_b32 s24, s24, s{xor_s}")
        a(f"""
        s_lshr_b32 s26, s2, 7
        s_lshl_b32 s26, s26, 14
        s_and_b32 s27, s2, 127
        s_lshl_b32 s27, s27, 6
        s_add_u32 s26, s26, s27
        s_add_u32 s26, s26, {C_FLAG*CH}
        v_mov_b32 v8, 0
        v_mov_b32 v11, s24
        s_mov_b64 exec, 1
        buffer_store_dword v11, v8, s[4:7], s26 offen sc1
        s_mov_b64 exec, -1
        """)
    def flag_poll(self, tagn, first_s, n, extra_id=None):
        a = self.a
        a(f"v_add_u32 v8, s{first_s}, v0")
        nl = n
        if extra_id is not None:
            a(f"v_cmp_eq_u32 vcc, {n}, v0\nv_mov_b32 v11, {extra_id}\nv_cndmask_b32 v8, v8, v11, vcc")
            nl = n + 1
        a(f"v_cmp_ne_u32 vcc, {nl}, v0\nv_cndmask_b32 v8, 0, v8, vcc\nv_cndmask_b32_e64 v9, 1, 0, vcc")
        cl = nl; nl += 1
        a(f"""
        v_lshrrev_b32 v11, 7, v8
        v_lshlrev_b32 v11, 14, v11
        v_and_b32 v8, 127, v8
        v_lshl_add_u32 v8, v8, 6, v11
        s_mov_b32 s26, {C_FLAG*CH}
        s_mov_b32 s25, 0
        s_mov_b32 exec_lo, {hex(((1 << nl) - 1) & 0xffffffff)}
        s_mov_b32 exec_hi, {hex(((1 << nl) - 1) >> 32)}
        L_fp_{tagn}:
        buffer_load_dword v11, v8, s[4:7], s26 offen sc1
        """)
        self.timeout()
        a(f"""
        s_waitcnt vmcnt(0)
        v_xor_b32 v11, s24, v11
        v_cmp_gt_u32 vcc, v11, v9
        s_cbranch_vccnz L_fp_{tagn}
        v_readlane_b32 s26, v11, {cl}
        s_mov_b64 exec, -1
        s_lshl_b32 s26, s26, 13
        s_xor_b32 s20, s20, s26
        """)
    def tag_from_lds(self, addr):
        self.a(f"v_mov_b32 v8, {addr}\nds_read_b32 v9, v8\ns_waitcnt lgkmcnt(0)\nv_readfirstlane_b32 s24, v9")
    def front_setup(self, c_src, c_xr):
        a = self.a
        a(f"""
        s_mov_b32 s50, 0x00ff00ff
        s_mov_b32 s51, 0xff00ff00
        s_mov_b32 s48, 0
        s_mov_b32 s49, -1
        s_cmp_eq_u32 s22, 3
        s_cselect_b32 s28, 0x00ff00ff, -1
        s_mov_b32 s29, s28
        s_lshl_b32 s26, s22, 8
        v_lshlrev_b32 v8, 10, v2
        v_lshl_add_u32 v8, v1, 4, v8
        v_add_u32 v16, s26, v8
        v_add_u32 v18, s26, v14
        s_add_u32 s27, s26, {c_xr*CH}
        v_add_u32 v17, s27, v14
        v_lshrrev_b32 v11, 3, v0
        v_lshl_add_u32 v19, v11, 5, s26
        v_lshlrev_b32 v8, 14, v11
        v_and_b32 v9, 7, v0
        v_lshl_add_u32 v8, v9, 10, v8
        s_add_u32 s27, s26, {c_src*CH}
        v_add_u32 v13, s27, v8
        v_lshrrev_b32 v11, 3, v1
        v_lshlrev_b32 v11, 8, v11
        v_and_b32 v12, 7, v1
        v_lshl_add_u32 v11, v12, 5, v11
        v_and_b32 v12, 1, v2
        v_lshl_add_u32 v11, v12, 4, v11
        s_lshl_b32 s26, s22, 9
        s_add_u32 s26, s26, 1024
        v_add_u32 v20, s26, v11
        s_lshl_b32 s26, s22, 3
        s_add_u32 s26, s26, {1024+4096}
        v_lshrrev_b32 v8, 5, v0
        v_lshl_add_u32 v21, v8, 2, s26
        v_and_b32 v92, 0x3f803f80, v3
        v_and_b32 v93, 0x3f803f80, v4
        v_and_b32 v94, 0x3f803f80, v5
        v_and_b32 v95, 0x3f803f80, v6
        v_mov_b32 v22, 0
        """)
        for i in range(32): a(f"v_mov_b32 v{60+i}, 0")
        for i in range(8):
            a(f"s_mov_b32 s{32+i}, {c_src*CH + (i>>1)*CH + (i&1)*4096}")
    def add_side(self, src):
        self.a(f"v_add_u32 v16, {src}, v16\nv_add_u32 v17, {src}, v17\nv_add_u32 v13, {src}, v13")
    def r16_loads(self, srd, reg, rowstride, vaddr, pace=0, npace=99):
        for s in range(8):
            for hf in range(2):
                self.a(f"s_mov_b32 s26, {(64*hf + 2*s)*rowstride}")
                r = reg + 8*s + 4*hf
                if pace and 2*s + hf <= npace: self.a(f"s_waitcnt vmcnt({pace-1})")
                self.a(f"buffer_load_dwordx4 v[{r}:{r+3}], v{vaddr}, s[{srd}:{srd+3}], s26 offen nt")
    def r16_addr(self, vdst, rowstride):
        self.a(f"""
        v_lshrrev_b32 v8, 1, v2
        v_lshrrev_b32 v9, 3, v1
        v_lshl_add_u32 v8, v8, 1, v9
        v_and_b32 v9, 1, v2
        v_lshl_add_u32 v8, v8, 4, v9
        s_lshl_b32 s26, s22, 7
        v_add_u32 v8, s26, v8
        v_mul_u32_u24 v8, {rowstride}, v8
        v_and_b32 v9, 7, v1
        v_lshl_add_u32 v{vdst}, v9, 4, v8
        """)
    def x_load(self):
        self.a("""
        v_and_b32 v8, 1, v2
        v_lshlrev_b32 v8, 3, v8
        v_lshl_add_u32 v8, v1, 4, v8
        v_lshrrev_b32 v9, 1, v2
        v_lshl_add_u32 v14, v9, 2, v8
        s_lshl_b32 s26, s22, 8
        buffer_load_dword v25, v14, s[16:19], s26 offen
        """)
    def gather(self, tagn, nld, xr_cond):
        a = self.a
        mode = self.o.get("pre", "any")
        a("s_mov_b32 s25, 0")
        if mode != "none":
            a(f"s_mov_b32 exec_lo, {hex(0xffffffff if nld == 8 else 0x0fffffff)}\ns_mov_b32 exec_hi, 0")
            a(f"L_gl_{tagn}:\nbuffer_load_dword v54, v13, s[4:7], 0 offen sc1")
            self.timeout()
            a("s_waitcnt vmcnt(0)")
            if isinstance(mode, int):
                a(f"v_cmp_ne_u32 vcc, -1, v54\ns_bcnt1_i32_b32 s26, vcc_lo\ns_cmp_lt_u32 s26, {mode * 4 * nld // 32}\ns_cbranch_scc1 L_gl_{tagn}")
            elif mode == "all": a(f"v_cmp_eq_u32 vcc, -1, v54\ns_cbranch_vccnz L_gl_{tagn}")
            else: a(f"v_cmp_ne_u32 vcc, -1, v54\ns_cbranch_vccz L_gl_{tagn}")
        def loads(pol, t):
            a("s_mov_b64 exec, s[28:29]")
            if xr_cond:
                a(f"s_cmp_eq_u32 s23, 0\ns_cbranch_scc1 L_gx{t}_{tagn}")
            a("buffer_load_dword v22, v17, s[4:7], 0 offen sc1")
            if xr_cond: a(f"L_gx{t}_{tagn}:")
            for i in range(nld):
                a(f"buffer_load_dwordx4 v[{60+4*i}:{63+4*i}], v16, s[4:7], s{32+i} offen {pol}")
        if self.o.get("l2"):
            loads({1: "", 2: "sc0"}[self.o["l2"]], "a")
            a(f"s_branch L_gc_{tagn}")
        a(f"L_gp_{tagn}:")
        loads("sc1", "")
        a(f"L_gc_{tagn}:")
        a("s_mov_b64 exec, -1")
        self.timeout()
        a("v_mov_b32 v42, 0\nv_mov_b32 v43, 0\nv_mov_b32 v44, 0\nv_mov_b32 v45, 0")
        for i in range(0, 8, 2):
            a(f"s_waitcnt vmcnt({max(0, nld-2-i)})")
            r = 60 + 4*i
            a(f"v_smfmac_f32_16x16x64_bf16 v[42:45], v[92:95], v[{r}:{r+7}], v7")
            a(f"v_max3_u32 v54, v{22 if i == 0 else 54}, v{r}, v{r+4}")
            if i == 0: a("v_lshlrev_b32 v52, 16, v22\nv_and_b32 v53, 0xffff0000, v22")
        a(f"v_cmp_eq_u32 vcc, -1, v54\ns_cbranch_vccnz L_gp_{tagn}")
        a("""
        v_cndmask_b32 v50, v42, v44, s[48:49]
        v_cndmask_b32 v51, v43, v45, s[48:49]
        v_cvt_pk_bf16_f32 v55, v50, v51
        v_lshlrev_b32 v50, 16, v55
        v_and_b32 v51, 0xffff0000, v55
        v_pk_add_f32 v[50:51], v[50:51], v[52:53]
        v_cvt_pk_bf16_f32 v24, v50, v51
        """)
    def front_gemv(self, two, cs=False):
        a = self.a
        a("""
        ds_write_b32 v18, v24
        v_lshlrev_b32 v50, 16, v24
        v_and_b32 v51, 0xffff0000, v24
        v_mov_b32 v42, 0
        v_mov_b32 v43, 0
        s_waitcnt lgkmcnt(0)
        ds_read_b128 v[26:29], v19
        ds_read_b128 v[30:33], v19 offset:16
        v_add_f32 v55, v50, v51
        v_mul_f32 v56, v50, v50
        v_fmac_f32 v56, v51, v51
        v_mov_b32 v44, 0
        v_mov_b32 v45, 0
        """)
        if two: a("v_mov_b32 v46, 0\nv_mov_b32 v47, 0\nv_mov_b32 v48, 0\nv_mov_b32 v49, 0")
        a("v_permlane32_swap_b32 v55, v56\nv_add_f32 v55, v55, v56")
        a("s_and_b32 s26, s23, 1\ns_mul_i32 s26, s26, 4352\nv_add_u32 v8, s26, v20\nv_add_u32 v9, s26, v21")
        a("s_waitcnt lgkmcnt(1)")
        self.abuild(34, 26)
        fill = ["v_mov_b32 v56, v55", None, "v_permlane16_swap_b32 v55, v56\nv_add_f32 v55, v55, v56",
                "v_add_f32_dpp v55, v55, v55 row_ror:8 row_mask:0xf bank_mask:0xf", "v_add_f32_dpp v55, v55, v55 row_ror:4 row_mask:0xf bank_mask:0xf",
                "v_add_f32_dpp v55, v55, v55 row_ror:2 row_mask:0xf bank_mask:0xf", "v_add_f32_dpp v55, v55, v55 row_ror:1 row_mask:0xf bank_mask:0xf",
                "s_mov_b32 exec_lo, 1\ns_mov_b32 exec_hi, 1\nds_write_b32 v9, v55\ns_mov_b64 exec, s[50:51]"]
        for s in range(8):
            A = 34 + 4*(s & 1)
            if s == 3: a("s_waitcnt lgkmcnt(0)")
            if s < 7: self.abuild(34 + 4*((s+1) & 1), 26 + s + 1)
            a(f"v_smfmac_f32_16x16x64_bf16 v[42:45], v[{A}:{A+3}], v[{128+8*s}:{135+8*s}], v7")
            if two: a(f"v_smfmac_f32_16x16x64_bf16 v[46:49], v[{A}:{A+3}], v[{192+8*s}:{199+8*s}], v7")
            if fill[s]: a(fill[s])
        a("ds_write_b128 v8, v[42:45]")
        if two: a("ds_write_b128 v8, v[46:49] offset:2048")
        if cs:
            a("s_cmp_eq_u32 s23, 0\ns_cbranch_scc0 L_ncs\ns_mov_b64 exec, -1\nv_mov_b32 v46, 0\nv_mov_b32 v47, 0\nv_mov_b32 v48, 0\nv_mov_b32 v49, 0")
            for s in range(8): a(f"v_smfmac_f32_16x16x64_bf16 v[46:49], v[92:95], v[{128+8*s}:{135+8*s}], v7")
            a("s_mov_b64 exec, s[50:51]\nds_write_b128 v8, v[46:49] offset:2048\nL_ncs:")
        a("s_mov_b64 exec, -1\ns_waitcnt lgkmcnt(0)\ns_barrier")
    def xr_publish(self, sofs_expr):
        self.a(f"""
        v_subrev_u32 v8, s20, v17
        v_min_u32 v9, -2, v24
        {sofs_expr}
        v_add_u32 v8, s26, v8
        s_mov_b32 s26, 8192
        s_mov_b64 exec, s[28:29]
        buffer_store_dword v9, v8, s[4:7], 0 offen sc1
        buffer_store_dword v9, v8, s[4:7], s26 offen sc1
        s_mov_b64 exec, -1
        """)
    def back_reduce(self, two, base, ro):
        a = self.a
        a(f"ds_read_b128 v[{ro+16}:{ro+19}], v{base+1}\nds_read_b128 v[{ro+20}:{ro+23}], v{base+1} offset:16")
        for m in range(2 if two else 1):
            for k in range(4):
                a(f"ds_read2st64_b32 v[{ro+8*m+2*k}:{ro+8*m+2*k+1}], v{base} offset0:{8*m+2*k} offset1:{8*m+2*k+1}")
    def ln_scalars(self, ro, nrest):
        a = self.a
        t = ro + 16
        a(f"""
        s_waitcnt lgkmcnt({nrest})
        v_pk_add_f32 v[{t}:{t+1}], v[{t}:{t+1}], v[{t+2}:{t+3}]
        v_pk_add_f32 v[{t+4}:{t+5}], v[{t+4}:{t+5}], v[{t+6}:{t+7}]
        v_pk_add_f32 v[{t}:{t+1}], v[{t}:{t+1}], v[{t+4}:{t+5}]
        v_mul_f32 v{t}, {hex(f2u(1.0/448))}, v{t}
        v_mul_f32 v{t+1}, {hex(f2u(1.0/448))}, v{t+1}
        v_fma_f32 v{t+1}, -v{t}, v{t}, v{t+1}
        v_max_f32 v{t+1}, 0, v{t+1}
        v_cvt_pk_bf16_f32 v{t+2}, v{t}, v{t+1}
        v_lshlrev_b32 v{t}, 16, v{t+2}
        v_and_b32 v{t+1}, 0xffff0000, v{t+2}
        v_add_f32 v{t+1}, {hex(f2u(1e-5))}, v{t+1}
        v_cvt_pk_bf16_f32 v{t+1}, v{t+1}, v{t+1}
        v_and_b32 v{t+1}, 0xffff0000, v{t+1}
        v_sqrt_f32 v{t+1}, v{t+1}
        v_cvt_pk_bf16_f32 v{t+1}, v{t+1}, v{t+1}
        v_and_b32 v{t+1}, 0xffff0000, v{t+1}
        v_rcp_f32 v{t+1}, v{t+1}
        """)
    def sum8(self, r):
        self.a(f"""
        v_pk_add_f32 v[{r}:{r+1}], v[{r}:{r+1}], v[{r+2}:{r+3}]
        v_pk_add_f32 v[{r+4}:{r+5}], v[{r+4}:{r+5}], v[{r+6}:{r+7}]
        v_pk_add_f32 v[{r}:{r+1}], v[{r}:{r+1}], v[{r+4}:{r+5}]
        v_add_f32 v{r}, v{r}, v{r+1}
        """)
    def r8_addr(self, vdst, NS, wv):
        self.a(f"""
        v_lshrrev_b32 v8, 1, v2
        v_mul_u32_u24 v8, {2*NS}, v8
        v_and_b32 v9, 1, v2
        v_add_u32 v8, v8, v9
        v_mul_u32_u24 v8, 896, v8
        v_lshl_add_u32 v8, v1, 4, v8
        s_lshl_b32 s26, s{wv}, 8
        v_add_u32 v{vdst}, s26, v8
        s_cmp_eq_u32 s{wv}, 3
        s_cselect_b32 s28, 0x00ff00ff, -1
        s_mov_b32 s29, s28
        """)
    def r8_loads(self, NS, srd, vaddr, reg, pace=0, npace=99):
        a = self.a
        a("s_mov_b64 exec, s[28:29]")
        for s in range(NS):
            for hf in range(2):
                a(f"s_mov_b32 s26, {(4*NS*hf + 2*s)*896}")
                r = reg + 8*s + 4*hf
                if pace and 2*s + hf <= npace: a(f"s_waitcnt vmcnt({pace-1})")
                a(f"buffer_load_dwordx4 v[{r}:{r+3}], v{vaddr}, s[{srd}:{srd+3}], s26 offen nt")
        a("s_mov_b64 exec, -1")
    def r8_pub_addr(self, vdst, wv, sslot):
        self.a(f"""
        v_lshrrev_b32 v9, 1, v2
        v_lshlrev_b32 v9, 13, v9
        v_lshl_add_u32 v8, v1, 4, v9
        s_lshl_b32 s26, s{wv}, 8
        s_add_u32 s26, s26, s{sslot}
        v_add_u32 v{vdst}, s26, v8
        s_and_b32 s46, s28, 0xffff
        s_mov_b32 s47, s46
        """)
    def r8_gemv(self, NS, X, reg, vpub, sofs):
        a = self.a
        a("v_mov_b32 v42, 0\nv_mov_b32 v43, 0\nv_mov_b32 v44, 0\nv_mov_b32 v45, 0")
        nrd = NS // 4
        a(f"s_waitcnt lgkmcnt({nrd-1})")
        self.abuild(34, X)
        for s in range(NS):
            A = 34 + 4*(s & 1)
            if s + 1 < NS:
                if (s + 1) % 4 == 0: a(f"s_waitcnt lgkmcnt({nrd - 1 - (s+1)//4})")
                self.abuild(34 + 4*((s+1) & 1), X + s + 1)
            a(f"v_smfmac_f32_16x16x64_bf16 v[42:45], v[{A}:{A+3}], v[{reg+8*s}:{reg+8*s+7}], v7")
        a(f"""
        v_cvt_pk_bf16_f32 v46, v42, v43
        v_cvt_pk_bf16_f32 v48, v42, v43
        v_cvt_pk_bf16_f32 v47, v44, v45
        v_cvt_pk_bf16_f32 v49, v44, v45
        v_permlane16_swap_b32 v46, v48
        v_permlane16_swap_b32 v47, v49
        s_mov_b64 exec, s[46:47]
        v_min_u32 v46, -2, v46
        buffer_store_dwordx4 v[46:49], v{vpub}, s[4:7], s{sofs} offen sc1
        s_mov_b64 exec, -1
        """)

    def role_q(self):
        a = self.a
        a(f"L_Q:\ns_sub_u32 s21, s2, {ID_Q}")
        a("s_cmp_gt_u32 s22, 4\ns_cbranch_scc1 L_exit\ns_cmp_eq_u32 s22, 4\ns_cbranch_scc1 L_Qh")
        self.srd(16, 64, 896)
        a("s_lshl_b32 s27, s21, 7")
        self.srd(8, 70, 448*8192 - 0, off_s=27)
        a("s_sub_u32 s10, s10, s27")
        self.x_load()
        self.r16_addr(15, 8192)
        if self.o.get("hb", 0) & 2: a("s_barrier")
        self.r16_loads(8, 128, 8192, 15)
        self.stamp(10)
        self.masks()
        self.front_setup(C_H4, C_XR1)
        a(f"v_lshlrev_b32 v58, 2, v0\nv_add_u32 v58, 1024, v58")
        a(f"s_lshr_b32 s26, s21, 5\ns_lshl_b32 s26, s26, 14\ns_and_b32 s27, s21, 31\ns_lshl_b32 s27, s27, 8\ns_add_u32 s26, s26, s27\ns_add_u32 s26, s26, {C_H1*CH}\nv_lshl_add_u32 v59, v0, 2, s26\nv_mov_b32 v99, 12288")
        a("s_mov_b32 s23, 0\ns_waitcnt vmcnt(0)\nv_mov_b32 v24, v25")
        self.stamp(1)
        a("s_branch L_Qg")
        a("L_Qloop:")
        self.tag_from_lds(12288)
        a(f"s_mov_b32 s27, {ID_F}")
        self.flag_poll("q", 27, NF)
        self.add_side("s20")
        self.gather("q", 7, False)
        self.stamp(5)
        a("L_Qg:")
        self.front_gemv(False, cs=True)
        self.stamp_l(2, 6)
        a("s_cmp_eq_u32 s22, 0\ns_cbranch_scc0 L_Qnext")
        a(f"s_and_b32 s26, s23, 1\ns_mul_i32 s26, s26, 4352\nv_add_u32 v10, s26, v58\ns_add_u32 s26, s26, {1024+4096}\nv_mov_b32 v11, s26")
        a("s_cmp_eq_u32 s23, 0\ns_cbranch_scc0 L_Qr\nds_read_b32 v125, v99")
        for k in range(4): a(f"ds_read2st64_b32 v[{108+2*k}:{109+2*k}], v10 offset0:{8+2*k} offset1:{9+2*k}")
        a("s_waitcnt lgkmcnt(0)")
        self.sum8(108)
        a("v_mov_b32 v57, v108\nL_Qr:")
        self.back_reduce(False, 10, 100)
        self.ln_scalars(100, 4)
        a("s_waitcnt lgkmcnt(0)")
        self.sum8(100)
        a("""
        v_fma_f32 v100, -v116, v57, v100
        v_mul_f32 v100, v100, v117
        s_lshl_b32 s26, s23, 15
        s_add_u32 s27, s26, 8192
        v_mov_b32_dpp v101, v100 quad_perm:[1,0,3,2] row_mask:0xf bank_mask:0xf
        s_mov_b32 exec_lo, 0x55555555
        s_mov_b32 exec_hi, 0x55555555
        v_cvt_pk_bf16_f32 v124, v100, v101
        buffer_store_dwordx2 v[124:125], v59, s[4:7], s26 offen sc1
        buffer_store_dwordx2 v[124:125], v59, s[4:7], s27 offen sc1
        s_mov_b64 exec, -1
        """)
        self.stamp_l(3, 7)
        a("L_Qnext:\ns_add_u32 s23, s23, 1\ns_cmp_lt_i32 s23, 2\ns_cbranch_scc1 L_Qloop")
        a("s_cmp_eq_u32 s21, 0\ns_cbranch_scc0 L_Qnx")
        self.xr_publish(f"s_mov_b32 s26, {(C_XR2-C_XR1)*CH & 0xffffffff}")
        a("L_Qnx:")
        a("s_cmp_lt_u32 s21, 7\ns_cbranch_scc0 L_exit\ns_cmp_eq_u32 s22, 0\ns_cbranch_scc0 L_exit")
        self.srd(16, 82, 896)
        a(f"""
        v_lshrrev_b32 v8, 3, v0
        v_lshlrev_b32 v8, 10, v8
        v_and_b32 v9, 7, v0
        v_lshl_add_u32 v8, v9, 4, v8
        s_lshl_b32 s26, s21, 7
        s_add_u32 s27, s26, s20
        v_add_u32 v16, s27, v8
        v_add_u32 v97, s26, v14
        s_add_u32 s27, s27, {C_XR3*CH}
        v_add_u32 v17, s27, v14
        v_mov_b32 v22, 0
        v_mov_b32 v72, 0
        v_mov_b32 v73, 0
        v_mov_b32 v74, 0
        v_mov_b32 v75, 0
        s_mov_b32 s32, {(C_H4+4)*CH}
        s_mov_b32 s33, {(C_H4+5)*CH}
        s_mov_b32 s34, {(C_H4+6)*CH}
        s_mov_b32 s35, {(C_H4+7)*CH}
        s_mov_b32 s28, 0x00ff00ff
        s_mov_b32 s29, 0x00ff00ff
        s_mov_b32 s25, 0
        L_Fp:
        s_mov_b64 exec, s[28:29]
        buffer_load_dword v22, v17, s[4:7], 0 offen sc1
        s_mov_b64 exec, -1
        buffer_load_dwordx4 v[60:63], v16, s[4:7], s32 offen sc1
        buffer_load_dwordx4 v[64:67], v16, s[4:7], s33 offen sc1
        buffer_load_dwordx4 v[68:71], v16, s[4:7], s34 offen sc1
        s_mov_b32 exec_hi, 0
        buffer_load_dwordx4 v[72:75], v16, s[4:7], s35 offen sc1
        s_mov_b64 exec, -1
        """)
        self.timeout()
        a("""
        v_mov_b32 v42, 0
        v_mov_b32 v43, 0
        v_mov_b32 v44, 0
        v_mov_b32 v45, 0
        s_waitcnt vmcnt(2)
        v_smfmac_f32_16x16x64_bf16 v[42:45], v[92:95], v[60:67], v7
        v_max3_u32 v54, v22, v60, v64
        v_lshlrev_b32 v52, 16, v22
        v_and_b32 v53, 0xffff0000, v22
        s_waitcnt vmcnt(0)
        v_smfmac_f32_16x16x64_bf16 v[42:45], v[92:95], v[68:75], v7
        v_max3_u32 v54, v54, v68, v72
        v_cmp_eq_u32 vcc, -1, v54
        s_cbranch_vccnz L_Fp
        v_cndmask_b32 v50, v42, v44, s[48:49]
        v_cndmask_b32 v51, v43, v45, s[48:49]
        v_add_f32_dpp v50, v50, v50 row_ror:8 row_mask:0xf bank_mask:0xf
        v_add_f32_dpp v51, v51, v51 row_ror:8 row_mask:0xf bank_mask:0xf
        v_cvt_pk_bf16_f32 v55, v50, v51
        v_lshlrev_b32 v50, 16, v55
        v_and_b32 v51, 0xffff0000, v55
        v_pk_add_f32 v[50:51], v[50:51], v[52:53]
        v_cvt_pk_bf16_f32 v50, v50, v51
        s_mov_b64 exec, s[28:29]
        buffer_store_dword v50, v97, s[16:19], 0 offen
        """)
        self.stamp(8)
        a("s_cmp_eq_u32 s21, 0\ns_cbranch_scc0 L_exit\nv_mov_b32 v9, s24\nv_mov_b32 v8, 0\ns_mov_b64 exec, 1\nbuffer_store_dword v9, v8, s[4:7], 0 offen sc1\ns_branch L_exit")
        a("L_Qh:")
        self.epoch_load()
        a(f"""
        v_lshlrev_b32 v10, 4, v0
        s_cmp_eq_u32 s21, 0
        s_cbranch_scc0 L_Qh1
        s_mov_b32 s30, {C_XR2*CH}
        """)
        self.reset1k(30)
        a("L_Qh1:")
        if self.o.get("hb", 0) & 2: a("s_barrier")
        self.flag_store(0)
        a("v_mov_b32 v16, 12288\nds_write_b32 v16, v11\ns_waitcnt lgkmcnt(0)\ns_branch L_exit")

    def role_f(self):
        a = self.a
        a(f"L_F:\ns_sub_u32 s21, s2, {ID_F}")
        a("s_cmp_gt_u32 s22, 3\ns_cbranch_scc1 L_Fb")
        self.srd(16, 64, 896)
        a("s_lshl_b32 s27, s21, 7")
        self.srd(8, 76, 448*3584, off_s=27)
        a("s_sub_u32 s10, s10, s27")
        self.srd(12, 78, 448*3584, off_s=27)
        a("s_sub_u32 s14, s14, s27")
        self.x_load()
        self.r16_addr(15, 3584)
        if self.o.get("gatef") or self.o.get("hb", 0) & 8: a("s_barrier")
        self.r16_loads(8, 128, 3584, 15, self.o.get("pf", 0), self.o.get("pfn", 99))
        self.r16_loads(12, 192, 3584, 15, self.o.get("pf", 0), self.o.get("pfn", 99) - 16)
        self.stamp(10)
        self.masks()
        self.front_setup(C_H3, C_XR2)
        a("s_mov_b32 s23, -1\nv_mov_b32 v24, 0x3f803f80\ns_waitcnt vmcnt(0)\nv_mov_b32 v22, v25")
        self.stamp(1)
        a("s_branch L_Fg")
        a("L_Floop:")
        self.gather("f", 8, True)
        self.stamp_l(2, 5)
        a("L_Fg:")
        self.front_gemv(True)
        self.stamp_l(3, 6)
        a("s_cmp_eq_u32 s23, -1\ns_cbranch_scc0 L_Fn1")
        a("v_mov_b32 v8, 12288\nds_read_b32 v9, v8\ns_waitcnt lgkmcnt(0)\nv_readfirstlane_b32 s20, v9")
        self.add_side("v9")
        a("s_mov_b32 s23, 0\ns_branch L_Floop")
        a("L_Fn1:\ns_cmp_eq_u32 s21, 0\ns_cbranch_scc0 L_Fnx")
        self.xr_publish(f"s_lshl_b32 s26, s23, 14\ns_add_u32 s26, s26, {(C_XR1-C_XR2)*CH}")
        a("L_Fnx:")
        a(f"v_add_u32 v16, {4*CH}, v16\nv_add_u32 v13, {4*CH}, v13")
        a("s_add_u32 s23, s23, 1\ns_cmp_lt_i32 s23, 2\ns_cbranch_scc1 L_Floop\ns_branch L_exit")
        a("L_Fb:\ns_sub_u32 s30, s22, 4")
        a("s_mul_i32 s27, s21, 57344")
        self.srd(8, 80, 57344, off_s=27)
        a(f"""
        s_lshr_b32 s27, s21, 3
        s_lshl_b32 s27, s27, 14
        s_and_b32 s26, s21, 7
        s_lshl_b32 s26, s26, 10
        s_add_u32 s52, s26, s27
        s_add_u32 s52, s52, {C_H4*CH}
        s_cmp_eq_u32 s22, 4
        s_cbranch_scc0 L_Fb1
        """)
        self.epoch_load()
        a("v_lshlrev_b32 v10, 4, v0")
        self.reset1k(52)
        a(f"s_add_u32 s53, s52, {4*CH}")
        self.reset1k(53)
        a(f"s_cmp_eq_u32 s21, 0\ns_cbranch_scc0 L_Fb1\ns_mov_b32 s53, {C_XR1*CH}")
        self.reset1k(53)
        a(f"s_mov_b32 s53, {C_XR3*CH}")
        self.reset1k(53)
        a("L_Fb1:")
        self.r8_addr2(16, 8, 30)
        if self.o.get("gatef"):
            a("s_cmp_eq_u32 s22, 4\ns_cbranch_scc0 L_Fb3")
            self.flag_store(0)
            a("L_Fb3:\ns_barrier")
        elif self.o.get("hb", 0) & 8: a("s_barrier")
        self.r8_loads(8, 8, 16, 128, (self.o.get("pf", 0) + 1) // 2, self.o.get("pfn", 99) // 2)
        a("s_cmp_eq_u32 s22, 4\ns_cbranch_scc0 L_Fb2")
        if not self.o.get("gatef"): self.flag_store(16)
        a(f"s_mov_b32 s27, {ID_W}")
        self.flag_poll("f", 27, NW, extra_id=ID_Q)
        a("v_mov_b32 v8, 12288\nv_mov_b32 v9, s20\nds_write_b32 v8, v9\ns_waitcnt lgkmcnt(0)")
        a("L_Fb2:")
        self.masks()
        self.r8_pub_addr(17, 30, 52)
        a("v_lshlrev_b32 v58, 2, v0\nv_add_u32 v58, 1024, v58")
        a("s_lshl_b32 s26, s30, 7\ns_add_u32 s26, s26, 10240\nv_lshl_add_u32 v18, v0, 1, s26\nv_lshl_add_u32 v19, v2, 5, s26")
        a("s_mov_b32 s23, -1\ns_waitcnt vmcnt(0)")
        self.stamp(1)
        a("L_Fbl:")
        a(f"s_and_b32 s26, s23, 1\ns_mul_i32 s26, s26, 4352\nv_add_u32 v10, s26, v58\ns_add_u32 s26, s26, {1024+4096}\nv_mov_b32 v11, s26\ns_lshl_b32 s27, s23, 16")
        a("s_barrier")
        self.stamp_l(2, 5)
        self.back_reduce(True, 10, 60)
        self.ln_scalars(60, 8)
        a("s_waitcnt lgkmcnt(4)")
        self.sum8(60)
        a("s_waitcnt lgkmcnt(0)")
        self.sum8(68)
        a("s_cmp_eq_u32 s23, -1\ns_cbranch_scc0 L_Fbh\nv_mov_b32 v56, v60\nv_mov_b32 v57, v68\ns_mov_b32 s23, 0\ns_branch L_Fbl")
        a(f"""
        L_Fbh:
        v_fma_f32 v60, -v76, v56, v60
        v_fma_f32 v68, -v76, v57, v68
        v_mul_f32 v60, v60, v77
        v_mul_f32 v68, v68, v77
        v_cvt_pk_bf16_f32 v61, v60, v68
        v_lshlrev_b32 v60, 16, v61
        v_and_b32 v68, 0xffff0000, v61
        v_mul_f32 v61, {hex(f2u(-LOG2E))}, v60
        v_exp_f32 v61, v61
        v_add_f32 v61, 1.0, v61
        v_rcp_f32 v61, v61
        v_mul_f32 v61, v60, v61
        v_cvt_pk_bf16_f32 v61, v61, v61
        v_and_b32 v61, 0xffff0000, v61
        v_mul_f32 v61, v61, v68
        v_cvt_pk_bf16_f32 v61, v61, v61
        ds_write_b16 v18, v61
        s_waitcnt lgkmcnt(0)
        ds_read_b128 v[26:29], v19
        ds_read_b128 v[30:33], v19 offset:16
        """)
        self.stamp_l(3, 6)
        self.r8_gemv(8, 26, 128, 17, 27)
        self.stamp_l(4, 7)
        a("s_add_u32 s23, s23, 1\ns_cmp_lt_i32 s23, 2\ns_cbranch_scc1 L_Fbl\ns_branch L_exit")
    def r8_addr2(self, vdst, NS, wv):
        self.a(f"""
        v_lshrrev_b32 v20, 1, v2
        v_mul_u32_u24 v20, {2*NS}, v20
        v_and_b32 v21, 1, v2
        v_add_u32 v20, v20, v21
        v_mul_u32_u24 v20, 896, v20
        v_lshl_add_u32 v20, v1, 4, v20
        s_lshl_b32 s26, s{wv}, 8
        v_add_u32 v{vdst}, s26, v20
        s_cmp_eq_u32 s{wv}, 3
        s_cselect_b32 s28, 0x00ff00ff, -1
        s_mov_b32 s29, s28
        """)

    def role_w(self):
        a = self.a
        a(f"L_W:\ns_sub_u32 s21, s2, {ID_W}")
        a(f"""
        s_lshr_b32 s27, s21, 2
        s_lshl_b32 s27, s27, 14
        s_and_b32 s26, s21, 3
        s_lshl_b32 s26, s26, 11
        s_add_u32 s53, s26, s27
        s_lshr_b32 s27, s21, 3
        s_lshl_b32 s27, s27, 14
        s_and_b32 s26, s21, 7
        s_lshl_b32 s26, s26, 10
        s_add_u32 s52, s26, s27
        s_add_u32 s52, s52, {C_H3*CH}
        """)
        a("s_cmp_gt_u32 s22, 4\ns_cbranch_scc1 L_exit\ns_cmp_eq_u32 s22, 4\ns_cbranch_scc1 L_Wh")
        a("s_mul_i32 s27, s21, 114688")
        self.srd(8, 72, 114688, off_s=27)
        self.r8_addr(16, 16, 22)
        if self.o.get("gatew") or self.o.get("hb", 0) & 4: a("s_barrier")
        self.r8_loads(16, 8, 16, 128, self.o.get("pw", 0), self.o.get("pwn", 99))
        self.stamp(10)
        self.masks()
        self.r8_pub_addr(17, 22, 52)
        a(f"""
        v_lshrrev_b32 v8, 2, v0
        v_and_b32 v9, 3, v0
        v_lshlrev_b32 v10, 9, v8
        v_lshl_add_u32 v10, v9, 5, v10
        s_lshl_b32 s26, s21, 14
        s_lshl_b32 s27, s22, 7
        s_add_u32 s26, s26, s27
        s_add_u32 s26, s26, {C_H2O*CH}
        v_add_u32 v18, s26, v10
        s_add_u32 s26, s53, {C_H2M*CH}
        v_lshl_add_u32 v19, v8, 7, s26
        v_lshlrev_b32 v10, 4, v9
        v_lshl_add_u32 v10, v2, 2, v10
        s_lshl_b32 s26, s22, 6
        v_add_u32 v20, s26, v10
        v_lshlrev_b32 v21, 6, v2
        s_mov_b32 s23, 0
        s_waitcnt vmcnt(0)
        """)
        self.stamp(1)
        a("v_mov_b32 v8, 512\ns_barrier\nds_read_b32 v9, v8\ns_waitcnt lgkmcnt(0)\nv_add_u32 v18, v9, v18\nv_add_u32 v19, v9, v19")
        a("L_Wl:\ns_mov_b32 s25, 0")
        a(f"s_mul_i32 s30, s23, {32*CH}\ns_lshl_b32 s27, s23, 17\ns_lshl_b32 s31, s23, 16")
        a("""
        L_Wp:
        buffer_load_dwordx2 v[22:23], v19, s[4:7], s27 offen sc1
        buffer_load_dwordx4 v[60:63], v18, s[4:7], s30 offen sc1
        buffer_load_dwordx4 v[64:67], v18, s[4:7], s30 offen offset:16 sc1
        """)
        self.timeout()
        a("""
        s_waitcnt vmcnt(2)
        v_max_f32_dpp v24, v22, v22 row_ror:4 row_mask:0xf bank_mask:0xf
        v_max_f32_dpp v24, v24, v24 row_ror:8 row_mask:0xf bank_mask:0xf
        v_mov_b32 v25, v24
        v_permlane16_swap_b32 v24, v25
        v_max_f32 v24, v24, v25
        v_mov_b32 v25, v24
        v_permlane32_swap_b32 v24, v25
        v_max_f32 v24, v24, v25
        v_sub_f32 v24, v22, v24
        v_exp_f32 v24, v24
        s_waitcnt vmcnt(0)
        v_max3_u32 v54, v22, v60, v64
        v_cmp_eq_u32 vcc, -1, v54
        s_cbranch_vccnz L_Wp
        """)
        self.stamp_l(2, 5)
        a("""
        v_mul_f32 v26, v23, v24
        v_pk_mul_f32 v[60:61], v[60:61], v[24:25] op_sel_hi:[1,0]
        v_pk_mul_f32 v[64:65], v[64:65], v[24:25] op_sel_hi:[1,0]
        v_pk_mul_f32 v[62:63], v[62:63], v[24:25] op_sel_hi:[1,0]
        v_pk_mul_f32 v[66:67], v[66:67], v[24:25] op_sel_hi:[1,0]
        v_add_f32_dpp v26, v26, v26 row_ror:4 row_mask:0xf bank_mask:0xf
        v_permlane32_swap_b32 v60, v64
        v_permlane32_swap_b32 v61, v65
        v_add_f32_dpp v26, v26, v26 row_ror:8 row_mask:0xf bank_mask:0xf
        v_permlane32_swap_b32 v62, v66
        v_permlane32_swap_b32 v63, v67
        v_mov_b32 v27, v26
        v_pk_add_f32 v[60:61], v[60:61], v[64:65]
        v_pk_add_f32 v[62:63], v[62:63], v[66:67]
        v_permlane16_swap_b32 v26, v27
        v_add_f32 v26, v26, v27
        v_permlane16_swap_b32 v60, v62
        v_permlane16_swap_b32 v61, v63
        v_mov_b32 v27, v26
        v_pk_add_f32 v[60:61], v[60:61], v[62:63]
        v_permlane32_swap_b32 v26, v27
        v_add_f32_dpp v60, v60, v60 row_ror:4 row_mask:0xf bank_mask:0xf
        v_add_f32_dpp v61, v61, v61 row_ror:4 row_mask:0xf bank_mask:0xf
        v_add_f32 v26, v26, v27
        v_rcp_f32 v26, v26
        v_add_f32_dpp v60, v60, v60 row_ror:8 row_mask:0xf bank_mask:0xf
        v_add_f32_dpp v61, v61, v61 row_ror:8 row_mask:0xf bank_mask:0xf
        v_pk_mul_f32 v[60:61], v[60:61], v[26:27] op_sel_hi:[1,0]
        v_cvt_pk_bf16_f32 v60, v60, v61
        ds_write_b32 v20, v60
        s_waitcnt lgkmcnt(0)
        s_barrier
        ds_read_b128 v[60:63], v21
        ds_read_b128 v[64:67], v21 offset:16
        ds_read_b128 v[68:71], v21 offset:32
        ds_read_b128 v[72:75], v21 offset:48
        """)
        self.stamp_l(3, 6)
        self.r8_gemv(16, 60, 128, 17, 31)
        self.stamp_l(4, 7)
        a("s_cmp_eq_u32 s23, 1\ns_cbranch_scc1 L_exit\ns_mov_b32 s23, 1\ns_branch L_Wl")
        a("L_Wh:")
        self.epoch_load()
        a("v_lshlrev_b32 v10, 4, v0")
        self.reset1k(52)
        a(f"s_add_u32 s53, s52, {4*CH}")
        self.reset1k(53)
        if self.o.get("hb", 0) & 4 and not self.o.get("gatew"): a("s_barrier")
        self.flag_store(0)
        if self.o.get("gatew"): a("s_barrier")
        a(f"s_lshr_b32 s27, s21, 2\ns_lshl_b32 s27, s27, 4\ns_add_u32 s27, s27, {ID_A}")
        self.flag_poll("w", 27, 16)
        a("v_mov_b32 v8, 512\nv_mov_b32 v9, s20\nds_write_b32 v8, v9\ns_waitcnt lgkmcnt(0)\ns_branch L_exit")

    def role_a(self):
        a = self.a
        a(f"L_A:\ns_sub_u32 s21, s2, {ID_A}\ns_lshr_b32 s52, s21, 4\ns_and_b32 s53, s21, 15")
        a("s_cmp_gt_u32 s22, 4\ns_cbranch_scc1 L_exit\ns_cmp_eq_u32 s22, 4\ns_cbranch_scc1 L_Ah")
        a(f"s_lshl_b32 s27, s52, 22\ns_lshl_b32 s26, s53, 16\ns_add_u32 s27, s27, s26\ns_add_u32 s27, s27, {6144*512}")
        self.srd(8, 66, 65536, off_s=27)
        self.srd(12, 68, 65536, off_s=27)
        a("""
        s_lshl_b32 s26, s22, 14
        v_and_b32 v8, 7, v1
        v_lshlrev_b32 v8, 9, v8
        v_lshl_add_u32 v8, v2, 4, v8
        v_lshrrev_b32 v9, 3, v1
        v_lshl_add_u32 v8, v9, 6, v8
        v_add_u32 v16, s26, v8
        v_lshrrev_b32 v8, 1, v2
        v_and_b32 v9, 1, v2
        v_lshl_add_u32 v8, v8, 2, v9
        v_lshlrev_b32 v8, 9, v8
        v_lshl_add_u32 v8, v1, 4, v8
        v_add_u32 v17, s26, v8
        s_mov_b32 s32, 0
        s_mov_b32 s33, 4096
        s_mov_b32 s34, 8192
        s_mov_b32 s35, 12288
        """)
        KR, VR = 128, 192
        if self.o.get("hb", 0) & 1 or self.o.get("ga"): a("s_barrier")
        for T in range(2):
            for ks in range(8):
                r = KR + 32*T + 4*ks
                a(f"buffer_load_dwordx4 v[{r}:{r+3}], v16, s[8:11], s{32+2*T+(ks&1)} offen offset:{128*(ks>>1)} nt")
        self.stamp(10)
        for T in range(2):
            for aa in range(2):
                for cb in range(2):
                    for hf in range(2):
                        r = VR + ((2*T + aa)*2 + cb)*8 + 4*hf
                        if self.o.get("pace", 1): a("s_waitcnt vmcnt(15)")
                        a(f"buffer_load_dwordx4 v[{r}:{r+3}], v17, s[12:15], s{32+2*T+hf} offen offset:{1024*aa + 256*cb} nt")
        self.masks()
        a(f"""
        v_lshrrev_b32 v8, 3, v1
        v_lshlrev_b32 v8, 9, v8
        v_lshl_add_u32 v18, v2, 4, v8
        v_lshrrev_b32 v8, 1, v2
        v_lshlrev_b32 v8, 10, v8
        v_lshl_add_u32 v8, v1, 5, v8
        v_and_b32 v9, 1, v2
        v_lshl_add_u32 v8, v9, 4, v8
        s_lshl_b32 s26, s22, 11
        s_add_u32 s26, s26, 1024
        v_add_u32 v19, s26, v8
        v_lshrrev_b32 v8, 3, v1
        s_lshl_b32 s26, s22, 3
        s_add_u32 s26, s26, 9216
        v_lshl_add_u32 v20, v8, 5, s26
        v_and_b32 v8, 31, v0
        s_lshl_b32 s26, s22, 9
        s_add_u32 s26, s26, 1024
        v_lshl_add_u32 v21, v8, 4, s26
        s_lshr_b32 s26, s22, 1
        s_lshl_b32 s26, s26, 5
        s_add_u32 s26, s26, 9216
        v_mov_b32 v22, s26
        s_lshl_b32 s26, s52, 2
        s_add_u32 s26, s26, s22
        s_lshl_b32 s27, s26, 14
        s_lshl_b32 s30, s53, 9
        s_add_u32 s27, s27, s30
        s_add_u32 s27, s27, {C_H2O*CH}
        v_lshrrev_b32 v9, 5, v0
        v_lshlrev_b32 v9, 13, v9
        v_lshl_add_u32 v8, v8, 4, v9
        v_add_u32 v23, s27, v8
        s_lshl_b32 s27, s52, 14
        s_lshl_b32 s30, s22, 11
        s_add_u32 s27, s27, s30
        s_lshl_b32 s30, s53, 7
        s_add_u32 s27, s27, s30
        s_add_u32 s27, s27, {C_H2M*CH}
        v_add_u32 v24, s27, v9
        s_mov_b32 s36, {hex(f2u(LOG2E/16))}
        s_mov_b32 s23, 0
        s_waitcnt vmcnt(16)
        """)
        self.stamp(1)
        for pr in range(8):
            X = KR + 8*pr
            for d in range(4): a(f"v_mov_b32_dpp v{60+d}, v{X+d} row_ror:8 row_mask:0xf bank_mask:0xf")
            for d in range(4): a(f"v_mov_b32_dpp v{X+d}, v{X+4+d} row_ror:8 row_mask:0xf bank_mask:0xc")
            for d in range(4): a(f"v_mov_b32_dpp v{X+4+d}, v{60+d} quad_perm:[0,1,2,3] row_mask:0xf bank_mask:0x3")
        if self.o.get("vstamp"):
            a("s_waitcnt vmcnt(0)"); self.stamp(9)
        a("L_Al:\ns_barrier")
        self.stamp_l(2, 6)
        QR = 60
        for ks in range(8):
            a(f"ds_read_b128 v[{QR+4*ks}:{QR+4*ks+3}], v18 offset:{64*ks}")
        for ks in range(8):
            a(f"s_waitcnt lgkmcnt({7-ks})")
            for T in range(2):
                c = "0" if ks == 0 else f"v[{44+4*T}:{47+4*T}]"
                a(f"v_mfma_f32_16x16x32_bf16 v[{44+4*T}:{47+4*T}], v[{KR+32*T+4*ks}:{KR+32*T+4*ks+3}], v[{QR+4*ks}:{QR+4*ks+3}], {c}")
        for i in range(8): a(f"v_mov_b32 v{92+i}, 0")
        for k in range(4): a(f"v_cvt_pk_bf16_f32 v{52+k}, v{44+2*k}, v{45+2*k}")
        for k in range(4): a(f"v_lshlrev_b32 v{44+2*k}, 16, v{52+k}\nv_and_b32 v{45+2*k}, 0xffff0000, v{52+k}")
        a("""
        v_max3_f32 v52, v44, v45, v46
        v_max3_f32 v53, v47, v48, v49
        v_max3_f32 v52, v50, v51, v52
        v_max_f32 v52, v52, v53
        v_mov_b32 v53, v52
        v_permlane32_swap_b32 v52, v53
        v_max_f32 v52, v52, v53
        v_mov_b32 v53, v52
        v_permlane16_swap_b32 v52, v53
        v_max_f32 v52, v52, v53
        v_mul_f32 v56, s36, v52
        """)
        for k in range(8): a(f"v_fma_f32 v{44+k}, v{44+k}, s36, -v56")
        for k in range(8): a(f"v_exp_f32 v{44+k}, v{44+k}")
        for k in range(4): a(f"v_cvt_pk_bf16_f32 v{52+k}, v{44+2*k}, v{45+2*k}")
        self.abuild(34, 52)
        a("s_waitcnt vmcnt(0)")
        self.stamp_l(3, 7)
        fill = ["v_pk_add_f32 v[44:45], v[44:45], v[46:47]\nv_pk_add_f32 v[48:49], v[48:49], v[50:51]",
                "v_pk_add_f32 v[44:45], v[44:45], v[48:49]\nv_add_f32 v57, v44, v45\nv_mov_b32 v58, v57",
                "v_permlane32_swap_b32 v57, v58\nv_add_f32 v57, v57, v58\nv_mov_b32 v58, v57",
                "v_permlane16_swap_b32 v57, v58\nv_add_f32 v57, v57, v58"]
        for n in range(4):
            A = 34 + 4*(n & 1)
            if n < 3: self.abuild(34 + 4*((n+1) & 1), 52 + n + 1)
            for cb in range(2):
                r = VR + (n*2 + cb)*8
                a(f"v_smfmac_f32_16x16x64_bf16 v[{92+4*cb}:{95+4*cb}], v[{A}:{A+3}], v[{r}:{r+7}], v7")
            a(fill[n])
        a("""
        s_mov_b64 exec, 0x101
        ds_write_b64 v20, v[56:57]
        s_mov_b64 exec, -1
        ds_write_b128 v19, v[92:95]
        ds_write_b128 v19, v[96:99] offset:512
        s_waitcnt lgkmcnt(0)
        s_barrier
        ds_read_b128 v[44:47], v22
        ds_read_b128 v[48:51], v22 offset:16
        ds_read_b128 v[60:63], v21
        ds_read_b128 v[64:67], v21 offset:2048
        ds_read_b128 v[68:71], v21 offset:4096
        ds_read_b128 v[72:75], v21 offset:6144
        s_waitcnt lgkmcnt(4)
        v_max3_f32 v56, v44, v46, v48
        v_max_f32 v56, v56, v50
        v_sub_f32 v52, v44, v56
        v_sub_f32 v53, v46, v56
        v_sub_f32 v54, v48, v56
        v_sub_f32 v55, v50, v56
        v_exp_f32 v52, v52
        v_exp_f32 v53, v53
        v_exp_f32 v54, v54
        v_exp_f32 v55, v55
        s_waitcnt lgkmcnt(3)
        v_pk_mul_f32 v[60:61], v[60:61], v[52:53] op_sel_hi:[1,0]
        v_pk_mul_f32 v[62:63], v[62:63], v[52:53] op_sel_hi:[1,0]
        s_waitcnt lgkmcnt(2)
        v_pk_fma_f32 v[60:61], v[64:65], v[52:53], v[60:61] op_sel:[0,1,0] op_sel_hi:[1,1,1]
        v_pk_fma_f32 v[62:63], v[66:67], v[52:53], v[62:63] op_sel:[0,1,0] op_sel_hi:[1,1,1]
        s_waitcnt lgkmcnt(1)
        v_pk_fma_f32 v[60:61], v[68:69], v[54:55], v[60:61] op_sel_hi:[1,0,1]
        v_pk_fma_f32 v[62:63], v[70:71], v[54:55], v[62:63] op_sel_hi:[1,0,1]
        s_waitcnt lgkmcnt(0)
        v_pk_fma_f32 v[60:61], v[72:73], v[54:55], v[60:61] op_sel:[0,1,0] op_sel_hi:[1,1,1]
        v_pk_fma_f32 v[62:63], v[74:75], v[54:55], v[62:63] op_sel:[0,1,0] op_sel_hi:[1,1,1]
        """)
        a(f"s_mul_i32 s26, s23, {32*CH}\ns_lshl_b32 s27, s23, 17")
        a("""
        v_mul_f32 v57, v52, v45
        v_min_u32 v60, -2, v60
        buffer_store_dwordx4 v[60:63], v23, s[4:7], s26 offen sc1
        v_fmac_f32 v57, v53, v47
        v_fmac_f32 v57, v54, v49
        v_fmac_f32 v57, v55, v51
        v_min_u32 v56, -2, v56
        s_mov_b32 exec_lo, 1
        s_mov_b32 exec_hi, 1
        buffer_store_dwordx2 v[56:57], v24, s[4:7], s27 offen sc1
        s_mov_b64 exec, -1
        """)
        self.stamp_l(4, 8)
        a("s_add_u32 s23, s23, 1\ns_cmp_lt_i32 s23, 2\ns_cbranch_scc1 L_Al\ns_branch L_exit")
        a("L_Ah:")
        self.epoch_load()
        a(f"""
        v_and_b32 v8, 31, v0
        v_lshrrev_b32 v11, 5, v0
        v_lshlrev_b32 v11, 13, v11
        v_lshl_add_u32 v10, v8, 4, v11
        s_lshl_b32 s27, s52, 16
        s_lshl_b32 s30, s53, 9
        s_add_u32 s27, s27, s30
        s_add_u32 s27, s27, {C_H2O*CH}
        """)
        for L in range(2):
            for w in range(4):
                a(f"s_add_u32 s26, s27, {(L*32 + w)*CH}\nbuffer_store_dwordx4 v[12:15], v10, s[4:7], s26 offen sc1")
        a(f"""
        v_and_b32 v8, 3, v0
        v_lshlrev_b32 v8, 11, v8
        v_bfe_u32 v11, v0, 2, 1
        v_lshl_add_u32 v8, v11, 13, v8
        v_bfe_u32 v11, v0, 3, 1
        v_lshl_add_u32 v8, v11, 17, v8
        s_lshl_b32 s27, s52, 14
        s_lshl_b32 s30, s53, 7
        s_add_u32 s27, s27, s30
        s_add_u32 s27, s27, {C_H2M*CH}
        s_mov_b64 exec, 0xffff
        buffer_store_dwordx4 v[12:15], v8, s[4:7], s27 offen sc1
        s_mov_b64 exec, -1
        """)
        if self.o.get("hb", 0) & 1: a("s_barrier")
        self.flag_store(0)
        if self.o.get("ga"): a("s_barrier")
        self.stamp(1)
        D = self.o.get("qd", 2)
        a(f"""
        v_lshlrev_b32 v16, 3, v0
        s_lshr_b32 s26, s52, 2
        s_lshl_b32 s26, s26, 14
        s_and_b32 s27, s52, 3
        s_lshl_b32 s27, s27, 11
        s_add_u32 s26, s26, s27
        s_add_u32 s30, s26, {C_H1*CH}
        v_lshlrev_b32 v17, 4, v0
        s_mov_b32 s23, 0
        L_Ahl:
        s_lshl_b32 s26, s23, 15
        s_add_u32 s26, s26, s30
        s_add_u32 s26, s26, s20
        s_mov_b32 s25, 0
        """)
        def issue(k):
            r = 20 + 8*k
            a(f"buffer_load_dwordx4 v[{r}:{r+3}], v17, s[4:7], s26 offen sc1\nbuffer_load_dwordx4 v[{r+4}:{r+7}], v17, s[4:7], s26 offen offset:1024 sc1")
        for k in range(D - 1): issue(k)
        a("L_Ahp:")
        for k in range(D):
            r = 20 + 8*k
            issue((k + D - 1) % D)
            if k == 0: self.timeout()
            a(f"""
            s_waitcnt vmcnt({2*(D-1)})
            v_xor_b32 v18, s24, v{r+1}
            v_xor_b32 v19, s24, v{r+3}
            v_xor_b32 v{r+1}, s24, v{r+5}
            v_xor_b32 v{r+3}, s24, v{r+7}
            v_or3_b32 v18, v18, v19, v{r+1}
            v_or_b32 v18, v18, v{r+3}
            v_cmp_ne_u32 vcc, 0, v18
            """)
            if k < D - 1: a(f"s_cbranch_vccz L_Ahd{k}")
            else: a("s_cbranch_vccnz L_Ahp")
        for k in reversed(range(D)):
            r = 20 + 8*k
            a(f"L_Ahd{k}:\nds_write2_b32 v16, v{r}, v{r+2} offset0:0 offset1:1\nds_write2_b32 v16, v{r+4}, v{r+6} offset0:128 offset1:129")
            if k > 0: a("s_branch L_Ahe")
        a("""
        L_Ahe:
        s_waitcnt lgkmcnt(0)
        s_barrier
        s_waitcnt vmcnt(0)
        s_barrier
        s_cmp_eq_u32 s23, 1
        s_cbranch_scc1 L_exit
        s_mov_b32 s23, 1
        s_mov_b32 s27, 0
        """)
        self.flag_poll("a", 27, 0)
        a("s_branch L_Ahl")

    def role_c(self):
        a = self.a
        a("L_C:")
        a("s_cmp_eq_u32 s22, 0\ns_cbranch_scc0 L_exit\ns_setprio 3")
        self.epoch_load()
        ld = self.o.get("cld", 1)
        def op(soff, off):
            if ld: return f"buffer_load_dword v16, v8, s[4:7], s{soff} offen offset:{off} sc1"
            return f"buffer_store_dword v8, v8, s[4:7], s{soff} offen offset:{off} sc1"
        a(f"""
        s_mov_b32 s26, {C_PR*CH}
        s_mov_b32 s27, {C_PR*CH+8192}
        s_mov_b64 exec, 1
        buffer_store_dword v8, v8, s[4:7], s26 offen sc1
        buffer_store_dword v8, v8, s[4:7], s27 offen sc1
        s_mov_b32 s32, -1
        s_mov_b32 s33, -1
        s_waitcnt vmcnt(0)
        """)
        n = self.o.get("cmax", 8); thr = self.o.get("cthr", 100)
        a(f"""
        s_mov_b32 s30, 0
        L_Cl:
        s_add_u32 s26, s26, 256
        s_add_u32 s27, s27, 256
        s_memtime s[36:37]
        s_waitcnt lgkmcnt(0)
        {op(26, 128)}
        s_waitcnt vmcnt(0)
        s_memtime s[38:39]
        s_waitcnt lgkmcnt(0)
        {op(27, 128)}
        s_waitcnt vmcnt(0)
        s_memtime s[40:41]
        s_waitcnt lgkmcnt(0)
        s_sub_u32 s34, s38, s36
        s_sub_u32 s35, s40, s38
        s_min_u32 s32, s32, s34
        s_min_u32 s33, s33, s35
        s_add_u32 s30, s30, 1
        s_cmp_ge_u32 s30, {n}
        s_cbranch_scc1 L_Cd
        s_min_u32 s34, s32, s33
        s_max_u32 s35, s32, s33
        s_sub_u32 s35, s35, s34
        s_cmp_le_u32 s34, {self.o.get("cabs", 570)}
        s_cselect_b32 s35, s35, 0
        s_cmp_ge_u32 s30, 2
        s_cselect_b32 s35, s35, 0
        s_cmp_ge_u32 s35, {thr}
        s_cbranch_scc0 L_Cl
        """)
        a(f"""
        L_Cd:
        s_mov_b64 exec, -1
        s_cmp_lt_u32 s33, s32
        s_cselect_b32 s30, 1, 0
        s_lshr_b32 s31, s20, 13
        s_xor_b32 s30, s30, s31
        """)
        if self.o.get("cflip"): a("s_xor_b32 s30, s30, 1")
        if self.diag: a("s_mov_b32 s57, s32\ns_mov_b32 s58, s33\ns_mov_b32 s59, s30")
        self.flag_store(0, xor_s=30)
        self.stamp(4)
        a("s_branch L_exit")

    def build(self):
        a = self.a
        a(f"s_cmp_ge_u32 s2, {NWG}\ns_cbranch_scc1 L_end")
        if self.o.get("dbg"): a("s_memrealtime s[56:57]")
        if self.diag: a("s_memrealtime s[52:53]")
        a("s_load_dwordx16 s[64:79], s[0:1], 0\ns_load_dwordx8 s[80:87], s[0:1], 64")
        if self.diag:
            for s in self.STS: a(f"s_mov_b32 s{s}, 0")
            a("s_mov_b32 s23, -1")
        a("""
        v_lshrrev_b32 v1, 6, v0
        v_and_b32 v0, 63, v0
        s_getreg_b32 s20, hwreg(HW_REG_XCC_ID, 0, 4)
        v_readfirstlane_b32 s22, v1
        s_bfe_u32 s20, s20, 0x10002
        s_lshl_b32 s20, s20, 13
        v_and_b32 v1, 15, v0
        v_lshrrev_b32 v2, 4, v0
        s_cmp_lt_u32 s22, 4
        s_cbranch_scc1 L_np
        s_setprio 3
        L_np:
        s_waitcnt lgkmcnt(0)
        """)
        if self.diag: a(f"s_mov_b32 s{self.STS[11]}, s52")
        self.stamp(0)
        self.srd(4, 86, (4 << 20) if self.diag else (2 << 20))
        a("s_cmp_eq_u32 s2, 0\ns_cbranch_scc1 L_C")
        a(f"s_cmp_lt_u32 s2, {ID_A}\ns_cbranch_scc1 L_Q\ns_cmp_lt_u32 s2, {ID_W}\ns_cbranch_scc1 L_A\ns_cmp_lt_u32 s2, {ID_F}\ns_cbranch_scc1 L_W\ns_branch L_F")
        self.role_c(); self.role_q(); self.role_a(); self.role_w(); self.role_f()
        a("L_exit:")
        if self.o.get("dbg"):
            a("s_cmp_eq_u32 s22, 0\ns_cbranch_scc0 L_end\ns_mov_b32 s26, -1")
            for n, w in enumerate((1, 65, 192, 193, 225, 252)):
                a(f"s_cmp_eq_u32 s2, {w}\ns_cselect_b32 s26, {8*n}, s26")
            a("s_cmp_eq_u32 s26, -1\ns_cbranch_scc1 L_end\ns_memrealtime s[54:55]")
            if self.o.get("amp"):
                a(f"s_waitcnt lgkmcnt(0)\ns_cmp_eq_u32 s2, 1\ns_cbranch_scc0 L_amp2\ns_sub_u32 s27, s54, s56\ns_mul_i32 s27, s27, {self.o['amp']}\ns_min_u32 s27, s27, 100000")
                a("L_amp:\ns_memrealtime s[58:59]\ns_waitcnt lgkmcnt(0)\ns_sub_u32 s30, s58, s56\ns_cmp_lt_u32 s30, s27\ns_cbranch_scc1 L_amp\nL_amp2:")
            self.srd(8, 84, 256)
            a("s_mov_b64 exec, 1\ns_waitcnt lgkmcnt(0)\nv_mov_b32 v8, 0\nv_mov_b32 v12, s56\nv_mov_b32 v13, s54")
            a("buffer_store_dwordx2 v[12:13], v8, s[8:11], s26 offen")
        if self.diag:
            a("s_mov_b64 exec, -1\ns_waitcnt vmcnt(0) lgkmcnt(0)")
            self.stamp(19)
            a("s_lshl_b32 s26, s2, 3\ns_add_u32 s26, s26, s22\ns_lshl_b32 s26, s26, 7\ns_add_u32 s26, s26, 0x200000\nv_mov_b32 v8, 0\ns_mov_b64 exec, 1")
            for k in range(0, 20, 4):
                for i in range(4): a(f"v_mov_b32 v{12+i}, s{self.STS[k+i]}")
                a(f"buffer_store_dwordx4 v[12:15], v8, s[4:7], s26 offen offset:{4*k}")
            a("s_waitcnt vmcnt(0)")
        a("L_end:")
        hdr = open("interleave_layers__sliding_block_cached__glu_gated_swiglu__decode.s.ref").read().split("\n")
        top = [l for l in hdr if l.startswith(";") and "@launch" not in l]
        out = "\n".join(top) + f"\n; @launch grid=({NWG},1,1) block=(512,1,1) lds=16384\n"
        out += f'.amdgcn_target "amdgcn-amd-amdhsa--gfx950"\n.text\n.globl {NAME}\n.p2align 8\n.type {NAME},@function\n{NAME}:\n'
        out += a.text()
        out += f"""s_endpgm
.section .rodata,"a"
.p2align 6
.amdhsa_kernel {NAME}
  .amdhsa_next_free_vgpr 256
  .amdhsa_next_free_sgpr 102
  .amdhsa_accum_offset 256
  .amdhsa_group_segment_fixed_size 0
  .amdhsa_kernarg_size 96
  .amdhsa_user_sgpr_count 2
  .amdhsa_user_sgpr_kernarg_segment_ptr 1
  .amdhsa_system_sgpr_workgroup_id_x 1
.end_amdhsa_kernel
"""
        return out

if __name__ == "__main__":
    opts = {}
    for x in sys.argv[3:]:
        k, v = x.split("=")
        opts[k] = int(v) if v.lstrip("-").isdigit() else v
    if sys.argv[1] != "-": open(sys.argv[1], "w").write(G(False, opts).build())
    if len(sys.argv) > 2 and sys.argv[2] != "-": open(sys.argv[2], "w").write(G(True, opts).build())
```

```python
import sys
from asmlib import Asm
NAME = "interleave_layers__sliding_block_cached__glu_gated_swiglu__decode_kernel"
CH = 16384
C_FLAG, C_H1, C_H2O, C_H2M, C_H3, C_XR2, C_H4, C_XR1, C_XR3, C_PR = 1, 3, 8, 72, 88, 96, 97, 105, 106, 107
NQ, NA, NW, NF = 64, 128, 32, 28
ID_Q, ID_A, ID_W, ID_F = 1, 65, 193, 225
NWG = 253
TMO = 20000
LOG2E = 1.4426950408889634
import struct
def f2u(x): return struct.unpack("<I", struct.pack("<f", x))[0]

class G:
    def __init__(self, diag=False, opts=None):
        self.a = Asm(); self.diag = diag; self.o = opts or {}
        self.nst = 0
    STS = list(range(56, 64)) + list(range(88, 100))
    def stamp(self, k):
        if not self.diag: return
        if self.o.get("lite") and k not in (0, 1, 4, 8, 9, 19): return
        self.a(f"s_memrealtime s[54:55]\ns_waitcnt lgkmcnt(0)\ns_mov_b32 s{self.STS[k]}, s54")
    def stamp_l(self, k0, k1):
        if not self.diag: return
        if self.o.get("lite"): return
        self.a(f"s_memrealtime s[54:55]\ns_waitcnt lgkmcnt(0)\ns_cmp_eq_u32 s23, 1\ns_cselect_b32 s{self.STS[k1]}, s54, s{self.STS[k1]}\ns_cmp_eq_u32 s23, 0\ns_cselect_b32 s{self.STS[k0]}, s54, s{self.STS[k0]}")
    def srd(self, d, p, nbytes, off_s=None):
        a = self.a
        if off_s is None:
            a(f"s_mov_b32 s{d}, s{p}\ns_mov_b32 s{d+1}, s{p+1}")
        else:
            a(f"s_add_u32 s{d}, s{p}, s{off_s}\ns_addc_u32 s{d+1}, s{p+1}, 0")
        a(f"s_mov_b32 s{d+2}, {nbytes}\ns_mov_b32 s{d+3}, 0x20000")
    def timeout(self):
        self.a(f"s_add_u32 s25, s25, 1\ns_cmp_gt_u32 s25, {TMO}\ns_cbranch_scc1 L_exit")
    def masks(self):
        a = self.a
        a("""
        v_and_b32 v8, 4, v1
        v_cmp_eq_u32 vcc, 0, v8
        v_mov_b32 v9, 0xffff
        v_cndmask_b32 v3, 0, v9, vcc
        v_xor_b32 v4, v3, v9
        v_lshlrev_b32 v5, 16, v3
        v_lshlrev_b32 v6, 16, v4
        v_and_b32 v8, 3, v1
        v_mul_u32_u24 v7, 17425, v8
        v_xor_b32 v8, 1, v8
        v_mul_u32_u24 v8, 4420, v8
        v_add_u32 v7, v7, v8
        """)
    def abuild(self, dst, src):
        for d in range(4):
            self.a(f"v_and_b32 v{dst+d}, v{src}, v{3+d}")
    def epoch_load(self):
        self.a("v_mov_b32 v8, 0\nbuffer_load_dword v9, v8, s[4:7], 0 offen sc1\nv_mov_b32 v12, -1\nv_mov_b32 v13, -1\nv_mov_b32 v14, -1\nv_mov_b32 v15, -1")
    def reset1k(self, sbase):
        a = self.a
        a(f"buffer_store_dwordx4 v[12:15], v10, s[4:7], s{sbase} offen sc1")
        a(f"s_add_u32 s31, s{sbase}, 8192")
        a(f"buffer_store_dwordx4 v[12:15], v10, s[4:7], s31 offen sc1")
    def flag_store(self, nleft, xor_s=None):
        a = self.a
        a(f"s_waitcnt vmcnt({nleft})")
        a("v_readfirstlane_b32 s24, v9")
        a("s_mul_i32 s24, s24, 0x9E3779B1\ns_add_u32 s24, s24, 0x7F4A7C15")
        if xor_s is not None: a(f"s_xor_b32 s24, s24, s{xor_s}")
        a(f"""
        s_lshr_b32 s26, s2, 7
        s_lshl_b32 s26, s26, 14
        s_and_b32 s27, s2, 127
        s_lshl_b32 s27, s27, 6
        s_add_u32 s26, s26, s27
        s_add_u32 s26, s26, {C_FLAG*CH}
        v_mov_b32 v8, 0
        v_mov_b32 v11, s24
        s_mov_b64 exec, 1
        buffer_store_dword v11, v8, s[4:7], s26 offen sc1
        s_mov_b64 exec, -1
        """)
    def flag_poll(self, tagn, first_s, n, extra_id=None):
        a = self.a
        a(f"v_add_u32 v8, s{first_s}, v0")
        nl = n
        if extra_id is not None:
            a(f"v_cmp_eq_u32 vcc, {n}, v0\nv_mov_b32 v11, {extra_id}\nv_cndmask_b32 v8, v8, v11, vcc")
            nl = n + 1
        a(f"v_cmp_ne_u32 vcc, {nl}, v0\nv_cndmask_b32 v8, 0, v8, vcc\nv_cndmask_b32_e64 v9, 1, 0, vcc")
        cl = nl; nl += 1
        a(f"""
        v_lshrrev_b32 v11, 7, v8
        v_lshlrev_b32 v11, 14, v11
        v_and_b32 v8, 127, v8
        v_lshl_add_u32 v8, v8, 6, v11
        s_mov_b32 s26, {C_FLAG*CH}
        s_mov_b32 s25, 0
        s_mov_b32 exec_lo, {hex(((1 << nl) - 1) & 0xffffffff)}
        s_mov_b32 exec_hi, {hex(((1 << nl) - 1) >> 32)}
        L_fp_{tagn}:
        buffer_load_dword v11, v8, s[4:7], s26 offen sc1
        """)
        self.timeout()
        a(f"""
        s_waitcnt vmcnt(0)
        v_xor_b32 v11, s24, v11
        v_cmp_gt_u32 vcc, v11, v9
        s_cbranch_vccnz L_fp_{tagn}
        v_readlane_b32 s26, v11, {cl}
        s_mov_b64 exec, -1
        s_lshl_b32 s26, s26, 13
        s_xor_b32 s20, s20, s26
        """)
    def tag_from_lds(self, addr):
        self.a(f"v_mov_b32 v8, {addr}\nds_read_b32 v9, v8\ns_waitcnt lgkmcnt(0)\nv_readfirstlane_b32 s24, v9")
    def front_setup(self, c_src, c_xr):
        a = self.a
        a(f"""
        s_mov_b32 s50, 0x00ff00ff
        s_mov_b32 s51, 0xff00ff00
        s_mov_b32 s48, 0
        s_mov_b32 s49, -1
        s_cmp_eq_u32 s22, 3
        s_cselect_b32 s28, 0x00ff00ff, -1
        s_mov_b32 s29, s28
        s_lshl_b32 s26, s22, 8
        v_lshlrev_b32 v8, 10, v2
        v_lshl_add_u32 v8, v1, 4, v8
        v_add_u32 v16, s26, v8
        v_add_u32 v18, s26, v14
        s_add_u32 s27, s26, {c_xr*CH}
        v_add_u32 v17, s27, v14
        v_lshrrev_b32 v11, 3, v0
        v_lshl_add_u32 v19, v11, 5, s26
        v_lshlrev_b32 v8, 14, v11
        v_and_b32 v9, 7, v0
        v_lshl_add_u32 v8, v9, 10, v8
        s_add_u32 s27, s26, {c_src*CH}
        v_add_u32 v13, s27, v8
        v_lshrrev_b32 v11, 3, v1
        v_lshlrev_b32 v11, 8, v11
        v_and_b32 v12, 7, v1
        v_lshl_add_u32 v11, v12, 5, v11
        v_and_b32 v12, 1, v2
        v_lshl_add_u32 v11, v12, 4, v11
        s_lshl_b32 s26, s22, 9
        s_add_u32 s26, s26, 1024
        v_add_u32 v20, s26, v11
        s_lshl_b32 s26, s22, 3
        s_add_u32 s26, s26, {1024+4096}
        v_lshrrev_b32 v8, 5, v0
        v_lshl_add_u32 v21, v8, 2, s26
        v_and_b32 v92, 0x3f803f80, v3
        v_and_b32 v93, 0x3f803f80, v4
        v_and_b32 v94, 0x3f803f80, v5
        v_and_b32 v95, 0x3f803f80, v6
        v_mov_b32 v22, 0
        """)
        for i in range(32): a(f"v_mov_b32 v{60+i}, 0")
        for i in range(8):
            a(f"s_mov_b32 s{32+i}, {c_src*CH + (i>>1)*CH + (i&1)*4096}")
    def add_side(self, src):
        self.a(f"v_add_u32 v16, {src}, v16\nv_add_u32 v17, {src}, v17\nv_add_u32 v13, {src}, v13")
    def r16_loads(self, srd, reg, rowstride, vaddr, pace=0, npace=99):
        for s in range(8):
            for hf in range(2):
                self.a(f"s_mov_b32 s26, {(64*hf + 2*s)*rowstride}")
                r = reg + 8*s + 4*hf
                if pace and 2*s + hf <= npace: self.a(f"s_waitcnt vmcnt({pace-1})")
                self.a(f"buffer_load_dwordx4 v[{r}:{r+3}], v{vaddr}, s[{srd}:{srd+3}], s26 offen nt")
    def r16_addr(self, vdst, rowstride):
        self.a(f"""
        v_lshrrev_b32 v8, 1, v2
        v_lshrrev_b32 v9, 3, v1
        v_lshl_add_u32 v8, v8, 1, v9
        v_and_b32 v9, 1, v2
        v_lshl_add_u32 v8, v8, 4, v9
        s_lshl_b32 s26, s22, 7
        v_add_u32 v8, s26, v8
        v_mul_u32_u24 v8, {rowstride}, v8
        v_and_b32 v9, 7, v1
        v_lshl_add_u32 v{vdst}, v9, 4, v8
        """)
    def x_load(self):
        self.a("""
        v_and_b32 v8, 1, v2
        v_lshlrev_b32 v8, 3, v8
        v_lshl_add_u32 v8, v1, 4, v8
        v_lshrrev_b32 v9, 1, v2
        v_lshl_add_u32 v14, v9, 2, v8
        s_lshl_b32 s26, s22, 8
        buffer_load_dword v25, v14, s[16:19], s26 offen
        """)
    def gather(self, tagn, nld, xr_cond):
        a = self.a
        mode = self.o.get("pre", "any")
        a("s_mov_b32 s25, 0")
        if mode != "none":
            a(f"s_mov_b32 exec_lo, {hex(0xffffffff if nld == 8 else 0x0fffffff)}\ns_mov_b32 exec_hi, 0")
            a(f"L_gl_{tagn}:\nbuffer_load_dword v54, v13, s[4:7], 0 offen sc1")
            self.timeout()
            a("s_waitcnt vmcnt(0)")
            if isinstance(mode, int):
                a(f"v_cmp_ne_u32 vcc, -1, v54\ns_bcnt1_i32_b32 s26, vcc_lo\ns_cmp_lt_u32 s26, {mode * 4 * nld // 32}\ns_cbranch_scc1 L_gl_{tagn}")
            elif mode == "all": a(f"v_cmp_eq_u32 vcc, -1, v54\ns_cbranch_vccnz L_gl_{tagn}")
            else: a(f"v_cmp_ne_u32 vcc, -1, v54\ns_cbranch_vccz L_gl_{tagn}")
        def loads(pol, t):
            a("s_mov_b64 exec, s[28:29]")
            if xr_cond:
                a(f"s_cmp_eq_u32 s23, 0\ns_cbranch_scc1 L_gx{t}_{tagn}")
            a("buffer_load_dword v22, v17, s[4:7], 0 offen sc1")
            if xr_cond: a(f"L_gx{t}_{tagn}:")
            for i in range(nld):
                a(f"buffer_load_dwordx4 v[{60+4*i}:{63+4*i}], v16, s[4:7], s{32+i} offen {pol}")
        if self.o.get("l2"):
            loads({1: "", 2: "sc0"}[self.o["l2"]], "a")
            a(f"s_branch L_gc_{tagn}")
        a(f"L_gp_{tagn}:")
        loads("sc1", "")
        a(f"L_gc_{tagn}:")
        a("s_mov_b64 exec, -1")
        self.timeout()
        a("v_mov_b32 v42, 0\nv_mov_b32 v43, 0\nv_mov_b32 v44, 0\nv_mov_b32 v45, 0")
        for i in range(0, 8, 2):
            a(f"s_waitcnt vmcnt({max(0, nld-2-i)})")
            r = 60 + 4*i
            a(f"v_smfmac_f32_16x16x64_bf16 v[42:45], v[92:95], v[{r}:{r+7}], v7")
            a(f"v_max3_u32 v54, v{22 if i == 0 else 54}, v{r}, v{r+4}")
            if i == 0: a("v_lshlrev_b32 v52, 16, v22\nv_and_b32 v53, 0xffff0000, v22")
        a(f"v_cmp_eq_u32 vcc, -1, v54\ns_cbranch_vccnz L_gp_{tagn}")
        a("""
        v_cndmask_b32 v50, v42, v44, s[48:49]
        v_cndmask_b32 v51, v43, v45, s[48:49]
        v_cvt_pk_bf16_f32 v55, v50, v51
        v_lshlrev_b32 v50, 16, v55
        v_and_b32 v51, 0xffff0000, v55
        v_pk_add_f32 v[50:51], v[50:51], v[52:53]
        v_cvt_pk_bf16_f32 v24, v50, v51
        """)
    def front_gemv(self, two, cs=False):
        a = self.a
        a("""
        ds_write_b32 v18, v24
        v_lshlrev_b32 v50, 16, v24
        v_and_b32 v51, 0xffff0000, v24
        v_mov_b32 v42, 0
        v_mov_b32 v43, 0
        s_waitcnt lgkmcnt(0)
        ds_read_b128 v[26:29], v19
        ds_read_b128 v[30:33], v19 offset:16
        v_add_f32 v55, v50, v51
        v_mul_f32 v56, v50, v50
        v_fmac_f32 v56, v51, v51
        v_mov_b32 v44, 0
        v_mov_b32 v45, 0
        """)
        if two: a("v_mov_b32 v46, 0\nv_mov_b32 v47, 0\nv_mov_b32 v48, 0\nv_mov_b32 v49, 0")
        a("v_permlane32_swap_b32 v55, v56\nv_add_f32 v55, v55, v56")
        a("s_and_b32 s26, s23, 1\ns_mul_i32 s26, s26, 4352\nv_add_u32 v8, s26, v20\nv_add_u32 v9, s26, v21")
        a("s_waitcnt lgkmcnt(1)")
        self.abuild(34, 26)
        fill = ["v_mov_b32 v56, v55", None, "v_permlane16_swap_b32 v55, v56\nv_add_f32 v55, v55, v56",
                "v_add_f32_dpp v55, v55, v55 row_ror:8 row_mask:0xf bank_mask:0xf", "v_add_f32_dpp v55, v55, v55 row_ror:4 row_mask:0xf bank_mask:0xf",
                "v_add_f32_dpp v55, v55, v55 row_ror:2 row_mask:0xf bank_mask:0xf", "v_add_f32_dpp v55, v55, v55 row_ror:1 row_mask:0xf bank_mask:0xf",
                "s_mov_b32 exec_lo, 1\ns_mov_b32 exec_hi, 1\nds_write_b32 v9, v55\ns_mov_b64 exec, s[50:51]"]
        for s in range(8):
            A = 34 + 4*(s & 1)
            if s == 3: a("s_waitcnt lgkmcnt(0)")
            if s < 7: self.abuild(34 + 4*((s+1) & 1), 26 + s + 1)
            a(f"v_smfmac_f32_16x16x64_bf16 v[42:45], v[{A}:{A+3}], v[{128+8*s}:{135+8*s}], v7")
            if two: a(f"v_smfmac_f32_16x16x64_bf16 v[46:49], v[{A}:{A+3}], v[{192+8*s}:{199+8*s}], v7")
            if fill[s]: a(fill[s])
        a("ds_write_b128 v8, v[42:45]")
        if two: a("ds_write_b128 v8, v[46:49] offset:2048")
        if cs:
            a("s_cmp_eq_u32 s23, 0\ns_cbranch_scc0 L_ncs\ns_mov_b64 exec, -1\nv_mov_b32 v46, 0\nv_mov_b32 v47, 0\nv_mov_b32 v48, 0\nv_mov_b32 v49, 0")
            for s in range(8): a(f"v_smfmac_f32_16x16x64_bf16 v[46:49], v[92:95], v[{128+8*s}:{135+8*s}], v7")
            a("s_mov_b64 exec, s[50:51]\nds_write_b128 v8, v[46:49] offset:2048\nL_ncs:")
        a("s_mov_b64 exec, -1\ns_waitcnt lgkmcnt(0)\ns_barrier")
    def xr_publish(self, sofs_expr):
        self.a(f"""
        v_subrev_u32 v8, s20, v17
        v_min_u32 v9, -2, v24
        {sofs_expr}
        v_add_u32 v8, s26, v8
        s_mov_b32 s26, 8192
        s_mov_b64 exec, s[28:29]
        buffer_store_dword v9, v8, s[4:7], 0 offen sc1
        buffer_store_dword v9, v8, s[4:7], s26 offen sc1
        s_mov_b64 exec, -1
        """)
    def back_reduce(self, two, base, ro):
        a = self.a
        a(f"ds_read_b128 v[{ro+16}:{ro+19}], v{base+1}\nds_read_b128 v[{ro+20}:{ro+23}], v{base+1} offset:16")
        for m in range(2 if two else 1):
            for k in range(4):
                a(f"ds_read2st64_b32 v[{ro+8*m+2*k}:{ro+8*m+2*k+1}], v{base} offset0:{8*m+2*k} offset1:{8*m+2*k+1}")
    def ln_scalars(self, ro, nrest):
        a = self.a
        t = ro + 16
        a(f"""
        s_waitcnt lgkmcnt({nrest})
        v_pk_add_f32 v[{t}:{t+1}], v[{t}:{t+1}], v[{t+2}:{t+3}]
        v_pk_add_f32 v[{t+4}:{t+5}], v[{t+4}:{t+5}], v[{t+6}:{t+7}]
        v_pk_add_f32 v[{t}:{t+1}], v[{t}:{t+1}], v[{t+4}:{t+5}]
        v_mul_f32 v{t}, {hex(f2u(1.0/448))}, v{t}
        v_mul_f32 v{t+1}, {hex(f2u(1.0/448))}, v{t+1}
        v_fma_f32 v{t+1}, -v{t}, v{t}, v{t+1}
        v_max_f32 v{t+1}, 0, v{t+1}
        v_cvt_pk_bf16_f32 v{t+2}, v{t}, v{t+1}
        v_lshlrev_b32 v{t}, 16, v{t+2}
        v_and_b32 v{t+1}, 0xffff0000, v{t+2}
        v_add_f32 v{t+1}, {hex(f2u(1e-5))}, v{t+1}
        v_cvt_pk_bf16_f32 v{t+1}, v{t+1}, v{t+1}
        v_and_b32 v{t+1}, 0xffff0000, v{t+1}
        v_sqrt_f32 v{t+1}, v{t+1}
        v_cvt_pk_bf16_f32 v{t+1}, v{t+1}, v{t+1}
        v_and_b32 v{t+1}, 0xffff0000, v{t+1}
        v_rcp_f32 v{t+1}, v{t+1}
        """)
    def sum8(self, r):
        self.a(f"""
        v_pk_add_f32 v[{r}:{r+1}], v[{r}:{r+1}], v[{r+2}:{r+3}]
        v_pk_add_f32 v[{r+4}:{r+5}], v[{r+4}:{r+5}], v[{r+6}:{r+7}]
        v_pk_add_f32 v[{r}:{r+1}], v[{r}:{r+1}], v[{r+4}:{r+5}]
        v_add_f32 v{r}, v{r}, v{r+1}
        """)
    def r8_addr(self, vdst, NS, wv):
        self.a(f"""
        v_lshrrev_b32 v8, 1, v2
        v_mul_u32_u24 v8, {2*NS}, v8
        v_and_b32 v9, 1, v2
        v_add_u32 v8, v8, v9
        v_mul_u32_u24 v8, 896, v8
        v_lshl_add_u32 v8, v1, 4, v8
        s_lshl_b32 s26, s{wv}, 8
        v_add_u32 v{vdst}, s26, v8
        s_cmp_eq_u32 s{wv}, 3
        s_cselect_b32 s28, 0x00ff00ff, -1
        s_mov_b32 s29, s28
        """)
    def r8_loads(self, NS, srd, vaddr, reg, pace=0, npace=99):
        a = self.a
        a("s_mov_b64 exec, s[28:29]")
        for s in range(NS):
            for hf in range(2):
                a(f"s_mov_b32 s26, {(4*NS*hf + 2*s)*896}")
                r = reg + 8*s + 4*hf
                if pace and 2*s + hf <= npace: a(f"s_waitcnt vmcnt({pace-1})")
                a(f"buffer_load_dwordx4 v[{r}:{r+3}], v{vaddr}, s[{srd}:{srd+3}], s26 offen nt")
        a("s_mov_b64 exec, -1")
    def r8_pub_addr(self, vdst, wv, sslot):
        self.a(f"""
        v_lshrrev_b32 v9, 1, v2
        v_lshlrev_b32 v9, 13, v9
        v_lshl_add_u32 v8, v1, 4, v9
        s_lshl_b32 s26, s{wv}, 8
        s_add_u32 s26, s26, s{sslot}
        v_add_u32 v{vdst}, s26, v8
        s_and_b32 s46, s28, 0xffff
        s_mov_b32 s47, s46
        """)
    def r8_gemv(self, NS, X, reg, vpub, sofs):
        a = self.a
        a("v_mov_b32 v42, 0\nv_mov_b32 v43, 0\nv_mov_b32 v44, 0\nv_mov_b32 v45, 0")
        nrd = NS // 4
        a(f"s_waitcnt lgkmcnt({nrd-1})")
        self.abuild(34, X)
        for s in range(NS):
            A = 34 + 4*(s & 1)
            if s + 1 < NS:
                if (s + 1) % 4 == 0: a(f"s_waitcnt lgkmcnt({nrd - 1 - (s+1)//4})")
                self.abuild(34 + 4*((s+1) & 1), X + s + 1)
            a(f"v_smfmac_f32_16x16x64_bf16 v[42:45], v[{A}:{A+3}], v[{reg+8*s}:{reg+8*s+7}], v7")
        a(f"""
        v_cvt_pk_bf16_f32 v46, v42, v43
        v_cvt_pk_bf16_f32 v48, v42, v43
        v_cvt_pk_bf16_f32 v47, v44, v45
        v_cvt_pk_bf16_f32 v49, v44, v45
        v_permlane16_swap_b32 v46, v48
        v_permlane16_swap_b32 v47, v49
        s_mov_b64 exec, s[46:47]
        v_min_u32 v46, -2, v46
        buffer_store_dwordx4 v[46:49], v{vpub}, s[4:7], s{sofs} offen sc1
        s_mov_b64 exec, -1
        """)

    def role_q(self):
        a = self.a
        a(f"L_Q:\ns_sub_u32 s21, s2, {ID_Q}")
        a("s_cmp_gt_u32 s22, 4\ns_cbranch_scc1 L_exit\ns_cmp_eq_u32 s22, 4\ns_cbranch_scc1 L_Qh")
        self.srd(16, 64, 896)
        a("s_lshl_b32 s27, s21, 7")
        self.srd(8, 70, 448*8192 - 0, off_s=27)
        a("s_sub_u32 s10, s10, s27")
        self.x_load()
        self.r16_addr(15, 8192)
        if self.o.get("hb", 0) & 2: a("s_barrier")
        self.r16_loads(8, 128, 8192, 15)
        self.stamp(10)
        self.masks()
        self.front_setup(C_H4, C_XR1)
        a(f"v_lshlrev_b32 v58, 2, v0\nv_add_u32 v58, 1024, v58")
        a(f"s_lshr_b32 s26, s21, 5\ns_lshl_b32 s26, s26, 14\ns_and_b32 s27, s21, 31\ns_lshl_b32 s27, s27, 8\ns_add_u32 s26, s26, s27\ns_add_u32 s26, s26, {C_H1*CH}\nv_lshl_add_u32 v59, v0, 2, s26\nv_mov_b32 v99, 12288")
        a("s_mov_b32 s23, 0\ns_waitcnt vmcnt(0)\nv_mov_b32 v24, v25")
        self.stamp(1)
        a("s_branch L_Qg")
        a("L_Qloop:")
        self.tag_from_lds(12288)
        a(f"s_mov_b32 s27, {ID_F}")
        self.flag_poll("q", 27, NF)
        self.add_side("s20")
        self.gather("q", 7, False)
        self.stamp(5)
        a("L_Qg:")
        self.front_gemv(False, cs=True)
        self.stamp_l(2, 6)
        a("s_cmp_eq_u32 s22, 0\ns_cbranch_scc0 L_Qnext")
        a(f"s_and_b32 s26, s23, 1\ns_mul_i32 s26, s26, 4352\nv_add_u32 v10, s26, v58\ns_add_u32 s26, s26, {1024+4096}\nv_mov_b32 v11, s26")
        a("s_cmp_eq_u32 s23, 0\ns_cbranch_scc0 L_Qr\nds_read_b32 v125, v99")
        for k in range(4): a(f"ds_read2st64_b32 v[{108+2*k}:{109+2*k}], v10 offset0:{8+2*k} offset1:{9+2*k}")
        a("s_waitcnt lgkmcnt(0)")
        self.sum8(108)
        a("v_mov_b32 v57, v108\nL_Qr:")
        self.back_reduce(False, 10, 100)
        self.ln_scalars(100, 4)
        a("s_waitcnt lgkmcnt(0)")
        self.sum8(100)
        a("""
        v_fma_f32 v100, -v116, v57, v100
        v_mul_f32 v100, v100, v117
        s_lshl_b32 s26, s23, 15
        s_add_u32 s27, s26, 8192
        v_mov_b32_dpp v101, v100 quad_perm:[1,0,3,2] row_mask:0xf bank_mask:0xf
        s_mov_b32 exec_lo, 0x55555555
        s_mov_b32 exec_hi, 0x55555555
        v_cvt_pk_bf16_f32 v124, v100, v101
        buffer_store_dwordx2 v[124:125], v59, s[4:7], s26 offen sc1
        buffer_store_dwordx2 v[124:125], v59, s[4:7], s27 offen sc1
        s_mov_b64 exec, -1
        """)
        self.stamp_l(3, 7)
        a("L_Qnext:\ns_add_u32 s23, s23, 1\ns_cmp_lt_i32 s23, 2\ns_cbranch_scc1 L_Qloop")
        a("s_cmp_eq_u32 s21, 0\ns_cbranch_scc0 L_Qnx")
        self.xr_publish(f"s_mov_b32 s26, {(C_XR2-C_XR1)*CH & 0xffffffff}")
        a("L_Qnx:")
        a("s_cmp_lt_u32 s21, 7\ns_cbranch_scc0 L_exit\ns_cmp_eq_u32 s22, 0\ns_cbranch_scc0 L_exit")
        self.srd(16, 82, 896)
        a(f"""
        v_lshrrev_b32 v8, 3, v0
        v_lshlrev_b32 v8, 10, v8
        v_and_b32 v9, 7, v0
        v_lshl_add_u32 v8, v9, 4, v8
        s_lshl_b32 s26, s21, 7
        s_add_u32 s27, s26, s20
        v_add_u32 v16, s27, v8
        v_add_u32 v97, s26, v14
        s_add_u32 s27, s27, {C_XR3*CH}
        v_add_u32 v17, s27, v14
        v_mov_b32 v22, 0
        v_mov_b32 v72, 0
        v_mov_b32 v73, 0
        v_mov_b32 v74, 0
        v_mov_b32 v75, 0
        s_mov_b32 s32, {(C_H4+4)*CH}
        s_mov_b32 s33, {(C_H4+5)*CH}
        s_mov_b32 s34, {(C_H4+6)*CH}
        s_mov_b32 s35, {(C_H4+7)*CH}
        s_mov_b32 s28, 0x00ff00ff
        s_mov_b32 s29, 0x00ff00ff
        s_mov_b32 s25, 0
        L_Fp:
        s_mov_b64 exec, s[28:29]
        buffer_load_dword v22, v17, s[4:7], 0 offen sc1
        s_mov_b64 exec, -1
        buffer_load_dwordx4 v[60:63], v16, s[4:7], s32 offen sc1
        buffer_load_dwordx4 v[64:67], v16, s[4:7], s33 offen sc1
        buffer_load_dwordx4 v[68:71], v16, s[4:7], s34 offen sc1
        s_mov_b32 exec_hi, 0
        buffer_load_dwordx4 v[72:75], v16, s[4:7], s35 offen sc1
        s_mov_b64 exec, -1
        """)
        self.timeout()
        a("""
        v_mov_b32 v42, 0
        v_mov_b32 v43, 0
        v_mov_b32 v44, 0
        v_mov_b32 v45, 0
        s_waitcnt vmcnt(2)
        v_smfmac_f32_16x16x64_bf16 v[42:45], v[92:95], v[60:67], v7
        v_max3_u32 v54, v22, v60, v64
        v_lshlrev_b32 v52, 16, v22
        v_and_b32 v53, 0xffff0000, v22
        s_waitcnt vmcnt(0)
        v_smfmac_f32_16x16x64_bf16 v[42:45], v[92:95], v[68:75], v7
        v_max3_u32 v54, v54, v68, v72
        v_cmp_eq_u32 vcc, -1, v54
        s_cbranch_vccnz L_Fp
        v_cndmask_b32 v50, v42, v44, s[48:49]
        v_cndmask_b32 v51, v43, v45, s[48:49]
        v_add_f32_dpp v50, v50, v50 row_ror:8 row_mask:0xf bank_mask:0xf
        v_add_f32_dpp v51, v51, v51 row_ror:8 row_mask:0xf bank_mask:0xf
        v_cvt_pk_bf16_f32 v55, v50, v51
        v_lshlrev_b32 v50, 16, v55
        v_and_b32 v51, 0xffff0000, v55
        v_pk_add_f32 v[50:51], v[50:51], v[52:53]
        v_cvt_pk_bf16_f32 v50, v50, v51
        s_mov_b64 exec, s[28:29]
        buffer_store_dword v50, v97, s[16:19], 0 offen
        """)
        self.stamp(8)
        a("s_cmp_eq_u32 s21, 0\ns_cbranch_scc0 L_exit\nv_mov_b32 v9, s24\nv_mov_b32 v8, 0\ns_mov_b64 exec, 1\nbuffer_store_dword v9, v8, s[4:7], 0 offen sc1\ns_branch L_exit")
        a("L_Qh:")
        self.epoch_load()
        a(f"""
        v_lshlrev_b32 v10, 4, v0
        s_cmp_eq_u32 s21, 0
        s_cbranch_scc0 L_Qh1
        s_mov_b32 s30, {C_XR2*CH}
        """)
        self.reset1k(30)
        a("L_Qh1:")
        if self.o.get("hb", 0) & 2: a("s_barrier")
        self.flag_store(0)
        a("v_mov_b32 v16, 12288\nds_write_b32 v16, v11\ns_waitcnt lgkmcnt(0)\ns_branch L_exit")

    def role_f(self):
        a = self.a
        a(f"L_F:\ns_sub_u32 s21, s2, {ID_F}")
        a("s_cmp_gt_u32 s22, 3\ns_cbranch_scc1 L_Fb")
        self.srd(16, 64, 896)
        a("s_lshl_b32 s27, s21, 7")
        self.srd(8, 76, 448*3584, off_s=27)
        a("s_sub_u32 s10, s10, s27")
        self.srd(12, 78, 448*3584, off_s=27)
        a("s_sub_u32 s14, s14, s27")
        self.x_load()
        self.r16_addr(15, 3584)
        if self.o.get("gatef") or self.o.get("hb", 0) & 8: a("s_barrier")
        self.r16_loads(8, 128, 3584, 15, self.o.get("pf", 0), self.o.get("pfn", 99))
        self.r16_loads(12, 192, 3584, 15, self.o.get("pf", 0), self.o.get("pfn", 99) - 16)
        self.stamp(10)
        self.masks()
        self.front_setup(C_H3, C_XR2)
        a("s_mov_b32 s23, -1\nv_mov_b32 v24, 0x3f803f80\ns_waitcnt vmcnt(0)\nv_mov_b32 v22, v25")
        self.stamp(1)
        a("s_branch L_Fg")
        a("L_Floop:")
        self.gather("f", 8, True)
        self.stamp_l(2, 5)
        a("L_Fg:")
        self.front_gemv(True)
        self.stamp_l(3, 6)
        a("s_cmp_eq_u32 s23, -1\ns_cbranch_scc0 L_Fn1")
        a("v_mov_b32 v8, 12288\nds_read_b32 v9, v8\ns_waitcnt lgkmcnt(0)\nv_readfirstlane_b32 s20, v9")
        self.add_side("v9")
        a("s_mov_b32 s23, 0\ns_branch L_Floop")
        a("L_Fn1:\ns_cmp_eq_u32 s21, 0\ns_cbranch_scc0 L_Fnx")
        self.xr_publish(f"s_lshl_b32 s26, s23, 14\ns_add_u32 s26, s26, {(C_XR1-C_XR2)*CH}")
        a("L_Fnx:")
        a(f"v_add_u32 v16, {4*CH}, v16\nv_add_u32 v13, {4*CH}, v13")
        a("s_add_u32 s23, s23, 1\ns_cmp_lt_i32 s23, 2\ns_cbranch_scc1 L_Floop\ns_branch L_exit")
        a("L_Fb:\ns_sub_u32 s30, s22, 4")
        a("s_mul_i32 s27, s21, 57344")
        self.srd(8, 80, 57344, off_s=27)
        a(f"""
        s_lshr_b32 s27, s21, 3
        s_lshl_b32 s27, s27, 14
        s_and_b32 s26, s21, 7
        s_lshl_b32 s26, s26, 10
        s_add_u32 s52, s26, s27
        s_add_u32 s52, s52, {C_H4*CH}
        s_cmp_eq_u32 s22, 4
        s_cbranch_scc0 L_Fb1
        """)
        self.epoch_load()
        a("v_lshlrev_b32 v10, 4, v0")
        self.reset1k(52)
        a(f"s_add_u32 s53, s52, {4*CH}")
        self.reset1k(53)
        a(f"s_cmp_eq_u32 s21, 0\ns_cbranch_scc0 L_Fb1\ns_mov_b32 s53, {C_XR1*CH}")
        self.reset1k(53)
        a(f"s_mov_b32 s53, {C_XR3*CH}")
        self.reset1k(53)
        a("L_Fb1:")
        self.r8_addr2(16, 8, 30)
        if self.o.get("gatef"):
            a("s_cmp_eq_u32 s22, 4\ns_cbranch_scc0 L_Fb3")
            self.flag_store(0)
            a("L_Fb3:\ns_barrier")
        elif self.o.get("hb", 0) & 8: a("s_barrier")
        self.r8_loads(8, 8, 16, 128, (self.o.get("pf", 0) + 1) // 2, self.o.get("pfn", 99) // 2)
        a("s_cmp_eq_u32 s22, 4\ns_cbranch_scc0 L_Fb2")
        if not self.o.get("gatef"): self.flag_store(16)
        a(f"s_mov_b32 s27, {ID_W}")
        self.flag_poll("f", 27, NW, extra_id=ID_Q)
        a("v_mov_b32 v8, 12288\nv_mov_b32 v9, s20\nds_write_b32 v8, v9\ns_waitcnt lgkmcnt(0)")
        a("L_Fb2:")
        self.masks()
        self.r8_pub_addr(17, 30, 52)
        a("v_lshlrev_b32 v58, 2, v0\nv_add_u32 v58, 1024, v58")
        a("s_lshl_b32 s26, s30, 7\ns_add_u32 s26, s26, 10240\nv_lshl_add_u32 v18, v0, 1, s26\nv_lshl_add_u32 v19, v2, 5, s26")
        a("s_mov_b32 s23, -1\ns_waitcnt vmcnt(0)")
        self.stamp(1)
        a("L_Fbl:")
        a(f"s_and_b32 s26, s23, 1\ns_mul_i32 s26, s26, 4352\nv_add_u32 v10, s26, v58\ns_add_u32 s26, s26, {1024+4096}\nv_mov_b32 v11, s26\ns_lshl_b32 s27, s23, 16")
        a("s_barrier")
        self.stamp_l(2, 5)
        self.back_reduce(True, 10, 60)
        self.ln_scalars(60, 8)
        a("s_waitcnt lgkmcnt(4)")
        self.sum8(60)
        a("s_waitcnt lgkmcnt(0)")
        self.sum8(68)
        a("s_cmp_eq_u32 s23, -1\ns_cbranch_scc0 L_Fbh\nv_mov_b32 v56, v60\nv_mov_b32 v57, v68\ns_mov_b32 s23, 0\ns_branch L_Fbl")
        a(f"""
        L_Fbh:
        v_fma_f32 v60, -v76, v56, v60
        v_fma_f32 v68, -v76, v57, v68
        v_mul_f32 v60, v60, v77
        v_mul_f32 v68, v68, v77
        v_cvt_pk_bf16_f32 v61, v60, v68
        v_lshlrev_b32 v60, 16, v61
        v_and_b32 v68, 0xffff0000, v61
        v_mul_f32 v61, {hex(f2u(-LOG2E))}, v60
        v_exp_f32 v61, v61
        v_add_f32 v61, 1.0, v61
        v_rcp_f32 v61, v61
        v_mul_f32 v61, v60, v61
        v_cvt_pk_bf16_f32 v61, v61, v61
        v_and_b32 v61, 0xffff0000, v61
        v_mul_f32 v61, v61, v68
        v_cvt_pk_bf16_f32 v61, v61, v61
        ds_write_b16 v18, v61
        s_waitcnt lgkmcnt(0)
        ds_read_b128 v[26:29], v19
        ds_read_b128 v[30:33], v19 offset:16
        """)
        self.stamp_l(3, 6)
        self.r8_gemv(8, 26, 128, 17, 27)
        self.stamp_l(4, 7)
        a("s_add_u32 s23, s23, 1\ns_cmp_lt_i32 s23, 2\ns_cbranch_scc1 L_Fbl\ns_branch L_exit")
    def r8_addr2(self, vdst, NS, wv):
        self.a(f"""
        v_lshrrev_b32 v20, 1, v2
        v_mul_u32_u24 v20, {2*NS}, v20
        v_and_b32 v21, 1, v2
        v_add_u32 v20, v20, v21
        v_mul_u32_u24 v20, 896, v20
        v_lshl_add_u32 v20, v1, 4, v20
        s_lshl_b32 s26, s{wv}, 8
        v_add_u32 v{vdst}, s26, v20
        s_cmp_eq_u32 s{wv}, 3
        s_cselect_b32 s28, 0x00ff00ff, -1
        s_mov_b32 s29, s28
        """)

    def role_w(self):
        a = self.a
        a(f"L_W:\ns_sub_u32 s21, s2, {ID_W}")
        a(f"""
        s_lshr_b32 s27, s21, 2
        s_lshl_b32 s27, s27, 14
        s_and_b32 s26, s21, 3
        s_lshl_b32 s26, s26, 11
        s_add_u32 s53, s26, s27
        s_lshr_b32 s27, s21, 3
        s_lshl_b32 s27, s27, 14
        s_and_b32 s26, s21, 7
        s_lshl_b32 s26, s26, 10
        s_add_u32 s52, s26, s27
        s_add_u32 s52, s52, {C_H3*CH}
        """)
        a("s_cmp_gt_u32 s22, 4\ns_cbranch_scc1 L_exit\ns_cmp_eq_u32 s22, 4\ns_cbranch_scc1 L_Wh")
        a("s_mul_i32 s27, s21, 114688")
        self.srd(8, 72, 114688, off_s=27)
        self.r8_addr(16, 16, 22)
        if self.o.get("gatew") or self.o.get("hb", 0) & 4: a("s_barrier")
        self.r8_loads(16, 8, 16, 128, self.o.get("pw", 0), self.o.get("pwn", 99))
        self.stamp(10)
        self.masks()
        self.r8_pub_addr(17, 22, 52)
        a(f"""
        v_lshrrev_b32 v8, 2, v0
        v_and_b32 v9, 3, v0
        v_lshlrev_b32 v10, 9, v8
        v_lshl_add_u32 v10, v9, 5, v10
        s_lshl_b32 s26, s21, 14
        s_lshl_b32 s27, s22, 7
        s_add_u32 s26, s26, s27
        s_add_u32 s26, s26, {C_H2O*CH}
        v_add_u32 v18, s26, v10
        s_add_u32 s26, s53, {C_H2M*CH}
        v_lshl_add_u32 v19, v8, 7, s26
        v_lshlrev_b32 v10, 4, v9
        v_lshl_add_u32 v10, v2, 2, v10
        s_lshl_b32 s26, s22, 6
        v_add_u32 v20, s26, v10
        v_lshlrev_b32 v21, 6, v2
        s_mov_b32 s23, 0
        s_waitcnt vmcnt(0)
        """)
        self.stamp(1)
        a("v_mov_b32 v8, 512\ns_barrier\nds_read_b32 v9, v8\ns_waitcnt lgkmcnt(0)\nv_add_u32 v18, v9, v18\nv_add_u32 v19, v9, v19")
        a("L_Wl:\ns_mov_b32 s25, 0")
        a(f"s_mul_i32 s30, s23, {32*CH}\ns_lshl_b32 s27, s23, 17\ns_lshl_b32 s31, s23, 16")
        a("""
        L_Wp:
        buffer_load_dwordx2 v[22:23], v19, s[4:7], s27 offen sc1
        buffer_load_dwordx4 v[60:63], v18, s[4:7], s30 offen sc1
        buffer_load_dwordx4 v[64:67], v18, s[4:7], s30 offen offset:16 sc1
        """)
        self.timeout()
        a("""
        s_waitcnt vmcnt(2)
        v_max_f32_dpp v24, v22, v22 row_ror:4 row_mask:0xf bank_mask:0xf
        v_max_f32_dpp v24, v24, v24 row_ror:8 row_mask:0xf bank_mask:0xf
        v_mov_b32 v25, v24
        v_permlane16_swap_b32 v24, v25
        v_max_f32 v24, v24, v25
        v_mov_b32 v25, v24
        v_permlane32_swap_b32 v24, v25
        v_max_f32 v24, v24, v25
        v_sub_f32 v24, v22, v24
        v_exp_f32 v24, v24
        s_waitcnt vmcnt(0)
        v_max3_u32 v54, v22, v60, v64
        v_cmp_eq_u32 vcc, -1, v54
        s_cbranch_vccnz L_Wp
        """)
        self.stamp_l(2, 5)
        a("""
        v_mul_f32 v26, v23, v24
        v_pk_mul_f32 v[60:61], v[60:61], v[24:25] op_sel_hi:[1,0]
        v_pk_mul_f32 v[64:65], v[64:65], v[24:25] op_sel_hi:[1,0]
        v_pk_mul_f32 v[62:63], v[62:63], v[24:25] op_sel_hi:[1,0]
        v_pk_mul_f32 v[66:67], v[66:67], v[24:25] op_sel_hi:[1,0]
        v_add_f32_dpp v26, v26, v26 row_ror:4 row_mask:0xf bank_mask:0xf
        v_permlane32_swap_b32 v60, v64
        v_permlane32_swap_b32 v61, v65
        v_add_f32_dpp v26, v26, v26 row_ror:8 row_mask:0xf bank_mask:0xf
        v_permlane32_swap_b32 v62, v66
        v_permlane32_swap_b32 v63, v67
        v_mov_b32 v27, v26
        v_pk_add_f32 v[60:61], v[60:61], v[64:65]
        v_pk_add_f32 v[62:63], v[62:63], v[66:67]
        v_permlane16_swap_b32 v26, v27
        v_add_f32 v26, v26, v27
        v_permlane16_swap_b32 v60, v62
        v_permlane16_swap_b32 v61, v63
        v_mov_b32 v27, v26
        v_pk_add_f32 v[60:61], v[60:61], v[62:63]
        v_permlane32_swap_b32 v26, v27
        v_add_f32_dpp v60, v60, v60 row_ror:4 row_mask:0xf bank_mask:0xf
        v_add_f32_dpp v61, v61, v61 row_ror:4 row_mask:0xf bank_mask:0xf
        v_add_f32 v26, v26, v27
        v_rcp_f32 v26, v26
        v_add_f32_dpp v60, v60, v60 row_ror:8 row_mask:0xf bank_mask:0xf
        v_add_f32_dpp v61, v61, v61 row_ror:8 row_mask:0xf bank_mask:0xf
        v_pk_mul_f32 v[60:61], v[60:61], v[26:27] op_sel_hi:[1,0]
        v_cvt_pk_bf16_f32 v60, v60, v61
        ds_write_b32 v20, v60
        s_waitcnt lgkmcnt(0)
        s_barrier
        ds_read_b128 v[60:63], v21
        ds_read_b128 v[64:67], v21 offset:16
        ds_read_b128 v[68:71], v21 offset:32
        ds_read_b128 v[72:75], v21 offset:48
        """)
        self.stamp_l(3, 6)
        self.r8_gemv(16, 60, 128, 17, 31)
        self.stamp_l(4, 7)
        a("s_cmp_eq_u32 s23, 1\ns_cbranch_scc1 L_exit\ns_mov_b32 s23, 1\ns_branch L_Wl")
        a("L_Wh:")
        self.epoch_load()
        a("v_lshlrev_b32 v10, 4, v0")
        self.reset1k(52)
        a(f"s_add_u32 s53, s52, {4*CH}")
        self.reset1k(53)
        if self.o.get("hb", 0) & 4 and not self.o.get("gatew"): a("s_barrier")
        self.flag_store(0)
        if self.o.get("gatew"): a("s_barrier")
        a(f"s_lshr_b32 s27, s21, 2\ns_lshl_b32 s27, s27, 4\ns_add_u32 s27, s27, {ID_A}")
        self.flag_poll("w", 27, 16)
        a("v_mov_b32 v8, 512\nv_mov_b32 v9, s20\nds_write_b32 v8, v9\ns_waitcnt lgkmcnt(0)\ns_branch L_exit")

    def role_a(self):
        a = self.a
        a(f"L_A:\ns_sub_u32 s21, s2, {ID_A}\ns_lshr_b32 s52, s21, 4\ns_and_b32 s53, s21, 15")
        a("s_cmp_gt_u32 s22, 4\ns_cbranch_scc1 L_exit\ns_cmp_eq_u32 s22, 4\ns_cbranch_scc1 L_Ah")
        a(f"s_lshl_b32 s27, s52, 22\ns_lshl_b32 s26, s53, 16\ns_add_u32 s27, s27, s26\ns_add_u32 s27, s27, {6144*512}")
        self.srd(8, 66, 65536, off_s=27)
        self.srd(12, 68, 65536, off_s=27)
        a("""
        s_lshl_b32 s26, s22, 14
        v_and_b32 v8, 7, v1
        v_lshlrev_b32 v8, 9, v8
        v_lshl_add_u32 v8, v2, 4, v8
        v_lshrrev_b32 v9, 3, v1
        v_lshl_add_u32 v8, v9, 6, v8
        v_add_u32 v16, s26, v8
        v_lshrrev_b32 v8, 1, v2
        v_and_b32 v9, 1, v2
        v_lshl_add_u32 v8, v8, 2, v9
        v_lshlrev_b32 v8, 9, v8
        v_lshl_add_u32 v8, v1, 4, v8
        v_add_u32 v17, s26, v8
        s_mov_b32 s32, 0
        s_mov_b32 s33, 4096
        s_mov_b32 s34, 8192
        s_mov_b32 s35, 12288
        """)
        KR, VR = 128, 192
        if self.o.get("hb", 0) & 1 or self.o.get("ga"): a("s_barrier")
        for T in range(2):
            for ks in range(8):
                r = KR + 32*T + 4*ks
                a(f"buffer_load_dwordx4 v[{r}:{r+3}], v16, s[8:11], s{32+2*T+(ks&1)} offen offset:{128*(ks>>1)} nt")
        self.stamp(10)
        for T in range(2):
            for aa in range(2):
                for cb in range(2):
                    for hf in range(2):
                        r = VR + ((2*T + aa)*2 + cb)*8 + 4*hf
                        if self.o.get("pace", 1): a("s_waitcnt vmcnt(15)")
                        a(f"buffer_load_dwordx4 v[{r}:{r+3}], v17, s[12:15], s{32+2*T+hf} offen offset:{1024*aa + 256*cb} nt")
        self.masks()
        a(f"""
        v_lshrrev_b32 v8, 3, v1
        v_lshlrev_b32 v8, 9, v8
        v_lshl_add_u32 v18, v2, 4, v8
        v_lshrrev_b32 v8, 1, v2
        v_lshlrev_b32 v8, 10, v8
        v_lshl_add_u32 v8, v1, 5, v8
        v_and_b32 v9, 1, v2
        v_lshl_add_u32 v8, v9, 4, v8
        s_lshl_b32 s26, s22, 11
        s_add_u32 s26, s26, 1024
        v_add_u32 v19, s26, v8
        v_lshrrev_b32 v8, 3, v1
        s_lshl_b32 s26, s22, 3
        s_add_u32 s26, s26, 9216
        v_lshl_add_u32 v20, v8, 5, s26
        v_and_b32 v8, 31, v0
        s_lshl_b32 s26, s22, 9
        s_add_u32 s26, s26, 1024
        v_lshl_add_u32 v21, v8, 4, s26
        s_lshr_b32 s26, s22, 1
        s_lshl_b32 s26, s26, 5
        s_add_u32 s26, s26, 9216
        v_mov_b32 v22, s26
        s_lshl_b32 s26, s52, 2
        s_add_u32 s26, s26, s22
        s_lshl_b32 s27, s26, 14
        s_lshl_b32 s30, s53, 9
        s_add_u32 s27, s27, s30
        s_add_u32 s27, s27, {C_H2O*CH}
        v_lshrrev_b32 v9, 5, v0
        v_lshlrev_b32 v9, 13, v9
        v_lshl_add_u32 v8, v8, 4, v9
        v_add_u32 v23, s27, v8
        s_lshl_b32 s27, s52, 14
        s_lshl_b32 s30, s22, 11
        s_add_u32 s27, s27, s30
        s_lshl_b32 s30, s53, 7
        s_add_u32 s27, s27, s30
        s_add_u32 s27, s27, {C_H2M*CH}
        v_add_u32 v24, s27, v9
        s_mov_b32 s36, {hex(f2u(LOG2E/16))}
        s_mov_b32 s23, 0
        s_waitcnt vmcnt(16)
        """)
        self.stamp(1)
        for pr in range(8):
            X = KR + 8*pr
            for d in range(4): a(f"v_mov_b32_dpp v{60+d}, v{X+d} row_ror:8 row_mask:0xf bank_mask:0xf")
            for d in range(4): a(f"v_mov_b32_dpp v{X+d}, v{X+4+d} row_ror:8 row_mask:0xf bank_mask:0xc")
            for d in range(4): a(f"v_mov_b32_dpp v{X+4+d}, v{60+d} quad_perm:[0,1,2,3] row_mask:0xf bank_mask:0x3")
        if self.o.get("vstamp"):
            a("s_waitcnt vmcnt(0)"); self.stamp(9)
        a("L_Al:\ns_barrier")
        self.stamp_l(2, 6)
        QR = 60
        for ks in range(8):
            a(f"ds_read_b128 v[{QR+4*ks}:{QR+4*ks+3}], v18 offset:{64*ks}")
        for ks in range(8):
            a(f"s_waitcnt lgkmcnt({7-ks})")
            for T in range(2):
                c = "0" if ks == 0 else f"v[{44+4*T}:{47+4*T}]"
                a(f"v_mfma_f32_16x16x32_bf16 v[{44+4*T}:{47+4*T}], v[{KR+32*T+4*ks}:{KR+32*T+4*ks+3}], v[{QR+4*ks}:{QR+4*ks+3}], {c}")
        for i in range(8): a(f"v_mov_b32 v{92+i}, 0")
        for k in range(4): a(f"v_cvt_pk_bf16_f32 v{52+k}, v{44+2*k}, v{45+2*k}")
        for k in range(4): a(f"v_lshlrev_b32 v{44+2*k}, 16, v{52+k}\nv_and_b32 v{45+2*k}, 0xffff0000, v{52+k}")
        a("""
        v_max3_f32 v52, v44, v45, v46
        v_max3_f32 v53, v47, v48, v49
        v_max3_f32 v52, v50, v51, v52
        v_max_f32 v52, v52, v53
        v_mov_b32 v53, v52
        v_permlane32_swap_b32 v52, v53
        v_max_f32 v52, v52, v53
        v_mov_b32 v53, v52
        v_permlane16_swap_b32 v52, v53
        v_max_f32 v52, v52, v53
        v_mul_f32 v56, s36, v52
        """)
        for k in range(8): a(f"v_fma_f32 v{44+k}, v{44+k}, s36, -v56")
        for k in range(8): a(f"v_exp_f32 v{44+k}, v{44+k}")
        for k in range(4): a(f"v_cvt_pk_bf16_f32 v{52+k}, v{44+2*k}, v{45+2*k}")
        self.abuild(34, 52)
        a("s_waitcnt vmcnt(0)")
        self.stamp_l(3, 7)
        fill = ["v_pk_add_f32 v[44:45], v[44:45], v[46:47]\nv_pk_add_f32 v[48:49], v[48:49], v[50:51]",
                "v_pk_add_f32 v[44:45], v[44:45], v[48:49]\nv_add_f32 v57, v44, v45\nv_mov_b32 v58, v57",
                "v_permlane32_swap_b32 v57, v58\nv_add_f32 v57, v57, v58\nv_mov_b32 v58, v57",
                "v_permlane16_swap_b32 v57, v58\nv_add_f32 v57, v57, v58"]
        for n in range(4):
            A = 34 + 4*(n & 1)
            if n < 3: self.abuild(34 + 4*((n+1) & 1), 52 + n + 1)
            for cb in range(2):
                r = VR + (n*2 + cb)*8
                a(f"v_smfmac_f32_16x16x64_bf16 v[{92+4*cb}:{95+4*cb}], v[{A}:{A+3}], v[{r}:{r+7}], v7")
            a(fill[n])
        a("""
        s_mov_b64 exec, 0x101
        ds_write_b64 v20, v[56:57]
        s_mov_b64 exec, -1
        ds_write_b128 v19, v[92:95]
        ds_write_b128 v19, v[96:99] offset:512
        s_waitcnt lgkmcnt(0)
        s_barrier
        ds_read_b128 v[44:47], v22
        ds_read_b128 v[48:51], v22 offset:16
        ds_read_b128 v[60:63], v21
        ds_read_b128 v[64:67], v21 offset:2048
        ds_read_b128 v[68:71], v21 offset:4096
        ds_read_b128 v[72:75], v21 offset:6144
        s_waitcnt lgkmcnt(4)
        v_max3_f32 v56, v44, v46, v48
        v_max_f32 v56, v56, v50
        v_sub_f32 v52, v44, v56
        v_sub_f32 v53, v46, v56
        v_sub_f32 v54, v48, v56
        v_sub_f32 v55, v50, v56
        v_exp_f32 v52, v52
        v_exp_f32 v53, v53
        v_exp_f32 v54, v54
        v_exp_f32 v55, v55
        s_waitcnt lgkmcnt(3)
        v_pk_mul_f32 v[60:61], v[60:61], v[52:53] op_sel_hi:[1,0]
        v_pk_mul_f32 v[62:63], v[62:63], v[52:53] op_sel_hi:[1,0]
        s_waitcnt lgkmcnt(2)
        v_pk_fma_f32 v[60:61], v[64:65], v[52:53], v[60:61] op_sel:[0,1,0] op_sel_hi:[1,1,1]
        v_pk_fma_f32 v[62:63], v[66:67], v[52:53], v[62:63] op_sel:[0,1,0] op_sel_hi:[1,1,1]
        s_waitcnt lgkmcnt(1)
        v_pk_fma_f32 v[60:61], v[68:69], v[54:55], v[60:61] op_sel_hi:[1,0,1]
        v_pk_fma_f32 v[62:63], v[70:71], v[54:55], v[62:63] op_sel_hi:[1,0,1]
        s_waitcnt lgkmcnt(0)
        v_pk_fma_f32 v[60:61], v[72:73], v[54:55], v[60:61] op_sel:[0,1,0] op_sel_hi:[1,1,1]
        v_pk_fma_f32 v[62:63], v[74:75], v[54:55], v[62:63] op_sel:[0,1,0] op_sel_hi:[1,1,1]
        """)
        a(f"s_mul_i32 s26, s23, {32*CH}\ns_lshl_b32 s27, s23, 17")
        a("""
        v_mul_f32 v57, v52, v45
        v_min_u32 v60, -2, v60
        buffer_store_dwordx4 v[60:63], v23, s[4:7], s26 offen sc1
        v_fmac_f32 v57, v53, v47
        v_fmac_f32 v57, v54, v49
        v_fmac_f32 v57, v55, v51
        v_min_u32 v56, -2, v56
        s_mov_b32 exec_lo, 1
        s_mov_b32 exec_hi, 1
        buffer_store_dwordx2 v[56:57], v24, s[4:7], s27 offen sc1
        s_mov_b64 exec, -1
        """)
        self.stamp_l(4, 8)
        a("s_add_u32 s23, s23, 1\ns_cmp_lt_i32 s23, 2\ns_cbranch_scc1 L_Al\ns_branch L_exit")
        a("L_Ah:")
        self.epoch_load()
        a(f"""
        v_and_b32 v8, 31, v0
        v_lshrrev_b32 v11, 5, v0
        v_lshlrev_b32 v11, 13, v11
        v_lshl_add_u32 v10, v8, 4, v11
        s_lshl_b32 s27, s52, 16
        s_lshl_b32 s30, s53, 9
        s_add_u32 s27, s27, s30
        s_add_u32 s27, s27, {C_H2O*CH}
        """)
        for L in range(2):
            for w in range(4):
                a(f"s_add_u32 s26, s27, {(L*32 + w)*CH}\nbuffer_store_dwordx4 v[12:15], v10, s[4:7], s26 offen sc1")
        a(f"""
        v_and_b32 v8, 3, v0
        v_lshlrev_b32 v8, 11, v8
        v_bfe_u32 v11, v0, 2, 1
        v_lshl_add_u32 v8, v11, 13, v8
        v_bfe_u32 v11, v0, 3, 1
        v_lshl_add_u32 v8, v11, 17, v8
        s_lshl_b32 s27, s52, 14
        s_lshl_b32 s30, s53, 7
        s_add_u32 s27, s27, s30
        s_add_u32 s27, s27, {C_H2M*CH}
        s_mov_b64 exec, 0xffff
        buffer_store_dwordx4 v[12:15], v8, s[4:7], s27 offen sc1
        s_mov_b64 exec, -1
        """)
        if self.o.get("hb", 0) & 1: a("s_barrier")
        self.flag_store(0)
        if self.o.get("ga"): a("s_barrier")
        self.stamp(1)
        D = self.o.get("qd", 2)
        a(f"""
        v_lshlrev_b32 v16, 3, v0
        s_lshr_b32 s26, s52, 2
        s_lshl_b32 s26, s26, 14
        s_and_b32 s27, s52, 3
        s_lshl_b32 s27, s27, 11
        s_add_u32 s26, s26, s27
        s_add_u32 s30, s26, {C_H1*CH}
        v_lshlrev_b32 v17, 4, v0
        s_mov_b32 s23, 0
        L_Ahl:
        s_lshl_b32 s26, s23, 15
        s_add_u32 s26, s26, s30
        s_add_u32 s26, s26, s20
        s_mov_b32 s25, 0
        """)
        def issue(k):
            r = 20 + 8*k
            a(f"buffer_load_dwordx4 v[{r}:{r+3}], v17, s[4:7], s26 offen sc1\nbuffer_load_dwordx4 v[{r+4}:{r+7}], v17, s[4:7], s26 offen offset:1024 sc1")
        for k in range(D - 1): issue(k)
        a("L_Ahp:")
        for k in range(D):
            r = 20 + 8*k
            issue((k + D - 1) % D)
            if k == 0: self.timeout()
            a(f"""
            s_waitcnt vmcnt({2*(D-1)})
            v_xor_b32 v18, s24, v{r+1}
            v_xor_b32 v19, s24, v{r+3}
            v_xor_b32 v{r+1}, s24, v{r+5}
            v_xor_b32 v{r+3}, s24, v{r+7}
            v_or3_b32 v18, v18, v19, v{r+1}
            v_or_b32 v18, v18, v{r+3}
            v_cmp_ne_u32 vcc, 0, v18
            """)
            if k < D - 1: a(f"s_cbranch_vccz L_Ahd{k}")
            else: a("s_cbranch_vccnz L_Ahp")
        for k in reversed(range(D)):
            r = 20 + 8*k
            a(f"L_Ahd{k}:\nds_write2_b32 v16, v{r}, v{r+2} offset0:0 offset1:1\nds_write2_b32 v16, v{r+4}, v{r+6} offset0:128 offset1:129")
            if k > 0: a("s_branch L_Ahe")
        a("""
        L_Ahe:
        s_waitcnt lgkmcnt(0)
        s_barrier
        s_waitcnt vmcnt(0)
        s_barrier
        s_cmp_eq_u32 s23, 1
        s_cbranch_scc1 L_exit
        s_mov_b32 s23, 1
        s_mov_b32 s27, 0
        """)
        self.flag_poll("a", 27, 0)
        a("s_branch L_Ahl")

    def role_c(self):
        a = self.a
        a("L_C:")
        a("s_cmp_eq_u32 s22, 0\ns_cbranch_scc0 L_exit\ns_setprio 3")
        self.epoch_load()
        ld = self.o.get("cld", 1)
        def op(soff, off):
            if ld: return f"buffer_load_dword v16, v8, s[4:7], s{soff} offen offset:{off} sc1"
            return f"buffer_store_dword v8, v8, s[4:7], s{soff} offen offset:{off} sc1"
        a(f"""
        s_mov_b32 s26, {C_PR*CH}
        s_mov_b32 s27, {C_PR*CH+8192}
        s_mov_b64 exec, 1
        buffer_store_dword v8, v8, s[4:7], s26 offen sc1
        buffer_store_dword v8, v8, s[4:7], s27 offen sc1
        s_mov_b32 s32, -1
        s_mov_b32 s33, -1
        s_waitcnt vmcnt(0)
        """)
        n = self.o.get("cmax", 8); thr = self.o.get("cthr", 100)
        dbgs = ""
        step = 0 if self.o.get("csame") else 256
        if self.o.get("cdbg"):
            self.srd(8, 84, 256)
            dbgs = "s_mul_i32 s42, s34, 10000\ns_add_u32 s42, s42, s35\nv_mov_b32 v17, s42\ns_lshl_b32 s42, s30, 2\nbuffer_store_dword v17, v8, s[8:11], s42 offen\ns_waitcnt vmcnt(0)"
        a(f"""
        s_mov_b32 s30, 0
        L_Cl:
        s_add_u32 s26, s26, {step}
        s_add_u32 s27, s27, {step}
        s_memtime s[36:37]
        s_waitcnt lgkmcnt(0)
        {op(26, 128 if step else 0)}
        s_waitcnt vmcnt(0)
        s_memtime s[38:39]
        s_waitcnt lgkmcnt(0)
        {op(27, 128 if step else 0)}
        s_waitcnt vmcnt(0)
        s_memtime s[40:41]
        s_waitcnt lgkmcnt(0)
        s_sub_u32 s34, s38, s36
        s_sub_u32 s35, s40, s38
        s_min_u32 s32, s32, s34
        s_min_u32 s33, s33, s35
        {dbgs}
        s_add_u32 s30, s30, 1
        s_cmp_ge_u32 s30, {n}
        s_cbranch_scc1 L_Cd
        s_min_u32 s34, s32, s33
        s_max_u32 s35, s32, s33
        s_sub_u32 s35, s35, s34
        s_cmp_ge_u32 s30, {self.o.get("cabsn", 99)}
        s_cselect_b32 s34, 0, s34
        s_cmp_le_u32 s34, {self.o.get("cabs", 570)}
        s_cselect_b32 s35, s35, 0
        s_cmp_ge_u32 s30, 2
        s_cselect_b32 s35, s35, 0
        s_cmp_ge_u32 s35, {thr}
        s_cbranch_scc0 L_Cl
        """)
        a(f"""
        L_Cd:
        s_mov_b64 exec, -1
        s_cmp_lt_u32 s33, s32
        s_cselect_b32 s30, 1, 0
        s_lshr_b32 s31, s20, 13
        s_xor_b32 s30, s30, s31
        """)
        if self.o.get("cflip"): a("s_xor_b32 s30, s30, 1")
        if self.diag: a("s_mov_b32 s57, s32\ns_mov_b32 s58, s33\ns_mov_b32 s59, s30")
        self.flag_store(0, xor_s=30)
        self.stamp(4)
        a("s_branch L_exit")

    def build(self):
        a = self.a
        a(f"s_cmp_ge_u32 s2, {NWG}\ns_cbranch_scc1 L_end")
        if self.o.get("dbg"): a("s_memrealtime s[56:57]")
        if self.diag: a("s_memrealtime s[52:53]")
        a("s_load_dwordx16 s[64:79], s[0:1], 0\ns_load_dwordx8 s[80:87], s[0:1], 64")
        if self.diag:
            for s in self.STS: a(f"s_mov_b32 s{s}, 0")
            a("s_mov_b32 s23, -1")
        a("""
        v_lshrrev_b32 v1, 6, v0
        v_and_b32 v0, 63, v0
        s_getreg_b32 s20, hwreg(HW_REG_XCC_ID, 0, 4)
        v_readfirstlane_b32 s22, v1
        s_bfe_u32 s20, s20, 0x10002
        s_lshl_b32 s20, s20, 13
        v_and_b32 v1, 15, v0
        v_lshrrev_b32 v2, 4, v0
        s_cmp_lt_u32 s22, 4
        s_cbranch_scc1 L_np
        s_setprio 3
        L_np:
        s_waitcnt lgkmcnt(0)
        """)
        if self.diag: a(f"s_mov_b32 s{self.STS[11]}, s52")
        self.stamp(0)
        self.srd(4, 86, (4 << 20) if self.diag else (2 << 20))
        a("s_cmp_eq_u32 s2, 0\ns_cbranch_scc1 L_C")
        a(f"s_cmp_lt_u32 s2, {ID_A}\ns_cbranch_scc1 L_Q\ns_cmp_lt_u32 s2, {ID_W}\ns_cbranch_scc1 L_A\ns_cmp_lt_u32 s2, {ID_F}\ns_cbranch_scc1 L_W\ns_branch L_F")
        self.role_c(); self.role_q(); self.role_a(); self.role_w(); self.role_f()
        a("L_exit:")
        if self.o.get("dbg"):
            a("s_cmp_eq_u32 s22, 0\ns_cbranch_scc0 L_end\ns_mov_b32 s26, -1")
            for n, w in enumerate((1, 65, 192, 193, 225, 252)):
                a(f"s_cmp_eq_u32 s2, {w}\ns_cselect_b32 s26, {8*n}, s26")
            a("s_cmp_eq_u32 s26, -1\ns_cbranch_scc1 L_end\ns_memrealtime s[54:55]")
            if self.o.get("amp"):
                a(f"s_waitcnt lgkmcnt(0)\ns_cmp_eq_u32 s2, 1\ns_cbranch_scc0 L_amp2\ns_sub_u32 s27, s54, s56\ns_mul_i32 s27, s27, {self.o['amp']}\ns_min_u32 s27, s27, 100000")
                a("L_amp:\ns_memrealtime s[58:59]\ns_waitcnt lgkmcnt(0)\ns_sub_u32 s30, s58, s56\ns_cmp_lt_u32 s30, s27\ns_cbranch_scc1 L_amp\nL_amp2:")
            self.srd(8, 84, 256)
            a("s_mov_b64 exec, 1\ns_waitcnt lgkmcnt(0)\nv_mov_b32 v8, 0\nv_mov_b32 v12, s56\nv_mov_b32 v13, s54")
            a("buffer_store_dwordx2 v[12:13], v8, s[8:11], s26 offen")
        if self.diag:
            a("s_mov_b64 exec, -1\ns_waitcnt vmcnt(0) lgkmcnt(0)")
            self.stamp(19)
            a("s_lshl_b32 s26, s2, 3\ns_add_u32 s26, s26, s22\ns_lshl_b32 s26, s26, 7\ns_add_u32 s26, s26, 0x200000\nv_mov_b32 v8, 0\ns_mov_b64 exec, 1")
            for k in range(0, 20, 4):
                for i in range(4): a(f"v_mov_b32 v{12+i}, s{self.STS[k+i]}")
                a(f"buffer_store_dwordx4 v[12:15], v8, s[4:7], s26 offen offset:{4*k}")
            a("s_waitcnt vmcnt(0)")
        a("L_end:")
        hdr = open("interleave_layers__sliding_block_cached__glu_gated_swiglu__decode.s.ref").read().split("\n")
        top = [l for l in hdr if l.startswith(";") and "@launch" not in l]
        out = "\n".join(top) + f"\n; @launch grid=({NWG},1,1) block=(512,1,1) lds=16384\n"
        out += f'.amdgcn_target "amdgcn-amd-amdhsa--gfx950"\n.text\n.globl {NAME}\n.p2align 8\n.type {NAME},@function\n{NAME}:\n'
        out += a.text()
        out += f"""s_endpgm
.section .rodata,"a"
.p2align 6
.amdhsa_kernel {NAME}
  .amdhsa_next_free_vgpr 256
  .amdhsa_next_free_sgpr 102
  .amdhsa_accum_offset 256
  .amdhsa_group_segment_fixed_size 0
  .amdhsa_kernarg_size 96
  .amdhsa_user_sgpr_count 2
  .amdhsa_user_sgpr_kernarg_segment_ptr 1
  .amdhsa_system_sgpr_workgroup_id_x 1
.end_amdhsa_kernel
"""
        return out

if __name__ == "__main__":
    opts = {}
    for x in sys.argv[3:]:
        k, v = x.split("=")
        opts[k] = int(v) if v.lstrip("-").isdigit() else v
    if sys.argv[1] != "-": open(sys.argv[1], "w").write(G(False, opts).build())
    if len(sys.argv) > 2 and sys.argv[2] != "-": open(sys.argv[2], "w").write(G(True, opts).build())
```

```python
import sys
from asmlib import Asm
NAME = "interleave_layers__sliding_block_cached__glu_gated_swiglu__decode_kernel"
CH = 16384
C_FLAG, C_H1, C_H2O, C_H2M, C_H3, C_XR2, C_H4, C_XR1, C_XR3, C_PR = 1, 3, 8, 72, 88, 96, 97, 105, 106, 107
NQ, NA, NW, NF = 64, 128, 32, 28
ID_Q, ID_A, ID_W, ID_F = 1, 65, 193, 225
NWG = 253
TMO = 20000
LOG2E = 1.4426950408889634
import struct
def f2u(x): return struct.unpack("<I", struct.pack("<f", x))[0]

class G:
    def __init__(self, diag=False, opts=None):
        self.a = Asm(); self.diag = diag; self.o = opts or {}
        self.nst = 0
    STS = list(range(56, 64)) + list(range(88, 100))
    def stamp(self, k):
        if not self.diag: return
        if self.o.get("lite") and k not in (0, 1, 4, 8, 9, 19): return
        self.a(f"s_memrealtime s[54:55]\ns_waitcnt lgkmcnt(0)\ns_mov_b32 s{self.STS[k]}, s54")
    def stamp_l(self, k0, k1):
        if not self.diag: return
        if self.o.get("lite"): return
        self.a(f"s_memrealtime s[54:55]\ns_waitcnt lgkmcnt(0)\ns_cmp_eq_u32 s23, 1\ns_cselect_b32 s{self.STS[k1]}, s54, s{self.STS[k1]}\ns_cmp_eq_u32 s23, 0\ns_cselect_b32 s{self.STS[k0]}, s54, s{self.STS[k0]}")
    def srd(self, d, p, nbytes, off_s=None):
        a = self.a
        if off_s is None:
            a(f"s_mov_b32 s{d}, s{p}\ns_mov_b32 s{d+1}, s{p+1}")
        else:
            a(f"s_add_u32 s{d}, s{p}, s{off_s}\ns_addc_u32 s{d+1}, s{p+1}, 0")
        a(f"s_mov_b32 s{d+2}, {nbytes}\ns_mov_b32 s{d+3}, 0x20000")
    def timeout(self):
        self.a(f"s_add_u32 s25, s25, 1\ns_cmp_gt_u32 s25, {TMO}\ns_cbranch_scc1 L_exit")
    def masks(self):
        a = self.a
        a("""
        v_and_b32 v8, 4, v1
        v_cmp_eq_u32 vcc, 0, v8
        v_mov_b32 v9, 0xffff
        v_cndmask_b32 v3, 0, v9, vcc
        v_xor_b32 v4, v3, v9
        v_lshlrev_b32 v5, 16, v3
        v_lshlrev_b32 v6, 16, v4
        v_and_b32 v8, 3, v1
        v_mul_u32_u24 v7, 17425, v8
        v_xor_b32 v8, 1, v8
        v_mul_u32_u24 v8, 4420, v8
        v_add_u32 v7, v7, v8
        """)
    def abuild(self, dst, src):
        for d in range(4):
            self.a(f"v_and_b32 v{dst+d}, v{src}, v{3+d}")
    def epoch_load(self):
        self.a("v_mov_b32 v8, 0\nbuffer_load_dword v9, v8, s[4:7], 0 offen sc1\nv_mov_b32 v12, -1\nv_mov_b32 v13, -1\nv_mov_b32 v14, -1\nv_mov_b32 v15, -1")
    def reset1k(self, sbase):
        a = self.a
        a(f"buffer_store_dwordx4 v[12:15], v10, s[4:7], s{sbase} offen sc1")
        a(f"s_add_u32 s31, s{sbase}, 8192")
        a(f"buffer_store_dwordx4 v[12:15], v10, s[4:7], s31 offen sc1")
    def flag_store(self, nleft, xor_s=None):
        a = self.a
        a(f"s_waitcnt vmcnt({nleft})")
        a("v_readfirstlane_b32 s24, v9")
        a("s_mul_i32 s24, s24, 0x9E3779B1\ns_add_u32 s24, s24, 0x7F4A7C15")
        if xor_s is not None: a(f"s_xor_b32 s24, s24, s{xor_s}")
        a(f"""
        s_lshr_b32 s26, s2, 7
        s_lshl_b32 s26, s26, 14
        s_and_b32 s27, s2, 127
        s_lshl_b32 s27, s27, 6
        s_add_u32 s26, s26, s27
        s_add_u32 s26, s26, {C_FLAG*CH}
        v_mov_b32 v8, 0
        v_mov_b32 v11, s24
        s_mov_b64 exec, 1
        buffer_store_dword v11, v8, s[4:7], s26 offen sc1
        s_mov_b64 exec, -1
        """)
    def flag_poll(self, tagn, first_s, n, extra_id=None):
        a = self.a
        a(f"v_add_u32 v8, s{first_s}, v0")
        nl = n
        if extra_id is not None:
            a(f"v_cmp_eq_u32 vcc, {n}, v0\nv_mov_b32 v11, {extra_id}\nv_cndmask_b32 v8, v8, v11, vcc")
            nl = n + 1
        a(f"v_cmp_ne_u32 vcc, {nl}, v0\nv_cndmask_b32 v8, 0, v8, vcc\nv_cndmask_b32_e64 v9, 1, 0, vcc")
        cl = nl; nl += 1
        a(f"""
        v_lshrrev_b32 v11, 7, v8
        v_lshlrev_b32 v11, 14, v11
        v_and_b32 v8, 127, v8
        v_lshl_add_u32 v8, v8, 6, v11
        s_mov_b32 s26, {C_FLAG*CH}
        s_mov_b32 s25, 0
        s_mov_b32 exec_lo, {hex(((1 << nl) - 1) & 0xffffffff)}
        s_mov_b32 exec_hi, {hex(((1 << nl) - 1) >> 32)}
        L_fp_{tagn}:
        buffer_load_dword v11, v8, s[4:7], s26 offen sc1
        """)
        self.timeout()
        a(f"""
        s_waitcnt vmcnt(0)
        v_xor_b32 v11, s24, v11
        v_cmp_gt_u32 vcc, v11, v9
        s_cbranch_vccnz L_fp_{tagn}
        v_readlane_b32 s26, v11, {cl}
        s_mov_b64 exec, -1
        s_lshl_b32 s26, s26, 13
        s_xor_b32 s20, s20, s26
        """)
    def tag_from_lds(self, addr):
        self.a(f"v_mov_b32 v8, {addr}\nds_read_b32 v9, v8\ns_waitcnt lgkmcnt(0)\nv_readfirstlane_b32 s24, v9")
    def front_setup(self, c_src, c_xr):
        a = self.a
        a(f"""
        s_mov_b32 s50, 0x00ff00ff
        s_mov_b32 s51, 0xff00ff00
        s_mov_b32 s48, 0
        s_mov_b32 s49, -1
        s_cmp_eq_u32 s22, 3
        s_cselect_b32 s28, 0x00ff00ff, -1
        s_mov_b32 s29, s28
        s_lshl_b32 s26, s22, 8
        v_lshlrev_b32 v8, 10, v2
        v_lshl_add_u32 v8, v1, 4, v8
        v_add_u32 v16, s26, v8
        v_add_u32 v18, s26, v14
        s_add_u32 s27, s26, {c_xr*CH}
        v_add_u32 v17, s27, v14
        v_lshrrev_b32 v11, 3, v0
        v_lshl_add_u32 v19, v11, 5, s26
        v_lshlrev_b32 v8, 14, v11
        v_and_b32 v9, 7, v0
        v_lshl_add_u32 v8, v9, 10, v8
        s_add_u32 s27, s26, {c_src*CH}
        v_add_u32 v13, s27, v8
        v_lshrrev_b32 v11, 3, v1
        v_lshlrev_b32 v11, 8, v11
        v_and_b32 v12, 7, v1
        v_lshl_add_u32 v11, v12, 5, v11
        v_and_b32 v12, 1, v2
        v_lshl_add_u32 v11, v12, 4, v11
        s_lshl_b32 s26, s22, 9
        s_add_u32 s26, s26, 1024
        v_add_u32 v20, s26, v11
        s_lshl_b32 s26, s22, 3
        s_add_u32 s26, s26, {1024+4096}
        v_lshrrev_b32 v8, 5, v0
        v_lshl_add_u32 v21, v8, 2, s26
        v_and_b32 v92, 0x3f803f80, v3
        v_and_b32 v93, 0x3f803f80, v4
        v_and_b32 v94, 0x3f803f80, v5
        v_and_b32 v95, 0x3f803f80, v6
        v_mov_b32 v22, 0
        """)
        for i in range(32): a(f"v_mov_b32 v{60+i}, 0")
        for i in range(8):
            a(f"s_mov_b32 s{32+i}, {c_src*CH + (i>>1)*CH + (i&1)*4096}")
    def add_side(self, src):
        self.a(f"v_add_u32 v16, {src}, v16\nv_add_u32 v17, {src}, v17\nv_add_u32 v13, {src}, v13")
    def r16_loads(self, srd, reg, rowstride, vaddr, pace=0, npace=99):
        for s in range(8):
            for hf in range(2):
                self.a(f"s_mov_b32 s26, {(64*hf + 2*s)*rowstride}")
                r = reg + 8*s + 4*hf
                if pace and 2*s + hf <= npace: self.a(f"s_waitcnt vmcnt({pace-1})")
                self.a(f"buffer_load_dwordx4 v[{r}:{r+3}], v{vaddr}, s[{srd}:{srd+3}], s26 offen nt")
    def r16_addr(self, vdst, rowstride):
        self.a(f"""
        v_lshrrev_b32 v8, 1, v2
        v_lshrrev_b32 v9, 3, v1
        v_lshl_add_u32 v8, v8, 1, v9
        v_and_b32 v9, 1, v2
        v_lshl_add_u32 v8, v8, 4, v9
        s_lshl_b32 s26, s22, 7
        v_add_u32 v8, s26, v8
        v_mul_u32_u24 v8, {rowstride}, v8
        v_and_b32 v9, 7, v1
        v_lshl_add_u32 v{vdst}, v9, 4, v8
        """)
    def x_load(self):
        self.a("""
        v_and_b32 v8, 1, v2
        v_lshlrev_b32 v8, 3, v8
        v_lshl_add_u32 v8, v1, 4, v8
        v_lshrrev_b32 v9, 1, v2
        v_lshl_add_u32 v14, v9, 2, v8
        s_lshl_b32 s26, s22, 8
        buffer_load_dword v25, v14, s[16:19], s26 offen
        """)
    def gather(self, tagn, nld, xr_cond):
        a = self.a
        mode = self.o.get("pre", "any")
        a("s_mov_b32 s25, 0")
        if mode != "none":
            a(f"s_mov_b32 exec_lo, {hex(0xffffffff if nld == 8 else 0x0fffffff)}\ns_mov_b32 exec_hi, 0")
            a(f"L_gl_{tagn}:\nbuffer_load_dword v54, v13, s[4:7], 0 offen sc1")
            self.timeout()
            a("s_waitcnt vmcnt(0)")
            if isinstance(mode, int):
                a(f"v_cmp_ne_u32 vcc, -1, v54\ns_bcnt1_i32_b32 s26, vcc_lo\ns_cmp_lt_u32 s26, {mode * 4 * nld // 32}\ns_cbranch_scc1 L_gl_{tagn}")
            elif mode == "all": a(f"v_cmp_eq_u32 vcc, -1, v54\ns_cbranch_vccnz L_gl_{tagn}")
            else: a(f"v_cmp_ne_u32 vcc, -1, v54\ns_cbranch_vccz L_gl_{tagn}")
        def loads(pol, t):
            a("s_mov_b64 exec, s[28:29]")
            if xr_cond:
                a(f"s_cmp_eq_u32 s23, 0\ns_cbranch_scc1 L_gx{t}_{tagn}")
            a("buffer_load_dword v22, v17, s[4:7], 0 offen sc1")
            if xr_cond: a(f"L_gx{t}_{tagn}:")
            for i in range(nld):
                a(f"buffer_load_dwordx4 v[{60+4*i}:{63+4*i}], v16, s[4:7], s{32+i} offen {pol}")
        if self.o.get("l2"):
            loads({1: "", 2: "sc0"}[self.o["l2"]], "a")
            a(f"s_branch L_gc_{tagn}")
        a(f"L_gp_{tagn}:")
        loads("sc1", "")
        a(f"L_gc_{tagn}:")
        a("s_mov_b64 exec, -1")
        self.timeout()
        a("v_mov_b32 v42, 0\nv_mov_b32 v43, 0\nv_mov_b32 v44, 0\nv_mov_b32 v45, 0")
        for i in range(0, 8, 2):
            a(f"s_waitcnt vmcnt({max(0, nld-2-i)})")
            r = 60 + 4*i
            a(f"v_smfmac_f32_16x16x64_bf16 v[42:45], v[92:95], v[{r}:{r+7}], v7")
            a(f"v_max3_u32 v54, v{22 if i == 0 else 54}, v{r}, v{r+4}")
            if i == 0: a("v_lshlrev_b32 v52, 16, v22\nv_and_b32 v53, 0xffff0000, v22")
        a(f"v_cmp_eq_u32 vcc, -1, v54\ns_cbranch_vccnz L_gp_{tagn}")
        a("""
        v_cndmask_b32 v50, v42, v44, s[48:49]
        v_cndmask_b32 v51, v43, v45, s[48:49]
        v_cvt_pk_bf16_f32 v55, v50, v51
        v_lshlrev_b32 v50, 16, v55
        v_and_b32 v51, 0xffff0000, v55
        v_pk_add_f32 v[50:51], v[50:51], v[52:53]
        v_cvt_pk_bf16_f32 v24, v50, v51
        """)
    def front_gemv(self, two, cs=False):
        a = self.a
        a("""
        ds_write_b32 v18, v24
        v_lshlrev_b32 v50, 16, v24
        v_and_b32 v51, 0xffff0000, v24
        v_mov_b32 v42, 0
        v_mov_b32 v43, 0
        s_waitcnt lgkmcnt(0)
        ds_read_b128 v[26:29], v19
        ds_read_b128 v[30:33], v19 offset:16
        v_add_f32 v55, v50, v51
        v_mul_f32 v56, v50, v50
        v_fmac_f32 v56, v51, v51
        v_mov_b32 v44, 0
        v_mov_b32 v45, 0
        """)
        if two: a("v_mov_b32 v46, 0\nv_mov_b32 v47, 0\nv_mov_b32 v48, 0\nv_mov_b32 v49, 0")
        a("v_permlane32_swap_b32 v55, v56\nv_add_f32 v55, v55, v56")
        a("s_and_b32 s26, s23, 1\ns_mul_i32 s26, s26, 4352\nv_add_u32 v8, s26, v20\nv_add_u32 v9, s26, v21")
        a("s_waitcnt lgkmcnt(1)")
        self.abuild(34, 26)
        fill = ["v_mov_b32 v56, v55", None, "v_permlane16_swap_b32 v55, v56\nv_add_f32 v55, v55, v56",
                "v_add_f32_dpp v55, v55, v55 row_ror:8 row_mask:0xf bank_mask:0xf", "v_add_f32_dpp v55, v55, v55 row_ror:4 row_mask:0xf bank_mask:0xf",
                "v_add_f32_dpp v55, v55, v55 row_ror:2 row_mask:0xf bank_mask:0xf", "v_add_f32_dpp v55, v55, v55 row_ror:1 row_mask:0xf bank_mask:0xf",
                "s_mov_b32 exec_lo, 1\ns_mov_b32 exec_hi, 1\nds_write_b32 v9, v55\ns_mov_b64 exec, s[50:51]"]
        for s in range(8):
            A = 34 + 4*(s & 1)
            if s == 3: a("s_waitcnt lgkmcnt(0)")
            if s < 7: self.abuild(34 + 4*((s+1) & 1), 26 + s + 1)
            a(f"v_smfmac_f32_16x16x64_bf16 v[42:45], v[{A}:{A+3}], v[{128+8*s}:{135+8*s}], v7")
            if two: a(f"v_smfmac_f32_16x16x64_bf16 v[46:49], v[{A}:{A+3}], v[{192+8*s}:{199+8*s}], v7")
            if fill[s]: a(fill[s])
        a("ds_write_b128 v8, v[42:45]")
        if two: a("ds_write_b128 v8, v[46:49] offset:2048")
        if cs:
            a("s_cmp_eq_u32 s23, 0\ns_cbranch_scc0 L_ncs\ns_mov_b64 exec, -1\nv_mov_b32 v46, 0\nv_mov_b32 v47, 0\nv_mov_b32 v48, 0\nv_mov_b32 v49, 0")
            for s in range(8): a(f"v_smfmac_f32_16x16x64_bf16 v[46:49], v[92:95], v[{128+8*s}:{135+8*s}], v7")
            a("s_mov_b64 exec, s[50:51]\nds_write_b128 v8, v[46:49] offset:2048\nL_ncs:")
        a("s_mov_b64 exec, -1\ns_waitcnt lgkmcnt(0)\ns_barrier")
    def xr_publish(self, sofs_expr):
        self.a(f"""
        v_subrev_u32 v8, s20, v17
        v_min_u32 v9, -2, v24
        {sofs_expr}
        v_add_u32 v8, s26, v8
        s_mov_b32 s26, 8192
        s_mov_b64 exec, s[28:29]
        buffer_store_dword v9, v8, s[4:7], 0 offen sc1
        buffer_store_dword v9, v8, s[4:7], s26 offen sc1
        s_mov_b64 exec, -1
        """)
    def back_reduce(self, two, base, ro):
        a = self.a
        a(f"ds_read_b128 v[{ro+16}:{ro+19}], v{base+1}\nds_read_b128 v[{ro+20}:{ro+23}], v{base+1} offset:16")
        for m in range(2 if two else 1):
            for k in range(4):
                a(f"ds_read2st64_b32 v[{ro+8*m+2*k}:{ro+8*m+2*k+1}], v{base} offset0:{8*m+2*k} offset1:{8*m+2*k+1}")
    def ln_scalars(self, ro, nrest):
        a = self.a
        t = ro + 16
        a(f"""
        s_waitcnt lgkmcnt({nrest})
        v_pk_add_f32 v[{t}:{t+1}], v[{t}:{t+1}], v[{t+2}:{t+3}]
        v_pk_add_f32 v[{t+4}:{t+5}], v[{t+4}:{t+5}], v[{t+6}:{t+7}]
        v_pk_add_f32 v[{t}:{t+1}], v[{t}:{t+1}], v[{t+4}:{t+5}]
        v_mul_f32 v{t}, {hex(f2u(1.0/448))}, v{t}
        v_mul_f32 v{t+1}, {hex(f2u(1.0/448))}, v{t+1}
        v_fma_f32 v{t+1}, -v{t}, v{t}, v{t+1}
        v_max_f32 v{t+1}, 0, v{t+1}
        v_cvt_pk_bf16_f32 v{t+2}, v{t}, v{t+1}
        v_lshlrev_b32 v{t}, 16, v{t+2}
        v_and_b32 v{t+1}, 0xffff0000, v{t+2}
        v_add_f32 v{t+1}, {hex(f2u(1e-5))}, v{t+1}
        v_cvt_pk_bf16_f32 v{t+1}, v{t+1}, v{t+1}
        v_and_b32 v{t+1}, 0xffff0000, v{t+1}
        v_sqrt_f32 v{t+1}, v{t+1}
        v_cvt_pk_bf16_f32 v{t+1}, v{t+1}, v{t+1}
        v_and_b32 v{t+1}, 0xffff0000, v{t+1}
        v_rcp_f32 v{t+1}, v{t+1}
        """)
    def sum8(self, r):
        self.a(f"""
        v_pk_add_f32 v[{r}:{r+1}], v[{r}:{r+1}], v[{r+2}:{r+3}]
        v_pk_add_f32 v[{r+4}:{r+5}], v[{r+4}:{r+5}], v[{r+6}:{r+7}]
        v_pk_add_f32 v[{r}:{r+1}], v[{r}:{r+1}], v[{r+4}:{r+5}]
        v_add_f32 v{r}, v{r}, v{r+1}
        """)
    def r8_addr(self, vdst, NS, wv):
        self.a(f"""
        v_lshrrev_b32 v8, 1, v2
        v_mul_u32_u24 v8, {2*NS}, v8
        v_and_b32 v9, 1, v2
        v_add_u32 v8, v8, v9
        v_mul_u32_u24 v8, 896, v8
        v_lshl_add_u32 v8, v1, 4, v8
        s_lshl_b32 s26, s{wv}, 8
        v_add_u32 v{vdst}, s26, v8
        s_cmp_eq_u32 s{wv}, 3
        s_cselect_b32 s28, 0x00ff00ff, -1
        s_mov_b32 s29, s28
        """)
    def r8_loads(self, NS, srd, vaddr, reg, pace=0, npace=99):
        a = self.a
        a("s_mov_b64 exec, s[28:29]")
        for s in range(NS):
            for hf in range(2):
                a(f"s_mov_b32 s26, {(4*NS*hf + 2*s)*896}")
                r = reg + 8*s + 4*hf
                if pace and 2*s + hf <= npace: a(f"s_waitcnt vmcnt({pace-1})")
                a(f"buffer_load_dwordx4 v[{r}:{r+3}], v{vaddr}, s[{srd}:{srd+3}], s26 offen nt")
        a("s_mov_b64 exec, -1")
    def r8_pub_addr(self, vdst, wv, sslot):
        self.a(f"""
        v_lshrrev_b32 v9, 1, v2
        v_lshlrev_b32 v9, 13, v9
        v_lshl_add_u32 v8, v1, 4, v9
        s_lshl_b32 s26, s{wv}, 8
        s_add_u32 s26, s26, s{sslot}
        v_add_u32 v{vdst}, s26, v8
        s_and_b32 s46, s28, 0xffff
        s_mov_b32 s47, s46
        """)
    def r8_gemv(self, NS, X, reg, vpub, sofs):
        a = self.a
        a("v_mov_b32 v42, 0\nv_mov_b32 v43, 0\nv_mov_b32 v44, 0\nv_mov_b32 v45, 0")
        nrd = NS // 4
        a(f"s_waitcnt lgkmcnt({nrd-1})")
        self.abuild(34, X)
        for s in range(NS):
            A = 34 + 4*(s & 1)
            if s + 1 < NS:
                if (s + 1) % 4 == 0: a(f"s_waitcnt lgkmcnt({nrd - 1 - (s+1)//4})")
                self.abuild(34 + 4*((s+1) & 1), X + s + 1)
            a(f"v_smfmac_f32_16x16x64_bf16 v[42:45], v[{A}:{A+3}], v[{reg+8*s}:{reg+8*s+7}], v7")
        a(f"""
        v_cvt_pk_bf16_f32 v46, v42, v43
        v_cvt_pk_bf16_f32 v48, v42, v43
        v_cvt_pk_bf16_f32 v47, v44, v45
        v_cvt_pk_bf16_f32 v49, v44, v45
        v_permlane16_swap_b32 v46, v48
        v_permlane16_swap_b32 v47, v49
        s_mov_b64 exec, s[46:47]
        v_min_u32 v46, -2, v46
        buffer_store_dwordx4 v[46:49], v{vpub}, s[4:7], s{sofs} offen sc1
        s_mov_b64 exec, -1
        """)

    def role_q(self):
        a = self.a
        a(f"L_Q:\ns_sub_u32 s21, s2, {ID_Q}")
        a("s_cmp_gt_u32 s22, 4\ns_cbranch_scc1 L_exit\ns_cmp_eq_u32 s22, 4\ns_cbranch_scc1 L_Qh")
        self.srd(16, 64, 896)
        a("s_lshl_b32 s27, s21, 7")
        self.srd(8, 70, 448*8192 - 0, off_s=27)
        a("s_sub_u32 s10, s10, s27")
        self.x_load()
        self.r16_addr(15, 8192)
        if self.o.get("hb", 0) & 2: a("s_barrier")
        self.r16_loads(8, 128, 8192, 15)
        self.stamp(10)
        self.masks()
        self.front_setup(C_H4, C_XR1)
        a(f"v_lshlrev_b32 v58, 2, v0\nv_add_u32 v58, 1024, v58")
        a(f"s_lshr_b32 s26, s21, 5\ns_lshl_b32 s26, s26, 14\ns_and_b32 s27, s21, 31\ns_lshl_b32 s27, s27, 8\ns_add_u32 s26, s26, s27\ns_add_u32 s26, s26, {C_H1*CH}\nv_lshl_add_u32 v59, v0, 2, s26\nv_mov_b32 v99, 12288")
        a("s_mov_b32 s23, 0\ns_waitcnt vmcnt(0)\nv_mov_b32 v24, v25")
        self.stamp(1)
        a("s_branch L_Qg")
        a("L_Qloop:")
        self.tag_from_lds(12288)
        a(f"s_mov_b32 s27, {ID_F}")
        self.flag_poll("q", 27, NF)
        self.add_side("s20")
        self.gather("q", 7, False)
        self.stamp(5)
        a("L_Qg:")
        self.front_gemv(False, cs=True)
        self.stamp_l(2, 6)
        a("s_cmp_eq_u32 s22, 0\ns_cbranch_scc0 L_Qnext")
        a(f"s_and_b32 s26, s23, 1\ns_mul_i32 s26, s26, 4352\nv_add_u32 v10, s26, v58\ns_add_u32 s26, s26, {1024+4096}\nv_mov_b32 v11, s26")
        a("s_cmp_eq_u32 s23, 0\ns_cbranch_scc0 L_Qr\nds_read_b32 v125, v99")
        for k in range(4): a(f"ds_read2st64_b32 v[{108+2*k}:{109+2*k}], v10 offset0:{8+2*k} offset1:{9+2*k}")
        a("s_waitcnt lgkmcnt(0)")
        self.sum8(108)
        a("v_mov_b32 v57, v108\nL_Qr:")
        self.back_reduce(False, 10, 100)
        self.ln_scalars(100, 4)
        a("s_waitcnt lgkmcnt(0)")
        self.sum8(100)
        a("""
        v_fma_f32 v100, -v116, v57, v100
        v_mul_f32 v100, v100, v117
        s_lshl_b32 s26, s23, 15
        s_add_u32 s27, s26, 8192
        v_mov_b32_dpp v101, v100 quad_perm:[1,0,3,2] row_mask:0xf bank_mask:0xf
        s_mov_b32 exec_lo, 0x55555555
        s_mov_b32 exec_hi, 0x55555555
        v_cvt_pk_bf16_f32 v124, v100, v101
        buffer_store_dwordx2 v[124:125], v59, s[4:7], s26 offen sc1
        buffer_store_dwordx2 v[124:125], v59, s[4:7], s27 offen sc1
        s_mov_b64 exec, -1
        """)
        self.stamp_l(3, 7)
        a("L_Qnext:\ns_add_u32 s23, s23, 1\ns_cmp_lt_i32 s23, 2\ns_cbranch_scc1 L_Qloop")
        a("s_cmp_eq_u32 s21, 0\ns_cbranch_scc0 L_Qnx")
        self.xr_publish(f"s_mov_b32 s26, {(C_XR2-C_XR1)*CH & 0xffffffff}")
        a("L_Qnx:")
        a("s_cmp_lt_u32 s21, 7\ns_cbranch_scc0 L_exit\ns_cmp_eq_u32 s22, 0\ns_cbranch_scc0 L_exit")
        self.srd(16, 82, 896)
        a(f"""
        v_lshrrev_b32 v8, 3, v0
        v_lshlrev_b32 v8, 10, v8
        v_and_b32 v9, 7, v0
        v_lshl_add_u32 v8, v9, 4, v8
        s_lshl_b32 s26, s21, 7
        s_add_u32 s27, s26, s20
        v_add_u32 v16, s27, v8
        v_add_u32 v97, s26, v14
        s_add_u32 s27, s27, {C_XR3*CH}
        v_add_u32 v17, s27, v14
        v_mov_b32 v22, 0
        v_mov_b32 v72, 0
        v_mov_b32 v73, 0
        v_mov_b32 v74, 0
        v_mov_b32 v75, 0
        s_mov_b32 s32, {(C_H4+4)*CH}
        s_mov_b32 s33, {(C_H4+5)*CH}
        s_mov_b32 s34, {(C_H4+6)*CH}
        s_mov_b32 s35, {(C_H4+7)*CH}
        s_mov_b32 s28, 0x00ff00ff
        s_mov_b32 s29, 0x00ff00ff
        s_mov_b32 s25, 0
        L_Fp:
        s_mov_b64 exec, s[28:29]
        buffer_load_dword v22, v17, s[4:7], 0 offen sc1
        s_mov_b64 exec, -1
        buffer_load_dwordx4 v[60:63], v16, s[4:7], s32 offen sc1
        buffer_load_dwordx4 v[64:67], v16, s[4:7], s33 offen sc1
        buffer_load_dwordx4 v[68:71], v16, s[4:7], s34 offen sc1
        s_mov_b32 exec_hi, 0
        buffer_load_dwordx4 v[72:75], v16, s[4:7], s35 offen sc1
        s_mov_b64 exec, -1
        """)
        self.timeout()
        a("""
        v_mov_b32 v42, 0
        v_mov_b32 v43, 0
        v_mov_b32 v44, 0
        v_mov_b32 v45, 0
        s_waitcnt vmcnt(2)
        v_smfmac_f32_16x16x64_bf16 v[42:45], v[92:95], v[60:67], v7
        v_max3_u32 v54, v22, v60, v64
        v_lshlrev_b32 v52, 16, v22
        v_and_b32 v53, 0xffff0000, v22
        s_waitcnt vmcnt(0)
        v_smfmac_f32_16x16x64_bf16 v[42:45], v[92:95], v[68:75], v7
        v_max3_u32 v54, v54, v68, v72
        v_cmp_eq_u32 vcc, -1, v54
        s_cbranch_vccnz L_Fp
        v_cndmask_b32 v50, v42, v44, s[48:49]
        v_cndmask_b32 v51, v43, v45, s[48:49]
        v_add_f32_dpp v50, v50, v50 row_ror:8 row_mask:0xf bank_mask:0xf
        v_add_f32_dpp v51, v51, v51 row_ror:8 row_mask:0xf bank_mask:0xf
        v_cvt_pk_bf16_f32 v55, v50, v51
        v_lshlrev_b32 v50, 16, v55
        v_and_b32 v51, 0xffff0000, v55
        v_pk_add_f32 v[50:51], v[50:51], v[52:53]
        v_cvt_pk_bf16_f32 v50, v50, v51
        s_mov_b64 exec, s[28:29]
        buffer_store_dword v50, v97, s[16:19], 0 offen
        """)
        self.stamp(8)
        a("s_cmp_eq_u32 s21, 0\ns_cbranch_scc0 L_exit\nv_mov_b32 v9, s24\nv_mov_b32 v8, 0\ns_mov_b64 exec, 1\nbuffer_store_dword v9, v8, s[4:7], 0 offen sc1\ns_branch L_exit")
        a("L_Qh:")
        self.epoch_load()
        a(f"""
        v_lshlrev_b32 v10, 4, v0
        s_cmp_eq_u32 s21, 0
        s_cbranch_scc0 L_Qh1
        s_mov_b32 s30, {C_XR2*CH}
        """)
        self.reset1k(30)
        a("L_Qh1:")
        if self.o.get("hb", 0) & 2: a("s_barrier")
        self.flag_store(0)
        a("v_mov_b32 v16, 12288\nds_write_b32 v16, v11\ns_waitcnt lgkmcnt(0)\ns_branch L_exit")

    def role_f(self):
        a = self.a
        a(f"L_F:\ns_sub_u32 s21, s2, {ID_F}")
        a("s_cmp_gt_u32 s22, 3\ns_cbranch_scc1 L_Fb")
        self.srd(16, 64, 896)
        a("s_lshl_b32 s27, s21, 7")
        self.srd(8, 76, 448*3584, off_s=27)
        a("s_sub_u32 s10, s10, s27")
        self.srd(12, 78, 448*3584, off_s=27)
        a("s_sub_u32 s14, s14, s27")
        self.x_load()
        self.r16_addr(15, 3584)
        if self.o.get("gatef") or self.o.get("hb", 0) & 8: a("s_barrier")
        self.r16_loads(8, 128, 3584, 15, self.o.get("pf", 0), self.o.get("pfn", 99))
        self.r16_loads(12, 192, 3584, 15, self.o.get("pf", 0), self.o.get("pfn", 99) - 16)
        self.stamp(10)
        self.masks()
        self.front_setup(C_H3, C_XR2)
        a("s_mov_b32 s23, -1\nv_mov_b32 v24, 0x3f803f80\ns_waitcnt vmcnt(0)\nv_mov_b32 v22, v25")
        self.stamp(1)
        a("s_branch L_Fg")
        a("L_Floop:")
        self.gather("f", 8, True)
        self.stamp_l(2, 5)
        a("L_Fg:")
        self.front_gemv(True)
        self.stamp_l(3, 6)
        a("s_cmp_eq_u32 s23, -1\ns_cbranch_scc0 L_Fn1")
        a("v_mov_b32 v8, 12288\nds_read_b32 v9, v8\ns_waitcnt lgkmcnt(0)\nv_readfirstlane_b32 s20, v9")
        self.add_side("v9")
        a("s_mov_b32 s23, 0\ns_branch L_Floop")
        a("L_Fn1:\ns_cmp_eq_u32 s21, 0\ns_cbranch_scc0 L_Fnx")
        self.xr_publish(f"s_lshl_b32 s26, s23, 14\ns_add_u32 s26, s26, {(C_XR1-C_XR2)*CH}")
        a("L_Fnx:")
        a(f"v_add_u32 v16, {4*CH}, v16\nv_add_u32 v13, {4*CH}, v13")
        a("s_add_u32 s23, s23, 1\ns_cmp_lt_i32 s23, 2\ns_cbranch_scc1 L_Floop\ns_branch L_exit")
        a("L_Fb:\ns_sub_u32 s30, s22, 4")
        a("s_mul_i32 s27, s21, 57344")
        self.srd(8, 80, 57344, off_s=27)
        a(f"""
        s_lshr_b32 s27, s21, 3
        s_lshl_b32 s27, s27, 14
        s_and_b32 s26, s21, 7
        s_lshl_b32 s26, s26, 10
        s_add_u32 s52, s26, s27
        s_add_u32 s52, s52, {C_H4*CH}
        s_cmp_eq_u32 s22, 4
        s_cbranch_scc0 L_Fb1
        """)
        self.epoch_load()
        a("v_lshlrev_b32 v10, 4, v0")
        self.reset1k(52)
        a(f"s_add_u32 s53, s52, {4*CH}")
        self.reset1k(53)
        a(f"s_cmp_eq_u32 s21, 0\ns_cbranch_scc0 L_Fb1\ns_mov_b32 s53, {C_XR1*CH}")
        self.reset1k(53)
        a(f"s_mov_b32 s53, {C_XR3*CH}")
        self.reset1k(53)
        a("L_Fb1:")
        self.r8_addr2(16, 8, 30)
        if self.o.get("gatef"):
            a("s_cmp_eq_u32 s22, 4\ns_cbranch_scc0 L_Fb3")
            self.flag_store(0)
            a("L_Fb3:\ns_barrier")
        elif self.o.get("hb", 0) & 8: a("s_barrier")
        self.r8_loads(8, 8, 16, 128, (self.o.get("pf", 0) + 1) // 2, self.o.get("pfn", 99) // 2)
        a("s_cmp_eq_u32 s22, 4\ns_cbranch_scc0 L_Fb2")
        if not self.o.get("gatef"): self.flag_store(16)
        a(f"s_mov_b32 s27, {ID_W}")
        self.flag_poll("f", 27, NW, extra_id=ID_Q)
        a("v_mov_b32 v8, 12288\nv_mov_b32 v9, s20\nds_write_b32 v8, v9\ns_waitcnt lgkmcnt(0)")
        a("L_Fb2:")
        self.masks()
        self.r8_pub_addr(17, 30, 52)
        a("v_lshlrev_b32 v58, 2, v0\nv_add_u32 v58, 1024, v58")
        a("s_lshl_b32 s26, s30, 7\ns_add_u32 s26, s26, 10240\nv_lshl_add_u32 v18, v0, 1, s26\nv_lshl_add_u32 v19, v2, 5, s26")
        a("s_mov_b32 s23, -1\ns_waitcnt vmcnt(0)")
        self.stamp(1)
        a("L_Fbl:")
        a(f"s_and_b32 s26, s23, 1\ns_mul_i32 s26, s26, 4352\nv_add_u32 v10, s26, v58\ns_add_u32 s26, s26, {1024+4096}\nv_mov_b32 v11, s26\ns_lshl_b32 s27, s23, 16")
        a("s_barrier")
        self.stamp_l(2, 5)
        self.back_reduce(True, 10, 60)
        self.ln_scalars(60, 8)
        a("s_waitcnt lgkmcnt(4)")
        self.sum8(60)
        a("s_waitcnt lgkmcnt(0)")
        self.sum8(68)
        a("s_cmp_eq_u32 s23, -1\ns_cbranch_scc0 L_Fbh\nv_mov_b32 v56, v60\nv_mov_b32 v57, v68\ns_mov_b32 s23, 0\ns_branch L_Fbl")
        a(f"""
        L_Fbh:
        v_fma_f32 v60, -v76, v56, v60
        v_fma_f32 v68, -v76, v57, v68
        v_mul_f32 v60, v60, v77
        v_mul_f32 v68, v68, v77
        v_cvt_pk_bf16_f32 v61, v60, v68
        v_lshlrev_b32 v60, 16, v61
        v_and_b32 v68, 0xffff0000, v61
        v_mul_f32 v61, {hex(f2u(-LOG2E))}, v60
        v_exp_f32 v61, v61
        v_add_f32 v61, 1.0, v61
        v_rcp_f32 v61, v61
        v_mul_f32 v61, v60, v61
        v_cvt_pk_bf16_f32 v61, v61, v61
        v_and_b32 v61, 0xffff0000, v61
        v_mul_f32 v61, v61, v68
        v_cvt_pk_bf16_f32 v61, v61, v61
        ds_write_b16 v18, v61
        s_waitcnt lgkmcnt(0)
        ds_read_b128 v[26:29], v19
        ds_read_b128 v[30:33], v19 offset:16
        """)
        self.stamp_l(3, 6)
        self.r8_gemv(8, 26, 128, 17, 27)
        self.stamp_l(4, 7)
        a("s_add_u32 s23, s23, 1\ns_cmp_lt_i32 s23, 2\ns_cbranch_scc1 L_Fbl\ns_branch L_exit")
    def r8_addr2(self, vdst, NS, wv):
        self.a(f"""
        v_lshrrev_b32 v20, 1, v2
        v_mul_u32_u24 v20, {2*NS}, v20
        v_and_b32 v21, 1, v2
        v_add_u32 v20, v20, v21
        v_mul_u32_u24 v20, 896, v20
        v_lshl_add_u32 v20, v1, 4, v20
        s_lshl_b32 s26, s{wv}, 8
        v_add_u32 v{vdst}, s26, v20
        s_cmp_eq_u32 s{wv}, 3
        s_cselect_b32 s28, 0x00ff00ff, -1
        s_mov_b32 s29, s28
        """)

    def role_w(self):
        a = self.a
        a(f"L_W:\ns_sub_u32 s21, s2, {ID_W}")
        a(f"""
        s_lshr_b32 s27, s21, 2
        s_lshl_b32 s27, s27, 14
        s_and_b32 s26, s21, 3
        s_lshl_b32 s26, s26, 11
        s_add_u32 s53, s26, s27
        s_lshr_b32 s27, s21, 3
        s_lshl_b32 s27, s27, 14
        s_and_b32 s26, s21, 7
        s_lshl_b32 s26, s26, 10
        s_add_u32 s52, s26, s27
        s_add_u32 s52, s52, {C_H3*CH}
        """)
        a("s_cmp_gt_u32 s22, 4\ns_cbranch_scc1 L_exit\ns_cmp_eq_u32 s22, 4\ns_cbranch_scc1 L_Wh")
        a("s_mul_i32 s27, s21, 114688")
        self.srd(8, 72, 114688, off_s=27)
        self.r8_addr(16, 16, 22)
        if self.o.get("gatew") or self.o.get("hb", 0) & 4: a("s_barrier")
        self.r8_loads(16, 8, 16, 128, self.o.get("pw", 0), self.o.get("pwn", 99))
        self.stamp(10)
        self.masks()
        self.r8_pub_addr(17, 22, 52)
        a(f"""
        v_lshrrev_b32 v8, 2, v0
        v_and_b32 v9, 3, v0
        v_lshlrev_b32 v10, 9, v8
        v_lshl_add_u32 v10, v9, 5, v10
        s_lshl_b32 s26, s21, 14
        s_lshl_b32 s27, s22, 7
        s_add_u32 s26, s26, s27
        s_add_u32 s26, s26, {C_H2O*CH}
        v_add_u32 v18, s26, v10
        s_add_u32 s26, s53, {C_H2M*CH}
        v_lshl_add_u32 v19, v8, 7, s26
        v_lshlrev_b32 v10, 4, v9
        v_lshl_add_u32 v10, v2, 2, v10
        s_lshl_b32 s26, s22, 6
        v_add_u32 v20, s26, v10
        v_lshlrev_b32 v21, 6, v2
        s_mov_b32 s23, 0
        s_waitcnt vmcnt(0)
        """)
        self.stamp(1)
        a("v_mov_b32 v8, 512\ns_barrier\nds_read_b32 v9, v8\ns_waitcnt lgkmcnt(0)\nv_add_u32 v18, v9, v18\nv_add_u32 v19, v9, v19")
        a("L_Wl:\ns_mov_b32 s25, 0")
        a(f"s_mul_i32 s30, s23, {32*CH}\ns_lshl_b32 s27, s23, 17\ns_lshl_b32 s31, s23, 16")
        a("""
        L_Wp:
        buffer_load_dwordx2 v[22:23], v19, s[4:7], s27 offen sc1
        buffer_load_dwordx4 v[60:63], v18, s[4:7], s30 offen sc1
        buffer_load_dwordx4 v[64:67], v18, s[4:7], s30 offen offset:16 sc1
        """)
        self.timeout()
        a("""
        s_waitcnt vmcnt(2)
        v_max_f32_dpp v24, v22, v22 row_ror:4 row_mask:0xf bank_mask:0xf
        v_max_f32_dpp v24, v24, v24 row_ror:8 row_mask:0xf bank_mask:0xf
        v_mov_b32 v25, v24
        v_permlane16_swap_b32 v24, v25
        v_max_f32 v24, v24, v25
        v_mov_b32 v25, v24
        v_permlane32_swap_b32 v24, v25
        v_max_f32 v24, v24, v25
        v_sub_f32 v24, v22, v24
        v_exp_f32 v24, v24
        s_waitcnt vmcnt(0)
        v_max3_u32 v54, v22, v60, v64
        v_cmp_eq_u32 vcc, -1, v54
        s_cbranch_vccnz L_Wp
        """)
        self.stamp_l(2, 5)
        a("""
        v_mul_f32 v26, v23, v24
        v_pk_mul_f32 v[60:61], v[60:61], v[24:25] op_sel_hi:[1,0]
        v_pk_mul_f32 v[64:65], v[64:65], v[24:25] op_sel_hi:[1,0]
        v_pk_mul_f32 v[62:63], v[62:63], v[24:25] op_sel_hi:[1,0]
        v_pk_mul_f32 v[66:67], v[66:67], v[24:25] op_sel_hi:[1,0]
        v_add_f32_dpp v26, v26, v26 row_ror:4 row_mask:0xf bank_mask:0xf
        v_permlane32_swap_b32 v60, v64
        v_permlane32_swap_b32 v61, v65
        v_add_f32_dpp v26, v26, v26 row_ror:8 row_mask:0xf bank_mask:0xf
        v_permlane32_swap_b32 v62, v66
        v_permlane32_swap_b32 v63, v67
        v_mov_b32 v27, v26
        v_pk_add_f32 v[60:61], v[60:61], v[64:65]
        v_pk_add_f32 v[62:63], v[62:63], v[66:67]
        v_permlane16_swap_b32 v26, v27
        v_add_f32 v26, v26, v27
        v_permlane16_swap_b32 v60, v62
        v_permlane16_swap_b32 v61, v63
        v_mov_b32 v27, v26
        v_pk_add_f32 v[60:61], v[60:61], v[62:63]
        v_permlane32_swap_b32 v26, v27
        v_add_f32_dpp v60, v60, v60 row_ror:4 row_mask:0xf bank_mask:0xf
        v_add_f32_dpp v61, v61, v61 row_ror:4 row_mask:0xf bank_mask:0xf
        v_add_f32 v26, v26, v27
        v_rcp_f32 v26, v26
        v_add_f32_dpp v60, v60, v60 row_ror:8 row_mask:0xf bank_mask:0xf
        v_add_f32_dpp v61, v61, v61 row_ror:8 row_mask:0xf bank_mask:0xf
        v_pk_mul_f32 v[60:61], v[60:61], v[26:27] op_sel_hi:[1,0]
        v_cvt_pk_bf16_f32 v60, v60, v61
        ds_write_b32 v20, v60
        s_waitcnt lgkmcnt(0)
        s_barrier
        ds_read_b128 v[60:63], v21
        ds_read_b128 v[64:67], v21 offset:16
        ds_read_b128 v[68:71], v21 offset:32
        ds_read_b128 v[72:75], v21 offset:48
        """)
        self.stamp_l(3, 6)
        self.r8_gemv(16, 60, 128, 17, 31)
        self.stamp_l(4, 7)
        a("s_cmp_eq_u32 s23, 1\ns_cbranch_scc1 L_exit\ns_mov_b32 s23, 1\ns_branch L_Wl")
        a("L_Wh:")
        self.epoch_load()
        a("v_lshlrev_b32 v10, 4, v0")
        self.reset1k(52)
        a(f"s_add_u32 s53, s52, {4*CH}")
        self.reset1k(53)
        if self.o.get("hb", 0) & 4 and not self.o.get("gatew"): a("s_barrier")
        self.flag_store(0)
        if self.o.get("gatew"): a("s_barrier")
        a(f"s_lshr_b32 s27, s21, 2\ns_lshl_b32 s27, s27, 4\ns_add_u32 s27, s27, {ID_A}")
        self.flag_poll("w", 27, 16)
        a("v_mov_b32 v8, 512\nv_mov_b32 v9, s20\nds_write_b32 v8, v9\ns_waitcnt lgkmcnt(0)\ns_branch L_exit")

    def role_a(self):
        a = self.a
        a(f"L_A:\ns_sub_u32 s21, s2, {ID_A}\ns_lshr_b32 s52, s21, 4\ns_and_b32 s53, s21, 15")
        a("s_cmp_gt_u32 s22, 4\ns_cbranch_scc1 L_exit\ns_cmp_eq_u32 s22, 4\ns_cbranch_scc1 L_Ah")
        a(f"s_lshl_b32 s27, s52, 22\ns_lshl_b32 s26, s53, 16\ns_add_u32 s27, s27, s26\ns_add_u32 s27, s27, {6144*512}")
        self.srd(8, 66, 65536, off_s=27)
        self.srd(12, 68, 65536, off_s=27)
        a("""
        s_lshl_b32 s26, s22, 14
        v_and_b32 v8, 7, v1
        v_lshlrev_b32 v8, 9, v8
        v_lshl_add_u32 v8, v2, 4, v8
        v_lshrrev_b32 v9, 3, v1
        v_lshl_add_u32 v8, v9, 6, v8
        v_add_u32 v16, s26, v8
        v_lshrrev_b32 v8, 1, v2
        v_and_b32 v9, 1, v2
        v_lshl_add_u32 v8, v8, 2, v9
        v_lshlrev_b32 v8, 9, v8
        v_lshl_add_u32 v8, v1, 4, v8
        v_add_u32 v17, s26, v8
        s_mov_b32 s32, 0
        s_mov_b32 s33, 4096
        s_mov_b32 s34, 8192
        s_mov_b32 s35, 12288
        """)
        KR, VR = 128, 192
        if self.o.get("hb", 0) & 1 or self.o.get("ga"): a("s_barrier")
        for T in range(2):
            for ks in range(8):
                r = KR + 32*T + 4*ks
                a(f"buffer_load_dwordx4 v[{r}:{r+3}], v16, s[8:11], s{32+2*T+(ks&1)} offen offset:{128*(ks>>1)} nt")
        self.stamp(10)
        for T in range(2):
            for aa in range(2):
                for cb in range(2):
                    for hf in range(2):
                        r = VR + ((2*T + aa)*2 + cb)*8 + 4*hf
                        if self.o.get("pace", 1): a("s_waitcnt vmcnt(15)")
                        a(f"buffer_load_dwordx4 v[{r}:{r+3}], v17, s[12:15], s{32+2*T+hf} offen offset:{1024*aa + 256*cb} nt")
        self.masks()
        a(f"""
        v_lshrrev_b32 v8, 3, v1
        v_lshlrev_b32 v8, 9, v8
        v_lshl_add_u32 v18, v2, 4, v8
        v_lshrrev_b32 v8, 1, v2
        v_lshlrev_b32 v8, 10, v8
        v_lshl_add_u32 v8, v1, 5, v8
        v_and_b32 v9, 1, v2
        v_lshl_add_u32 v8, v9, 4, v8
        s_lshl_b32 s26, s22, 11
        s_add_u32 s26, s26, 1024
        v_add_u32 v19, s26, v8
        v_lshrrev_b32 v8, 3, v1
        s_lshl_b32 s26, s22, 3
        s_add_u32 s26, s26, 9216
        v_lshl_add_u32 v20, v8, 5, s26
        v_and_b32 v8, 31, v0
        s_lshl_b32 s26, s22, 9
        s_add_u32 s26, s26, 1024
        v_lshl_add_u32 v21, v8, 4, s26
        s_lshr_b32 s26, s22, 1
        s_lshl_b32 s26, s26, 5
        s_add_u32 s26, s26, 9216
        v_mov_b32 v22, s26
        s_lshl_b32 s26, s52, 2
        s_add_u32 s26, s26, s22
        s_lshl_b32 s27, s26, 14
        s_lshl_b32 s30, s53, 9
        s_add_u32 s27, s27, s30
        s_add_u32 s27, s27, {C_H2O*CH}
        v_lshrrev_b32 v9, 5, v0
        v_lshlrev_b32 v9, 13, v9
        v_lshl_add_u32 v8, v8, 4, v9
        v_add_u32 v23, s27, v8
        s_lshl_b32 s27, s52, 14
        s_lshl_b32 s30, s22, 11
        s_add_u32 s27, s27, s30
        s_lshl_b32 s30, s53, 7
        s_add_u32 s27, s27, s30
        s_add_u32 s27, s27, {C_H2M*CH}
        v_add_u32 v24, s27, v9
        s_mov_b32 s36, {hex(f2u(LOG2E/16))}
        s_mov_b32 s23, 0
        s_waitcnt vmcnt(16)
        """)
        self.stamp(1)
        for pr in range(8):
            X = KR + 8*pr
            for d in range(4): a(f"v_mov_b32_dpp v{60+d}, v{X+d} row_ror:8 row_mask:0xf bank_mask:0xf")
            for d in range(4): a(f"v_mov_b32_dpp v{X+d}, v{X+4+d} row_ror:8 row_mask:0xf bank_mask:0xc")
            for d in range(4): a(f"v_mov_b32_dpp v{X+4+d}, v{60+d} quad_perm:[0,1,2,3] row_mask:0xf bank_mask:0x3")
        if self.o.get("vstamp"):
            a("s_waitcnt vmcnt(0)"); self.stamp(9)
        a("L_Al:\ns_barrier")
        self.stamp_l(2, 6)
        QR = 60
        for ks in range(8):
            a(f"ds_read_b128 v[{QR+4*ks}:{QR+4*ks+3}], v18 offset:{64*ks}")
        for ks in range(8):
            a(f"s_waitcnt lgkmcnt({7-ks})")
            for T in range(2):
                c = "0" if ks == 0 else f"v[{44+4*T}:{47+4*T}]"
                a(f"v_mfma_f32_16x16x32_bf16 v[{44+4*T}:{47+4*T}], v[{KR+32*T+4*ks}:{KR+32*T+4*ks+3}], v[{QR+4*ks}:{QR+4*ks+3}], {c}")
        for i in range(8): a(f"v_mov_b32 v{92+i}, 0")
        for k in range(4): a(f"v_cvt_pk_bf16_f32 v{52+k}, v{44+2*k}, v{45+2*k}")
        for k in range(4): a(f"v_lshlrev_b32 v{44+2*k}, 16, v{52+k}\nv_and_b32 v{45+2*k}, 0xffff0000, v{52+k}")
        a("""
        v_max3_f32 v52, v44, v45, v46
        v_max3_f32 v53, v47, v48, v49
        v_max3_f32 v52, v50, v51, v52
        v_max_f32 v52, v52, v53
        v_mov_b32 v53, v52
        v_permlane32_swap_b32 v52, v53
        v_max_f32 v52, v52, v53
        v_mov_b32 v53, v52
        v_permlane16_swap_b32 v52, v53
        v_max_f32 v52, v52, v53
        v_mul_f32 v56, s36, v52
        """)
        for k in range(8): a(f"v_fma_f32 v{44+k}, v{44+k}, s36, -v56")
        for k in range(8): a(f"v_exp_f32 v{44+k}, v{44+k}")
        for k in range(4): a(f"v_cvt_pk_bf16_f32 v{52+k}, v{44+2*k}, v{45+2*k}")
        self.abuild(34, 52)
        a("s_waitcnt vmcnt(0)")
        self.stamp_l(3, 7)
        fill = ["v_pk_add_f32 v[44:45], v[44:45], v[46:47]\nv_pk_add_f32 v[48:49], v[48:49], v[50:51]",
                "v_pk_add_f32 v[44:45], v[44:45], v[48:49]\nv_add_f32 v57, v44, v45\nv_mov_b32 v58, v57",
                "v_permlane32_swap_b32 v57, v58\nv_add_f32 v57, v57, v58\nv_mov_b32 v58, v57",
                "v_permlane16_swap_b32 v57, v58\nv_add_f32 v57, v57, v58"]
        for n in range(4):
            A = 34 + 4*(n & 1)
            if n < 3: self.abuild(34 + 4*((n+1) & 1), 52 + n + 1)
            for cb in range(2):
                r = VR + (n*2 + cb)*8
                a(f"v_smfmac_f32_16x16x64_bf16 v[{92+4*cb}:{95+4*cb}], v[{A}:{A+3}], v[{r}:{r+7}], v7")
            a(fill[n])
        a("""
        s_mov_b64 exec, 0x101
        ds_write_b64 v20, v[56:57]
        s_mov_b64 exec, -1
        ds_write_b128 v19, v[92:95]
        ds_write_b128 v19, v[96:99] offset:512
        s_waitcnt lgkmcnt(0)
        s_barrier
        ds_read_b128 v[44:47], v22
        ds_read_b128 v[48:51], v22 offset:16
        ds_read_b128 v[60:63], v21
        ds_read_b128 v[64:67], v21 offset:2048
        ds_read_b128 v[68:71], v21 offset:4096
        ds_read_b128 v[72:75], v21 offset:6144
        s_waitcnt lgkmcnt(4)
        v_max3_f32 v56, v44, v46, v48
        v_max_f32 v56, v56, v50
        v_sub_f32 v52, v44, v56
        v_sub_f32 v53, v46, v56
        v_sub_f32 v54, v48, v56
        v_sub_f32 v55, v50, v56
        v_exp_f32 v52, v52
        v_exp_f32 v53, v53
        v_exp_f32 v54, v54
        v_exp_f32 v55, v55
        s_waitcnt lgkmcnt(3)
        v_pk_mul_f32 v[60:61], v[60:61], v[52:53] op_sel_hi:[1,0]
        v_pk_mul_f32 v[62:63], v[62:63], v[52:53] op_sel_hi:[1,0]
        s_waitcnt lgkmcnt(2)
        v_pk_fma_f32 v[60:61], v[64:65], v[52:53], v[60:61] op_sel:[0,1,0] op_sel_hi:[1,1,1]
        v_pk_fma_f32 v[62:63], v[66:67], v[52:53], v[62:63] op_sel:[0,1,0] op_sel_hi:[1,1,1]
        s_waitcnt lgkmcnt(1)
        v_pk_fma_f32 v[60:61], v[68:69], v[54:55], v[60:61] op_sel_hi:[1,0,1]
        v_pk_fma_f32 v[62:63], v[70:71], v[54:55], v[62:63] op_sel_hi:[1,0,1]
        s_waitcnt lgkmcnt(0)
        v_pk_fma_f32 v[60:61], v[72:73], v[54:55], v[60:61] op_sel:[0,1,0] op_sel_hi:[1,1,1]
        v_pk_fma_f32 v[62:63], v[74:75], v[54:55], v[62:63] op_sel:[0,1,0] op_sel_hi:[1,1,1]
        """)
        a(f"s_mul_i32 s26, s23, {32*CH}\ns_lshl_b32 s27, s23, 17")
        a("""
        v_mul_f32 v57, v52, v45
        v_min_u32 v60, -2, v60
        buffer_store_dwordx4 v[60:63], v23, s[4:7], s26 offen sc1
        v_fmac_f32 v57, v53, v47
        v_fmac_f32 v57, v54, v49
        v_fmac_f32 v57, v55, v51
        v_min_u32 v56, -2, v56
        s_mov_b32 exec_lo, 1
        s_mov_b32 exec_hi, 1
        buffer_store_dwordx2 v[56:57], v24, s[4:7], s27 offen sc1
        s_mov_b64 exec, -1
        """)
        self.stamp_l(4, 8)
        a("s_add_u32 s23, s23, 1\ns_cmp_lt_i32 s23, 2\ns_cbranch_scc1 L_Al\ns_branch L_exit")
        a("L_Ah:")
        self.epoch_load()
        a(f"""
        v_and_b32 v8, 31, v0
        v_lshrrev_b32 v11, 5, v0
        v_lshlrev_b32 v11, 13, v11
        v_lshl_add_u32 v10, v8, 4, v11
        s_lshl_b32 s27, s52, 16
        s_lshl_b32 s30, s53, 9
        s_add_u32 s27, s27, s30
        s_add_u32 s27, s27, {C_H2O*CH}
        """)
        for L in range(2):
            for w in range(4):
                a(f"s_add_u32 s26, s27, {(L*32 + w)*CH}\nbuffer_store_dwordx4 v[12:15], v10, s[4:7], s26 offen sc1")
        a(f"""
        v_and_b32 v8, 3, v0
        v_lshlrev_b32 v8, 11, v8
        v_bfe_u32 v11, v0, 2, 1
        v_lshl_add_u32 v8, v11, 13, v8
        v_bfe_u32 v11, v0, 3, 1
        v_lshl_add_u32 v8, v11, 17, v8
        s_lshl_b32 s27, s52, 14
        s_lshl_b32 s30, s53, 7
        s_add_u32 s27, s27, s30
        s_add_u32 s27, s27, {C_H2M*CH}
        s_mov_b64 exec, 0xffff
        buffer_store_dwordx4 v[12:15], v8, s[4:7], s27 offen sc1
        s_mov_b64 exec, -1
        """)
        if self.o.get("hb", 0) & 1: a("s_barrier")
        self.flag_store(0)
        if self.o.get("ga"): a("s_barrier")
        self.stamp(1)
        D = self.o.get("qd", 2)
        a(f"""
        v_lshlrev_b32 v16, 3, v0
        s_lshr_b32 s26, s52, 2
        s_lshl_b32 s26, s26, 14
        s_and_b32 s27, s52, 3
        s_lshl_b32 s27, s27, 11
        s_add_u32 s26, s26, s27
        s_add_u32 s30, s26, {C_H1*CH}
        v_lshlrev_b32 v17, 4, v0
        s_mov_b32 s23, 0
        L_Ahl:
        s_lshl_b32 s26, s23, 15
        s_add_u32 s26, s26, s30
        s_add_u32 s26, s26, s20
        s_mov_b32 s25, 0
        """)
        def issue(k):
            r = 20 + 8*k
            a(f"buffer_load_dwordx4 v[{r}:{r+3}], v17, s[4:7], s26 offen sc1\nbuffer_load_dwordx4 v[{r+4}:{r+7}], v17, s[4:7], s26 offen offset:1024 sc1")
        for k in range(D - 1): issue(k)
        a("L_Ahp:")
        for k in range(D):
            r = 20 + 8*k
            issue((k + D - 1) % D)
            if k == 0: self.timeout()
            a(f"""
            s_waitcnt vmcnt({2*(D-1)})
            v_xor_b32 v18, s24, v{r+1}
            v_xor_b32 v19, s24, v{r+3}
            v_xor_b32 v{r+1}, s24, v{r+5}
            v_xor_b32 v{r+3}, s24, v{r+7}
            v_or3_b32 v18, v18, v19, v{r+1}
            v_or_b32 v18, v18, v{r+3}
            v_cmp_ne_u32 vcc, 0, v18
            """)
            if k < D - 1: a(f"s_cbranch_vccz L_Ahd{k}")
            else: a("s_cbranch_vccnz L_Ahp")
        for k in reversed(range(D)):
            r = 20 + 8*k
            a(f"L_Ahd{k}:\nds_write2_b32 v16, v{r}, v{r+2} offset0:0 offset1:1\nds_write2_b32 v16, v{r+4}, v{r+6} offset0:128 offset1:129")
            if k > 0: a("s_branch L_Ahe")
        a("""
        L_Ahe:
        s_waitcnt lgkmcnt(0)
        s_barrier
        s_waitcnt vmcnt(0)
        s_barrier
        s_cmp_eq_u32 s23, 1
        s_cbranch_scc1 L_exit
        s_mov_b32 s23, 1
        s_mov_b32 s27, 0
        """)
        self.flag_poll("a", 27, 0)
        a("s_branch L_Ahl")

    def role_c(self):
        a = self.a
        a("L_C:")
        a("s_cmp_eq_u32 s22, 0\ns_cbranch_scc0 L_exit\ns_setprio 3")
        self.epoch_load()
        ld = self.o.get("cld", 0)
        def op(soff, off):
            if ld: return f"buffer_load_dword v16, v8, s[4:7], s{soff} offen offset:{off} sc1"
            return f"buffer_store_dword v8, v8, s[4:7], s{soff} offen offset:{off} sc1"
        a(f"""
        s_mov_b32 s26, {C_PR*CH}
        s_mov_b32 s27, {C_PR*CH+8192}
        v_lshlrev_b32 v17, 8, v0
        s_mov_b64 exec, {hex(0xffff if self.o.get("cpre") else 1)}
        buffer_store_dword v8, v17, s[4:7], s26 offen offset:{128 if self.o.get("cpre") else 0} sc1
        buffer_store_dword v8, v17, s[4:7], s27 offen offset:{128 if self.o.get("cpre") else 0} sc1
        s_mov_b64 exec, 1
        s_mov_b32 s32, -1
        s_mov_b32 s33, -1
        s_waitcnt vmcnt(0)
        """)
        n = self.o.get("cmax", 8); thr = self.o.get("cthr", 100)
        dbgs = ""
        step = 0 if self.o.get("csame") else 256
        if self.o.get("cdbg"):
            self.srd(8, 84, 256)
            dbgs = "s_mul_i32 s42, s34, 10000\ns_add_u32 s42, s42, s35\nv_mov_b32 v17, s42\ns_lshl_b32 s42, s30, 2\nbuffer_store_dword v17, v8, s[8:11], s42 offen\ns_waitcnt vmcnt(0)"
        a(f"""
        s_mov_b32 s30, 0
        L_Cl:
        s_add_u32 s26, s26, {step}
        s_add_u32 s27, s27, {step}
        s_memtime s[36:37]
        s_waitcnt lgkmcnt(0)
        {op(26, 128 if step else 0)}
        s_waitcnt vmcnt(0)
        s_memtime s[38:39]
        s_waitcnt lgkmcnt(0)
        {op(27, 128 if step else 0)}
        s_waitcnt vmcnt(0)
        s_memtime s[40:41]
        s_waitcnt lgkmcnt(0)
        s_sub_u32 s34, s38, s36
        s_sub_u32 s35, s40, s38
        s_min_u32 s32, s32, s34
        s_min_u32 s33, s33, s35
        {dbgs}
        s_add_u32 s30, s30, 1
        s_cmp_ge_u32 s30, {n}
        s_cbranch_scc1 L_Cd
        s_min_u32 s34, s32, s33
        s_max_u32 s35, s32, s33
        s_sub_u32 s35, s35, s34
        s_cmp_ge_u32 s30, {self.o.get("cabsn", 99)}
        s_cselect_b32 s34, 0, s34
        s_cmp_le_u32 s34, {self.o.get("cabs", 600)}
        s_cselect_b32 s35, s35, 0
        s_cmp_ge_u32 s30, 2
        s_cselect_b32 s35, s35, 0
        s_cmp_ge_u32 s35, {thr}
        s_cbranch_scc0 L_Cl
        """)
        a(f"""
        L_Cd:
        s_mov_b64 exec, -1
        s_cmp_lt_u32 s33, s32
        s_cselect_b32 s30, 1, 0
        s_lshr_b32 s31, s20, 13
        s_xor_b32 s30, s30, s31
        """)
        if self.o.get("cflip"): a("s_xor_b32 s30, s30, 1")
        if self.diag: a("s_mov_b32 s57, s32\ns_mov_b32 s58, s33\ns_mov_b32 s59, s30")
        self.flag_store(0, xor_s=30)
        self.stamp(4)
        a("s_branch L_exit")

    def build(self):
        a = self.a
        a(f"s_cmp_ge_u32 s2, {NWG}\ns_cbranch_scc1 L_end")
        if self.o.get("dbg"): a("s_memrealtime s[56:57]")
        if self.diag: a("s_memrealtime s[52:53]")
        a("s_load_dwordx16 s[64:79], s[0:1], 0\ns_load_dwordx8 s[80:87], s[0:1], 64")
        if self.diag:
            for s in self.STS: a(f"s_mov_b32 s{s}, 0")
            a("s_mov_b32 s23, -1")
        a("""
        v_lshrrev_b32 v1, 6, v0
        v_and_b32 v0, 63, v0
        s_getreg_b32 s20, hwreg(HW_REG_XCC_ID, 0, 4)
        v_readfirstlane_b32 s22, v1
        s_bfe_u32 s20, s20, 0x10002
        s_lshl_b32 s20, s20, 13
        v_and_b32 v1, 15, v0
        v_lshrrev_b32 v2, 4, v0
        s_cmp_lt_u32 s22, 4
        s_cbranch_scc1 L_np
        s_setprio 3
        L_np:
        s_waitcnt lgkmcnt(0)
        """)
        if self.diag: a(f"s_mov_b32 s{self.STS[11]}, s52")
        self.stamp(0)
        self.srd(4, 86, (4 << 20) if self.diag else (2 << 20))
        a("s_cmp_eq_u32 s2, 0\ns_cbranch_scc1 L_C")
        a(f"s_cmp_lt_u32 s2, {ID_A}\ns_cbranch_scc1 L_Q\ns_cmp_lt_u32 s2, {ID_W}\ns_cbranch_scc1 L_A\ns_cmp_lt_u32 s2, {ID_F}\ns_cbranch_scc1 L_W\ns_branch L_F")
        self.role_c(); self.role_q(); self.role_a(); self.role_w(); self.role_f()
        a("L_exit:")
        if self.o.get("dbg"):
            a("s_cmp_eq_u32 s22, 0\ns_cbranch_scc0 L_end\ns_mov_b32 s26, -1")
            for n, w in enumerate((1, 65, 192, 193, 225, 252)):
                a(f"s_cmp_eq_u32 s2, {w}\ns_cselect_b32 s26, {8*n}, s26")
            a("s_cmp_eq_u32 s26, -1\ns_cbranch_scc1 L_end\ns_memrealtime s[54:55]")
            if self.o.get("amp"):
                a(f"s_waitcnt lgkmcnt(0)\ns_cmp_eq_u32 s2, 1\ns_cbranch_scc0 L_amp2\ns_sub_u32 s27, s54, s56\ns_mul_i32 s27, s27, {self.o['amp']}\ns_min_u32 s27, s27, 100000")
                a("L_amp:\ns_memrealtime s[58:59]\ns_waitcnt lgkmcnt(0)\ns_sub_u32 s30, s58, s56\ns_cmp_lt_u32 s30, s27\ns_cbranch_scc1 L_amp\nL_amp2:")
            self.srd(8, 84, 256)
            a("s_mov_b64 exec, 1\ns_waitcnt lgkmcnt(0)\nv_mov_b32 v8, 0\nv_mov_b32 v12, s56\nv_mov_b32 v13, s54")
            a("buffer_store_dwordx2 v[12:13], v8, s[8:11], s26 offen")
        if self.diag:
            a("s_mov_b64 exec, -1\ns_waitcnt vmcnt(0) lgkmcnt(0)")
            self.stamp(19)
            a("s_lshl_b32 s26, s2, 3\ns_add_u32 s26, s26, s22\ns_lshl_b32 s26, s26, 7\ns_add_u32 s26, s26, 0x200000\nv_mov_b32 v8, 0\ns_mov_b64 exec, 1")
            for k in range(0, 20, 4):
                for i in range(4): a(f"v_mov_b32 v{12+i}, s{self.STS[k+i]}")
                a(f"buffer_store_dwordx4 v[12:15], v8, s[4:7], s26 offen offset:{4*k}")
            a("s_waitcnt vmcnt(0)")
        a("L_end:")
        hdr = open("interleave_layers__sliding_block_cached__glu_gated_swiglu__decode.s.ref").read().split("\n")
        top = [l for l in hdr if l.startswith(";") and "@launch" not in l]
        out = "\n".join(top) + f"\n; @launch grid=({NWG},1,1) block=(512,1,1) lds=16384\n"
        out += f'.amdgcn_target "amdgcn-amd-amdhsa--gfx950"\n.text\n.globl {NAME}\n.p2align 8\n.type {NAME},@function\n{NAME}:\n'
        out += a.text()
        out += f"""s_endpgm
.section .rodata,"a"
.p2align 6
.amdhsa_kernel {NAME}
  .amdhsa_next_free_vgpr 256
  .amdhsa_next_free_sgpr 102
  .amdhsa_accum_offset 256
  .amdhsa_group_segment_fixed_size 0
  .amdhsa_kernarg_size 96
  .amdhsa_user_sgpr_count 2
  .amdhsa_user_sgpr_kernarg_segment_ptr 1
  .amdhsa_system_sgpr_workgroup_id_x 1
.end_amdhsa_kernel
"""
        return out

if __name__ == "__main__":
    opts = {}
    for x in sys.argv[3:]:
        k, v = x.split("=")
        opts[k] = int(v) if v.lstrip("-").isdigit() else v
    if sys.argv[1] != "-": open(sys.argv[1], "w").write(G(False, opts).build())
    if len(sys.argv) > 2 and sys.argv[2] != "-": open(sys.argv[2], "w").write(G(True, opts).build())
```

```python
import sys
from asmlib import Asm
NAME = "interleave_layers__sliding_block_cached__glu_gated_swiglu__decode_kernel"
CH = 16384
C_FLAG, C_H1, C_H2O, C_H2M, C_H3, C_XR2, C_H4, C_XR1, C_XR3, C_PR = 1, 3, 8, 72, 88, 96, 97, 105, 106, 107
NQ, NA, NW, NF = 64, 128, 32, 28
ID_Q, ID_A, ID_W, ID_F = 1, 65, 193, 225
NWG = 253
TMO = 20000
LOG2E = 1.4426950408889634
import struct
def f2u(x): return struct.unpack("<I", struct.pack("<f", x))[0]

class G:
    def __init__(self, diag=False, opts=None):
        self.a = Asm(); self.diag = diag; self.o = dict(pw=2, pwn=8, pf=1, pfn=3, pb=1, pbn=1); self.o.update(opts or {})
        self.nst = 0
    STS = list(range(56, 64)) + list(range(88, 100))
    def stamp(self, k):
        if not self.diag: return
        if self.o.get("lite") and k not in (0, 1, 4, 8, 9, 19): return
        self.a(f"s_memrealtime s[54:55]\ns_waitcnt lgkmcnt(0)\ns_mov_b32 s{self.STS[k]}, s54")
    def stamp_l(self, k0, k1):
        if not self.diag: return
        if self.o.get("lite"): return
        self.a(f"s_memrealtime s[54:55]\ns_waitcnt lgkmcnt(0)\ns_cmp_eq_u32 s23, 1\ns_cselect_b32 s{self.STS[k1]}, s54, s{self.STS[k1]}\ns_cmp_eq_u32 s23, 0\ns_cselect_b32 s{self.STS[k0]}, s54, s{self.STS[k0]}")
    def srd(self, d, p, nbytes, off_s=None):
        a = self.a
        if off_s is None:
            a(f"s_mov_b32 s{d}, s{p}\ns_mov_b32 s{d+1}, s{p+1}")
        else:
            a(f"s_add_u32 s{d}, s{p}, s{off_s}\ns_addc_u32 s{d+1}, s{p+1}, 0")
        a(f"s_mov_b32 s{d+2}, {nbytes}\ns_mov_b32 s{d+3}, 0x20000")
    def timeout(self):
        self.a(f"s_add_u32 s25, s25, 1\ns_cmp_gt_u32 s25, {TMO}\ns_cbranch_scc1 L_exit")
    def masks(self):
        a = self.a
        a("""
        v_and_b32 v8, 4, v1
        v_cmp_eq_u32 vcc, 0, v8
        v_mov_b32 v9, 0xffff
        v_cndmask_b32 v3, 0, v9, vcc
        v_xor_b32 v4, v3, v9
        v_lshlrev_b32 v5, 16, v3
        v_lshlrev_b32 v6, 16, v4
        v_and_b32 v8, 3, v1
        v_mul_u32_u24 v7, 17425, v8
        v_xor_b32 v8, 1, v8
        v_mul_u32_u24 v8, 4420, v8
        v_add_u32 v7, v7, v8
        """)
    def abuild(self, dst, src):
        for d in range(4):
            self.a(f"v_and_b32 v{dst+d}, v{src}, v{3+d}")
    def epoch_load(self):
        self.a("v_mov_b32 v8, 0\nbuffer_load_dword v9, v8, s[4:7], 0 offen sc1\nv_mov_b32 v12, -1\nv_mov_b32 v13, -1\nv_mov_b32 v14, -1\nv_mov_b32 v15, -1")
    def reset1k(self, sbase):
        a = self.a
        a(f"buffer_store_dwordx4 v[12:15], v10, s[4:7], s{sbase} offen sc1")
        a(f"s_add_u32 s31, s{sbase}, 8192")
        a(f"buffer_store_dwordx4 v[12:15], v10, s[4:7], s31 offen sc1")
    def tag_calc(self, nleft):
        self.a(f"s_waitcnt vmcnt({nleft})\nv_readfirstlane_b32 s24, v9\ns_mul_i32 s24, s24, 0x9E3779B1\ns_add_u32 s24, s24, 0x7F4A7C15")
    def flag_store(self, nleft, xor_s=None, have_tag=False):
        a = self.a
        if have_tag: a(f"s_waitcnt vmcnt({nleft})")
        else: self.tag_calc(nleft)
        if xor_s is not None: a(f"s_xor_b32 s24, s24, s{xor_s}")
        a(f"""
        s_lshr_b32 s26, s2, 7
        s_lshl_b32 s26, s26, 14
        s_and_b32 s27, s2, 127
        s_lshl_b32 s27, s27, 6
        s_add_u32 s26, s26, s27
        s_add_u32 s26, s26, {C_FLAG*CH}
        v_mov_b32 v8, 0
        v_mov_b32 v11, s24
        s_mov_b64 exec, 1
        buffer_store_dword v11, v8, s[4:7], s26 offen sc1
        s_mov_b64 exec, -1
        """)
    def flag_poll(self, tagn, first_s, n, extra_id=None):
        a = self.a
        a(f"v_add_u32 v8, s{first_s}, v0")
        nl = n
        if extra_id is not None:
            a(f"v_cmp_eq_u32 vcc, {n}, v0\nv_mov_b32 v11, {extra_id}\nv_cndmask_b32 v8, v8, v11, vcc")
            nl = n + 1
        a(f"v_cmp_ne_u32 vcc, {nl}, v0\nv_cndmask_b32 v8, 0, v8, vcc\nv_cndmask_b32_e64 v9, 1, 0, vcc")
        cl = nl; nl += 1
        a(f"""
        v_lshrrev_b32 v11, 7, v8
        v_lshlrev_b32 v11, 14, v11
        v_and_b32 v8, 127, v8
        v_lshl_add_u32 v8, v8, 6, v11
        s_mov_b32 s26, {C_FLAG*CH}
        s_mov_b32 s25, 0
        s_mov_b32 exec_lo, {hex(((1 << nl) - 1) & 0xffffffff)}
        s_mov_b32 exec_hi, {hex(((1 << nl) - 1) >> 32)}
        L_fp_{tagn}:
        buffer_load_dword v11, v8, s[4:7], s26 offen sc1
        """)
        self.timeout()
        a(f"""
        s_waitcnt vmcnt(0)
        v_xor_b32 v11, s24, v11
        v_cmp_gt_u32 vcc, v11, v9
        s_cbranch_vccnz L_fp_{tagn}
        v_readlane_b32 s26, v11, {cl}
        s_mov_b64 exec, -1
        s_lshl_b32 s26, s26, 13
        s_xor_b32 s20, s20, s26
        """)
    def tag_from_lds(self, addr):
        self.a(f"v_mov_b32 v8, {addr}\nds_read_b32 v9, v8\ns_waitcnt lgkmcnt(0)\nv_readfirstlane_b32 s24, v9")
    def front_setup(self, c_src, c_xr):
        a = self.a
        a(f"""
        s_mov_b32 s50, 0x00ff00ff
        s_mov_b32 s51, 0xff00ff00
        s_mov_b32 s48, 0
        s_mov_b32 s49, -1
        s_cmp_eq_u32 s22, 3
        s_cselect_b32 s28, 0x00ff00ff, -1
        s_mov_b32 s29, s28
        s_lshl_b32 s26, s22, 8
        v_lshlrev_b32 v8, 10, v2
        v_lshl_add_u32 v8, v1, 4, v8
        v_add_u32 v16, s26, v8
        v_add_u32 v18, s26, v14
        s_add_u32 s27, s26, {c_xr*CH}
        v_add_u32 v17, s27, v14
        v_lshrrev_b32 v11, 3, v0
        v_lshl_add_u32 v19, v11, 5, s26
        v_lshlrev_b32 v8, 14, v11
        v_and_b32 v9, 7, v0
        v_lshl_add_u32 v8, v9, 10, v8
        s_add_u32 s27, s26, {c_src*CH}
        v_add_u32 v13, s27, v8
        v_lshrrev_b32 v11, 3, v1
        v_lshlrev_b32 v11, 8, v11
        v_and_b32 v12, 7, v1
        v_lshl_add_u32 v11, v12, 5, v11
        v_and_b32 v12, 1, v2
        v_lshl_add_u32 v11, v12, 4, v11
        s_lshl_b32 s26, s22, 9
        s_add_u32 s26, s26, 1024
        v_add_u32 v20, s26, v11
        s_lshl_b32 s26, s22, 3
        s_add_u32 s26, s26, {1024+4096}
        v_lshrrev_b32 v8, 5, v0
        v_lshl_add_u32 v21, v8, 2, s26
        v_and_b32 v92, 0x3f803f80, v3
        v_and_b32 v93, 0x3f803f80, v4
        v_and_b32 v94, 0x3f803f80, v5
        v_and_b32 v95, 0x3f803f80, v6
        v_mov_b32 v22, 0
        """)
        for i in range(32): a(f"v_mov_b32 v{60+i}, 0")
        for i in range(8):
            a(f"s_mov_b32 s{32+i}, {c_src*CH + (i>>1)*CH + (i&1)*4096}")
    def add_side(self, src):
        self.a(f"v_add_u32 v16, {src}, v16\nv_add_u32 v17, {src}, v17\nv_add_u32 v13, {src}, v13")
    def r16_loads(self, srd, reg, rowstride, vaddr, pace=0, npace=99):
        for s in range(8):
            for hf in range(2):
                self.a(f"s_mov_b32 s26, {(64*hf + 2*s)*rowstride}")
                r = reg + 8*s + 4*hf
                if pace and 2*s + hf <= npace: self.a(f"s_waitcnt vmcnt({pace-1})")
                self.a(f"buffer_load_dwordx4 v[{r}:{r+3}], v{vaddr}, s[{srd}:{srd+3}], s26 offen nt")
    def r16_addr(self, vdst, rowstride):
        self.a(f"""
        v_lshrrev_b32 v8, 1, v2
        v_lshrrev_b32 v9, 3, v1
        v_lshl_add_u32 v8, v8, 1, v9
        v_and_b32 v9, 1, v2
        v_lshl_add_u32 v8, v8, 4, v9
        s_lshl_b32 s26, s22, 7
        v_add_u32 v8, s26, v8
        v_mul_u32_u24 v8, {rowstride}, v8
        v_and_b32 v9, 7, v1
        v_lshl_add_u32 v{vdst}, v9, 4, v8
        """)
    def x_load(self):
        self.a("""
        v_and_b32 v8, 1, v2
        v_lshlrev_b32 v8, 3, v8
        v_lshl_add_u32 v8, v1, 4, v8
        v_lshrrev_b32 v9, 1, v2
        v_lshl_add_u32 v14, v9, 2, v8
        s_lshl_b32 s26, s22, 8
        buffer_load_dword v25, v14, s[16:19], s26 offen
        """)
    def gather(self, tagn, nld, xr_cond):
        a = self.a
        mode = self.o.get("pre", "any")
        a("s_mov_b32 s25, 0")
        if mode != "none":
            a(f"s_mov_b32 exec_lo, {hex(0xffffffff if nld == 8 else 0x0fffffff)}\ns_mov_b32 exec_hi, 0")
            a(f"L_gl_{tagn}:\nbuffer_load_dword v54, v13, s[4:7], 0 offen sc1")
            self.timeout()
            a("s_waitcnt vmcnt(0)")
            if isinstance(mode, int):
                a(f"v_cmp_ne_u32 vcc, -1, v54\ns_bcnt1_i32_b32 s26, vcc_lo\ns_cmp_lt_u32 s26, {mode * 4 * nld // 32}\ns_cbranch_scc1 L_gl_{tagn}")
            elif mode == "all": a(f"v_cmp_eq_u32 vcc, -1, v54\ns_cbranch_vccnz L_gl_{tagn}")
            else: a(f"v_cmp_ne_u32 vcc, -1, v54\ns_cbranch_vccz L_gl_{tagn}")
        if self.o.get("inc", 0):
            def gload(g, t):
                if g == 0:
                    if xr_cond: a(f"s_cmp_eq_u32 s23, 0\ns_cbranch_scc1 L_gx{t}_{tagn}")
                    a("buffer_load_dword v22, v17, s[4:7], 0 offen sc1")
                    if xr_cond: a(f"L_gx{t}_{tagn}:")
                for i in (2*g, 2*g + 1):
                    if i < nld: a(f"buffer_load_dwordx4 v[{60+4*i}:{63+4*i}], v16, s[4:7], s{32+i} offen sc1")
            def gcheck(g, t):
                r = 60 + 8*g
                if g == 0: a(f"v_max3_u32 v54, v22, v{r}, v{r+4}")
                else: a(f"v_max_u32 v54, v{r}, v{r+4}")
                a(f"v_cmp_eq_u32 vcc, -1, v54\ns_cbranch_vccnz L_gs{t}{g}_{tagn}")
                a(f"v_smfmac_f32_16x16x64_bf16 v[42:45], v[92:95], v[{r}:{r+7}], v7\ns_bitset0_b32 s30, {g}")
                a(f"L_gs{t}{g}_{tagn}:")
            a("s_mov_b64 exec, s[28:29]")
            for g in range(4): gload(g, "a")
            a("s_mov_b64 exec, -1\ns_mov_b32 s30, 15\nv_mov_b32 v42, 0\nv_mov_b32 v43, 0\nv_mov_b32 v44, 0\nv_mov_b32 v45, 0")
            for g in range(4):
                a(f"s_waitcnt vmcnt({max(0, nld-2-2*g)})")
                gcheck(g, "a")
            a(f"s_cmp_eq_u32 s30, 0\ns_cbranch_scc1 L_gd_{tagn}")
            a(f"L_gp_{tagn}:\ns_mov_b64 exec, s[28:29]")
            for g in range(4):
                a(f"s_bitcmp1_b32 s30, {g}\ns_cbranch_scc0 L_gq{g}_{tagn}")
                gload(g, "b")
                a(f"L_gq{g}_{tagn}:")
            a("s_mov_b64 exec, -1")
            self.timeout()
            a("s_waitcnt vmcnt(0)")
            for g in range(4):
                a(f"s_bitcmp1_b32 s30, {g}\ns_cbranch_scc0 L_gsb{g}_{tagn}")
                gcheck(g, "b")
            a(f"s_cmp_eq_u32 s30, 0\ns_cbranch_scc0 L_gp_{tagn}")
            a(f"L_gd_{tagn}:\nv_lshlrev_b32 v52, 16, v22\nv_and_b32 v53, 0xffff0000, v22\ns_nop 2")
        else:
            def loads(pol, t):
                a("s_mov_b64 exec, s[28:29]")
                if xr_cond:
                    a(f"s_cmp_eq_u32 s23, 0\ns_cbranch_scc1 L_gx{t}_{tagn}")
                a("buffer_load_dword v22, v17, s[4:7], 0 offen sc1")
                if xr_cond: a(f"L_gx{t}_{tagn}:")
                for i in range(nld):
                    a(f"buffer_load_dwordx4 v[{60+4*i}:{63+4*i}], v16, s[4:7], s{32+i} offen {pol}")
            if self.o.get("l2"):
                loads({1: "", 2: "sc0"}[self.o["l2"]], "a")
                a(f"s_branch L_gc_{tagn}")
            a(f"L_gp_{tagn}:")
            loads("sc1", "")
            a(f"L_gc_{tagn}:")
            a("s_mov_b64 exec, -1")
            self.timeout()
            a("v_mov_b32 v42, 0\nv_mov_b32 v43, 0\nv_mov_b32 v44, 0\nv_mov_b32 v45, 0")
            for i in range(0, 8, 2):
                a(f"s_waitcnt vmcnt({max(0, nld-2-i)})")
                r = 60 + 4*i
                a(f"v_smfmac_f32_16x16x64_bf16 v[42:45], v[92:95], v[{r}:{r+7}], v7")
                a(f"v_max3_u32 v54, v{22 if i == 0 else 54}, v{r}, v{r+4}")
                if i == 0: a("v_lshlrev_b32 v52, 16, v22\nv_and_b32 v53, 0xffff0000, v22")
            a(f"v_cmp_eq_u32 vcc, -1, v54\ns_cbranch_vccnz L_gp_{tagn}")
        a("""
        v_cndmask_b32 v50, v42, v44, s[48:49]
        v_cndmask_b32 v51, v43, v45, s[48:49]
        v_cvt_pk_bf16_f32 v55, v50, v51
        v_lshlrev_b32 v50, 16, v55
        v_and_b32 v51, 0xffff0000, v55
        v_pk_add_f32 v[50:51], v[50:51], v[52:53]
        v_cvt_pk_bf16_f32 v24, v50, v51
        """)
    def front_gemv(self, two, cs=False):
        a = self.a
        a("""
        ds_write_b32 v18, v24
        v_lshlrev_b32 v50, 16, v24
        v_and_b32 v51, 0xffff0000, v24
        v_mov_b32 v42, 0
        v_mov_b32 v43, 0
        s_waitcnt lgkmcnt(0)
        ds_read_b128 v[26:29], v19
        ds_read_b128 v[30:33], v19 offset:16
        v_add_f32 v55, v50, v51
        v_mul_f32 v56, v50, v50
        v_fmac_f32 v56, v51, v51
        v_mov_b32 v44, 0
        v_mov_b32 v45, 0
        """)
        if two: a("v_mov_b32 v46, 0\nv_mov_b32 v47, 0\nv_mov_b32 v48, 0\nv_mov_b32 v49, 0")
        a("v_permlane32_swap_b32 v55, v56\nv_add_f32 v55, v55, v56")
        a("s_and_b32 s26, s23, 1\ns_mul_i32 s26, s26, 4352\nv_add_u32 v8, s26, v20\nv_add_u32 v9, s26, v21")
        a("s_waitcnt lgkmcnt(1)")
        self.abuild(34, 26)
        fill = ["v_mov_b32 v56, v55", None, "v_permlane16_swap_b32 v55, v56\nv_add_f32 v55, v55, v56",
                "v_add_f32_dpp v55, v55, v55 row_ror:8 row_mask:0xf bank_mask:0xf", "v_add_f32_dpp v55, v55, v55 row_ror:4 row_mask:0xf bank_mask:0xf",
                "v_add_f32_dpp v55, v55, v55 row_ror:2 row_mask:0xf bank_mask:0xf", "v_add_f32_dpp v55, v55, v55 row_ror:1 row_mask:0xf bank_mask:0xf",
                "s_mov_b32 exec_lo, 1\ns_mov_b32 exec_hi, 1\nds_write_b32 v9, v55\ns_mov_b64 exec, s[50:51]"]
        for s in range(8):
            A = 34 + 4*(s & 1)
            if s == 3: a("s_waitcnt lgkmcnt(0)")
            if s < 7: self.abuild(34 + 4*((s+1) & 1), 26 + s + 1)
            a(f"v_smfmac_f32_16x16x64_bf16 v[42:45], v[{A}:{A+3}], v[{128+8*s}:{135+8*s}], v7")
            if two: a(f"v_smfmac_f32_16x16x64_bf16 v[46:49], v[{A}:{A+3}], v[{192+8*s}:{199+8*s}], v7")
            if fill[s]: a(fill[s])
        a("ds_write_b128 v8, v[42:45]")
        if two: a("ds_write_b128 v8, v[46:49] offset:2048")
        if cs:
            a("s_cmp_eq_u32 s23, 0\ns_cbranch_scc0 L_ncs\ns_mov_b64 exec, -1\nv_mov_b32 v46, 0\nv_mov_b32 v47, 0\nv_mov_b32 v48, 0\nv_mov_b32 v49, 0")
            for s in range(8): a(f"v_smfmac_f32_16x16x64_bf16 v[46:49], v[92:95], v[{128+8*s}:{135+8*s}], v7")
            a("s_mov_b64 exec, s[50:51]\nds_write_b128 v8, v[46:49] offset:2048\nL_ncs:")
        a("s_mov_b64 exec, -1\ns_waitcnt lgkmcnt(0)\ns_barrier")
    def xr_publish(self, sofs_expr):
        self.a(f"""
        v_subrev_u32 v8, s20, v17
        v_min_u32 v9, -2, v24
        {sofs_expr}
        v_add_u32 v8, s26, v8
        s_mov_b32 s26, 8192
        s_mov_b64 exec, s[28:29]
        buffer_store_dword v9, v8, s[4:7], 0 offen sc1
        buffer_store_dword v9, v8, s[4:7], s26 offen sc1
        s_mov_b64 exec, -1
        """)
    def back_reduce(self, two, base, ro):
        a = self.a
        a(f"ds_read_b128 v[{ro+16}:{ro+19}], v{base+1}\nds_read_b128 v[{ro+20}:{ro+23}], v{base+1} offset:16")
        for m in range(2 if two else 1):
            for k in range(4):
                a(f"ds_read2st64_b32 v[{ro+8*m+2*k}:{ro+8*m+2*k+1}], v{base} offset0:{8*m+2*k} offset1:{8*m+2*k+1}")
    def ln_scalars(self, ro, nrest):
        a = self.a
        t = ro + 16
        a(f"""
        s_waitcnt lgkmcnt({nrest})
        v_pk_add_f32 v[{t}:{t+1}], v[{t}:{t+1}], v[{t+2}:{t+3}]
        v_pk_add_f32 v[{t+4}:{t+5}], v[{t+4}:{t+5}], v[{t+6}:{t+7}]
        v_pk_add_f32 v[{t}:{t+1}], v[{t}:{t+1}], v[{t+4}:{t+5}]
        v_mul_f32 v{t}, {hex(f2u(1.0/448))}, v{t}
        v_mul_f32 v{t+1}, {hex(f2u(1.0/448))}, v{t+1}
        v_fma_f32 v{t+1}, -v{t}, v{t}, v{t+1}
        v_max_f32 v{t+1}, 0, v{t+1}
        v_cvt_pk_bf16_f32 v{t+2}, v{t}, v{t+1}
        v_lshlrev_b32 v{t}, 16, v{t+2}
        v_and_b32 v{t+1}, 0xffff0000, v{t+2}
        v_add_f32 v{t+1}, {hex(f2u(1e-5))}, v{t+1}
        v_cvt_pk_bf16_f32 v{t+1}, v{t+1}, v{t+1}
        v_and_b32 v{t+1}, 0xffff0000, v{t+1}
        v_sqrt_f32 v{t+1}, v{t+1}
        v_cvt_pk_bf16_f32 v{t+1}, v{t+1}, v{t+1}
        v_and_b32 v{t+1}, 0xffff0000, v{t+1}
        v_rcp_f32 v{t+1}, v{t+1}
        """)
    def sum8(self, r):
        self.a(f"""
        v_pk_add_f32 v[{r}:{r+1}], v[{r}:{r+1}], v[{r+2}:{r+3}]
        v_pk_add_f32 v[{r+4}:{r+5}], v[{r+4}:{r+5}], v[{r+6}:{r+7}]
        v_pk_add_f32 v[{r}:{r+1}], v[{r}:{r+1}], v[{r+4}:{r+5}]
        v_add_f32 v{r}, v{r}, v{r+1}
        """)
    def r8_addr(self, vdst, NS, wv):
        self.a(f"""
        v_lshrrev_b32 v8, 1, v2
        v_mul_u32_u24 v8, {2*NS}, v8
        v_and_b32 v9, 1, v2
        v_add_u32 v8, v8, v9
        v_mul_u32_u24 v8, 896, v8
        v_lshl_add_u32 v8, v1, 4, v8
        s_lshl_b32 s26, s{wv}, 8
        v_add_u32 v{vdst}, s26, v8
        s_cmp_eq_u32 s{wv}, 3
        s_cselect_b32 s28, 0x00ff00ff, -1
        s_mov_b32 s29, s28
        """)
    def r8_loads(self, NS, srd, vaddr, reg, pace=0, npace=99):
        a = self.a
        a("s_mov_b64 exec, s[28:29]")
        for s in range(NS):
            for hf in range(2):
                a(f"s_mov_b32 s26, {(4*NS*hf + 2*s)*896}")
                r = reg + 8*s + 4*hf
                if pace and 2*s + hf <= npace: a(f"s_waitcnt vmcnt({pace-1})")
                a(f"buffer_load_dwordx4 v[{r}:{r+3}], v{vaddr}, s[{srd}:{srd+3}], s26 offen nt")
        a("s_mov_b64 exec, -1")
    def r8_pub_addr(self, vdst, wv, sslot):
        self.a(f"""
        v_lshrrev_b32 v9, 1, v2
        v_lshlrev_b32 v9, 13, v9
        v_lshl_add_u32 v8, v1, 4, v9
        s_lshl_b32 s26, s{wv}, 8
        s_add_u32 s26, s26, s{sslot}
        v_add_u32 v{vdst}, s26, v8
        s_and_b32 s46, s28, 0xffff
        s_mov_b32 s47, s46
        """)
    def r8_gemv(self, NS, X, reg, vpub, sofs):
        a = self.a
        a("v_mov_b32 v42, 0\nv_mov_b32 v43, 0\nv_mov_b32 v44, 0\nv_mov_b32 v45, 0")
        nrd = NS // 4
        a(f"s_waitcnt lgkmcnt({nrd-1})")
        self.abuild(34, X)
        for s in range(NS):
            A = 34 + 4*(s & 1)
            if s + 1 < NS:
                if (s + 1) % 4 == 0: a(f"s_waitcnt lgkmcnt({nrd - 1 - (s+1)//4})")
                self.abuild(34 + 4*((s+1) & 1), X + s + 1)
            a(f"v_smfmac_f32_16x16x64_bf16 v[42:45], v[{A}:{A+3}], v[{reg+8*s}:{reg+8*s+7}], v7")
        a(f"""
        v_cvt_pk_bf16_f32 v46, v42, v43
        v_cvt_pk_bf16_f32 v48, v42, v43
        v_cvt_pk_bf16_f32 v47, v44, v45
        v_cvt_pk_bf16_f32 v49, v44, v45
        v_permlane16_swap_b32 v46, v48
        v_permlane16_swap_b32 v47, v49
        s_mov_b64 exec, s[46:47]
        v_min_u32 v46, -2, v46
        buffer_store_dwordx4 v[46:49], v{vpub}, s[4:7], s{sofs} offen sc1
        s_mov_b64 exec, -1
        """)

    def role_q(self):
        a = self.a
        a(f"L_Q:\ns_sub_u32 s21, s2, {ID_Q}")
        a("s_cmp_gt_u32 s22, 4\ns_cbranch_scc1 L_exit\ns_cmp_eq_u32 s22, 4\ns_cbranch_scc1 L_Qh")
        self.srd(16, 64, 896)
        a("s_lshl_b32 s27, s21, 7")
        self.srd(8, 70, 448*8192 - 0, off_s=27)
        a("s_sub_u32 s10, s10, s27")
        self.x_load()
        self.r16_addr(15, 8192)
        if self.o.get("hb", 0) & 2: a("s_barrier")
        self.r16_loads(8, 128, 8192, 15)
        self.stamp(10)
        self.masks()
        self.front_setup(C_H4, C_XR1)
        a(f"v_lshlrev_b32 v58, 2, v0\nv_add_u32 v58, 1024, v58")
        a(f"s_lshr_b32 s26, s21, 5\ns_lshl_b32 s26, s26, 14\ns_and_b32 s27, s21, 31\ns_lshl_b32 s27, s27, 8\ns_add_u32 s26, s26, s27\ns_add_u32 s26, s26, {C_H1*CH}\nv_lshl_add_u32 v59, v0, 2, s26\nv_mov_b32 v99, 12288")
        a("s_mov_b32 s23, 0\ns_waitcnt vmcnt(0)\nv_mov_b32 v24, v25")
        self.stamp(1)
        a("s_branch L_Qg")
        a("L_Qloop:")
        self.tag_from_lds(12288)
        a(f"s_mov_b32 s27, {ID_F}")
        self.flag_poll("q", 27, NF)
        self.add_side("s20")
        self.gather("q", 7, False)
        self.stamp(5)
        a("L_Qg:")
        self.front_gemv(False, cs=True)
        self.stamp_l(2, 6)
        a("s_cmp_eq_u32 s22, 0\ns_cbranch_scc0 L_Qnext")
        a(f"s_and_b32 s26, s23, 1\ns_mul_i32 s26, s26, 4352\nv_add_u32 v10, s26, v58\ns_add_u32 s26, s26, {1024+4096}\nv_mov_b32 v11, s26")
        a("s_cmp_eq_u32 s23, 0\ns_cbranch_scc0 L_Qr\nds_read_b32 v125, v99")
        for k in range(4): a(f"ds_read2st64_b32 v[{108+2*k}:{109+2*k}], v10 offset0:{8+2*k} offset1:{9+2*k}")
        a("s_waitcnt lgkmcnt(0)")
        self.sum8(108)
        a("v_mov_b32 v57, v108\nL_Qr:")
        self.back_reduce(False, 10, 100)
        self.ln_scalars(100, 4)
        a("s_waitcnt lgkmcnt(0)")
        self.sum8(100)
        a("""
        v_fma_f32 v100, -v116, v57, v100
        v_mul_f32 v100, v100, v117
        s_lshl_b32 s26, s23, 15
        s_add_u32 s27, s26, 8192
        v_mov_b32_dpp v101, v100 quad_perm:[1,0,3,2] row_mask:0xf bank_mask:0xf
        s_mov_b32 exec_lo, 0x55555555
        s_mov_b32 exec_hi, 0x55555555
        v_cvt_pk_bf16_f32 v124, v100, v101
        buffer_store_dwordx2 v[124:125], v59, s[4:7], s26 offen sc1
        buffer_store_dwordx2 v[124:125], v59, s[4:7], s27 offen sc1
        s_mov_b64 exec, -1
        """)
        self.stamp_l(3, 7)
        a("L_Qnext:\ns_add_u32 s23, s23, 1\ns_cmp_lt_i32 s23, 2\ns_cbranch_scc1 L_Qloop")
        a("s_cmp_eq_u32 s21, 0\ns_cbranch_scc0 L_Qnx")
        self.xr_publish(f"s_mov_b32 s26, {(C_XR2-C_XR1)*CH & 0xffffffff}")
        a("L_Qnx:")
        a("s_cmp_lt_u32 s21, 7\ns_cbranch_scc0 L_exit\ns_cmp_eq_u32 s22, 0\ns_cbranch_scc0 L_exit")
        self.srd(16, 82, 896)
        a(f"""
        v_lshrrev_b32 v8, 3, v0
        v_lshlrev_b32 v8, 10, v8
        v_and_b32 v9, 7, v0
        v_lshl_add_u32 v8, v9, 4, v8
        s_lshl_b32 s26, s21, 7
        s_add_u32 s27, s26, s20
        v_add_u32 v16, s27, v8
        v_add_u32 v97, s26, v14
        s_add_u32 s27, s27, {C_XR3*CH}
        v_add_u32 v17, s27, v14
        v_mov_b32 v22, 0
        v_mov_b32 v72, 0
        v_mov_b32 v73, 0
        v_mov_b32 v74, 0
        v_mov_b32 v75, 0
        s_mov_b32 s32, {(C_H4+4)*CH}
        s_mov_b32 s33, {(C_H4+5)*CH}
        s_mov_b32 s34, {(C_H4+6)*CH}
        s_mov_b32 s35, {(C_H4+7)*CH}
        s_mov_b32 s28, 0x00ff00ff
        s_mov_b32 s29, 0x00ff00ff
        s_mov_b32 s25, 0
        L_Fp:
        s_mov_b64 exec, s[28:29]
        buffer_load_dword v22, v17, s[4:7], 0 offen sc1
        s_mov_b64 exec, -1
        buffer_load_dwordx4 v[60:63], v16, s[4:7], s32 offen sc1
        buffer_load_dwordx4 v[64:67], v16, s[4:7], s33 offen sc1
        buffer_load_dwordx4 v[68:71], v16, s[4:7], s34 offen sc1
        s_mov_b32 exec_hi, 0
        buffer_load_dwordx4 v[72:75], v16, s[4:7], s35 offen sc1
        s_mov_b64 exec, -1
        """)
        self.timeout()
        a("""
        v_mov_b32 v42, 0
        v_mov_b32 v43, 0
        v_mov_b32 v44, 0
        v_mov_b32 v45, 0
        s_waitcnt vmcnt(2)
        v_smfmac_f32_16x16x64_bf16 v[42:45], v[92:95], v[60:67], v7
        v_max3_u32 v54, v22, v60, v64
        v_lshlrev_b32 v52, 16, v22
        v_and_b32 v53, 0xffff0000, v22
        s_waitcnt vmcnt(0)
        v_smfmac_f32_16x16x64_bf16 v[42:45], v[92:95], v[68:75], v7
        v_max3_u32 v54, v54, v68, v72
        v_cmp_eq_u32 vcc, -1, v54
        s_cbranch_vccnz L_Fp
        v_cndmask_b32 v50, v42, v44, s[48:49]
        v_cndmask_b32 v51, v43, v45, s[48:49]
        v_add_f32_dpp v50, v50, v50 row_ror:8 row_mask:0xf bank_mask:0xf
        v_add_f32_dpp v51, v51, v51 row_ror:8 row_mask:0xf bank_mask:0xf
        v_cvt_pk_bf16_f32 v55, v50, v51
        v_lshlrev_b32 v50, 16, v55
        v_and_b32 v51, 0xffff0000, v55
        v_pk_add_f32 v[50:51], v[50:51], v[52:53]
        v_cvt_pk_bf16_f32 v50, v50, v51
        s_mov_b64 exec, s[28:29]
        buffer_store_dword v50, v97, s[16:19], 0 offen
        """)
        self.stamp(8)
        a("s_cmp_eq_u32 s21, 0\ns_cbranch_scc0 L_exit\nv_mov_b32 v9, s24\nv_mov_b32 v8, 0\ns_mov_b64 exec, 1\nbuffer_store_dword v9, v8, s[4:7], 0 offen sc1\ns_branch L_exit")
        a("L_Qh:")
        self.epoch_load()
        a(f"""
        v_lshlrev_b32 v10, 4, v0
        s_cmp_eq_u32 s21, 0
        s_cbranch_scc0 L_Qh1
        s_mov_b32 s30, {C_XR2*CH}
        """)
        self.reset1k(30)
        a("L_Qh1:")
        if self.o.get("hb", 0) & 2: a("s_barrier")
        self.flag_store(0)
        a("v_mov_b32 v16, 12288\nds_write_b32 v16, v11\ns_waitcnt lgkmcnt(0)\ns_branch L_exit")

    def role_f(self):
        a = self.a
        a(f"L_F:\ns_sub_u32 s21, s2, {ID_F}")
        a("s_cmp_gt_u32 s22, 3\ns_cbranch_scc1 L_Fb")
        self.srd(16, 64, 896)
        a("s_lshl_b32 s27, s21, 7")
        self.srd(8, 76, 448*3584, off_s=27)
        a("s_sub_u32 s10, s10, s27")
        self.srd(12, 78, 448*3584, off_s=27)
        a("s_sub_u32 s14, s14, s27")
        self.x_load()
        self.r16_addr(15, 3584)
        if self.o.get("gatef") or self.o.get("hb", 0) & 8: a("s_barrier")
        self.r16_loads(8, 128, 3584, 15, self.o.get("pf", 0), self.o.get("pfn", 99))
        self.r16_loads(12, 192, 3584, 15, self.o.get("pf", 0), self.o.get("pfn", 99) - 16)
        self.stamp(10)
        self.masks()
        self.front_setup(C_H3, C_XR2)
        a("s_mov_b32 s23, -1\nv_mov_b32 v24, 0x3f803f80\ns_waitcnt vmcnt(0)\nv_mov_b32 v22, v25")
        self.stamp(1)
        a("s_branch L_Fg")
        a("L_Floop:")
        self.gather("f", 8, True)
        self.stamp_l(2, 5)
        a("L_Fg:")
        self.front_gemv(True)
        self.stamp_l(3, 6)
        a("s_cmp_eq_u32 s23, -1\ns_cbranch_scc0 L_Fn1")
        a("v_mov_b32 v8, 12288\nds_read_b32 v9, v8\ns_waitcnt lgkmcnt(0)\nv_readfirstlane_b32 s20, v9")
        self.add_side("v9")
        a("s_mov_b32 s23, 0\ns_branch L_Floop")
        a("L_Fn1:\ns_cmp_eq_u32 s21, 0\ns_cbranch_scc0 L_Fnx")
        self.xr_publish(f"s_lshl_b32 s26, s23, 14\ns_add_u32 s26, s26, {(C_XR1-C_XR2)*CH}")
        a("L_Fnx:")
        a(f"v_add_u32 v16, {4*CH}, v16\nv_add_u32 v13, {4*CH}, v13")
        a("s_add_u32 s23, s23, 1\ns_cmp_lt_i32 s23, 2\ns_cbranch_scc1 L_Floop\ns_branch L_exit")
        a("L_Fb:\ns_sub_u32 s30, s22, 4")
        a("s_mul_i32 s27, s21, 57344")
        self.srd(8, 80, 57344, off_s=27)
        a(f"""
        s_lshr_b32 s27, s21, 3
        s_lshl_b32 s27, s27, 14
        s_and_b32 s26, s21, 7
        s_lshl_b32 s26, s26, 10
        s_add_u32 s52, s26, s27
        s_add_u32 s52, s52, {C_H4*CH}
        s_cmp_eq_u32 s22, 4
        s_cbranch_scc0 L_Fb1
        """)
        self.epoch_load()
        a("v_lshlrev_b32 v10, 4, v0")
        self.reset1k(52)
        a(f"s_add_u32 s53, s52, {4*CH}")
        self.reset1k(53)
        a(f"s_cmp_eq_u32 s21, 0\ns_cbranch_scc0 L_Fb1\ns_mov_b32 s53, {C_XR1*CH}")
        self.reset1k(53)
        a(f"s_mov_b32 s53, {C_XR3*CH}")
        self.reset1k(53)
        a("L_Fb1:")
        self.r8_addr2(16, 8, 30)
        if self.o.get("gatef"):
            a("s_cmp_eq_u32 s22, 4\ns_cbranch_scc0 L_Fb3")
            self.flag_store(0)
            a("L_Fb3:\ns_barrier")
        elif self.o.get("hb", 0) & 8: a("s_barrier")
        def w4():
            a("s_cmp_eq_u32 s22, 4\ns_cbranch_scc0 L_Fb2")
            if not self.o.get("gatef"): self.flag_store(0 if self.o.get("fb4") else 16)
            a(f"s_mov_b32 s27, {ID_W}")
            self.flag_poll("f", 27, NW, extra_id=ID_Q)
            a("v_mov_b32 v8, 12288\nv_mov_b32 v9, s20\nds_write_b32 v8, v9\ns_waitcnt lgkmcnt(0)")
            a("L_Fb2:")
        if self.o.get("fb4"): w4()
        self.r8_loads(8, 8, 16, 128, self.o.get("pb", 0), self.o.get("pbn", 99))
        if not self.o.get("fb4"): w4()
        self.masks()
        self.r8_pub_addr(17, 30, 52)
        a("v_lshlrev_b32 v58, 2, v0\nv_add_u32 v58, 1024, v58")
        a("s_lshl_b32 s26, s30, 7\ns_add_u32 s26, s26, 10240\nv_lshl_add_u32 v18, v0, 1, s26\nv_lshl_add_u32 v19, v2, 5, s26")
        a("s_mov_b32 s23, -1")
        self.stamp(1)
        a("L_Fbl:")
        a(f"s_and_b32 s26, s23, 1\ns_mul_i32 s26, s26, 4352\nv_add_u32 v10, s26, v58\ns_add_u32 s26, s26, {1024+4096}\nv_mov_b32 v11, s26\ns_lshl_b32 s27, s23, 16")
        a("s_barrier")
        self.stamp_l(2, 5)
        self.back_reduce(True, 10, 60)
        self.ln_scalars(60, 8)
        a("s_waitcnt lgkmcnt(4)")
        self.sum8(60)
        a("s_waitcnt lgkmcnt(0)")
        self.sum8(68)
        a("s_cmp_eq_u32 s23, -1\ns_cbranch_scc0 L_Fbh\nv_mov_b32 v56, v60\nv_mov_b32 v57, v68\ns_mov_b32 s23, 0\ns_branch L_Fbl")
        a(f"""
        L_Fbh:
        v_fma_f32 v60, -v76, v56, v60
        v_fma_f32 v68, -v76, v57, v68
        v_mul_f32 v60, v60, v77
        v_mul_f32 v68, v68, v77
        v_cvt_pk_bf16_f32 v61, v60, v68
        v_lshlrev_b32 v60, 16, v61
        v_and_b32 v68, 0xffff0000, v61
        v_mul_f32 v61, {hex(f2u(-LOG2E))}, v60
        v_exp_f32 v61, v61
        v_add_f32 v61, 1.0, v61
        v_rcp_f32 v61, v61
        v_mul_f32 v61, v60, v61
        v_cvt_pk_bf16_f32 v61, v61, v61
        v_and_b32 v61, 0xffff0000, v61
        v_mul_f32 v61, v61, v68
        v_cvt_pk_bf16_f32 v61, v61, v61
        ds_write_b16 v18, v61
        s_waitcnt lgkmcnt(0)
        ds_read_b128 v[26:29], v19
        ds_read_b128 v[30:33], v19 offset:16
        """)
        a("s_waitcnt vmcnt(0)")
        self.stamp_l(3, 6)
        self.r8_gemv(8, 26, 128, 17, 27)
        self.stamp_l(4, 7)
        a("s_add_u32 s23, s23, 1\ns_cmp_lt_i32 s23, 2\ns_cbranch_scc1 L_Fbl\ns_branch L_exit")
    def r8_addr2(self, vdst, NS, wv):
        self.a(f"""
        v_lshrrev_b32 v20, 1, v2
        v_mul_u32_u24 v20, {2*NS}, v20
        v_and_b32 v21, 1, v2
        v_add_u32 v20, v20, v21
        v_mul_u32_u24 v20, 896, v20
        v_lshl_add_u32 v20, v1, 4, v20
        s_lshl_b32 s26, s{wv}, 8
        v_add_u32 v{vdst}, s26, v20
        s_cmp_eq_u32 s{wv}, 3
        s_cselect_b32 s28, 0x00ff00ff, -1
        s_mov_b32 s29, s28
        """)

    def role_w(self):
        a = self.a
        a(f"L_W:\ns_sub_u32 s21, s2, {ID_W}")
        a(f"""
        s_lshr_b32 s27, s21, 2
        s_lshl_b32 s27, s27, 14
        s_and_b32 s26, s21, 3
        s_lshl_b32 s26, s26, 11
        s_add_u32 s53, s26, s27
        s_lshr_b32 s27, s21, 3
        s_lshl_b32 s27, s27, 14
        s_and_b32 s26, s21, 7
        s_lshl_b32 s26, s26, 10
        s_add_u32 s52, s26, s27
        s_add_u32 s52, s52, {C_H3*CH}
        """)
        a("s_cmp_gt_u32 s22, 4\ns_cbranch_scc1 L_exit\ns_cmp_eq_u32 s22, 4\ns_cbranch_scc1 L_Wh")
        a("s_mul_i32 s27, s21, 114688")
        self.srd(8, 72, 114688, off_s=27)
        self.r8_addr(16, 16, 22)
        if self.o.get("gatew") or self.o.get("hb", 0) & 4: a("s_barrier")
        self.r8_loads(16, 8, 16, 128, self.o.get("pw", 0), self.o.get("pwn", 99))
        self.stamp(10)
        self.masks()
        self.r8_pub_addr(17, 22, 52)
        a(f"""
        v_lshrrev_b32 v8, 2, v0
        v_and_b32 v9, 3, v0
        v_lshlrev_b32 v10, 9, v8
        v_lshl_add_u32 v10, v9, 5, v10
        s_lshl_b32 s26, s21, 14
        s_lshl_b32 s27, s22, 7
        s_add_u32 s26, s26, s27
        s_add_u32 s26, s26, {C_H2O*CH}
        v_add_u32 v18, s26, v10
        s_add_u32 s26, s53, {C_H2M*CH}
        v_lshl_add_u32 v19, v8, 7, s26
        v_lshlrev_b32 v10, 4, v9
        v_lshl_add_u32 v10, v2, 2, v10
        s_lshl_b32 s26, s22, 6
        v_add_u32 v20, s26, v10
        v_lshlrev_b32 v21, 6, v2
        s_mov_b32 s23, 0
        s_waitcnt vmcnt(0)
        """)
        self.stamp(1)
        a("v_mov_b32 v8, 512\ns_barrier\nds_read_b32 v9, v8\ns_waitcnt lgkmcnt(0)\nv_add_u32 v18, v9, v18\nv_add_u32 v19, v9, v19")
        a("L_Wl:\ns_mov_b32 s25, 0")
        a(f"s_mul_i32 s30, s23, {32*CH}\ns_lshl_b32 s27, s23, 17\ns_lshl_b32 s31, s23, 16")
        a("""
        L_Wp:
        buffer_load_dwordx2 v[22:23], v19, s[4:7], s27 offen sc1
        buffer_load_dwordx4 v[60:63], v18, s[4:7], s30 offen sc1
        buffer_load_dwordx4 v[64:67], v18, s[4:7], s30 offen offset:16 sc1
        """)
        self.timeout()
        a("""
        s_waitcnt vmcnt(2)
        v_max_f32_dpp v24, v22, v22 row_ror:4 row_mask:0xf bank_mask:0xf
        v_max_f32_dpp v24, v24, v24 row_ror:8 row_mask:0xf bank_mask:0xf
        v_mov_b32 v25, v24
        v_permlane16_swap_b32 v24, v25
        v_max_f32 v24, v24, v25
        v_mov_b32 v25, v24
        v_permlane32_swap_b32 v24, v25
        v_max_f32 v24, v24, v25
        v_sub_f32 v24, v22, v24
        v_exp_f32 v24, v24
        s_waitcnt vmcnt(0)
        v_max3_u32 v54, v22, v60, v64
        v_cmp_eq_u32 vcc, -1, v54
        s_cbranch_vccnz L_Wp
        """)
        self.stamp_l(2, 5)
        a("""
        v_mul_f32 v26, v23, v24
        v_pk_mul_f32 v[60:61], v[60:61], v[24:25] op_sel_hi:[1,0]
        v_pk_mul_f32 v[64:65], v[64:65], v[24:25] op_sel_hi:[1,0]
        v_pk_mul_f32 v[62:63], v[62:63], v[24:25] op_sel_hi:[1,0]
        v_pk_mul_f32 v[66:67], v[66:67], v[24:25] op_sel_hi:[1,0]
        v_add_f32_dpp v26, v26, v26 row_ror:4 row_mask:0xf bank_mask:0xf
        v_permlane32_swap_b32 v60, v64
        v_permlane32_swap_b32 v61, v65
        v_add_f32_dpp v26, v26, v26 row_ror:8 row_mask:0xf bank_mask:0xf
        v_permlane32_swap_b32 v62, v66
        v_permlane32_swap_b32 v63, v67
        v_mov_b32 v27, v26
        v_pk_add_f32 v[60:61], v[60:61], v[64:65]
        v_pk_add_f32 v[62:63], v[62:63], v[66:67]
        v_permlane16_swap_b32 v26, v27
        v_add_f32 v26, v26, v27
        v_permlane16_swap_b32 v60, v62
        v_permlane16_swap_b32 v61, v63
        v_mov_b32 v27, v26
        v_pk_add_f32 v[60:61], v[60:61], v[62:63]
        v_permlane32_swap_b32 v26, v27
        v_add_f32_dpp v60, v60, v60 row_ror:4 row_mask:0xf bank_mask:0xf
        v_add_f32_dpp v61, v61, v61 row_ror:4 row_mask:0xf bank_mask:0xf
        v_add_f32 v26, v26, v27
        v_rcp_f32 v26, v26
        v_add_f32_dpp v60, v60, v60 row_ror:8 row_mask:0xf bank_mask:0xf
        v_add_f32_dpp v61, v61, v61 row_ror:8 row_mask:0xf bank_mask:0xf
        v_pk_mul_f32 v[60:61], v[60:61], v[26:27] op_sel_hi:[1,0]
        v_cvt_pk_bf16_f32 v60, v60, v61
        ds_write_b32 v20, v60
        s_waitcnt lgkmcnt(0)
        s_barrier
        ds_read_b128 v[60:63], v21
        ds_read_b128 v[64:67], v21 offset:16
        ds_read_b128 v[68:71], v21 offset:32
        ds_read_b128 v[72:75], v21 offset:48
        """)
        self.stamp_l(3, 6)
        self.r8_gemv(16, 60, 128, 17, 31)
        self.stamp_l(4, 7)
        a("s_cmp_eq_u32 s23, 1\ns_cbranch_scc1 L_exit\ns_mov_b32 s23, 1\ns_branch L_Wl")
        a("L_Wh:")
        self.epoch_load()
        a("v_lshlrev_b32 v10, 4, v0")
        self.reset1k(52)
        a(f"s_add_u32 s53, s52, {4*CH}")
        self.reset1k(53)
        if self.o.get("hb", 0) & 4 and not self.o.get("gatew"): a("s_barrier")
        self.flag_store(0)
        if self.o.get("gatew"): a("s_barrier")
        a(f"s_lshr_b32 s27, s21, 2\ns_lshl_b32 s27, s27, 4\ns_add_u32 s27, s27, {ID_A}")
        self.flag_poll("w", 27, 16)
        a("v_mov_b32 v8, 512\nv_mov_b32 v9, s20\nds_write_b32 v8, v9\ns_waitcnt lgkmcnt(0)\ns_branch L_exit")

    def role_a(self):
        a = self.a
        a(f"L_A:\ns_sub_u32 s21, s2, {ID_A}\ns_lshr_b32 s52, s21, 4\ns_and_b32 s53, s21, 15")
        a("s_cmp_gt_u32 s22, 4\ns_cbranch_scc1 L_exit\ns_cmp_eq_u32 s22, 4\ns_cbranch_scc1 L_Ah")
        a(f"s_lshl_b32 s27, s52, 22\ns_lshl_b32 s26, s53, 16\ns_add_u32 s27, s27, s26\ns_add_u32 s27, s27, {6144*512}")
        self.srd(8, 66, 65536, off_s=27)
        self.srd(12, 68, 65536, off_s=27)
        a("""
        s_lshl_b32 s26, s22, 14
        v_and_b32 v8, 7, v1
        v_lshlrev_b32 v8, 9, v8
        v_lshl_add_u32 v8, v2, 4, v8
        v_lshrrev_b32 v9, 3, v1
        v_lshl_add_u32 v8, v9, 6, v8
        v_add_u32 v16, s26, v8
        v_lshrrev_b32 v8, 1, v2
        v_and_b32 v9, 1, v2
        v_lshl_add_u32 v8, v8, 2, v9
        v_lshlrev_b32 v8, 9, v8
        v_lshl_add_u32 v8, v1, 4, v8
        v_add_u32 v17, s26, v8
        s_mov_b32 s32, 0
        s_mov_b32 s33, 4096
        s_mov_b32 s34, 8192
        s_mov_b32 s35, 12288
        """)
        KR, VR = 128, 192
        if self.o.get("hb", 0) & 1 or self.o.get("ga"): a("s_barrier")
        for T in range(2):
            for ks in range(8):
                r = KR + 32*T + 4*ks
                if self.o.get("pk") and 8*T + ks >= self.o["pk"]: a(f"s_waitcnt vmcnt({self.o['pk'] - 1})")
                a(f"buffer_load_dwordx4 v[{r}:{r+3}], v16, s[8:11], s{32+2*T+(ks&1)} offen offset:{128*(ks>>1)} nt")
        self.stamp(10)
        for T in range(2):
            for aa in range(2):
                for cb in range(2):
                    for hf in range(2):
                        r = VR + ((2*T + aa)*2 + cb)*8 + 4*hf
                        if self.o.get("pace", 1): a(f"s_waitcnt vmcnt({self.o.get('pv', 16) - 1})")
                        a(f"buffer_load_dwordx4 v[{r}:{r+3}], v17, s[12:15], s{32+2*T+hf} offen offset:{1024*aa + 256*cb} nt")
        self.masks()
        a(f"""
        v_lshrrev_b32 v8, 3, v1
        v_lshlrev_b32 v8, 9, v8
        v_lshl_add_u32 v18, v2, 4, v8
        v_lshrrev_b32 v8, 1, v2
        v_lshlrev_b32 v8, 10, v8
        v_lshl_add_u32 v8, v1, 5, v8
        v_and_b32 v9, 1, v2
        v_lshl_add_u32 v8, v9, 4, v8
        s_lshl_b32 s26, s22, 11
        s_add_u32 s26, s26, 1024
        v_add_u32 v19, s26, v8
        v_lshrrev_b32 v8, 3, v1
        s_lshl_b32 s26, s22, 3
        s_add_u32 s26, s26, 9216
        v_lshl_add_u32 v20, v8, 5, s26
        v_and_b32 v8, 31, v0
        s_lshl_b32 s26, s22, 9
        s_add_u32 s26, s26, 1024
        v_lshl_add_u32 v21, v8, 4, s26
        s_lshr_b32 s26, s22, 1
        s_lshl_b32 s26, s26, 5
        s_add_u32 s26, s26, 9216
        v_mov_b32 v22, s26
        s_lshl_b32 s26, s52, 2
        s_add_u32 s26, s26, s22
        s_lshl_b32 s27, s26, 14
        s_lshl_b32 s30, s53, 9
        s_add_u32 s27, s27, s30
        s_add_u32 s27, s27, {C_H2O*CH}
        v_lshrrev_b32 v9, 5, v0
        v_lshlrev_b32 v9, 13, v9
        v_lshl_add_u32 v8, v8, 4, v9
        v_add_u32 v23, s27, v8
        s_lshl_b32 s27, s52, 14
        s_lshl_b32 s30, s22, 11
        s_add_u32 s27, s27, s30
        s_lshl_b32 s30, s53, 7
        s_add_u32 s27, s27, s30
        s_add_u32 s27, s27, {C_H2M*CH}
        v_add_u32 v24, s27, v9
        s_mov_b32 s36, {hex(f2u(LOG2E/16))}
        s_mov_b32 s23, 0
        s_waitcnt vmcnt(16)
        """)
        self.stamp(1)
        for pr in range(8):
            X = KR + 8*pr
            for d in range(4): a(f"v_mov_b32_dpp v{60+d}, v{X+d} row_ror:8 row_mask:0xf bank_mask:0xf")
            for d in range(4): a(f"v_mov_b32_dpp v{X+d}, v{X+4+d} row_ror:8 row_mask:0xf bank_mask:0xc")
            for d in range(4): a(f"v_mov_b32_dpp v{X+4+d}, v{60+d} quad_perm:[0,1,2,3] row_mask:0xf bank_mask:0x3")
        if self.o.get("vstamp"):
            a("s_waitcnt vmcnt(0)"); self.stamp(9)
        a("L_Al:\ns_barrier")
        self.stamp_l(2, 6)
        QR = 60
        for ks in range(8):
            a(f"ds_read_b128 v[{QR+4*ks}:{QR+4*ks+3}], v18 offset:{64*ks}")
        for ks in range(8):
            a(f"s_waitcnt lgkmcnt({7-ks})")
            for T in range(2):
                c = "0" if ks == 0 else f"v[{44+4*T}:{47+4*T}]"
                a(f"v_mfma_f32_16x16x32_bf16 v[{44+4*T}:{47+4*T}], v[{KR+32*T+4*ks}:{KR+32*T+4*ks+3}], v[{QR+4*ks}:{QR+4*ks+3}], {c}")
        for i in range(8): a(f"v_mov_b32 v{92+i}, 0")
        for k in range(4): a(f"v_cvt_pk_bf16_f32 v{52+k}, v{44+2*k}, v{45+2*k}")
        for k in range(4): a(f"v_lshlrev_b32 v{44+2*k}, 16, v{52+k}\nv_and_b32 v{45+2*k}, 0xffff0000, v{52+k}")
        a("""
        v_max3_f32 v52, v44, v45, v46
        v_max3_f32 v53, v47, v48, v49
        v_max3_f32 v52, v50, v51, v52
        v_max_f32 v52, v52, v53
        v_mov_b32 v53, v52
        v_permlane32_swap_b32 v52, v53
        v_max_f32 v52, v52, v53
        v_mov_b32 v53, v52
        v_permlane16_swap_b32 v52, v53
        v_max_f32 v52, v52, v53
        v_mul_f32 v56, s36, v52
        """)
        for k in range(8): a(f"v_fma_f32 v{44+k}, v{44+k}, s36, -v56")
        for k in range(8): a(f"v_exp_f32 v{44+k}, v{44+k}")
        for k in range(4): a(f"v_cvt_pk_bf16_f32 v{52+k}, v{44+2*k}, v{45+2*k}")
        self.abuild(34, 52)
        a("s_waitcnt vmcnt(0)")
        self.stamp_l(3, 7)
        fill = ["v_pk_add_f32 v[44:45], v[44:45], v[46:47]\nv_pk_add_f32 v[48:49], v[48:49], v[50:51]",
                "v_pk_add_f32 v[44:45], v[44:45], v[48:49]\nv_add_f32 v57, v44, v45\nv_mov_b32 v58, v57",
                "v_permlane32_swap_b32 v57, v58\nv_add_f32 v57, v57, v58\nv_mov_b32 v58, v57",
                "v_permlane16_swap_b32 v57, v58\nv_add_f32 v57, v57, v58"]
        for n in range(4):
            A = 34 + 4*(n & 1)
            if n < 3: self.abuild(34 + 4*((n+1) & 1), 52 + n + 1)
            for cb in range(2):
                r = VR + (n*2 + cb)*8
                a(f"v_smfmac_f32_16x16x64_bf16 v[{92+4*cb}:{95+4*cb}], v[{A}:{A+3}], v[{r}:{r+7}], v7")
            a(fill[n])
        a("""
        s_mov_b64 exec, 0x101
        ds_write_b64 v20, v[56:57]
        s_mov_b64 exec, -1
        ds_write_b128 v19, v[92:95]
        ds_write_b128 v19, v[96:99] offset:512
        s_waitcnt lgkmcnt(0)
        s_barrier
        ds_read_b128 v[44:47], v22
        ds_read_b128 v[48:51], v22 offset:16
        ds_read_b128 v[60:63], v21
        ds_read_b128 v[64:67], v21 offset:2048
        ds_read_b128 v[68:71], v21 offset:4096
        ds_read_b128 v[72:75], v21 offset:6144
        s_waitcnt lgkmcnt(4)
        v_max3_f32 v56, v44, v46, v48
        v_max_f32 v56, v56, v50
        v_sub_f32 v52, v44, v56
        v_sub_f32 v53, v46, v56
        v_sub_f32 v54, v48, v56
        v_sub_f32 v55, v50, v56
        v_exp_f32 v52, v52
        v_exp_f32 v53, v53
        v_exp_f32 v54, v54
        v_exp_f32 v55, v55
        s_waitcnt lgkmcnt(3)
        v_pk_mul_f32 v[60:61], v[60:61], v[52:53] op_sel_hi:[1,0]
        v_pk_mul_f32 v[62:63], v[62:63], v[52:53] op_sel_hi:[1,0]
        s_waitcnt lgkmcnt(2)
        v_pk_fma_f32 v[60:61], v[64:65], v[52:53], v[60:61] op_sel:[0,1,0] op_sel_hi:[1,1,1]
        v_pk_fma_f32 v[62:63], v[66:67], v[52:53], v[62:63] op_sel:[0,1,0] op_sel_hi:[1,1,1]
        s_waitcnt lgkmcnt(1)
        v_pk_fma_f32 v[60:61], v[68:69], v[54:55], v[60:61] op_sel_hi:[1,0,1]
        v_pk_fma_f32 v[62:63], v[70:71], v[54:55], v[62:63] op_sel_hi:[1,0,1]
        s_waitcnt lgkmcnt(0)
        v_pk_fma_f32 v[60:61], v[72:73], v[54:55], v[60:61] op_sel:[0,1,0] op_sel_hi:[1,1,1]
        v_pk_fma_f32 v[62:63], v[74:75], v[54:55], v[62:63] op_sel:[0,1,0] op_sel_hi:[1,1,1]
        """)
        a(f"s_mul_i32 s26, s23, {32*CH}\ns_lshl_b32 s27, s23, 17")
        a("""
        v_mul_f32 v57, v52, v45
        v_min_u32 v60, -2, v60
        buffer_store_dwordx4 v[60:63], v23, s[4:7], s26 offen sc1
        v_fmac_f32 v57, v53, v47
        v_fmac_f32 v57, v54, v49
        v_fmac_f32 v57, v55, v51
        v_min_u32 v56, -2, v56
        s_mov_b32 exec_lo, 1
        s_mov_b32 exec_hi, 1
        buffer_store_dwordx2 v[56:57], v24, s[4:7], s27 offen sc1
        s_mov_b64 exec, -1
        """)
        self.stamp_l(4, 8)
        a("s_add_u32 s23, s23, 1\ns_cmp_lt_i32 s23, 2\ns_cbranch_scc1 L_Al\ns_branch L_exit")
        a("L_Ah:")
        self.epoch_load()
        a(f"""
        v_and_b32 v8, 31, v0
        v_lshrrev_b32 v11, 5, v0
        v_lshlrev_b32 v11, 13, v11
        v_lshl_add_u32 v10, v8, 4, v11
        s_lshl_b32 s27, s52, 16
        s_lshl_b32 s30, s53, 9
        s_add_u32 s27, s27, s30
        s_add_u32 s27, s27, {C_H2O*CH}
        """)
        for L in range(2):
            for w in range(4):
                a(f"s_add_u32 s26, s27, {(L*32 + w)*CH}\nbuffer_store_dwordx4 v[12:15], v10, s[4:7], s26 offen sc1")
        a(f"""
        v_and_b32 v8, 3, v0
        v_lshlrev_b32 v8, 11, v8
        v_bfe_u32 v11, v0, 2, 1
        v_lshl_add_u32 v8, v11, 13, v8
        v_bfe_u32 v11, v0, 3, 1
        v_lshl_add_u32 v8, v11, 17, v8
        s_lshl_b32 s27, s52, 14
        s_lshl_b32 s30, s53, 7
        s_add_u32 s27, s27, s30
        s_add_u32 s27, s27, {C_H2M*CH}
        s_mov_b64 exec, 0xffff
        buffer_store_dwordx4 v[12:15], v8, s[4:7], s27 offen sc1
        s_mov_b64 exec, -1
        """)
        if self.o.get("hb", 0) & 1: a("s_barrier")
        early = self.o.get("early", 1)
        if not early:
            self.flag_store(0)
            if self.o.get("ga"): a("s_barrier")
            self.stamp(1)
        D = self.o.get("qd", 2)
        def issue(k, so=31):
            r = 20 + 8*k
            a(f"buffer_load_dwordx4 v[{r}:{r+3}], v17, s[4:7], s{so} offen sc1\nbuffer_load_dwordx4 v[{r+4}:{r+7}], v17, s[4:7], s{so} offen offset:1024 sc1")
        a(f"""
        v_lshlrev_b32 v16, 3, v0
        s_lshr_b32 s26, s52, 2
        s_lshl_b32 s26, s26, 14
        s_and_b32 s27, s52, 3
        s_lshl_b32 s27, s27, 11
        s_add_u32 s26, s26, s27
        s_add_u32 s30, s26, {C_H1*CH}
        v_lshlrev_b32 v17, 4, v0
        s_mov_b32 s23, 0
        """)
        if early:
            a("s_add_u32 s31, s30, s20\ns_mov_b32 s25, 0")
            for k in range(D - 1): issue(k)
            self.flag_store(2*(D - 1))
            self.stamp(1)
            a("s_branch L_Ahp0")
        a(f"""
        L_Ahl:
        s_lshl_b32 s31, s23, 15
        s_add_u32 s31, s31, s30
        s_add_u32 s31, s31, s20
        s_mov_b32 s25, 0
        """)
        for k in range(D - 1): issue(k)
        a("L_Ahp0:")
        a("L_Ahp:")
        for k in range(D):
            r = 20 + 8*k
            issue((k + D - 1) % D)
            if k == 0: self.timeout()
            a(f"""
            s_waitcnt vmcnt({2*(D-1)})
            v_xor_b32 v18, s24, v{r+1}
            v_xor_b32 v19, s24, v{r+3}
            v_xor_b32 v{r+1}, s24, v{r+5}
            v_xor_b32 v{r+3}, s24, v{r+7}
            v_or3_b32 v18, v18, v19, v{r+1}
            v_or_b32 v18, v18, v{r+3}
            v_cmp_ne_u32 vcc, 0, v18
            """)
            if k < D - 1: a(f"s_cbranch_vccz L_Ahd{k}")
            else: a("s_cbranch_vccnz L_Ahp")
        for k in reversed(range(D)):
            r = 20 + 8*k
            a(f"L_Ahd{k}:\nds_write2_b32 v16, v{r}, v{r+2} offset0:0 offset1:1\nds_write2_b32 v16, v{r+4}, v{r+6} offset0:128 offset1:129")
            if k > 0: a("s_branch L_Ahe")
        a("""
        L_Ahe:
        s_waitcnt lgkmcnt(0)
        s_barrier
        s_waitcnt vmcnt(0)
        s_barrier
        s_cmp_eq_u32 s23, 1
        s_cbranch_scc1 L_exit
        s_mov_b32 s23, 1
        s_mov_b32 s27, 0
        """)
        self.flag_poll("a", 27, 0)
        a("s_branch L_Ahl")

    def role_c(self):
        a = self.a
        a("L_C:")
        a("s_cmp_eq_u32 s22, 0\ns_cbranch_scc0 L_exit\ns_setprio 3")
        self.epoch_load()
        ld = self.o.get("cld", 0)
        def op(soff, off):
            if ld: return f"buffer_load_dword v16, v8, s[4:7], s{soff} offen offset:{off} sc1"
            return f"buffer_store_dword v8, v8, s[4:7], s{soff} offen offset:{off} sc1"
        a(f"""
        s_mov_b32 s26, {C_PR*CH}
        s_mov_b32 s27, {C_PR*CH+8192}
        v_lshlrev_b32 v17, 8, v0
        s_mov_b64 exec, {hex(0xffff if self.o.get("cpre") else 1)}
        buffer_store_dword v8, v17, s[4:7], s26 offen offset:{128 if self.o.get("cpre") else 0} sc1
        buffer_store_dword v8, v17, s[4:7], s27 offen offset:{128 if self.o.get("cpre") else 0} sc1
        s_mov_b64 exec, 1
        s_mov_b32 s32, -1
        s_mov_b32 s33, -1
        s_waitcnt vmcnt(0)
        """)
        n = self.o.get("cmax", 8); thr = self.o.get("cthr", 100)
        dbgs = ""
        step = 0 if self.o.get("csame") else 256
        if self.o.get("cdbg"):
            self.srd(8, 84, 256)
            dbgs = "s_mul_i32 s42, s34, 10000\ns_add_u32 s42, s42, s35\nv_mov_b32 v17, s42\ns_lshl_b32 s42, s30, 2\nbuffer_store_dword v17, v8, s[8:11], s42 offen\ns_waitcnt vmcnt(0)"
        a(f"""
        s_mov_b32 s30, 0
        L_Cl:
        s_add_u32 s26, s26, {step}
        s_add_u32 s27, s27, {step}
        s_memtime s[36:37]
        s_waitcnt lgkmcnt(0)
        {op(26, 128 if step else 0)}
        s_waitcnt vmcnt(0)
        s_memtime s[38:39]
        s_waitcnt lgkmcnt(0)
        {op(27, 128 if step else 0)}
        s_waitcnt vmcnt(0)
        s_memtime s[40:41]
        s_waitcnt lgkmcnt(0)
        s_sub_u32 s34, s38, s36
        s_sub_u32 s35, s40, s38
        s_min_u32 s32, s32, s34
        s_min_u32 s33, s33, s35
        {dbgs}
        s_add_u32 s30, s30, 1
        s_cmp_ge_u32 s30, {n}
        s_cbranch_scc1 L_Cd
        s_min_u32 s34, s32, s33
        s_max_u32 s35, s32, s33
        s_sub_u32 s35, s35, s34
        s_cmp_ge_u32 s30, {self.o.get("cabsn", 99)}
        s_cselect_b32 s34, 0, s34
        s_cmp_le_u32 s34, {self.o.get("cabs", 600)}
        s_cselect_b32 s35, s35, 0
        s_cmp_ge_u32 s30, 2
        s_cselect_b32 s35, s35, 0
        s_cmp_ge_u32 s35, {thr}
        s_cbranch_scc0 L_Cl
        """)
        a(f"""
        L_Cd:
        s_mov_b64 exec, -1
        s_cmp_lt_u32 s33, s32
        s_cselect_b32 s30, 1, 0
        s_lshr_b32 s31, s20, 13
        s_xor_b32 s30, s30, s31
        """)
        if self.o.get("cflip"): a("s_xor_b32 s30, s30, 1")
        if self.diag: a("s_mov_b32 s57, s32\ns_mov_b32 s58, s33\ns_mov_b32 s59, s30")
        self.flag_store(0, xor_s=30)
        self.stamp(4)
        a("s_branch L_exit")

    def build(self):
        a = self.a
        a(f"s_cmp_ge_u32 s2, {NWG}\ns_cbranch_scc1 L_end")
        if self.o.get("dbg"): a("s_memrealtime s[56:57]")
        if self.diag: a("s_memrealtime s[52:53]")
        a("s_load_dwordx16 s[64:79], s[0:1], 0\ns_load_dwordx8 s[80:87], s[0:1], 64")
        if self.diag:
            for s in self.STS: a(f"s_mov_b32 s{s}, 0")
            a("s_mov_b32 s23, -1")
        a("""
        v_lshrrev_b32 v1, 6, v0
        v_and_b32 v0, 63, v0
        s_getreg_b32 s20, hwreg(HW_REG_XCC_ID, 0, 4)
        v_readfirstlane_b32 s22, v1
        s_bfe_u32 s20, s20, 0x10002
        s_lshl_b32 s20, s20, 13
        v_and_b32 v1, 15, v0
        v_lshrrev_b32 v2, 4, v0
        s_cmp_lt_u32 s22, 4
        s_cbranch_scc1 L_np
        s_setprio 3
        L_np:
        s_waitcnt lgkmcnt(0)
        """)
        if self.diag: a(f"s_mov_b32 s{self.STS[11]}, s52")
        self.stamp(0)
        self.srd(4, 86, (4 << 20) if self.diag else (2 << 20))
        a("s_cmp_eq_u32 s2, 0\ns_cbranch_scc1 L_C")
        a(f"s_cmp_lt_u32 s2, {ID_A}\ns_cbranch_scc1 L_Q\ns_cmp_lt_u32 s2, {ID_W}\ns_cbranch_scc1 L_A\ns_cmp_lt_u32 s2, {ID_F}\ns_cbranch_scc1 L_W\ns_branch L_F")
        self.role_c(); self.role_q(); self.role_a(); self.role_w(); self.role_f()
        a("L_exit:")
        if self.o.get("dbg"):
            a("s_cmp_eq_u32 s22, 0\ns_cbranch_scc0 L_end\ns_mov_b32 s26, -1")
            for n, w in enumerate((1, 65, 192, 193, 225, 252)):
                a(f"s_cmp_eq_u32 s2, {w}\ns_cselect_b32 s26, {8*n}, s26")
            a("s_cmp_eq_u32 s26, -1\ns_cbranch_scc1 L_end\ns_memrealtime s[54:55]")
            if self.o.get("amp"):
                a(f"s_waitcnt lgkmcnt(0)\ns_cmp_eq_u32 s2, 1\ns_cbranch_scc0 L_amp2\ns_sub_u32 s27, s54, s56\ns_mul_i32 s27, s27, {self.o['amp']}\ns_min_u32 s27, s27, 100000")
                a("L_amp:\ns_memrealtime s[58:59]\ns_waitcnt lgkmcnt(0)\ns_sub_u32 s30, s58, s56\ns_cmp_lt_u32 s30, s27\ns_cbranch_scc1 L_amp\nL_amp2:")
            self.srd(8, 84, 256)
            a("s_mov_b64 exec, 1\ns_waitcnt lgkmcnt(0)\nv_mov_b32 v8, 0\nv_mov_b32 v12, s56\nv_mov_b32 v13, s54")
            a("buffer_store_dwordx2 v[12:13], v8, s[8:11], s26 offen")
        if self.diag:
            a("s_mov_b64 exec, -1\ns_waitcnt vmcnt(0) lgkmcnt(0)")
            self.stamp(19)
            a("s_lshl_b32 s26, s2, 3\ns_add_u32 s26, s26, s22\ns_lshl_b32 s26, s26, 7\ns_add_u32 s26, s26, 0x200000\nv_mov_b32 v8, 0\ns_mov_b64 exec, 1")
            for k in range(0, 20, 4):
                for i in range(4): a(f"v_mov_b32 v{12+i}, s{self.STS[k+i]}")
                a(f"buffer_store_dwordx4 v[12:15], v8, s[4:7], s26 offen offset:{4*k}")
            a("s_waitcnt vmcnt(0)")
        a("L_end:")
        hdr = open("interleave_layers__sliding_block_cached__glu_gated_swiglu__decode.s.ref").read().split("\n")
        top = [l for l in hdr if l.startswith(";") and "@launch" not in l]
        out = "\n".join(top) + f"\n; @launch grid=({NWG},1,1) block=(512,1,1) lds=16384\n"
        out += f'.amdgcn_target "amdgcn-amd-amdhsa--gfx950"\n.text\n.globl {NAME}\n.p2align 8\n.type {NAME},@function\n{NAME}:\n'
        out += a.text()
        out += f"""s_endpgm
.section .rodata,"a"
.p2align 6
.amdhsa_kernel {NAME}
  .amdhsa_next_free_vgpr 256
  .amdhsa_next_free_sgpr 102
  .amdhsa_accum_offset 256
  .amdhsa_group_segment_fixed_size 0
  .amdhsa_kernarg_size 96
  .amdhsa_user_sgpr_count 2
  .amdhsa_user_sgpr_kernarg_segment_ptr 1
  .amdhsa_system_sgpr_workgroup_id_x 1
.end_amdhsa_kernel
"""
        return out

if __name__ == "__main__":
    opts = {}
    for x in sys.argv[3:]:
        k, v = x.split("=")
        opts[k] = int(v) if v.lstrip("-").isdigit() else v
    if sys.argv[1] != "-": open(sys.argv[1], "w").write(G(False, opts).build())
    if len(sys.argv) > 2 and sys.argv[2] != "-": open(sys.argv[2], "w").write(G(True, opts).build())
```

```python
import sys
from asmlib import Asm
NAME = "interleave_layers__sliding_block_cached__glu_gated_swiglu__decode_kernel"
CH = 16384
C_FLAG, C_H1, C_H2O, C_H2M, C_H3, C_XR2, C_H4, C_XR1, C_XR3, C_PR = 1, 3, 8, 72, 88, 96, 97, 105, 106, 107
NQ, NA, NW, NF = 64, 128, 32, 28
ID_Q, ID_A, ID_W, ID_F = 1, 65, 193, 225
NWG = 253
TMO = 20000
LOG2E = 1.4426950408889634
import struct
def f2u(x): return struct.unpack("<I", struct.pack("<f", x))[0]

class G:
    def __init__(self, diag=False, opts=None):
        self.a = Asm(); self.diag = diag; self.o = dict(pw=2, pwn=8, pf=1, pfn=3, pb=1, pbn=1); self.o.update(opts or {})
        self.nst = 0
    STS = list(range(56, 64)) + list(range(88, 100))
    def stamp(self, k):
        if not self.diag: return
        if self.o.get("lite") and k not in (0, 1, 4, 8, 9, 19): return
        self.a(f"s_memrealtime s[54:55]\ns_waitcnt lgkmcnt(0)\ns_mov_b32 s{self.STS[k]}, s54")
    def stamp_l(self, k0, k1):
        if not self.diag: return
        if self.o.get("lite"): return
        self.a(f"s_memrealtime s[54:55]\ns_waitcnt lgkmcnt(0)\ns_cmp_eq_u32 s23, 1\ns_cselect_b32 s{self.STS[k1]}, s54, s{self.STS[k1]}\ns_cmp_eq_u32 s23, 0\ns_cselect_b32 s{self.STS[k0]}, s54, s{self.STS[k0]}")
    def srd(self, d, p, nbytes, off_s=None):
        a = self.a
        if off_s is None:
            a(f"s_mov_b32 s{d}, s{p}\ns_mov_b32 s{d+1}, s{p+1}")
        else:
            a(f"s_add_u32 s{d}, s{p}, s{off_s}\ns_addc_u32 s{d+1}, s{p+1}, 0")
        a(f"s_mov_b32 s{d+2}, {nbytes}\ns_mov_b32 s{d+3}, 0x20000")
    def kwait(self):
        self.a("s_waitcnt lgkmcnt(0)")
        self.stamp(0)
        self.srd(4, 86, (4 << 20) if self.diag else (2 << 20))
    def timeout(self):
        self.a(f"s_add_u32 s25, s25, 1\ns_cmp_gt_u32 s25, {TMO}\ns_cbranch_scc1 L_exit")
    def masks(self):
        a = self.a
        a("""
        v_and_b32 v8, 4, v1
        v_cmp_eq_u32 vcc, 0, v8
        v_mov_b32 v9, 0xffff
        v_cndmask_b32 v3, 0, v9, vcc
        v_xor_b32 v4, v3, v9
        v_lshlrev_b32 v5, 16, v3
        v_lshlrev_b32 v6, 16, v4
        v_and_b32 v8, 3, v1
        v_mul_u32_u24 v7, 17425, v8
        v_xor_b32 v8, 1, v8
        v_mul_u32_u24 v8, 4420, v8
        v_add_u32 v7, v7, v8
        """)
    def abuild(self, dst, src):
        for d in range(4):
            self.a(f"v_and_b32 v{dst+d}, v{src}, v{3+d}")
    def epoch_load(self):
        self.a("v_mov_b32 v8, 0\nbuffer_load_dword v9, v8, s[4:7], 0 offen sc1\nv_mov_b32 v12, -1\nv_mov_b32 v13, -1\nv_mov_b32 v14, -1\nv_mov_b32 v15, -1")
    def reset1k(self, sbase):
        a = self.a
        a(f"buffer_store_dwordx4 v[12:15], v10, s[4:7], s{sbase} offen sc1")
        a(f"s_add_u32 s31, s{sbase}, 8192")
        a(f"buffer_store_dwordx4 v[12:15], v10, s[4:7], s31 offen sc1")
    def tag_calc(self, nleft):
        self.a(f"s_waitcnt vmcnt({nleft})\nv_readfirstlane_b32 s24, v9\ns_mul_i32 s24, s24, 0x9E3779B1\ns_add_u32 s24, s24, 0x7F4A7C15")
    def flag_store(self, nleft, xor_s=None, have_tag=False):
        a = self.a
        if have_tag: a(f"s_waitcnt vmcnt({nleft})")
        else: self.tag_calc(nleft)
        if xor_s is not None: a(f"s_xor_b32 s24, s24, s{xor_s}")
        a(f"""
        s_lshr_b32 s26, s2, 7
        s_lshl_b32 s26, s26, 14
        s_and_b32 s27, s2, 127
        s_lshl_b32 s27, s27, 6
        s_add_u32 s26, s26, s27
        s_add_u32 s26, s26, {C_FLAG*CH}
        v_mov_b32 v8, 0
        v_mov_b32 v11, s24
        s_mov_b64 exec, 1
        buffer_store_dword v11, v8, s[4:7], s26 offen sc1
        s_mov_b64 exec, -1
        """)
    def flag_poll(self, tagn, first_s, n, extra_id=None):
        a = self.a
        a(f"v_add_u32 v8, s{first_s}, v0")
        nl = n
        if extra_id is not None:
            a(f"v_cmp_eq_u32 vcc, {n}, v0\nv_mov_b32 v11, {extra_id}\nv_cndmask_b32 v8, v8, v11, vcc")
            nl = n + 1
        a(f"v_cmp_ne_u32 vcc, {nl}, v0\nv_cndmask_b32 v8, 0, v8, vcc\nv_cndmask_b32_e64 v9, 1, 0, vcc")
        cl = nl; nl += 1
        a(f"""
        v_lshrrev_b32 v11, 7, v8
        v_lshlrev_b32 v11, 14, v11
        v_and_b32 v8, 127, v8
        v_lshl_add_u32 v8, v8, 6, v11
        s_mov_b32 s26, {C_FLAG*CH}
        s_mov_b32 s25, 0
        s_mov_b32 exec_lo, {hex(((1 << nl) - 1) & 0xffffffff)}
        s_mov_b32 exec_hi, {hex(((1 << nl) - 1) >> 32)}
        L_fp_{tagn}:
        buffer_load_dword v11, v8, s[4:7], s26 offen sc1
        """)
        self.timeout()
        a(f"""
        s_waitcnt vmcnt(0)
        v_xor_b32 v11, s24, v11
        v_cmp_gt_u32 vcc, v11, v9
        s_cbranch_vccnz L_fp_{tagn}
        v_readlane_b32 s26, v11, {cl}
        s_mov_b64 exec, -1
        s_lshl_b32 s26, s26, 13
        s_xor_b32 s20, s20, s26
        """)
    def tag_from_lds(self, addr):
        self.a(f"v_mov_b32 v8, {addr}\nds_read_b32 v9, v8\ns_waitcnt lgkmcnt(0)\nv_readfirstlane_b32 s24, v9")
    def front_setup(self, c_src, c_xr):
        a = self.a
        a(f"""
        s_mov_b32 s50, 0x00ff00ff
        s_mov_b32 s51, 0xff00ff00
        s_mov_b32 s48, 0
        s_mov_b32 s49, -1
        s_cmp_eq_u32 s22, 3
        s_cselect_b32 s28, 0x00ff00ff, -1
        s_mov_b32 s29, s28
        s_lshl_b32 s26, s22, 8
        v_lshlrev_b32 v8, 10, v2
        v_lshl_add_u32 v8, v1, 4, v8
        v_add_u32 v16, s26, v8
        v_add_u32 v18, s26, v14
        s_add_u32 s27, s26, {c_xr*CH}
        v_add_u32 v17, s27, v14
        v_lshrrev_b32 v11, 3, v0
        v_lshl_add_u32 v19, v11, 5, s26
        v_lshlrev_b32 v8, 14, v11
        v_and_b32 v9, 7, v0
        v_lshl_add_u32 v8, v9, 10, v8
        s_add_u32 s27, s26, {c_src*CH}
        v_add_u32 v13, s27, v8
        v_lshrrev_b32 v11, 3, v1
        v_lshlrev_b32 v11, 8, v11
        v_and_b32 v12, 7, v1
        v_lshl_add_u32 v11, v12, 5, v11
        v_and_b32 v12, 1, v2
        v_lshl_add_u32 v11, v12, 4, v11
        s_lshl_b32 s26, s22, 9
        s_add_u32 s26, s26, 1024
        v_add_u32 v20, s26, v11
        s_lshl_b32 s26, s22, 3
        s_add_u32 s26, s26, {1024+4096}
        v_lshrrev_b32 v8, 5, v0
        v_lshl_add_u32 v21, v8, 2, s26
        v_and_b32 v92, 0x3f803f80, v3
        v_and_b32 v93, 0x3f803f80, v4
        v_and_b32 v94, 0x3f803f80, v5
        v_and_b32 v95, 0x3f803f80, v6
        v_mov_b32 v22, 0
        """)
        for i in range(32): a(f"v_mov_b32 v{60+i}, 0")
        for i in range(8):
            a(f"s_mov_b32 s{32+i}, {c_src*CH + (i>>1)*CH + (i&1)*4096}")
    def add_side(self, src):
        self.a(f"v_add_u32 v16, {src}, v16\nv_add_u32 v17, {src}, v17\nv_add_u32 v13, {src}, v13")
    def r16_loads(self, srd, reg, rowstride, vaddr, pace=0, npace=99):
        for s in range(8):
            for hf in range(2):
                self.a(f"s_mov_b32 s26, {(64*hf + 2*s)*rowstride}")
                r = reg + 8*s + 4*hf
                if pace and 2*s + hf <= npace: self.a(f"s_waitcnt vmcnt({pace-1})")
                self.a(f"buffer_load_dwordx4 v[{r}:{r+3}], v{vaddr}, s[{srd}:{srd+3}], s26 offen nt")
    def r16_addr(self, vdst, rowstride):
        self.a(f"""
        v_lshrrev_b32 v8, 1, v2
        v_lshrrev_b32 v9, 3, v1
        v_lshl_add_u32 v8, v8, 1, v9
        v_and_b32 v9, 1, v2
        v_lshl_add_u32 v8, v8, 4, v9
        s_lshl_b32 s26, s22, 7
        v_add_u32 v8, s26, v8
        v_mul_u32_u24 v8, {rowstride}, v8
        v_and_b32 v9, 7, v1
        v_lshl_add_u32 v{vdst}, v9, 4, v8
        """)
    def x_load(self):
        self.a("""
        v_and_b32 v8, 1, v2
        v_lshlrev_b32 v8, 3, v8
        v_lshl_add_u32 v8, v1, 4, v8
        v_lshrrev_b32 v9, 1, v2
        v_lshl_add_u32 v14, v9, 2, v8
        s_lshl_b32 s26, s22, 8
        buffer_load_dword v25, v14, s[16:19], s26 offen
        """)
    def gather(self, tagn, nld, xr_cond):
        a = self.a
        mode = self.o.get("pre", "any")
        a("s_mov_b32 s25, 0")
        if mode != "none":
            a(f"s_mov_b32 exec_lo, {hex(0xffffffff if nld == 8 else 0x0fffffff)}\ns_mov_b32 exec_hi, 0")
            a(f"L_gl_{tagn}:\nbuffer_load_dword v54, v13, s[4:7], 0 offen sc1")
            self.timeout()
            a("s_waitcnt vmcnt(0)")
            if isinstance(mode, int):
                a(f"v_cmp_ne_u32 vcc, -1, v54\ns_bcnt1_i32_b32 s26, vcc_lo\ns_cmp_lt_u32 s26, {mode * 4 * nld // 32}\ns_cbranch_scc1 L_gl_{tagn}")
            elif mode == "all": a(f"v_cmp_eq_u32 vcc, -1, v54\ns_cbranch_vccnz L_gl_{tagn}")
            else: a(f"v_cmp_ne_u32 vcc, -1, v54\ns_cbranch_vccz L_gl_{tagn}")
        if self.o.get("inc", 0):
            def gload(g, t):
                if g == 0:
                    if xr_cond: a(f"s_cmp_eq_u32 s23, 0\ns_cbranch_scc1 L_gx{t}_{tagn}")
                    a("buffer_load_dword v22, v17, s[4:7], 0 offen sc1")
                    if xr_cond: a(f"L_gx{t}_{tagn}:")
                for i in (2*g, 2*g + 1):
                    if i < nld: a(f"buffer_load_dwordx4 v[{60+4*i}:{63+4*i}], v16, s[4:7], s{32+i} offen sc1")
            def gcheck(g, t):
                r = 60 + 8*g
                if g == 0: a(f"v_max3_u32 v54, v22, v{r}, v{r+4}")
                else: a(f"v_max_u32 v54, v{r}, v{r+4}")
                a(f"v_cmp_eq_u32 vcc, -1, v54\ns_cbranch_vccnz L_gs{t}{g}_{tagn}")
                a(f"v_smfmac_f32_16x16x64_bf16 v[42:45], v[92:95], v[{r}:{r+7}], v7\ns_bitset0_b32 s30, {g}")
                a(f"L_gs{t}{g}_{tagn}:")
            a("s_mov_b64 exec, s[28:29]")
            for g in range(4): gload(g, "a")
            a("s_mov_b64 exec, -1\ns_mov_b32 s30, 15\nv_mov_b32 v42, 0\nv_mov_b32 v43, 0\nv_mov_b32 v44, 0\nv_mov_b32 v45, 0")
            for g in range(4):
                a(f"s_waitcnt vmcnt({max(0, nld-2-2*g)})")
                gcheck(g, "a")
            a(f"s_cmp_eq_u32 s30, 0\ns_cbranch_scc1 L_gd_{tagn}")
            a(f"L_gp_{tagn}:\ns_mov_b64 exec, s[28:29]")
            for g in range(4):
                a(f"s_bitcmp1_b32 s30, {g}\ns_cbranch_scc0 L_gq{g}_{tagn}")
                gload(g, "b")
                a(f"L_gq{g}_{tagn}:")
            a("s_mov_b64 exec, -1")
            self.timeout()
            a("s_waitcnt vmcnt(0)")
            for g in range(4):
                a(f"s_bitcmp1_b32 s30, {g}\ns_cbranch_scc0 L_gsb{g}_{tagn}")
                gcheck(g, "b")
            a(f"s_cmp_eq_u32 s30, 0\ns_cbranch_scc0 L_gp_{tagn}")
            a(f"L_gd_{tagn}:\nv_lshlrev_b32 v52, 16, v22\nv_and_b32 v53, 0xffff0000, v22\ns_nop 2")
        else:
            def loads(pol, t):
                a("s_mov_b64 exec, s[28:29]")
                if xr_cond:
                    a(f"s_cmp_eq_u32 s23, 0\ns_cbranch_scc1 L_gx{t}_{tagn}")
                a("buffer_load_dword v22, v17, s[4:7], 0 offen sc1")
                if xr_cond: a(f"L_gx{t}_{tagn}:")
                for i in range(nld):
                    a(f"buffer_load_dwordx4 v[{60+4*i}:{63+4*i}], v16, s[4:7], s{32+i} offen {pol}")
            if self.o.get("l2"):
                loads({1: "", 2: "sc0"}[self.o["l2"]], "a")
                a(f"s_branch L_gc_{tagn}")
            a(f"L_gp_{tagn}:")
            loads("sc1", "")
            a(f"L_gc_{tagn}:")
            a("s_mov_b64 exec, -1")
            self.timeout()
            a("v_mov_b32 v42, 0\nv_mov_b32 v43, 0\nv_mov_b32 v44, 0\nv_mov_b32 v45, 0")
            for i in range(0, 8, 2):
                a(f"s_waitcnt vmcnt({max(0, nld-2-i)})")
                r = 60 + 4*i
                a(f"v_smfmac_f32_16x16x64_bf16 v[42:45], v[92:95], v[{r}:{r+7}], v7")
                a(f"v_max3_u32 v54, v{22 if i == 0 else 54}, v{r}, v{r+4}")
                if i == 0: a("v_lshlrev_b32 v52, 16, v22\nv_and_b32 v53, 0xffff0000, v22")
            a(f"v_cmp_eq_u32 vcc, -1, v54\ns_cbranch_vccnz L_gp_{tagn}")
        a("""
        v_cndmask_b32 v50, v42, v44, s[48:49]
        v_cndmask_b32 v51, v43, v45, s[48:49]
        v_cvt_pk_bf16_f32 v55, v50, v51
        v_lshlrev_b32 v50, 16, v55
        v_and_b32 v51, 0xffff0000, v55
        v_pk_add_f32 v[50:51], v[50:51], v[52:53]
        v_cvt_pk_bf16_f32 v24, v50, v51
        """)
    def front_gemv(self, two, cs=False):
        a = self.a
        a("""
        ds_write_b32 v18, v24
        v_lshlrev_b32 v50, 16, v24
        v_and_b32 v51, 0xffff0000, v24
        v_mov_b32 v42, 0
        v_mov_b32 v43, 0
        s_waitcnt lgkmcnt(0)
        ds_read_b128 v[26:29], v19
        ds_read_b128 v[30:33], v19 offset:16
        v_add_f32 v55, v50, v51
        v_mul_f32 v56, v50, v50
        v_fmac_f32 v56, v51, v51
        v_mov_b32 v44, 0
        v_mov_b32 v45, 0
        """)
        if two: a("v_mov_b32 v46, 0\nv_mov_b32 v47, 0\nv_mov_b32 v48, 0\nv_mov_b32 v49, 0")
        a("v_permlane32_swap_b32 v55, v56\nv_add_f32 v55, v55, v56")
        a("s_and_b32 s26, s23, 1\ns_mul_i32 s26, s26, 4352\nv_add_u32 v8, s26, v20\nv_add_u32 v9, s26, v21")
        a("s_waitcnt lgkmcnt(1)")
        self.abuild(34, 26)
        fill = ["v_mov_b32 v56, v55", None, "v_permlane16_swap_b32 v55, v56\nv_add_f32 v55, v55, v56",
                "v_add_f32_dpp v55, v55, v55 row_ror:8 row_mask:0xf bank_mask:0xf", "v_add_f32_dpp v55, v55, v55 row_ror:4 row_mask:0xf bank_mask:0xf",
                "v_add_f32_dpp v55, v55, v55 row_ror:2 row_mask:0xf bank_mask:0xf", "v_add_f32_dpp v55, v55, v55 row_ror:1 row_mask:0xf bank_mask:0xf",
                "s_mov_b32 exec_lo, 1\ns_mov_b32 exec_hi, 1\nds_write_b32 v9, v55\ns_mov_b64 exec, s[50:51]"]
        for s in range(8):
            A = 34 + 4*(s & 1)
            if s == 3: a("s_waitcnt lgkmcnt(0)")
            if s < 7: self.abuild(34 + 4*((s+1) & 1), 26 + s + 1)
            a(f"v_smfmac_f32_16x16x64_bf16 v[42:45], v[{A}:{A+3}], v[{128+8*s}:{135+8*s}], v7")
            if two: a(f"v_smfmac_f32_16x16x64_bf16 v[46:49], v[{A}:{A+3}], v[{192+8*s}:{199+8*s}], v7")
            if fill[s]: a(fill[s])
        a("ds_write_b128 v8, v[42:45]")
        if two: a("ds_write_b128 v8, v[46:49] offset:2048")
        if cs:
            a("s_cmp_eq_u32 s23, 0\ns_cbranch_scc0 L_ncs\ns_mov_b64 exec, -1\nv_mov_b32 v46, 0\nv_mov_b32 v47, 0\nv_mov_b32 v48, 0\nv_mov_b32 v49, 0")
            for s in range(8): a(f"v_smfmac_f32_16x16x64_bf16 v[46:49], v[92:95], v[{128+8*s}:{135+8*s}], v7")
            a("s_mov_b64 exec, s[50:51]\nds_write_b128 v8, v[46:49] offset:2048\nL_ncs:")
        a("s_mov_b64 exec, -1\ns_waitcnt lgkmcnt(0)\ns_barrier")
    def xr_publish(self, sofs_expr):
        self.a(f"""
        v_subrev_u32 v8, s20, v17
        v_min_u32 v9, -2, v24
        {sofs_expr}
        v_add_u32 v8, s26, v8
        s_mov_b32 s26, 8192
        s_mov_b64 exec, s[28:29]
        buffer_store_dword v9, v8, s[4:7], 0 offen sc1
        buffer_store_dword v9, v8, s[4:7], s26 offen sc1
        s_mov_b64 exec, -1
        """)
    def back_reduce(self, two, base, ro):
        a = self.a
        a(f"ds_read_b128 v[{ro+16}:{ro+19}], v{base+1}\nds_read_b128 v[{ro+20}:{ro+23}], v{base+1} offset:16")
        for m in range(2 if two else 1):
            for k in range(4):
                a(f"ds_read2st64_b32 v[{ro+8*m+2*k}:{ro+8*m+2*k+1}], v{base} offset0:{8*m+2*k} offset1:{8*m+2*k+1}")
    def ln_scalars(self, ro, nrest):
        a = self.a
        t = ro + 16
        a(f"""
        s_waitcnt lgkmcnt({nrest})
        v_pk_add_f32 v[{t}:{t+1}], v[{t}:{t+1}], v[{t+2}:{t+3}]
        v_pk_add_f32 v[{t+4}:{t+5}], v[{t+4}:{t+5}], v[{t+6}:{t+7}]
        v_pk_add_f32 v[{t}:{t+1}], v[{t}:{t+1}], v[{t+4}:{t+5}]
        v_mul_f32 v{t}, {hex(f2u(1.0/448))}, v{t}
        v_mul_f32 v{t+1}, {hex(f2u(1.0/448))}, v{t+1}
        v_fma_f32 v{t+1}, -v{t}, v{t}, v{t+1}
        v_max_f32 v{t+1}, 0, v{t+1}
        v_cvt_pk_bf16_f32 v{t+2}, v{t}, v{t+1}
        v_lshlrev_b32 v{t}, 16, v{t+2}
        v_and_b32 v{t+1}, 0xffff0000, v{t+2}
        v_add_f32 v{t+1}, {hex(f2u(1e-5))}, v{t+1}
        v_cvt_pk_bf16_f32 v{t+1}, v{t+1}, v{t+1}
        v_and_b32 v{t+1}, 0xffff0000, v{t+1}
        v_sqrt_f32 v{t+1}, v{t+1}
        v_cvt_pk_bf16_f32 v{t+1}, v{t+1}, v{t+1}
        v_and_b32 v{t+1}, 0xffff0000, v{t+1}
        v_rcp_f32 v{t+1}, v{t+1}
        """)
    def sum8(self, r):
        self.a(f"""
        v_pk_add_f32 v[{r}:{r+1}], v[{r}:{r+1}], v[{r+2}:{r+3}]
        v_pk_add_f32 v[{r+4}:{r+5}], v[{r+4}:{r+5}], v[{r+6}:{r+7}]
        v_pk_add_f32 v[{r}:{r+1}], v[{r}:{r+1}], v[{r+4}:{r+5}]
        v_add_f32 v{r}, v{r}, v{r+1}
        """)
    def r8_addr(self, vdst, NS, wv):
        self.a(f"""
        v_lshrrev_b32 v8, 1, v2
        v_mul_u32_u24 v8, {2*NS}, v8
        v_and_b32 v9, 1, v2
        v_add_u32 v8, v8, v9
        v_mul_u32_u24 v8, 896, v8
        v_lshl_add_u32 v8, v1, 4, v8
        s_lshl_b32 s26, s{wv}, 8
        v_add_u32 v{vdst}, s26, v8
        s_cmp_eq_u32 s{wv}, 3
        s_cselect_b32 s28, 0x00ff00ff, -1
        s_mov_b32 s29, s28
        """)
    def r8_loads(self, NS, srd, vaddr, reg, pace=0, npace=99):
        a = self.a
        a("s_mov_b64 exec, s[28:29]")
        for s in range(NS):
            for hf in range(2):
                a(f"s_mov_b32 s26, {(4*NS*hf + 2*s)*896}")
                r = reg + 8*s + 4*hf
                if pace and 2*s + hf <= npace: a(f"s_waitcnt vmcnt({pace-1})")
                a(f"buffer_load_dwordx4 v[{r}:{r+3}], v{vaddr}, s[{srd}:{srd+3}], s26 offen nt")
        a("s_mov_b64 exec, -1")
    def r8_pub_addr(self, vdst, wv, sslot):
        self.a(f"""
        v_lshrrev_b32 v9, 1, v2
        v_lshlrev_b32 v9, 13, v9
        v_lshl_add_u32 v8, v1, 4, v9
        s_lshl_b32 s26, s{wv}, 8
        s_add_u32 s26, s26, s{sslot}
        v_add_u32 v{vdst}, s26, v8
        s_and_b32 s46, s28, 0xffff
        s_mov_b32 s47, s46
        """)
    def r8_gemv(self, NS, X, reg, vpub, sofs, bc=False):
        a = self.a
        a("v_mov_b32 v42, 0\nv_mov_b32 v43, 0\nv_mov_b32 v44, 0\nv_mov_b32 v45, 0")
        nrd = NS // 4
        def ab(dst, s):
            if bc:
                for d in range(4): a(f"v_and_b32_dpp v{dst+d}, v{X}, v{3+d} row_newbcast:{2*s} row_mask:0xf bank_mask:0xf")
            else: self.abuild(dst, X + s)
        if not bc: a(f"s_waitcnt lgkmcnt({nrd-1})")
        ab(34, 0)
        for s in range(NS):
            A = 34 + 4*(s & 1)
            if s + 1 < NS:
                if (s + 1) % 4 == 0 and not bc: a(f"s_waitcnt lgkmcnt({nrd - 1 - (s+1)//4})")
                ab(34 + 4*((s+1) & 1), s + 1)
            a(f"v_smfmac_f32_16x16x64_bf16 v[42:45], v[{A}:{A+3}], v[{reg+8*s}:{reg+8*s+7}], v7")
        a(f"""
        v_cvt_pk_bf16_f32 v46, v42, v43
        v_cvt_pk_bf16_f32 v48, v42, v43
        v_cvt_pk_bf16_f32 v47, v44, v45
        v_cvt_pk_bf16_f32 v49, v44, v45
        v_permlane16_swap_b32 v46, v48
        v_permlane16_swap_b32 v47, v49
        s_mov_b64 exec, s[46:47]
        v_min_u32 v46, -2, v46
        buffer_store_dwordx4 v[46:49], v{vpub}, s[4:7], s{sofs} offen sc1
        s_mov_b64 exec, -1
        """)

    def role_q(self):
        a = self.a
        a(f"L_Q:\ns_sub_u32 s21, s2, {ID_Q}")
        a("s_cmp_gt_u32 s22, 4\ns_cbranch_scc1 L_exit\ns_cmp_eq_u32 s22, 4\ns_cbranch_scc1 L_Qh")
        self.r16_addr(15, 8192)
        a("s_lshl_b32 s27, s21, 7")
        self.kwait()
        self.srd(8, 70, 448*8192 - 0, off_s=27)
        a("s_sub_u32 s10, s10, s27")
        if self.o.get("hb", 0) & 2: a("s_barrier")
        self.r16_loads(8, 128, 8192, 15)
        self.srd(16, 64, 896)
        self.x_load()
        self.stamp(10)
        self.masks()
        self.front_setup(C_H4, C_XR1)
        a(f"v_lshlrev_b32 v58, 2, v0\nv_add_u32 v58, 1024, v58")
        a(f"s_lshr_b32 s26, s21, 5\ns_lshl_b32 s26, s26, 14\ns_and_b32 s27, s21, 31\ns_lshl_b32 s27, s27, 8\ns_add_u32 s26, s26, s27\ns_add_u32 s26, s26, {C_H1*CH}\nv_lshl_add_u32 v59, v0, 2, s26\nv_mov_b32 v99, 12288")
        a("s_mov_b32 s23, 0\ns_waitcnt vmcnt(0)\nv_mov_b32 v24, v25")
        self.stamp(1)
        a("s_branch L_Qg")
        a("L_Qloop:")
        self.tag_from_lds(12288)
        a(f"s_mov_b32 s27, {ID_F}")
        self.flag_poll("q", 27, NF)
        self.add_side("s20")
        self.gather("q", 7, False)
        self.stamp(5)
        a("L_Qg:")
        self.front_gemv(False, cs=True)
        self.stamp_l(2, 6)
        a("s_cmp_eq_u32 s22, 0\ns_cbranch_scc0 L_Qnext")
        a(f"s_and_b32 s26, s23, 1\ns_mul_i32 s26, s26, 4352\nv_add_u32 v10, s26, v58\ns_add_u32 s26, s26, {1024+4096}\nv_mov_b32 v11, s26")
        a("s_cmp_eq_u32 s23, 0\ns_cbranch_scc0 L_Qr\nds_read_b32 v125, v99")
        for k in range(4): a(f"ds_read2st64_b32 v[{108+2*k}:{109+2*k}], v10 offset0:{8+2*k} offset1:{9+2*k}")
        a("s_waitcnt lgkmcnt(0)")
        self.sum8(108)
        a("v_mov_b32 v57, v108\nL_Qr:")
        self.back_reduce(False, 10, 100)
        self.ln_scalars(100, 4)
        a("s_waitcnt lgkmcnt(0)")
        self.sum8(100)
        a("""
        v_fma_f32 v100, -v116, v57, v100
        v_mul_f32 v100, v100, v117
        s_lshl_b32 s26, s23, 15
        s_add_u32 s27, s26, 8192
        v_mov_b32_dpp v101, v100 quad_perm:[1,0,3,2] row_mask:0xf bank_mask:0xf
        s_mov_b32 exec_lo, 0x55555555
        s_mov_b32 exec_hi, 0x55555555
        v_cvt_pk_bf16_f32 v124, v100, v101
        buffer_store_dwordx2 v[124:125], v59, s[4:7], s26 offen sc1
        buffer_store_dwordx2 v[124:125], v59, s[4:7], s27 offen sc1
        s_mov_b64 exec, -1
        """)
        self.stamp_l(3, 7)
        a("L_Qnext:\ns_add_u32 s23, s23, 1\ns_cmp_lt_i32 s23, 2\ns_cbranch_scc1 L_Qloop")
        a("s_cmp_eq_u32 s21, 0\ns_cbranch_scc0 L_Qnx")
        self.xr_publish(f"s_mov_b32 s26, {(C_XR2-C_XR1)*CH & 0xffffffff}")
        a("L_Qnx:")
        a("s_cmp_lt_u32 s21, 7\ns_cbranch_scc0 L_exit\ns_cmp_eq_u32 s22, 0\ns_cbranch_scc0 L_exit")
        self.srd(16, 82, 896)
        a(f"""
        v_lshrrev_b32 v8, 3, v0
        v_lshlrev_b32 v8, 10, v8
        v_and_b32 v9, 7, v0
        v_lshl_add_u32 v8, v9, 4, v8
        s_lshl_b32 s26, s21, 7
        s_add_u32 s27, s26, s20
        v_add_u32 v16, s27, v8
        v_add_u32 v97, s26, v14
        s_add_u32 s27, s27, {C_XR3*CH}
        v_add_u32 v17, s27, v14
        v_mov_b32 v22, 0
        v_mov_b32 v72, 0
        v_mov_b32 v73, 0
        v_mov_b32 v74, 0
        v_mov_b32 v75, 0
        s_mov_b32 s32, {(C_H4+4)*CH}
        s_mov_b32 s33, {(C_H4+5)*CH}
        s_mov_b32 s34, {(C_H4+6)*CH}
        s_mov_b32 s35, {(C_H4+7)*CH}
        s_mov_b32 s28, 0x00ff00ff
        s_mov_b32 s29, 0x00ff00ff
        s_mov_b32 s25, 0
        L_Fp:
        s_mov_b64 exec, s[28:29]
        buffer_load_dword v22, v17, s[4:7], 0 offen sc1
        s_mov_b64 exec, -1
        buffer_load_dwordx4 v[60:63], v16, s[4:7], s32 offen sc1
        buffer_load_dwordx4 v[64:67], v16, s[4:7], s33 offen sc1
        buffer_load_dwordx4 v[68:71], v16, s[4:7], s34 offen sc1
        s_mov_b32 exec_hi, 0
        buffer_load_dwordx4 v[72:75], v16, s[4:7], s35 offen sc1
        s_mov_b64 exec, -1
        """)
        self.timeout()
        a("""
        v_mov_b32 v42, 0
        v_mov_b32 v43, 0
        v_mov_b32 v44, 0
        v_mov_b32 v45, 0
        s_waitcnt vmcnt(2)
        v_smfmac_f32_16x16x64_bf16 v[42:45], v[92:95], v[60:67], v7
        v_max3_u32 v54, v22, v60, v64
        v_lshlrev_b32 v52, 16, v22
        v_and_b32 v53, 0xffff0000, v22
        s_waitcnt vmcnt(0)
        v_smfmac_f32_16x16x64_bf16 v[42:45], v[92:95], v[68:75], v7
        v_max3_u32 v54, v54, v68, v72
        v_cmp_eq_u32 vcc, -1, v54
        s_cbranch_vccnz L_Fp
        v_cndmask_b32 v50, v42, v44, s[48:49]
        v_cndmask_b32 v51, v43, v45, s[48:49]
        v_add_f32_dpp v50, v50, v50 row_ror:8 row_mask:0xf bank_mask:0xf
        v_add_f32_dpp v51, v51, v51 row_ror:8 row_mask:0xf bank_mask:0xf
        v_cvt_pk_bf16_f32 v55, v50, v51
        v_lshlrev_b32 v50, 16, v55
        v_and_b32 v51, 0xffff0000, v55
        v_pk_add_f32 v[50:51], v[50:51], v[52:53]
        v_cvt_pk_bf16_f32 v50, v50, v51
        s_mov_b64 exec, s[28:29]
        buffer_store_dword v50, v97, s[16:19], 0 offen OUTPOL
        """)
        self.stamp(8)
        a("s_cmp_eq_u32 s21, 0\ns_cbranch_scc0 L_exit\nv_mov_b32 v9, s24\nv_mov_b32 v8, 0\ns_mov_b64 exec, 1\nbuffer_store_dword v9, v8, s[4:7], 0 offen sc1\ns_branch L_exit")
        a("L_Qh:")
        self.kwait()
        self.epoch_load()
        a(f"""
        v_lshlrev_b32 v10, 4, v0
        s_cmp_eq_u32 s21, 0
        s_cbranch_scc0 L_Qh1
        s_mov_b32 s30, {C_XR2*CH}
        """)
        self.reset1k(30)
        a("L_Qh1:")
        if self.o.get("hb", 0) & 2: a("s_barrier")
        self.flag_store(0)
        a("v_mov_b32 v16, 12288\nds_write_b32 v16, v11\ns_waitcnt lgkmcnt(0)\ns_branch L_exit")

    def role_f(self):
        a = self.a
        a(f"L_F:\ns_sub_u32 s21, s2, {ID_F}")
        self.kwait()
        a("s_cmp_gt_u32 s22, 3\ns_cbranch_scc1 L_Fb")
        self.srd(16, 64, 896)
        a("s_lshl_b32 s27, s21, 7")
        self.srd(8, 76, 448*3584, off_s=27)
        a("s_sub_u32 s10, s10, s27")
        self.srd(12, 78, 448*3584, off_s=27)
        a("s_sub_u32 s14, s14, s27")
        self.x_load()
        self.r16_addr(15, 3584)
        if self.o.get("gatef") or self.o.get("hb", 0) & 8: a("s_barrier")
        self.r16_loads(8, 128, 3584, 15, self.o.get("pf", 0), self.o.get("pfn", 99))
        self.r16_loads(12, 192, 3584, 15, self.o.get("pf", 0), self.o.get("pfn", 99) - 16)
        self.stamp(10)
        self.masks()
        self.front_setup(C_H3, C_XR2)
        a("s_mov_b32 s23, -1\nv_mov_b32 v24, 0x3f803f80\ns_waitcnt vmcnt(0)\nv_mov_b32 v22, v25")
        self.stamp(1)
        a("s_branch L_Fg")
        a("L_Floop:")
        self.gather("f", 8, True)
        self.stamp_l(2, 5)
        a("L_Fg:")
        self.front_gemv(True)
        self.stamp_l(3, 6)
        a("s_cmp_eq_u32 s23, -1\ns_cbranch_scc0 L_Fn1")
        a("v_mov_b32 v8, 12288\nds_read_b32 v9, v8\ns_waitcnt lgkmcnt(0)\nv_readfirstlane_b32 s20, v9")
        self.add_side("v9")
        a("s_mov_b32 s23, 0\ns_branch L_Floop")
        a("L_Fn1:\ns_cmp_eq_u32 s21, 0\ns_cbranch_scc0 L_Fnx")
        self.xr_publish(f"s_lshl_b32 s26, s23, 14\ns_add_u32 s26, s26, {(C_XR1-C_XR2)*CH}")
        a("L_Fnx:")
        a(f"v_add_u32 v16, {4*CH}, v16\nv_add_u32 v13, {4*CH}, v13")
        a("s_add_u32 s23, s23, 1\ns_cmp_lt_i32 s23, 2\ns_cbranch_scc1 L_Floop\ns_branch L_exit")
        a("L_Fb:\ns_sub_u32 s30, s22, 4")
        a("s_mul_i32 s27, s21, 57344")
        self.srd(8, 80, 57344, off_s=27)
        a(f"""
        s_lshr_b32 s27, s21, 3
        s_lshl_b32 s27, s27, 14
        s_and_b32 s26, s21, 7
        s_lshl_b32 s26, s26, 10
        s_add_u32 s52, s26, s27
        s_add_u32 s52, s52, {C_H4*CH}
        s_cmp_eq_u32 s22, 4
        s_cbranch_scc0 L_Fb1
        """)
        self.epoch_load()
        a("v_lshlrev_b32 v10, 4, v0")
        self.reset1k(52)
        a(f"s_add_u32 s53, s52, {4*CH}")
        self.reset1k(53)
        a(f"s_cmp_eq_u32 s21, 0\ns_cbranch_scc0 L_Fb1\ns_mov_b32 s53, {C_XR1*CH}")
        self.reset1k(53)
        a(f"s_mov_b32 s53, {C_XR3*CH}")
        self.reset1k(53)
        a("L_Fb1:")
        self.r8_addr2(16, 8, 30)
        if self.o.get("gatef"):
            a("s_cmp_eq_u32 s22, 4\ns_cbranch_scc0 L_Fb3")
            self.flag_store(0)
            a("L_Fb3:\ns_barrier")
        elif self.o.get("hb", 0) & 8: a("s_barrier")
        def w4():
            a("s_cmp_eq_u32 s22, 4\ns_cbranch_scc0 L_Fb2")
            if not self.o.get("gatef"): self.flag_store(0 if self.o.get("fb4") else 16)
            a(f"s_mov_b32 s27, {ID_W}")
            self.flag_poll("f", 27, NW, extra_id=ID_Q)
            a("v_mov_b32 v8, 12288\nv_mov_b32 v9, s20\nds_write_b32 v8, v9\ns_waitcnt lgkmcnt(0)")
            a("L_Fb2:")
        if self.o.get("fb4"): w4()
        self.r8_loads(8, 8, 16, 128, self.o.get("pb", 0), self.o.get("pbn", 99))
        if not self.o.get("fb4"): w4()
        self.masks()
        self.r8_pub_addr(17, 30, 52)
        a("v_lshlrev_b32 v58, 2, v0\nv_add_u32 v58, 1024, v58")
        a("s_lshl_b32 s26, s30, 7\ns_add_u32 s26, s26, 10240\nv_lshl_add_u32 v18, v0, 1, s26\nv_lshl_add_u32 v19, v2, 5, s26")
        a("s_mov_b32 s23, -1")
        self.stamp(1)
        a("L_Fbl:")
        a(f"s_and_b32 s26, s23, 1\ns_mul_i32 s26, s26, 4352\nv_add_u32 v10, s26, v58\ns_add_u32 s26, s26, {1024+4096}\nv_mov_b32 v11, s26\ns_lshl_b32 s27, s23, 16")
        a("s_barrier")
        self.stamp_l(2, 5)
        self.back_reduce(True, 10, 60)
        self.ln_scalars(60, 8)
        a("s_waitcnt lgkmcnt(4)")
        self.sum8(60)
        a("s_waitcnt lgkmcnt(0)")
        self.sum8(68)
        a("s_cmp_eq_u32 s23, -1\ns_cbranch_scc0 L_Fbh\nv_mov_b32 v56, v60\nv_mov_b32 v57, v68\ns_mov_b32 s23, 0\ns_branch L_Fbl")
        a(f"""
        L_Fbh:
        v_fma_f32 v60, -v76, v56, v60
        v_fma_f32 v68, -v76, v57, v68
        v_mul_f32 v60, v60, v77
        v_mul_f32 v68, v68, v77
        v_cvt_pk_bf16_f32 v61, v60, v68
        v_lshlrev_b32 v60, 16, v61
        v_and_b32 v68, 0xffff0000, v61
        v_mul_f32 v61, {hex(f2u(-LOG2E))}, v60
        v_exp_f32 v61, v61
        v_add_f32 v61, 1.0, v61
        v_rcp_f32 v61, v61
        v_mul_f32 v61, v60, v61
        v_cvt_pk_bf16_f32 v61, v61, v61
        v_and_b32 v61, 0xffff0000, v61
        v_mul_f32 v61, v61, v68
        v_mov_b32_dpp v62, v61 quad_perm:[1,0,3,2] row_mask:0xf bank_mask:0xf
        v_cvt_pk_bf16_f32 v26, v61, v62
        """)
        a("s_waitcnt vmcnt(0)")
        self.stamp_l(3, 6)
        self.r8_gemv(8, 26, 128, 17, 27, bc=True)
        self.stamp_l(4, 7)
        a("s_add_u32 s23, s23, 1\ns_cmp_lt_i32 s23, 2\ns_cbranch_scc1 L_Fbl\ns_branch L_exit")
    def r8_addr2(self, vdst, NS, wv):
        self.a(f"""
        v_lshrrev_b32 v20, 1, v2
        v_mul_u32_u24 v20, {2*NS}, v20
        v_and_b32 v21, 1, v2
        v_add_u32 v20, v20, v21
        v_mul_u32_u24 v20, 896, v20
        v_lshl_add_u32 v20, v1, 4, v20
        s_lshl_b32 s26, s{wv}, 8
        v_add_u32 v{vdst}, s26, v20
        s_cmp_eq_u32 s{wv}, 3
        s_cselect_b32 s28, 0x00ff00ff, -1
        s_mov_b32 s29, s28
        """)

    def role_w(self):
        a = self.a
        a(f"L_W:\ns_sub_u32 s21, s2, {ID_W}")
        a(f"""
        s_lshr_b32 s27, s21, 2
        s_lshl_b32 s27, s27, 14
        s_and_b32 s26, s21, 3
        s_lshl_b32 s26, s26, 11
        s_add_u32 s53, s26, s27
        s_lshr_b32 s27, s21, 3
        s_lshl_b32 s27, s27, 14
        s_and_b32 s26, s21, 7
        s_lshl_b32 s26, s26, 10
        s_add_u32 s52, s26, s27
        s_add_u32 s52, s52, {C_H3*CH}
        """)
        a("s_cmp_gt_u32 s22, 4\ns_cbranch_scc1 L_exit\ns_cmp_eq_u32 s22, 4\ns_cbranch_scc1 L_Wh")
        self.kwait()
        a("s_mul_i32 s27, s21, 114688")
        self.srd(8, 72, 114688, off_s=27)
        self.r8_addr(16, 16, 22)
        if self.o.get("gatew") or self.o.get("hb", 0) & 4: a("s_barrier")
        self.r8_loads(16, 8, 16, 128, self.o.get("pw", 0), self.o.get("pwn", 99))
        self.stamp(10)
        self.masks()
        self.r8_pub_addr(17, 22, 52)
        a(f"""
        v_lshrrev_b32 v8, 2, v0
        v_and_b32 v9, 3, v0
        v_lshlrev_b32 v10, 9, v8
        v_lshl_add_u32 v10, v9, 5, v10
        s_lshl_b32 s26, s21, 14
        s_lshl_b32 s27, s22, 7
        s_add_u32 s26, s26, s27
        s_add_u32 s26, s26, {C_H2O*CH}
        v_add_u32 v18, s26, v10
        s_add_u32 s26, s53, {C_H2M*CH}
        v_lshl_add_u32 v19, v8, 7, s26
        v_lshlrev_b32 v10, 4, v9
        v_lshl_add_u32 v10, v2, 2, v10
        s_lshl_b32 s26, s22, 6
        v_add_u32 v20, s26, v10
        v_lshlrev_b32 v21, 6, v2
        s_mov_b32 s23, 0
        s_waitcnt vmcnt(0)
        """)
        self.stamp(1)
        a("v_mov_b32 v8, 512\ns_barrier\nds_read_b32 v9, v8\ns_waitcnt lgkmcnt(0)\nv_add_u32 v18, v9, v18\nv_add_u32 v19, v9, v19")
        a("L_Wl:\ns_mov_b32 s25, 0")
        a(f"s_mul_i32 s30, s23, {32*CH}\ns_lshl_b32 s27, s23, 17\ns_lshl_b32 s31, s23, 16")
        a("""
        L_Wp:
        buffer_load_dwordx2 v[22:23], v19, s[4:7], s27 offen sc1
        buffer_load_dwordx4 v[60:63], v18, s[4:7], s30 offen sc1
        buffer_load_dwordx4 v[64:67], v18, s[4:7], s30 offen offset:16 sc1
        """)
        self.timeout()
        a("""
        s_waitcnt vmcnt(2)
        v_max_f32_dpp v24, v22, v22 row_ror:4 row_mask:0xf bank_mask:0xf
        v_max_f32_dpp v24, v24, v24 row_ror:8 row_mask:0xf bank_mask:0xf
        v_mov_b32 v25, v24
        v_permlane16_swap_b32 v24, v25
        v_max_f32 v24, v24, v25
        v_mov_b32 v25, v24
        v_permlane32_swap_b32 v24, v25
        v_max_f32 v24, v24, v25
        v_sub_f32 v24, v22, v24
        v_exp_f32 v24, v24
        s_waitcnt vmcnt(0)
        v_max3_u32 v54, v22, v60, v64
        v_cmp_eq_u32 vcc, -1, v54
        s_cbranch_vccnz L_Wp
        """)
        self.stamp_l(2, 5)
        a("""
        v_mul_f32 v26, v23, v24
        v_pk_mul_f32 v[60:61], v[60:61], v[24:25] op_sel_hi:[1,0]
        v_pk_mul_f32 v[64:65], v[64:65], v[24:25] op_sel_hi:[1,0]
        v_pk_mul_f32 v[62:63], v[62:63], v[24:25] op_sel_hi:[1,0]
        v_pk_mul_f32 v[66:67], v[66:67], v[24:25] op_sel_hi:[1,0]
        v_add_f32_dpp v26, v26, v26 row_ror:4 row_mask:0xf bank_mask:0xf
        v_permlane32_swap_b32 v60, v64
        v_permlane32_swap_b32 v61, v65
        v_add_f32_dpp v26, v26, v26 row_ror:8 row_mask:0xf bank_mask:0xf
        v_permlane32_swap_b32 v62, v66
        v_permlane32_swap_b32 v63, v67
        v_mov_b32 v27, v26
        v_pk_add_f32 v[60:61], v[60:61], v[64:65]
        v_pk_add_f32 v[62:63], v[62:63], v[66:67]
        v_permlane16_swap_b32 v26, v27
        v_add_f32 v26, v26, v27
        v_permlane16_swap_b32 v60, v62
        v_permlane16_swap_b32 v61, v63
        v_mov_b32 v27, v26
        v_pk_add_f32 v[60:61], v[60:61], v[62:63]
        v_permlane32_swap_b32 v26, v27
        v_add_f32_dpp v60, v60, v60 row_ror:4 row_mask:0xf bank_mask:0xf
        v_add_f32_dpp v61, v61, v61 row_ror:4 row_mask:0xf bank_mask:0xf
        v_add_f32 v26, v26, v27
        v_rcp_f32 v26, v26
        v_add_f32_dpp v60, v60, v60 row_ror:8 row_mask:0xf bank_mask:0xf
        v_add_f32_dpp v61, v61, v61 row_ror:8 row_mask:0xf bank_mask:0xf
        v_pk_mul_f32 v[60:61], v[60:61], v[26:27] op_sel_hi:[1,0]
        v_cvt_pk_bf16_f32 v60, v60, v61
        ds_write_b32 v20, v60
        s_waitcnt lgkmcnt(0)
        s_barrier
        ds_read_b128 v[60:63], v21
        ds_read_b128 v[64:67], v21 offset:16
        ds_read_b128 v[68:71], v21 offset:32
        ds_read_b128 v[72:75], v21 offset:48
        """)
        self.stamp_l(3, 6)
        self.r8_gemv(16, 60, 128, 17, 31)
        self.stamp_l(4, 7)
        a("s_cmp_eq_u32 s23, 1\ns_cbranch_scc1 L_exit\ns_mov_b32 s23, 1\ns_branch L_Wl")
        a("L_Wh:")
        self.kwait()
        self.epoch_load()
        a("v_lshlrev_b32 v10, 4, v0")
        self.reset1k(52)
        a(f"s_add_u32 s53, s52, {4*CH}")
        self.reset1k(53)
        if self.o.get("hb", 0) & 4 and not self.o.get("gatew"): a("s_barrier")
        self.flag_store(0)
        if self.o.get("gatew"): a("s_barrier")
        a(f"s_lshr_b32 s27, s21, 2\ns_lshl_b32 s27, s27, 4\ns_add_u32 s27, s27, {ID_A}")
        self.flag_poll("w", 27, 16)
        a("v_mov_b32 v8, 512\nv_mov_b32 v9, s20\nds_write_b32 v8, v9\ns_waitcnt lgkmcnt(0)\ns_branch L_exit")

    def role_a(self):
        a = self.a
        a(f"L_A:\ns_sub_u32 s21, s2, {ID_A}\ns_lshr_b32 s52, s21, 4\ns_and_b32 s53, s21, 15")
        a("s_cmp_gt_u32 s22, 4\ns_cbranch_scc1 L_exit\ns_cmp_eq_u32 s22, 4\ns_cbranch_scc1 L_Ah")
        a(f"s_lshl_b32 s27, s52, 22\ns_lshl_b32 s26, s53, 16\ns_add_u32 s27, s27, s26\ns_add_u32 s27, s27, {6144*512}")
        a("""
        s_lshl_b32 s26, s22, 14
        v_and_b32 v8, 7, v1
        v_lshlrev_b32 v8, 9, v8
        v_lshl_add_u32 v8, v2, 4, v8
        v_lshrrev_b32 v9, 3, v1
        v_lshl_add_u32 v8, v9, 6, v8
        v_add_u32 v16, s26, v8
        v_lshrrev_b32 v8, 1, v2
        v_and_b32 v9, 1, v2
        v_lshl_add_u32 v8, v8, 2, v9
        v_lshlrev_b32 v8, 9, v8
        v_lshl_add_u32 v8, v1, 4, v8
        v_add_u32 v17, s26, v8
        s_mov_b32 s32, 0
        s_mov_b32 s33, 4096
        s_mov_b32 s34, 8192
        s_mov_b32 s35, 12288
        """)
        self.kwait()
        self.srd(8, 66, 65536, off_s=27)
        self.srd(12, 68, 65536, off_s=27)
        KR, VR = 128, 192
        if self.o.get("hb", 0) & 1 or self.o.get("ga"): a("s_barrier")
        for T in range(2):
            for ks in range(8):
                r = KR + 32*T + 4*ks
                if self.o.get("pk") and 8*T + ks >= self.o["pk"]: a(f"s_waitcnt vmcnt({self.o['pk'] - 1})")
                a(f"buffer_load_dwordx4 v[{r}:{r+3}], v16, s[8:11], s{32+2*T+(ks&1)} offen offset:{128*(ks>>1)} nt")
        self.stamp(10)
        for T in range(2):
            for aa in range(2):
                for cb in range(2):
                    for hf in range(2):
                        r = VR + ((2*T + aa)*2 + cb)*8 + 4*hf
                        if self.o.get("pace", 1): a(f"s_waitcnt vmcnt({self.o.get('pv', 16) - 1})")
                        a(f"buffer_load_dwordx4 v[{r}:{r+3}], v17, s[12:15], s{32+2*T+hf} offen offset:{1024*aa + 256*cb} nt")
        self.masks()
        a(f"""
        v_lshrrev_b32 v8, 3, v1
        v_lshlrev_b32 v8, 9, v8
        v_lshl_add_u32 v18, v2, 4, v8
        v_lshrrev_b32 v8, 1, v2
        v_lshlrev_b32 v8, 10, v8
        v_lshl_add_u32 v8, v1, 5, v8
        v_and_b32 v9, 1, v2
        v_lshl_add_u32 v8, v9, 4, v8
        s_lshl_b32 s26, s22, 11
        s_add_u32 s26, s26, 1024
        v_add_u32 v19, s26, v8
        v_lshrrev_b32 v8, 3, v1
        s_lshl_b32 s26, s22, 3
        s_add_u32 s26, s26, 9216
        v_lshl_add_u32 v20, v8, 5, s26
        v_and_b32 v8, 31, v0
        s_lshl_b32 s26, s22, 9
        s_add_u32 s26, s26, 1024
        v_lshl_add_u32 v21, v8, 4, s26
        s_lshr_b32 s26, s22, 1
        s_lshl_b32 s26, s26, 5
        s_add_u32 s26, s26, 9216
        v_mov_b32 v22, s26
        s_lshl_b32 s26, s52, 2
        s_add_u32 s26, s26, s22
        s_lshl_b32 s27, s26, 14
        s_lshl_b32 s30, s53, 9
        s_add_u32 s27, s27, s30
        s_add_u32 s27, s27, {C_H2O*CH}
        v_lshrrev_b32 v9, 5, v0
        v_lshlrev_b32 v9, 13, v9
        v_lshl_add_u32 v8, v8, 4, v9
        v_add_u32 v23, s27, v8
        s_lshl_b32 s27, s52, 14
        s_lshl_b32 s30, s22, 11
        s_add_u32 s27, s27, s30
        s_lshl_b32 s30, s53, 7
        s_add_u32 s27, s27, s30
        s_add_u32 s27, s27, {C_H2M*CH}
        v_add_u32 v24, s27, v9
        s_mov_b32 s36, {hex(f2u(LOG2E/16))}
        s_mov_b32 s23, 0
        s_waitcnt vmcnt(16)
        """)
        self.stamp(1)
        for pr in range(8):
            X = KR + 8*pr
            for d in range(4): a(f"v_mov_b32_dpp v{60+d}, v{X+d} row_ror:8 row_mask:0xf bank_mask:0xf")
            for d in range(4): a(f"v_mov_b32_dpp v{X+d}, v{X+4+d} row_ror:8 row_mask:0xf bank_mask:0xc")
            for d in range(4): a(f"v_mov_b32_dpp v{X+4+d}, v{60+d} quad_perm:[0,1,2,3] row_mask:0xf bank_mask:0x3")
        if self.o.get("vstamp"):
            a("s_waitcnt vmcnt(0)"); self.stamp(9)
        a("L_Al:\ns_barrier")
        self.stamp_l(2, 6)
        QR = 60
        for ks in range(8):
            a(f"ds_read_b128 v[{QR+4*ks}:{QR+4*ks+3}], v18 offset:{64*ks}")
        for ks in range(8):
            a(f"s_waitcnt lgkmcnt({7-ks})")
            for T in range(2):
                c = "0" if ks == 0 else f"v[{44+4*T}:{47+4*T}]"
                a(f"v_mfma_f32_16x16x32_bf16 v[{44+4*T}:{47+4*T}], v[{KR+32*T+4*ks}:{KR+32*T+4*ks+3}], v[{QR+4*ks}:{QR+4*ks+3}], {c}")
        for i in range(8): a(f"v_mov_b32 v{92+i}, 0")
        for k in range(4): a(f"v_cvt_pk_bf16_f32 v{52+k}, v{44+2*k}, v{45+2*k}")
        for k in range(4): a(f"v_lshlrev_b32 v{44+2*k}, 16, v{52+k}\nv_and_b32 v{45+2*k}, 0xffff0000, v{52+k}")
        a("""
        v_max3_f32 v52, v44, v45, v46
        v_max3_f32 v53, v47, v48, v49
        v_max3_f32 v52, v50, v51, v52
        v_max_f32 v52, v52, v53
        v_mov_b32 v53, v52
        v_permlane32_swap_b32 v52, v53
        v_max_f32 v52, v52, v53
        v_mov_b32 v53, v52
        v_permlane16_swap_b32 v52, v53
        v_max_f32 v52, v52, v53
        v_mul_f32 v56, s36, v52
        """)
        for k in range(8): a(f"v_fma_f32 v{44+k}, v{44+k}, s36, -v56")
        for k in range(8): a(f"v_exp_f32 v{44+k}, v{44+k}")
        for k in range(4): a(f"v_cvt_pk_bf16_f32 v{52+k}, v{44+2*k}, v{45+2*k}")
        self.abuild(34, 52)
        a("s_waitcnt vmcnt(0)")
        self.stamp_l(3, 7)
        fill = ["v_pk_add_f32 v[44:45], v[44:45], v[46:47]\nv_pk_add_f32 v[48:49], v[48:49], v[50:51]",
                "v_pk_add_f32 v[44:45], v[44:45], v[48:49]\nv_add_f32 v57, v44, v45\nv_mov_b32 v58, v57",
                "v_permlane32_swap_b32 v57, v58\nv_add_f32 v57, v57, v58\nv_mov_b32 v58, v57",
                "v_permlane16_swap_b32 v57, v58\nv_add_f32 v57, v57, v58"]
        for n in range(4):
            A = 34 + 4*(n & 1)
            if n < 3: self.abuild(34 + 4*((n+1) & 1), 52 + n + 1)
            for cb in range(2):
                r = VR + (n*2 + cb)*8
                a(f"v_smfmac_f32_16x16x64_bf16 v[{92+4*cb}:{95+4*cb}], v[{A}:{A+3}], v[{r}:{r+7}], v7")
            a(fill[n])
        a(f"s_mul_i32 s26, s23, {32*CH}\ns_lshl_b32 s27, s23, 17")
        a("""
        s_mov_b64 exec, 0x101
        ds_write_b64 v20, v[56:57]
        s_mov_b64 exec, -1
        ds_write_b128 v19, v[92:95]
        ds_write_b128 v19, v[96:99] offset:512
        s_waitcnt lgkmcnt(0)
        s_barrier
        ds_read_b128 v[44:47], v22
        ds_read_b128 v[48:51], v22 offset:16
        ds_read_b128 v[60:63], v21
        ds_read_b128 v[64:67], v21 offset:2048
        ds_read_b128 v[68:71], v21 offset:4096
        ds_read_b128 v[72:75], v21 offset:6144
        s_waitcnt lgkmcnt(4)
        v_max3_f32 v56, v44, v46, v48
        v_max_f32 v56, v56, v50
        v_sub_f32 v52, v44, v56
        v_sub_f32 v53, v46, v56
        v_sub_f32 v54, v48, v56
        v_sub_f32 v55, v50, v56
        v_exp_f32 v52, v52
        v_exp_f32 v53, v53
        v_exp_f32 v54, v54
        v_exp_f32 v55, v55
        v_mul_f32 v57, v52, v45
        v_fmac_f32 v57, v53, v47
        v_fmac_f32 v57, v54, v49
        v_fmac_f32 v57, v55, v51
        v_min_u32 v56, -2, v56
        s_waitcnt lgkmcnt(3)
        v_pk_mul_f32 v[60:61], v[60:61], v[52:53] op_sel_hi:[1,0]
        v_pk_mul_f32 v[62:63], v[62:63], v[52:53] op_sel_hi:[1,0]
        s_mov_b32 exec_lo, 1
        s_mov_b32 exec_hi, 1
        buffer_store_dwordx2 v[56:57], v24, s[4:7], s27 offen sc1
        s_mov_b64 exec, -1
        s_waitcnt lgkmcnt(2)
        v_pk_fma_f32 v[60:61], v[64:65], v[52:53], v[60:61] op_sel:[0,1,0] op_sel_hi:[1,1,1]
        v_pk_fma_f32 v[62:63], v[66:67], v[52:53], v[62:63] op_sel:[0,1,0] op_sel_hi:[1,1,1]
        s_waitcnt lgkmcnt(1)
        v_pk_fma_f32 v[60:61], v[68:69], v[54:55], v[60:61] op_sel_hi:[1,0,1]
        v_pk_fma_f32 v[62:63], v[70:71], v[54:55], v[62:63] op_sel_hi:[1,0,1]
        s_waitcnt lgkmcnt(0)
        v_pk_fma_f32 v[60:61], v[72:73], v[54:55], v[60:61] op_sel:[0,1,0] op_sel_hi:[1,1,1]
        v_pk_fma_f32 v[62:63], v[74:75], v[54:55], v[62:63] op_sel:[0,1,0] op_sel_hi:[1,1,1]
        """)
        a("""
        v_min_u32 v60, -2, v60
        buffer_store_dwordx4 v[60:63], v23, s[4:7], s26 offen sc1
        """)
        self.stamp_l(4, 8)
        a("s_add_u32 s23, s23, 1\ns_cmp_lt_i32 s23, 2\ns_cbranch_scc1 L_Al\ns_branch L_exit")
        a("L_Ah:")
        self.kwait()
        self.epoch_load()
        a(f"""
        v_and_b32 v8, 31, v0
        v_lshrrev_b32 v11, 5, v0
        v_lshlrev_b32 v11, 13, v11
        v_lshl_add_u32 v10, v8, 4, v11
        s_lshl_b32 s27, s52, 16
        s_lshl_b32 s30, s53, 9
        s_add_u32 s27, s27, s30
        s_add_u32 s27, s27, {C_H2O*CH}
        """)
        for L in range(2):
            for w in range(4):
                a(f"s_add_u32 s26, s27, {(L*32 + w)*CH}\nbuffer_store_dwordx4 v[12:15], v10, s[4:7], s26 offen sc1")
        a(f"""
        v_and_b32 v8, 3, v0
        v_lshlrev_b32 v8, 11, v8
        v_bfe_u32 v11, v0, 2, 1
        v_lshl_add_u32 v8, v11, 13, v8
        v_bfe_u32 v11, v0, 3, 1
        v_lshl_add_u32 v8, v11, 17, v8
        s_lshl_b32 s27, s52, 14
        s_lshl_b32 s30, s53, 7
        s_add_u32 s27, s27, s30
        s_add_u32 s27, s27, {C_H2M*CH}
        s_mov_b64 exec, 0xffff
        buffer_store_dwordx4 v[12:15], v8, s[4:7], s27 offen sc1
        s_mov_b64 exec, -1
        """)
        if self.o.get("hb", 0) & 1: a("s_barrier")
        early = self.o.get("early", 1)
        if not early:
            self.flag_store(0)
            if self.o.get("ga"): a("s_barrier")
            self.stamp(1)
        D = self.o.get("qd", 2)
        def issue(k, so=31):
            r = 20 + 8*k
            a(f"buffer_load_dwordx4 v[{r}:{r+3}], v17, s[4:7], s{so} offen sc1\nbuffer_load_dwordx4 v[{r+4}:{r+7}], v17, s[4:7], s{so} offen offset:1024 sc1")
        a(f"""
        v_lshlrev_b32 v16, 3, v0
        s_lshr_b32 s26, s52, 2
        s_lshl_b32 s26, s26, 14
        s_and_b32 s27, s52, 3
        s_lshl_b32 s27, s27, 11
        s_add_u32 s26, s26, s27
        s_add_u32 s30, s26, {C_H1*CH}
        v_lshlrev_b32 v17, 4, v0
        s_mov_b32 s23, 0
        """)
        if early:
            a("s_add_u32 s31, s30, s20\ns_mov_b32 s25, 0")
            for k in range(D - 1): issue(k)
            self.flag_store(2*(D - 1))
            self.stamp(1)
            a("s_branch L_Ahp0")
        a(f"""
        L_Ahl:
        s_lshl_b32 s31, s23, 15
        s_add_u32 s31, s31, s30
        s_add_u32 s31, s31, s20
        s_mov_b32 s25, 0
        """)
        for k in range(D - 1): issue(k)
        a("L_Ahp0:")
        a("L_Ahp:")
        for k in range(D):
            r = 20 + 8*k
            issue((k + D - 1) % D)
            if k == 0: self.timeout()
            a(f"""
            s_waitcnt vmcnt({2*(D-1)})
            v_xor_b32 v18, s24, v{r+1}
            v_xor_b32 v19, s24, v{r+3}
            v_xor_b32 v{r+1}, s24, v{r+5}
            v_xor_b32 v{r+3}, s24, v{r+7}
            v_or3_b32 v18, v18, v19, v{r+1}
            v_or_b32 v18, v18, v{r+3}
            v_cmp_ne_u32 vcc, 0, v18
            """)
            if k < D - 1: a(f"s_cbranch_vccz L_Ahd{k}")
            else: a("s_cbranch_vccnz L_Ahp")
        for k in reversed(range(D)):
            r = 20 + 8*k
            a(f"L_Ahd{k}:\nds_write2_b32 v16, v{r}, v{r+2} offset0:0 offset1:1\nds_write2_b32 v16, v{r+4}, v{r+6} offset0:128 offset1:129")
            if k > 0: a("s_branch L_Ahe")
        a("""
        L_Ahe:
        s_waitcnt lgkmcnt(0)
        s_barrier
        s_waitcnt vmcnt(0)
        s_barrier
        s_cmp_eq_u32 s23, 1
        s_cbranch_scc1 L_exit
        s_mov_b32 s23, 1
        s_mov_b32 s27, 0
        """)
        self.flag_poll("a", 27, 0)
        a("s_branch L_Ahl")

    def role_c(self):
        a = self.a
        a("L_C:")
        a("s_cmp_eq_u32 s22, 0\ns_cbranch_scc0 L_exit\ns_setprio 3")
        self.kwait()
        self.epoch_load()
        ld = self.o.get("cld", 0)
        def op(soff, off):
            if ld: return f"buffer_load_dword v16, v8, s[4:7], s{soff} offen offset:{off} sc1"
            return f"buffer_store_dword v8, v8, s[4:7], s{soff} offen offset:{off} sc1"
        a(f"""
        s_mov_b32 s26, {C_PR*CH}
        s_mov_b32 s27, {C_PR*CH+8192}
        v_lshlrev_b32 v17, 8, v0
        s_mov_b64 exec, {hex(0xffff if self.o.get("cpre") else 1)}
        buffer_store_dword v8, v17, s[4:7], s26 offen offset:{128 if self.o.get("cpre") else 0} sc1
        buffer_store_dword v8, v17, s[4:7], s27 offen offset:{128 if self.o.get("cpre") else 0} sc1
        s_mov_b64 exec, 1
        s_mov_b32 s32, -1
        s_mov_b32 s33, -1
        s_waitcnt vmcnt(0)
        """)
        n = self.o.get("cmax", 8); thr = self.o.get("cthr", 100)
        dbgs = ""
        step = 0 if self.o.get("csame") else 256
        if self.o.get("cdbg"):
            self.srd(8, 84, 256)
            dbgs = "s_mul_i32 s42, s34, 10000\ns_add_u32 s42, s42, s35\nv_mov_b32 v17, s42\ns_lshl_b32 s42, s30, 2\nbuffer_store_dword v17, v8, s[8:11], s42 offen\ns_waitcnt vmcnt(0)"
        a(f"""
        s_mov_b32 s30, 0
        L_Cl:
        s_add_u32 s26, s26, {step}
        s_add_u32 s27, s27, {step}
        s_memtime s[36:37]
        s_waitcnt lgkmcnt(0)
        {op(26, 128 if step else 0)}
        s_waitcnt vmcnt(0)
        s_memtime s[38:39]
        s_waitcnt lgkmcnt(0)
        {op(27, 128 if step else 0)}
        s_waitcnt vmcnt(0)
        s_memtime s[40:41]
        s_waitcnt lgkmcnt(0)
        s_sub_u32 s34, s38, s36
        s_sub_u32 s35, s40, s38
        s_min_u32 s32, s32, s34
        s_min_u32 s33, s33, s35
        {dbgs}
        s_add_u32 s30, s30, 1
        s_cmp_ge_u32 s30, {n}
        s_cbranch_scc1 L_Cd
        s_min_u32 s34, s32, s33
        s_max_u32 s35, s32, s33
        s_sub_u32 s35, s35, s34
        s_cmp_ge_u32 s30, {self.o.get("cabsn", 99)}
        s_cselect_b32 s34, 0, s34
        s_cmp_le_u32 s34, {self.o.get("cabs", 600)}
        s_cselect_b32 s35, s35, 0
        s_cmp_ge_u32 s30, 2
        s_cselect_b32 s35, s35, 0
        s_cmp_ge_u32 s35, {thr}
        s_cbranch_scc0 L_Cl
        """)
        a(f"""
        L_Cd:
        s_mov_b64 exec, -1
        s_cmp_lt_u32 s33, s32
        s_cselect_b32 s30, 1, 0
        s_lshr_b32 s31, s20, 13
        s_xor_b32 s30, s30, s31
        """)
        if self.o.get("cflip"): a("s_xor_b32 s30, s30, 1")
        if self.diag: a("s_mov_b32 s57, s32\ns_mov_b32 s58, s33\ns_mov_b32 s59, s30")
        self.flag_store(0, xor_s=30)
        self.stamp(4)
        a("s_branch L_exit")

    def build(self):
        a = self.a
        a(f"s_cmp_ge_u32 s2, {NWG}\ns_cbranch_scc1 L_end")
        if self.o.get("dbg"): a("s_memrealtime s[56:57]")
        a("s_load_dwordx16 s[64:79], s[0:1], 0\ns_load_dwordx8 s[80:87], s[0:1], 64")
        if self.diag:
            for s in self.STS: a(f"s_mov_b32 s{s}, 0")
            a("s_mov_b32 s23, -1")
        a("""
        v_lshrrev_b32 v1, 6, v0
        v_and_b32 v0, 63, v0
        s_getreg_b32 s20, hwreg(HW_REG_XCC_ID, 0, 4)
        v_readfirstlane_b32 s22, v1
        s_bfe_u32 s20, s20, 0x10002
        s_lshl_b32 s20, s20, 13
        v_and_b32 v1, 15, v0
        v_lshrrev_b32 v2, 4, v0
        s_cmp_lt_u32 s22, 4
        s_cbranch_scc1 L_np
        s_setprio 3
        L_np:
        """)
        a("s_cmp_eq_u32 s2, 0\ns_cbranch_scc1 L_C")
        a(f"s_cmp_lt_u32 s2, {ID_A}\ns_cbranch_scc1 L_Q\ns_cmp_lt_u32 s2, {ID_W}\ns_cbranch_scc1 L_A\ns_cmp_lt_u32 s2, {ID_F}\ns_cbranch_scc1 L_W\ns_branch L_F")
        self.role_c(); self.role_q(); self.role_a(); self.role_w(); self.role_f()
        a("L_exit:\ns_waitcnt lgkmcnt(0)")
        if self.o.get("dbg"):
            a("s_cmp_eq_u32 s22, 0\ns_cbranch_scc0 L_end\ns_mov_b32 s26, -1")
            for n, w in enumerate((1, 65, 192, 193, 225, 252)):
                a(f"s_cmp_eq_u32 s2, {w}\ns_cselect_b32 s26, {8*n}, s26")
            a("s_cmp_eq_u32 s26, -1\ns_cbranch_scc1 L_end\ns_memrealtime s[54:55]")
            if self.o.get("amp"):
                a(f"s_waitcnt lgkmcnt(0)\ns_cmp_eq_u32 s2, 1\ns_cbranch_scc0 L_amp2\ns_sub_u32 s27, s54, s56\ns_mul_i32 s27, s27, {self.o['amp']}\ns_min_u32 s27, s27, 100000")
                a("L_amp:\ns_memrealtime s[58:59]\ns_waitcnt lgkmcnt(0)\ns_sub_u32 s30, s58, s56\ns_cmp_lt_u32 s30, s27\ns_cbranch_scc1 L_amp\nL_amp2:")
            self.srd(8, 84, 256)
            a("s_mov_b64 exec, 1\ns_waitcnt lgkmcnt(0)\nv_mov_b32 v8, 0\nv_mov_b32 v12, s56\nv_mov_b32 v13, s54")
            a("buffer_store_dwordx2 v[12:13], v8, s[8:11], s26 offen")
        if self.diag:
            a("s_mov_b64 exec, -1\ns_waitcnt vmcnt(0) lgkmcnt(0)")
            self.srd(4, 86, 4 << 20)
            self.stamp(19)
            a("s_lshl_b32 s26, s2, 3\ns_add_u32 s26, s26, s22\ns_lshl_b32 s26, s26, 7\ns_add_u32 s26, s26, 0x200000\nv_mov_b32 v8, 0\ns_mov_b64 exec, 1")
            for k in range(0, 20, 4):
                for i in range(4): a(f"v_mov_b32 v{12+i}, s{self.STS[k+i]}")
                a(f"buffer_store_dwordx4 v[12:15], v8, s[4:7], s26 offen offset:{4*k}")
            a("s_waitcnt vmcnt(0)")
        a("L_end:")
        hdr = open("interleave_layers__sliding_block_cached__glu_gated_swiglu__decode.s.ref").read().split("\n")
        top = [l for l in hdr if l.startswith(";") and "@launch" not in l]
        out = "\n".join(top) + f"\n; @launch grid=({NWG},1,1) block=(512,1,1) lds=16384\n"
        out += f'.amdgcn_target "amdgcn-amd-amdhsa--gfx950"\n.text\n.globl {NAME}\n.p2align 8\n.type {NAME},@function\n{NAME}:\n'
        out += a.text().replace(' OUTPOL', {0: '', 1: ' sc1', 2: ' sc0 sc1', 3: ' sc0 sc1 nt'}[self.o.get('op', 0)])
        out += f"""s_endpgm
.section .rodata,"a"
.p2align 6
.amdhsa_kernel {NAME}
  .amdhsa_next_free_vgpr 256
  .amdhsa_next_free_sgpr 102
  .amdhsa_accum_offset 256
  .amdhsa_group_segment_fixed_size 0
  .amdhsa_kernarg_size 96
  .amdhsa_user_sgpr_count 2
  .amdhsa_user_sgpr_kernarg_segment_ptr 1
  .amdhsa_system_sgpr_workgroup_id_x 1
.end_amdhsa_kernel
"""
        return out

if __name__ == "__main__":
    opts = {}
    for x in sys.argv[3:]:
        k, v = x.split("=")
        opts[k] = int(v) if v.lstrip("-").isdigit() else v
    if sys.argv[1] != "-": open(sys.argv[1], "w").write(G(False, opts).build())
    if len(sys.argv) > 2 and sys.argv[2] != "-": open(sys.argv[2], "w").write(G(True, opts).build())
```

```python
import sys
from asmlib import Asm
NAME = "interleave_layers__sliding_block_cached__glu_gated_swiglu__decode_kernel"
CH = 16384
C_FLAG, C_H1, C_H2O, C_H2M, C_H3, C_XR2, C_H4, C_XR1, C_XR3, C_PR = 1, 3, 8, 72, 88, 96, 97, 105, 106, 107
NQ, NA, NW, NF = 64, 128, 32, 28
ID_Q, ID_A, ID_W, ID_F = 1, 65, 193, 225
NWG = 253
TMO = 20000
LOG2E = 1.4426950408889634
import struct
def f2u(x): return struct.unpack("<I", struct.pack("<f", x))[0]

class G:
    def __init__(self, diag=False, opts=None):
        self.a = Asm(); self.diag = diag; self.o = dict(pw=2, pwn=8, pf=1, pfn=3, pb=1, pbn=1); self.o.update(opts or {})
        self.nst = 0
    STS = list(range(56, 64)) + list(range(88, 100))
    def stamp(self, k):
        if not self.diag: return
        if self.o.get("lite") and k not in (0, 1, 4, 8, 9, 19): return
        self.a(f"s_memrealtime s[54:55]\ns_waitcnt lgkmcnt(0)\ns_mov_b32 s{self.STS[k]}, s54")
    def stamp_l(self, k0, k1):
        if not self.diag: return
        if self.o.get("lite"): return
        self.a(f"s_memrealtime s[54:55]\ns_waitcnt lgkmcnt(0)\ns_cmp_eq_u32 s23, 1\ns_cselect_b32 s{self.STS[k1]}, s54, s{self.STS[k1]}\ns_cmp_eq_u32 s23, 0\ns_cselect_b32 s{self.STS[k0]}, s54, s{self.STS[k0]}")
    def srd(self, d, p, nbytes, off_s=None):
        a = self.a
        if off_s is None:
            a(f"s_mov_b32 s{d}, s{p}\ns_mov_b32 s{d+1}, s{p+1}")
        else:
            a(f"s_add_u32 s{d}, s{p}, s{off_s}\ns_addc_u32 s{d+1}, s{p+1}, 0")
        a(f"s_mov_b32 s{d+2}, {nbytes}\ns_mov_b32 s{d+3}, 0x20000")
    def kwait(self):
        self.a("s_waitcnt lgkmcnt(0)")
        self.stamp(0)
        self.srd(4, 86, (4 << 20) if self.diag else (2 << 20))
    def timeout(self):
        self.a(f"s_add_u32 s25, s25, 1\ns_cmp_gt_u32 s25, {TMO}\ns_cbranch_scc1 L_exit")
    def masks(self):
        a = self.a
        a("""
        v_and_b32 v8, 4, v1
        v_cmp_eq_u32 vcc, 0, v8
        v_mov_b32 v9, 0xffff
        v_cndmask_b32 v3, 0, v9, vcc
        v_xor_b32 v4, v3, v9
        v_lshlrev_b32 v5, 16, v3
        v_lshlrev_b32 v6, 16, v4
        v_and_b32 v8, 3, v1
        v_mul_u32_u24 v7, 17425, v8
        v_xor_b32 v8, 1, v8
        v_mul_u32_u24 v8, 4420, v8
        v_add_u32 v7, v7, v8
        """)
    def abuild(self, dst, src):
        for d in range(4):
            self.a(f"v_and_b32 v{dst+d}, v{src}, v{3+d}")
    def epoch_load(self):
        self.a("v_mov_b32 v8, 0\nbuffer_load_dword v9, v8, s[4:7], 0 offen sc1\nv_mov_b32 v12, -1\nv_mov_b32 v13, -1\nv_mov_b32 v14, -1\nv_mov_b32 v15, -1")
    def reset1k(self, sbase):
        a = self.a
        a(f"buffer_store_dwordx4 v[12:15], v10, s[4:7], s{sbase} offen sc1")
        a(f"s_add_u32 s31, s{sbase}, 8192")
        a(f"buffer_store_dwordx4 v[12:15], v10, s[4:7], s31 offen sc1")
    def tag_calc(self, nleft):
        self.a(f"s_waitcnt vmcnt({nleft})\nv_readfirstlane_b32 s24, v9\ns_mul_i32 s24, s24, 0x9E3779B1\ns_add_u32 s24, s24, 0x7F4A7C15")
    def flag_store(self, nleft, xor_s=None, have_tag=False):
        a = self.a
        if have_tag: a(f"s_waitcnt vmcnt({nleft})")
        else: self.tag_calc(nleft)
        if xor_s is not None: a(f"s_xor_b32 s24, s24, s{xor_s}")
        a(f"""
        s_lshr_b32 s26, s2, 7
        s_lshl_b32 s26, s26, 14
        s_and_b32 s27, s2, 127
        s_lshl_b32 s27, s27, 6
        s_add_u32 s26, s26, s27
        s_add_u32 s26, s26, {C_FLAG*CH}
        v_mov_b32 v8, 0
        v_mov_b32 v11, s24
        s_mov_b64 exec, 1
        buffer_store_dword v11, v8, s[4:7], s26 offen sc1
        s_mov_b64 exec, -1
        """)
    def flag_poll(self, tagn, first_s, n, extra_id=None):
        a = self.a
        a(f"v_add_u32 v8, s{first_s}, v0")
        nl = n
        if extra_id is not None:
            a(f"v_cmp_eq_u32 vcc, {n}, v0\nv_mov_b32 v11, {extra_id}\nv_cndmask_b32 v8, v8, v11, vcc")
            nl = n + 1
        a(f"v_cmp_ne_u32 vcc, {nl}, v0\nv_cndmask_b32 v8, 0, v8, vcc\nv_cndmask_b32_e64 v9, 1, 0, vcc")
        cl = nl; nl += 1
        a(f"""
        v_lshrrev_b32 v11, 7, v8
        v_lshlrev_b32 v11, 14, v11
        v_and_b32 v8, 127, v8
        v_lshl_add_u32 v8, v8, 6, v11
        s_mov_b32 s26, {C_FLAG*CH}
        s_mov_b32 s25, 0
        s_mov_b32 exec_lo, {hex(((1 << nl) - 1) & 0xffffffff)}
        s_mov_b32 exec_hi, {hex(((1 << nl) - 1) >> 32)}
        L_fp_{tagn}:
        buffer_load_dword v11, v8, s[4:7], s26 offen sc1
        """)
        self.timeout()
        a(f"""
        s_waitcnt vmcnt(0)
        v_xor_b32 v11, s24, v11
        v_cmp_gt_u32 vcc, v11, v9
        s_cbranch_vccnz L_fp_{tagn}
        v_readlane_b32 s26, v11, {cl}
        s_mov_b64 exec, -1
        s_lshl_b32 s26, s26, 13
        s_xor_b32 s20, s20, s26
        """)
    def tag_from_lds(self, addr):
        self.a(f"v_mov_b32 v8, {addr}\nds_read_b32 v9, v8\ns_waitcnt lgkmcnt(0)\nv_readfirstlane_b32 s24, v9")
    def front_setup(self, c_src, c_xr):
        a = self.a
        a(f"""
        s_mov_b32 s50, 0x00ff00ff
        s_mov_b32 s51, 0xff00ff00
        s_mov_b32 s48, 0
        s_mov_b32 s49, -1
        s_cmp_eq_u32 s22, 3
        s_cselect_b32 s28, 0x00ff00ff, -1
        s_mov_b32 s29, s28
        s_lshl_b32 s26, s22, 8
        v_lshlrev_b32 v8, 10, v2
        v_lshl_add_u32 v8, v1, 4, v8
        v_add_u32 v16, s26, v8
        v_add_u32 v18, s26, v14
        s_add_u32 s27, s26, {c_xr*CH}
        v_add_u32 v17, s27, v14
        v_lshrrev_b32 v11, 3, v0
        v_lshl_add_u32 v19, v11, 5, s26
        v_lshlrev_b32 v8, 14, v11
        v_and_b32 v9, 7, v0
        v_lshl_add_u32 v8, v9, 10, v8
        s_add_u32 s27, s26, {c_src*CH}
        v_add_u32 v13, s27, v8
        v_lshrrev_b32 v11, 3, v1
        v_lshlrev_b32 v11, 8, v11
        v_and_b32 v12, 7, v1
        v_lshl_add_u32 v11, v12, 5, v11
        v_and_b32 v12, 1, v2
        v_lshl_add_u32 v11, v12, 4, v11
        s_lshl_b32 s26, s22, 9
        s_add_u32 s26, s26, 1024
        v_add_u32 v20, s26, v11
        s_lshl_b32 s26, s22, 3
        s_add_u32 s26, s26, {1024+4096}
        v_lshrrev_b32 v8, 5, v0
        v_lshl_add_u32 v21, v8, 2, s26
        v_and_b32 v92, 0x3f803f80, v3
        v_and_b32 v93, 0x3f803f80, v4
        v_and_b32 v94, 0x3f803f80, v5
        v_and_b32 v95, 0x3f803f80, v6
        v_mov_b32 v22, 0
        """)
        for i in range(32): a(f"v_mov_b32 v{60+i}, 0")
        for i in range(8):
            a(f"s_mov_b32 s{32+i}, {c_src*CH + (i>>1)*CH + (i&1)*4096}")
    def add_side(self, src):
        self.a(f"v_add_u32 v16, {src}, v16\nv_add_u32 v17, {src}, v17\nv_add_u32 v13, {src}, v13")
    def r16_loads(self, srd, reg, rowstride, vaddr, pace=0, npace=99):
        for s in range(8):
            for hf in range(2):
                self.a(f"s_mov_b32 s26, {(64*hf + 2*s)*rowstride}")
                r = reg + 8*s + 4*hf
                if pace and 2*s + hf <= npace: self.a(f"s_waitcnt vmcnt({pace-1})")
                self.a(f"buffer_load_dwordx4 v[{r}:{r+3}], v{vaddr}, s[{srd}:{srd+3}], s26 offen nt")
    def r16_addr(self, vdst, rowstride):
        self.a(f"""
        v_lshrrev_b32 v8, 1, v2
        v_lshrrev_b32 v9, 3, v1
        v_lshl_add_u32 v8, v8, 1, v9
        v_and_b32 v9, 1, v2
        v_lshl_add_u32 v8, v8, 4, v9
        s_lshl_b32 s26, s22, 7
        v_add_u32 v8, s26, v8
        v_mul_u32_u24 v8, {rowstride}, v8
        v_and_b32 v9, 7, v1
        v_lshl_add_u32 v{vdst}, v9, 4, v8
        """)
    def x_load(self):
        self.a("""
        v_and_b32 v8, 1, v2
        v_lshlrev_b32 v8, 3, v8
        v_lshl_add_u32 v8, v1, 4, v8
        v_lshrrev_b32 v9, 1, v2
        v_lshl_add_u32 v14, v9, 2, v8
        s_lshl_b32 s26, s22, 8
        buffer_load_dword v25, v14, s[16:19], s26 offen
        """)
    def gather(self, tagn, nld, xr_cond):
        a = self.a
        mode = self.o.get("pre", "any")
        a("s_mov_b32 s25, 0")
        if mode != "none":
            a(f"s_mov_b32 exec_lo, {hex(0xffffffff if nld == 8 else 0x0fffffff)}\ns_mov_b32 exec_hi, 0")
            a(f"L_gl_{tagn}:\nbuffer_load_dword v54, v13, s[4:7], 0 offen sc1")
            self.timeout()
            a("s_waitcnt vmcnt(0)")
            if isinstance(mode, int):
                a(f"v_cmp_ne_u32 vcc, -1, v54\ns_bcnt1_i32_b32 s26, vcc_lo\ns_cmp_lt_u32 s26, {mode * 4 * nld // 32}\ns_cbranch_scc1 L_gl_{tagn}")
            elif mode == "all": a(f"v_cmp_eq_u32 vcc, -1, v54\ns_cbranch_vccnz L_gl_{tagn}")
            else: a(f"v_cmp_ne_u32 vcc, -1, v54\ns_cbranch_vccz L_gl_{tagn}")
        if self.o.get("inc", 0):
            def gload(g, t):
                if g == 0:
                    if xr_cond: a(f"s_cmp_eq_u32 s23, 0\ns_cbranch_scc1 L_gx{t}_{tagn}")
                    a("buffer_load_dword v22, v17, s[4:7], 0 offen sc1")
                    if xr_cond: a(f"L_gx{t}_{tagn}:")
                for i in (2*g, 2*g + 1):
                    if i < nld: a(f"buffer_load_dwordx4 v[{60+4*i}:{63+4*i}], v16, s[4:7], s{32+i} offen sc1")
            def gcheck(g, t):
                r = 60 + 8*g
                if g == 0: a(f"v_max3_u32 v54, v22, v{r}, v{r+4}")
                else: a(f"v_max_u32 v54, v{r}, v{r+4}")
                a(f"v_cmp_eq_u32 vcc, -1, v54\ns_cbranch_vccnz L_gs{t}{g}_{tagn}")
                a(f"v_smfmac_f32_16x16x64_bf16 v[42:45], v[92:95], v[{r}:{r+7}], v7\ns_bitset0_b32 s30, {g}")
                a(f"L_gs{t}{g}_{tagn}:")
            a("s_mov_b64 exec, s[28:29]")
            for g in range(4): gload(g, "a")
            a("s_mov_b64 exec, -1\ns_mov_b32 s30, 15\nv_mov_b32 v42, 0\nv_mov_b32 v43, 0\nv_mov_b32 v44, 0\nv_mov_b32 v45, 0")
            for g in range(4):
                a(f"s_waitcnt vmcnt({max(0, nld-2-2*g)})")
                gcheck(g, "a")
            a(f"s_cmp_eq_u32 s30, 0\ns_cbranch_scc1 L_gd_{tagn}")
            a(f"L_gp_{tagn}:\ns_mov_b64 exec, s[28:29]")
            for g in range(4):
                a(f"s_bitcmp1_b32 s30, {g}\ns_cbranch_scc0 L_gq{g}_{tagn}")
                gload(g, "b")
                a(f"L_gq{g}_{tagn}:")
            a("s_mov_b64 exec, -1")
            self.timeout()
            a("s_waitcnt vmcnt(0)")
            for g in range(4):
                a(f"s_bitcmp1_b32 s30, {g}\ns_cbranch_scc0 L_gsb{g}_{tagn}")
                gcheck(g, "b")
            a(f"s_cmp_eq_u32 s30, 0\ns_cbranch_scc0 L_gp_{tagn}")
            a(f"L_gd_{tagn}:\nv_lshlrev_b32 v52, 16, v22\nv_and_b32 v53, 0xffff0000, v22\ns_nop 2")
        else:
            def loads(pol, t):
                a("s_mov_b64 exec, s[28:29]")
                if xr_cond:
                    a(f"s_cmp_eq_u32 s23, 0\ns_cbranch_scc1 L_gx{t}_{tagn}")
                a("buffer_load_dword v22, v17, s[4:7], 0 offen sc1")
                if xr_cond: a(f"L_gx{t}_{tagn}:")
                for i in range(nld):
                    a(f"buffer_load_dwordx4 v[{60+4*i}:{63+4*i}], v16, s[4:7], s{32+i} offen {pol}")
            if self.o.get("l2"):
                loads({1: "", 2: "sc0"}[self.o["l2"]], "a")
                a(f"s_branch L_gc_{tagn}")
            a(f"L_gp_{tagn}:")
            loads("sc1", "")
            a(f"L_gc_{tagn}:")
            a("s_mov_b64 exec, -1")
            self.timeout()
            a("v_mov_b32 v42, 0\nv_mov_b32 v43, 0\nv_mov_b32 v44, 0\nv_mov_b32 v45, 0")
            for i in range(0, 8, 2):
                a(f"s_waitcnt vmcnt({max(0, nld-2-i)})")
                r = 60 + 4*i
                a(f"v_smfmac_f32_16x16x64_bf16 v[42:45], v[92:95], v[{r}:{r+7}], v7")
                a(f"v_max3_u32 v54, v{22 if i == 0 else 54}, v{r}, v{r+4}")
                if i == 0: a("v_lshlrev_b32 v52, 16, v22\nv_and_b32 v53, 0xffff0000, v22")
            a(f"v_cmp_eq_u32 vcc, -1, v54\ns_cbranch_vccnz L_gp_{tagn}")
        a("""
        v_cndmask_b32 v50, v42, v44, s[48:49]
        v_cndmask_b32 v51, v43, v45, s[48:49]
        v_cvt_pk_bf16_f32 v55, v50, v51
        v_lshlrev_b32 v50, 16, v55
        v_and_b32 v51, 0xffff0000, v55
        v_pk_add_f32 v[50:51], v[50:51], v[52:53]
        v_cvt_pk_bf16_f32 v24, v50, v51
        """)
    def front_gemv(self, two, cs=False):
        a = self.a
        a("""
        ds_write_b32 v18, v24
        v_lshlrev_b32 v50, 16, v24
        v_and_b32 v51, 0xffff0000, v24
        v_mov_b32 v42, 0
        v_mov_b32 v43, 0
        s_waitcnt lgkmcnt(0)
        ds_read_b128 v[26:29], v19
        ds_read_b128 v[30:33], v19 offset:16
        v_add_f32 v55, v50, v51
        v_mul_f32 v56, v50, v50
        v_fmac_f32 v56, v51, v51
        v_mov_b32 v44, 0
        v_mov_b32 v45, 0
        """)
        if two: a("v_mov_b32 v46, 0\nv_mov_b32 v47, 0\nv_mov_b32 v48, 0\nv_mov_b32 v49, 0")
        a("v_permlane32_swap_b32 v55, v56\nv_add_f32 v55, v55, v56")
        a("s_and_b32 s26, s23, 1\ns_mul_i32 s26, s26, 4352\nv_add_u32 v8, s26, v20\nv_add_u32 v9, s26, v21")
        a("s_waitcnt lgkmcnt(1)")
        self.abuild(34, 26)
        fill = ["v_mov_b32 v56, v55", None, "v_permlane16_swap_b32 v55, v56\nv_add_f32 v55, v55, v56",
                "v_add_f32_dpp v55, v55, v55 row_ror:8 row_mask:0xf bank_mask:0xf", "v_add_f32_dpp v55, v55, v55 row_ror:4 row_mask:0xf bank_mask:0xf",
                "v_add_f32_dpp v55, v55, v55 row_ror:2 row_mask:0xf bank_mask:0xf", "v_add_f32_dpp v55, v55, v55 row_ror:1 row_mask:0xf bank_mask:0xf",
                "s_mov_b32 exec_lo, 1\ns_mov_b32 exec_hi, 1\nds_write_b32 v9, v55\ns_mov_b64 exec, s[50:51]"]
        for s in range(8):
            A = 34 + 4*(s & 1)
            if s == 3: a("s_waitcnt lgkmcnt(0)")
            if s < 7: self.abuild(34 + 4*((s+1) & 1), 26 + s + 1)
            a(f"v_smfmac_f32_16x16x64_bf16 v[42:45], v[{A}:{A+3}], v[{128+8*s}:{135+8*s}], v7")
            if two: a(f"v_smfmac_f32_16x16x64_bf16 v[46:49], v[{A}:{A+3}], v[{192+8*s}:{199+8*s}], v7")
            if fill[s]: a(fill[s])
        a("ds_write_b128 v8, v[42:45]")
        if two: a("ds_write_b128 v8, v[46:49] offset:2048")
        if cs:
            a("s_cmp_eq_u32 s23, 0\ns_cbranch_scc0 L_ncs\ns_mov_b64 exec, -1\nv_mov_b32 v46, 0\nv_mov_b32 v47, 0\nv_mov_b32 v48, 0\nv_mov_b32 v49, 0")
            for s in range(8): a(f"v_smfmac_f32_16x16x64_bf16 v[46:49], v[92:95], v[{128+8*s}:{135+8*s}], v7")
            a("s_mov_b64 exec, s[50:51]\nds_write_b128 v8, v[46:49] offset:2048\nL_ncs:")
        a("s_mov_b64 exec, -1\ns_waitcnt lgkmcnt(0)\ns_barrier")
    def xr_publish(self, sofs_expr):
        self.a(f"""
        v_subrev_u32 v8, s20, v17
        v_min_u32 v9, -2, v24
        {sofs_expr}
        v_add_u32 v8, s26, v8
        s_mov_b32 s26, 8192
        s_mov_b64 exec, s[28:29]
        buffer_store_dword v9, v8, s[4:7], 0 offen sc1
        buffer_store_dword v9, v8, s[4:7], s26 offen sc1
        s_mov_b64 exec, -1
        """)
    def back_reduce(self, two, base, ro):
        a = self.a
        a(f"ds_read_b128 v[{ro+16}:{ro+19}], v{base+1}\nds_read_b128 v[{ro+20}:{ro+23}], v{base+1} offset:16")
        for m in range(2 if two else 1):
            for k in range(4):
                a(f"ds_read2st64_b32 v[{ro+8*m+2*k}:{ro+8*m+2*k+1}], v{base} offset0:{8*m+2*k} offset1:{8*m+2*k+1}")
    def ln_scalars(self, ro, nrest):
        a = self.a
        t = ro + 16
        a(f"""
        s_waitcnt lgkmcnt({nrest})
        v_pk_add_f32 v[{t}:{t+1}], v[{t}:{t+1}], v[{t+2}:{t+3}]
        v_pk_add_f32 v[{t+4}:{t+5}], v[{t+4}:{t+5}], v[{t+6}:{t+7}]
        v_pk_add_f32 v[{t}:{t+1}], v[{t}:{t+1}], v[{t+4}:{t+5}]
        v_mul_f32 v{t}, {hex(f2u(1.0/448))}, v{t}
        v_mul_f32 v{t+1}, {hex(f2u(1.0/448))}, v{t+1}
        v_fma_f32 v{t+1}, -v{t}, v{t}, v{t+1}
        v_max_f32 v{t+1}, 0, v{t+1}
        v_cvt_pk_bf16_f32 v{t+2}, v{t}, v{t+1}
        v_lshlrev_b32 v{t}, 16, v{t+2}
        v_and_b32 v{t+1}, 0xffff0000, v{t+2}
        v_add_f32 v{t+1}, {hex(f2u(1e-5))}, v{t+1}
        v_cvt_pk_bf16_f32 v{t+1}, v{t+1}, v{t+1}
        v_and_b32 v{t+1}, 0xffff0000, v{t+1}
        v_sqrt_f32 v{t+1}, v{t+1}
        v_cvt_pk_bf16_f32 v{t+1}, v{t+1}, v{t+1}
        v_and_b32 v{t+1}, 0xffff0000, v{t+1}
        v_rcp_f32 v{t+1}, v{t+1}
        """)
    def sum8(self, r):
        self.a(f"""
        v_pk_add_f32 v[{r}:{r+1}], v[{r}:{r+1}], v[{r+2}:{r+3}]
        v_pk_add_f32 v[{r+4}:{r+5}], v[{r+4}:{r+5}], v[{r+6}:{r+7}]
        v_pk_add_f32 v[{r}:{r+1}], v[{r}:{r+1}], v[{r+4}:{r+5}]
        v_add_f32 v{r}, v{r}, v{r+1}
        """)
    def r8_addr(self, vdst, NS, wv):
        self.a(f"""
        v_lshrrev_b32 v8, 1, v2
        v_mul_u32_u24 v8, {2*NS}, v8
        v_and_b32 v9, 1, v2
        v_add_u32 v8, v8, v9
        v_mul_u32_u24 v8, 896, v8
        v_lshl_add_u32 v8, v1, 4, v8
        s_lshl_b32 s26, s{wv}, 8
        v_add_u32 v{vdst}, s26, v8
        s_cmp_eq_u32 s{wv}, 3
        s_cselect_b32 s28, 0x00ff00ff, -1
        s_mov_b32 s29, s28
        """)
    def r8_loads(self, NS, srd, vaddr, reg, pace=0, npace=99):
        a = self.a
        a("s_mov_b64 exec, s[28:29]")
        for s in range(NS):
            for hf in range(2):
                a(f"s_mov_b32 s26, {(4*NS*hf + 2*s)*896}")
                r = reg + 8*s + 4*hf
                if pace and 2*s + hf <= npace: a(f"s_waitcnt vmcnt({pace-1})")
                a(f"buffer_load_dwordx4 v[{r}:{r+3}], v{vaddr}, s[{srd}:{srd+3}], s26 offen nt")
        a("s_mov_b64 exec, -1")
    def r8_pub_addr(self, vdst, wv, sslot):
        self.a(f"""
        v_lshrrev_b32 v9, 1, v2
        v_lshlrev_b32 v9, 13, v9
        v_lshl_add_u32 v8, v1, 4, v9
        s_lshl_b32 s26, s{wv}, 8
        s_add_u32 s26, s26, s{sslot}
        v_add_u32 v{vdst}, s26, v8
        s_and_b32 s46, s28, 0xffff
        s_mov_b32 s47, s46
        """)
    def r8_gemv(self, NS, X, reg, vpub, sofs, bc=False):
        a = self.a
        a("v_mov_b32 v42, 0\nv_mov_b32 v43, 0\nv_mov_b32 v44, 0\nv_mov_b32 v45, 0")
        nrd = NS // 4
        def ab(dst, s):
            if bc:
                for d in range(4): a(f"v_and_b32_dpp v{dst+d}, v{X}, v{3+d} row_newbcast:{2*s} row_mask:0xf bank_mask:0xf")
            else: self.abuild(dst, X + s)
        if not bc: a(f"s_waitcnt lgkmcnt({nrd-1})")
        ab(34, 0)
        for s in range(NS):
            A = 34 + 4*(s & 1)
            if s + 1 < NS:
                if (s + 1) % 4 == 0 and not bc: a(f"s_waitcnt lgkmcnt({nrd - 1 - (s+1)//4})")
                ab(34 + 4*((s+1) & 1), s + 1)
            a(f"v_smfmac_f32_16x16x64_bf16 v[42:45], v[{A}:{A+3}], v[{reg+8*s}:{reg+8*s+7}], v7")
        a(f"""
        v_cvt_pk_bf16_f32 v46, v42, v43
        v_cvt_pk_bf16_f32 v48, v42, v43
        v_cvt_pk_bf16_f32 v47, v44, v45
        v_cvt_pk_bf16_f32 v49, v44, v45
        v_permlane16_swap_b32 v46, v48
        v_permlane16_swap_b32 v47, v49
        s_mov_b64 exec, s[46:47]
        v_min_u32 v46, -2, v46
        buffer_store_dwordx4 v[46:49], v{vpub}, s[4:7], s{sofs} offen sc1
        s_mov_b64 exec, -1
        """)

    def role_q(self):
        a = self.a
        a(f"L_Q:\ns_sub_u32 s21, s2, {ID_Q}")
        a("s_cmp_gt_u32 s22, 4\ns_cbranch_scc1 L_exit\ns_cmp_eq_u32 s22, 4\ns_cbranch_scc1 L_Qh")
        self.r16_addr(15, 8192)
        a("s_lshl_b32 s27, s21, 7")
        self.kwait()
        self.srd(8, 70, 448*8192 - 0, off_s=27)
        a("s_sub_u32 s10, s10, s27")
        if self.o.get("hb", 0) & 2: a("s_barrier")
        self.r16_loads(8, 128, 8192, 15)
        self.srd(16, 64, 896)
        self.x_load()
        self.stamp(10)
        self.masks()
        self.front_setup(C_H4, C_XR1)
        a(f"v_lshlrev_b32 v58, 2, v0\nv_add_u32 v58, 1024, v58")
        a(f"s_lshr_b32 s26, s21, 5\ns_lshl_b32 s26, s26, 14\ns_and_b32 s27, s21, 31\ns_lshl_b32 s27, s27, 8\ns_add_u32 s26, s26, s27\ns_add_u32 s26, s26, {C_H1*CH}\nv_lshl_add_u32 v59, v0, 2, s26\nv_mov_b32 v99, 12288")
        a("s_mov_b32 s23, 0\ns_waitcnt vmcnt(0)\nv_mov_b32 v24, v25")
        self.stamp(1)
        a("s_branch L_Qg")
        a("L_Qloop:")
        self.tag_from_lds(12288)
        a(f"s_mov_b32 s27, {ID_F}")
        self.flag_poll("q", 27, NF)
        self.add_side("s20")
        self.gather("q", 7, False)
        self.stamp(5)
        a("L_Qg:")
        self.front_gemv(False, cs=True)
        self.stamp_l(2, 6)
        a("s_cmp_eq_u32 s22, 0\ns_cbranch_scc0 L_Qnext")
        a(f"s_and_b32 s26, s23, 1\ns_mul_i32 s26, s26, 4352\nv_add_u32 v10, s26, v58\ns_add_u32 s26, s26, {1024+4096}\nv_mov_b32 v11, s26")
        a("s_cmp_eq_u32 s23, 0\ns_cbranch_scc0 L_Qr\nds_read_b32 v125, v99")
        for k in range(4): a(f"ds_read2st64_b32 v[{108+2*k}:{109+2*k}], v10 offset0:{8+2*k} offset1:{9+2*k}")
        a("s_waitcnt lgkmcnt(0)")
        self.sum8(108)
        a("v_mov_b32 v57, v108\nL_Qr:")
        self.back_reduce(False, 10, 100)
        self.ln_scalars(100, 4)
        a("s_waitcnt lgkmcnt(0)")
        self.sum8(100)
        a("""
        v_fma_f32 v100, -v116, v57, v100
        v_mul_f32 v100, v100, v117
        s_lshl_b32 s26, s23, 15
        s_add_u32 s27, s26, 8192
        v_mov_b32_dpp v101, v100 quad_perm:[1,0,3,2] row_mask:0xf bank_mask:0xf
        s_mov_b32 exec_lo, 0x55555555
        s_mov_b32 exec_hi, 0x55555555
        v_cvt_pk_bf16_f32 v124, v100, v101
        buffer_store_dwordx2 v[124:125], v59, s[4:7], s26 offen sc1
        buffer_store_dwordx2 v[124:125], v59, s[4:7], s27 offen sc1
        s_mov_b64 exec, -1
        """)
        self.stamp_l(3, 7)
        a("L_Qnext:\ns_add_u32 s23, s23, 1\ns_cmp_lt_i32 s23, 2\ns_cbranch_scc1 L_Qloop")
        a("s_cmp_eq_u32 s21, 0\ns_cbranch_scc0 L_Qnx")
        self.xr_publish(f"s_mov_b32 s26, {(C_XR2-C_XR1)*CH & 0xffffffff}")
        a("L_Qnx:")
        a("s_cmp_lt_u32 s21, 7\ns_cbranch_scc0 L_exit\ns_cmp_eq_u32 s22, 0\ns_cbranch_scc0 L_exit")
        self.srd(16, 82, 896)
        a(f"""
        v_lshrrev_b32 v8, 3, v0
        v_lshlrev_b32 v8, 10, v8
        v_and_b32 v9, 7, v0
        v_lshl_add_u32 v8, v9, 4, v8
        s_lshl_b32 s26, s21, 7
        s_add_u32 s27, s26, s20
        v_add_u32 v16, s27, v8
        v_add_u32 v97, s26, v14
        s_add_u32 s27, s27, {C_XR3*CH}
        v_add_u32 v17, s27, v14
        v_mov_b32 v22, 0
        v_mov_b32 v72, 0
        v_mov_b32 v73, 0
        v_mov_b32 v74, 0
        v_mov_b32 v75, 0
        s_mov_b32 s32, {(C_H4+4)*CH}
        s_mov_b32 s33, {(C_H4+5)*CH}
        s_mov_b32 s34, {(C_H4+6)*CH}
        s_mov_b32 s35, {(C_H4+7)*CH}
        s_mov_b32 s28, 0x00ff00ff
        s_mov_b32 s29, 0x00ff00ff
        s_mov_b32 s25, 0
        L_Fp:
        s_mov_b64 exec, s[28:29]
        buffer_load_dword v22, v17, s[4:7], 0 offen sc1
        s_mov_b64 exec, -1
        buffer_load_dwordx4 v[60:63], v16, s[4:7], s32 offen sc1
        buffer_load_dwordx4 v[64:67], v16, s[4:7], s33 offen sc1
        buffer_load_dwordx4 v[68:71], v16, s[4:7], s34 offen sc1
        s_mov_b32 exec_hi, 0
        buffer_load_dwordx4 v[72:75], v16, s[4:7], s35 offen sc1
        s_mov_b64 exec, -1
        """)
        self.timeout()
        a("""
        v_mov_b32 v42, 0
        v_mov_b32 v43, 0
        v_mov_b32 v44, 0
        v_mov_b32 v45, 0
        s_waitcnt vmcnt(2)
        v_smfmac_f32_16x16x64_bf16 v[42:45], v[92:95], v[60:67], v7
        v_max3_u32 v54, v22, v60, v64
        v_lshlrev_b32 v52, 16, v22
        v_and_b32 v53, 0xffff0000, v22
        s_waitcnt vmcnt(0)
        v_smfmac_f32_16x16x64_bf16 v[42:45], v[92:95], v[68:75], v7
        v_max3_u32 v54, v54, v68, v72
        v_cmp_eq_u32 vcc, -1, v54
        s_cbranch_vccnz L_Fp
        v_cndmask_b32 v50, v42, v44, s[48:49]
        v_cndmask_b32 v51, v43, v45, s[48:49]
        v_add_f32_dpp v50, v50, v50 row_ror:8 row_mask:0xf bank_mask:0xf
        v_add_f32_dpp v51, v51, v51 row_ror:8 row_mask:0xf bank_mask:0xf
        v_cvt_pk_bf16_f32 v55, v50, v51
        v_lshlrev_b32 v50, 16, v55
        v_and_b32 v51, 0xffff0000, v55
        v_pk_add_f32 v[50:51], v[50:51], v[52:53]
        v_cvt_pk_bf16_f32 v50, v50, v51
        s_mov_b64 exec, s[28:29]
        buffer_store_dword v50, v97, s[16:19], 0 offen OUTPOL
        """)
        self.stamp(8)
        a("s_cmp_eq_u32 s21, 0\ns_cbranch_scc0 L_exit\nv_mov_b32 v9, s24\nv_mov_b32 v8, 0\ns_mov_b64 exec, 1\nbuffer_store_dword v9, v8, s[4:7], 0 offen sc1\ns_branch L_exit")
        a("L_Qh:")
        self.kwait()
        self.epoch_load()
        a(f"""
        v_lshlrev_b32 v10, 4, v0
        s_cmp_eq_u32 s21, 0
        s_cbranch_scc0 L_Qh1
        s_mov_b32 s30, {C_XR2*CH}
        """)
        self.reset1k(30)
        a("L_Qh1:")
        if self.o.get("hb", 0) & 2: a("s_barrier")
        self.flag_store(0)
        a("v_mov_b32 v16, 12288\nds_write_b32 v16, v11\ns_waitcnt lgkmcnt(0)\ns_branch L_exit")

    def role_f(self):
        a = self.a
        a(f"L_F:\ns_sub_u32 s21, s2, {ID_F}")
        self.kwait()
        a("s_cmp_gt_u32 s22, 3\ns_cbranch_scc1 L_Fb")
        self.srd(16, 64, 896)
        a("s_lshl_b32 s27, s21, 7")
        self.srd(8, 76, 448*3584, off_s=27)
        a("s_sub_u32 s10, s10, s27")
        self.srd(12, 78, 448*3584, off_s=27)
        a("s_sub_u32 s14, s14, s27")
        self.x_load()
        self.r16_addr(15, 3584)
        if self.o.get("gatef") or self.o.get("hb", 0) & 8: a("s_barrier")
        self.r16_loads(8, 128, 3584, 15, self.o.get("pf", 0), self.o.get("pfn", 99))
        self.r16_loads(12, 192, 3584, 15, self.o.get("pf", 0), self.o.get("pfn", 99) - 16)
        self.stamp(10)
        self.masks()
        self.front_setup(C_H3, C_XR2)
        a("s_mov_b32 s23, -1\nv_mov_b32 v24, 0x3f803f80\ns_waitcnt vmcnt(0)\nv_mov_b32 v22, v25")
        self.stamp(1)
        a("s_branch L_Fg")
        a("L_Floop:")
        self.gather("f", 8, True)
        self.stamp_l(2, 5)
        a("L_Fg:")
        self.front_gemv(True)
        self.stamp_l(3, 6)
        a("s_cmp_eq_u32 s23, -1\ns_cbranch_scc0 L_Fn1")
        a("v_mov_b32 v8, 12288\nds_read_b32 v9, v8\ns_waitcnt lgkmcnt(0)\nv_readfirstlane_b32 s20, v9")
        self.add_side("v9")
        a("s_mov_b32 s23, 0\ns_branch L_Floop")
        a("L_Fn1:\ns_cmp_eq_u32 s21, 0\ns_cbranch_scc0 L_Fnx")
        self.xr_publish(f"s_lshl_b32 s26, s23, 14\ns_add_u32 s26, s26, {(C_XR1-C_XR2)*CH}")
        a("L_Fnx:")
        a(f"v_add_u32 v16, {4*CH}, v16\nv_add_u32 v13, {4*CH}, v13")
        a("s_add_u32 s23, s23, 1\ns_cmp_lt_i32 s23, 2\ns_cbranch_scc1 L_Floop\ns_branch L_exit")
        a("L_Fb:\ns_sub_u32 s30, s22, 4")
        a("s_mul_i32 s27, s21, 57344")
        self.srd(8, 80, 57344, off_s=27)
        a(f"""
        s_lshr_b32 s27, s21, 3
        s_lshl_b32 s27, s27, 14
        s_and_b32 s26, s21, 7
        s_lshl_b32 s26, s26, 10
        s_add_u32 s52, s26, s27
        s_add_u32 s52, s52, {C_H4*CH}
        s_cmp_eq_u32 s22, 4
        s_cbranch_scc0 L_Fb1
        """)
        self.epoch_load()
        a("v_lshlrev_b32 v10, 4, v0")
        self.reset1k(52)
        a(f"s_add_u32 s53, s52, {4*CH}")
        self.reset1k(53)
        a(f"s_cmp_eq_u32 s21, 0\ns_cbranch_scc0 L_Fb1\ns_mov_b32 s53, {C_XR1*CH}")
        self.reset1k(53)
        a(f"s_mov_b32 s53, {C_XR3*CH}")
        self.reset1k(53)
        a("L_Fb1:")
        self.r8_addr2(16, 8, 30)
        if self.o.get("gatef"):
            a("s_cmp_eq_u32 s22, 4\ns_cbranch_scc0 L_Fb3")
            self.flag_store(0)
            a("L_Fb3:\ns_barrier")
        elif self.o.get("hb", 0) & 8: a("s_barrier")
        def w4():
            a("s_cmp_eq_u32 s22, 4\ns_cbranch_scc0 L_Fb2")
            if not self.o.get("gatef"): self.flag_store(0 if self.o.get("fb4") else 16)
            a(f"s_mov_b32 s27, {ID_W}")
            self.flag_poll("f", 27, NW, extra_id=ID_Q)
            a("v_mov_b32 v8, 12288\nv_mov_b32 v9, s20\nds_write_b32 v8, v9\ns_waitcnt lgkmcnt(0)")
            a("L_Fb2:")
        if self.o.get("fb4"): w4()
        self.r8_loads(8, 8, 16, 128, self.o.get("pb", 0), self.o.get("pbn", 99))
        if not self.o.get("fb4"): w4()
        self.masks()
        self.r8_pub_addr(17, 30, 52)
        a("v_lshlrev_b32 v58, 2, v0\nv_add_u32 v58, 1024, v58")
        a("s_lshl_b32 s26, s30, 7\ns_add_u32 s26, s26, 10240\nv_lshl_add_u32 v18, v0, 1, s26\nv_lshl_add_u32 v19, v2, 5, s26")
        a("s_mov_b32 s23, -1")
        self.stamp(1)
        a("L_Fbl:")
        a(f"s_and_b32 s26, s23, 1\ns_mul_i32 s26, s26, 4352\nv_add_u32 v10, s26, v58\ns_add_u32 s26, s26, {1024+4096}\nv_mov_b32 v11, s26\ns_lshl_b32 s27, s23, 16")
        a("s_barrier")
        self.stamp_l(2, 5)
        self.back_reduce(True, 10, 60)
        self.ln_scalars(60, 8)
        a("s_waitcnt lgkmcnt(4)")
        self.sum8(60)
        a("s_waitcnt lgkmcnt(0)")
        self.sum8(68)
        a("s_cmp_eq_u32 s23, -1\ns_cbranch_scc0 L_Fbh\nv_mov_b32 v56, v60\nv_mov_b32 v57, v68\ns_mov_b32 s23, 0\ns_branch L_Fbl")
        a(f"""
        L_Fbh:
        v_fma_f32 v60, -v76, v56, v60
        v_fma_f32 v68, -v76, v57, v68
        v_mul_f32 v60, v60, v77
        v_mul_f32 v68, v68, v77
        v_cvt_pk_bf16_f32 v61, v60, v68
        v_lshlrev_b32 v60, 16, v61
        v_and_b32 v68, 0xffff0000, v61
        v_mul_f32 v61, {hex(f2u(-LOG2E))}, v60
        v_exp_f32 v61, v61
        v_add_f32 v61, 1.0, v61
        v_rcp_f32 v61, v61
        v_mul_f32 v61, v60, v61
        v_cvt_pk_bf16_f32 v61, v61, v61
        v_and_b32 v61, 0xffff0000, v61
        v_mul_f32 v61, v61, v68
        v_mov_b32_dpp v62, v61 quad_perm:[1,0,3,2] row_mask:0xf bank_mask:0xf
        v_cvt_pk_bf16_f32 v26, v61, v62
        """)
        a("s_waitcnt vmcnt(0)")
        self.stamp_l(3, 6)
        self.r8_gemv(8, 26, 128, 17, 27, bc=True)
        self.stamp_l(4, 7)
        a("s_add_u32 s23, s23, 1\ns_cmp_lt_i32 s23, 2\ns_cbranch_scc1 L_Fbl\ns_branch L_exit")
    def r8_addr2(self, vdst, NS, wv):
        self.a(f"""
        v_lshrrev_b32 v20, 1, v2
        v_mul_u32_u24 v20, {2*NS}, v20
        v_and_b32 v21, 1, v2
        v_add_u32 v20, v20, v21
        v_mul_u32_u24 v20, 896, v20
        v_lshl_add_u32 v20, v1, 4, v20
        s_lshl_b32 s26, s{wv}, 8
        v_add_u32 v{vdst}, s26, v20
        s_cmp_eq_u32 s{wv}, 3
        s_cselect_b32 s28, 0x00ff00ff, -1
        s_mov_b32 s29, s28
        """)

    def role_w(self):
        a = self.a
        a(f"L_W:\ns_sub_u32 s21, s2, {ID_W}")
        a(f"""
        s_lshr_b32 s27, s21, 2
        s_lshl_b32 s27, s27, 14
        s_and_b32 s26, s21, 3
        s_lshl_b32 s26, s26, 11
        s_add_u32 s53, s26, s27
        s_lshr_b32 s27, s21, 3
        s_lshl_b32 s27, s27, 14
        s_and_b32 s26, s21, 7
        s_lshl_b32 s26, s26, 10
        s_add_u32 s52, s26, s27
        s_add_u32 s52, s52, {C_H3*CH}
        """)
        a("s_cmp_gt_u32 s22, 4\ns_cbranch_scc1 L_exit\ns_cmp_eq_u32 s22, 4\ns_cbranch_scc1 L_Wh")
        self.kwait()
        a("s_mul_i32 s27, s21, 114688")
        self.srd(8, 72, 114688, off_s=27)
        self.r8_addr(16, 16, 22)
        if self.o.get("gatew") or self.o.get("hb", 0) & 4: a("s_barrier")
        self.r8_loads(16, 8, 16, 128, self.o.get("pw", 0), self.o.get("pwn", 99))
        self.stamp(10)
        self.masks()
        self.r8_pub_addr(17, 22, 52)
        a(f"""
        v_lshrrev_b32 v8, 2, v0
        v_and_b32 v9, 3, v0
        v_lshlrev_b32 v10, 9, v8
        v_lshl_add_u32 v10, v9, 5, v10
        s_lshl_b32 s26, s21, 14
        s_lshl_b32 s27, s22, 7
        s_add_u32 s26, s26, s27
        s_add_u32 s26, s26, {C_H2O*CH}
        v_add_u32 v18, s26, v10
        s_add_u32 s26, s53, {C_H2M*CH}
        v_lshl_add_u32 v19, v8, 7, s26
        v_lshlrev_b32 v10, 4, v9
        v_lshl_add_u32 v10, v2, 2, v10
        s_lshl_b32 s26, s22, 6
        v_add_u32 v20, s26, v10
        v_lshlrev_b32 v21, 6, v2
        s_mov_b32 s23, 0
        s_waitcnt vmcnt(0)
        """)
        self.stamp(1)
        a("v_mov_b32 v8, 512\ns_barrier\nds_read_b32 v9, v8\ns_waitcnt lgkmcnt(0)\nv_add_u32 v18, v9, v18\nv_add_u32 v19, v9, v19")
        a("L_Wl:\ns_mov_b32 s25, 0")
        a(f"s_mul_i32 s30, s23, {32*CH}\ns_lshl_b32 s27, s23, 17\ns_lshl_b32 s31, s23, 16")
        a("""
        L_Wp:
        buffer_load_dwordx2 v[22:23], v19, s[4:7], s27 offen sc1
        buffer_load_dwordx4 v[60:63], v18, s[4:7], s30 offen sc1
        buffer_load_dwordx4 v[64:67], v18, s[4:7], s30 offen offset:16 sc1
        """)
        self.timeout()
        a("""
        s_waitcnt vmcnt(2)
        v_max_f32_dpp v24, v22, v22 row_ror:4 row_mask:0xf bank_mask:0xf
        v_max_f32_dpp v24, v24, v24 row_ror:8 row_mask:0xf bank_mask:0xf
        v_mov_b32 v25, v24
        v_permlane16_swap_b32 v24, v25
        v_max_f32 v24, v24, v25
        v_mov_b32 v25, v24
        v_permlane32_swap_b32 v24, v25
        v_max_f32 v24, v24, v25
        v_sub_f32 v24, v22, v24
        v_exp_f32 v24, v24
        s_waitcnt vmcnt(0)
        v_max3_u32 v54, v22, v60, v64
        v_cmp_eq_u32 vcc, -1, v54
        s_cbranch_vccnz L_Wp
        """)
        self.stamp_l(2, 5)
        a("""
        v_mul_f32 v26, v23, v24
        v_pk_mul_f32 v[60:61], v[60:61], v[24:25] op_sel_hi:[1,0]
        v_pk_mul_f32 v[64:65], v[64:65], v[24:25] op_sel_hi:[1,0]
        v_pk_mul_f32 v[62:63], v[62:63], v[24:25] op_sel_hi:[1,0]
        v_pk_mul_f32 v[66:67], v[66:67], v[24:25] op_sel_hi:[1,0]
        v_add_f32_dpp v26, v26, v26 row_ror:4 row_mask:0xf bank_mask:0xf
        v_permlane32_swap_b32 v60, v64
        v_permlane32_swap_b32 v61, v65
        v_add_f32_dpp v26, v26, v26 row_ror:8 row_mask:0xf bank_mask:0xf
        v_permlane32_swap_b32 v62, v66
        v_permlane32_swap_b32 v63, v67
        v_mov_b32 v27, v26
        v_pk_add_f32 v[60:61], v[60:61], v[64:65]
        v_pk_add_f32 v[62:63], v[62:63], v[66:67]
        v_permlane16_swap_b32 v26, v27
        v_add_f32 v26, v26, v27
        v_permlane16_swap_b32 v60, v62
        v_permlane16_swap_b32 v61, v63
        v_mov_b32 v27, v26
        v_pk_add_f32 v[60:61], v[60:61], v[62:63]
        v_permlane32_swap_b32 v26, v27
        v_add_f32_dpp v60, v60, v60 row_ror:4 row_mask:0xf bank_mask:0xf
        v_add_f32_dpp v61, v61, v61 row_ror:4 row_mask:0xf bank_mask:0xf
        v_add_f32 v26, v26, v27
        v_rcp_f32 v26, v26
        v_add_f32_dpp v60, v60, v60 row_ror:8 row_mask:0xf bank_mask:0xf
        v_add_f32_dpp v61, v61, v61 row_ror:8 row_mask:0xf bank_mask:0xf
        v_pk_mul_f32 v[60:61], v[60:61], v[26:27] op_sel_hi:[1,0]
        v_cvt_pk_bf16_f32 v60, v60, v61
        ds_write_b32 v20, v60
        s_waitcnt lgkmcnt(0)
        s_barrier
        ds_read_b128 v[60:63], v21
        ds_read_b128 v[64:67], v21 offset:16
        ds_read_b128 v[68:71], v21 offset:32
        ds_read_b128 v[72:75], v21 offset:48
        """)
        self.stamp_l(3, 6)
        self.r8_gemv(16, 60, 128, 17, 31)
        self.stamp_l(4, 7)
        a("s_cmp_eq_u32 s23, 1\ns_cbranch_scc1 L_exit\ns_mov_b32 s23, 1\ns_branch L_Wl")
        a("L_Wh:")
        self.kwait()
        self.epoch_load()
        a("v_lshlrev_b32 v10, 4, v0")
        self.reset1k(52)
        a(f"s_add_u32 s53, s52, {4*CH}")
        self.reset1k(53)
        if self.o.get("hb", 0) & 4 and not self.o.get("gatew"): a("s_barrier")
        self.flag_store(0)
        if self.o.get("gatew"): a("s_barrier")
        a(f"s_lshr_b32 s27, s21, 2\ns_lshl_b32 s27, s27, 4\ns_add_u32 s27, s27, {ID_A}")
        self.flag_poll("w", 27, 16)
        a("v_mov_b32 v8, 512\nv_mov_b32 v9, s20\nds_write_b32 v8, v9\ns_waitcnt lgkmcnt(0)\ns_branch L_exit")

    def role_a(self):
        a = self.a
        a(f"L_A:\ns_sub_u32 s21, s2, {ID_A}\ns_lshr_b32 s52, s21, 4\ns_and_b32 s53, s21, 15")
        a("s_cmp_gt_u32 s22, 4\ns_cbranch_scc1 L_exit\ns_cmp_eq_u32 s22, 4\ns_cbranch_scc1 L_Ah")
        a(f"s_lshl_b32 s27, s52, 22\ns_lshl_b32 s26, s53, 16\ns_add_u32 s27, s27, s26\ns_add_u32 s27, s27, {6144*512}")
        a("""
        s_lshl_b32 s26, s22, 14
        v_and_b32 v8, 7, v1
        v_lshlrev_b32 v8, 9, v8
        v_lshl_add_u32 v8, v2, 4, v8
        v_lshrrev_b32 v9, 3, v1
        v_lshl_add_u32 v8, v9, 6, v8
        v_add_u32 v16, s26, v8
        v_lshrrev_b32 v8, 1, v2
        v_and_b32 v9, 1, v2
        v_lshl_add_u32 v8, v8, 2, v9
        v_lshlrev_b32 v8, 9, v8
        v_lshl_add_u32 v8, v1, 4, v8
        v_add_u32 v17, s26, v8
        s_mov_b32 s32, 0
        s_mov_b32 s33, 4096
        s_mov_b32 s34, 8192
        s_mov_b32 s35, 12288
        """)
        self.kwait()
        self.srd(8, 66, 65536, off_s=27)
        self.srd(12, 68, 65536, off_s=27)
        KR, VR = 128, 192
        if self.o.get("hb", 0) & 1 or self.o.get("ga"): a("s_barrier")
        for T in range(2):
            for ks in range(8):
                r = KR + 32*T + 4*ks
                if self.o.get("pk") and 8*T + ks >= self.o["pk"]: a(f"s_waitcnt vmcnt({self.o['pk'] - 1})")
                a(f"buffer_load_dwordx4 v[{r}:{r+3}], v16, s[8:11], s{32+2*T+(ks&1)} offen offset:{128*(ks>>1)} nt")
        self.stamp(10)
        for T in range(2):
            for aa in range(2):
                for cb in range(2):
                    for hf in range(2):
                        r = VR + ((2*T + aa)*2 + cb)*8 + 4*hf
                        if self.o.get("pace", 1): a(f"s_waitcnt vmcnt({self.o.get('pv', 16) - 1})")
                        a(f"buffer_load_dwordx4 v[{r}:{r+3}], v17, s[12:15], s{32+2*T+hf} offen offset:{1024*aa + 256*cb} nt")
        self.masks()
        a(f"""
        v_lshrrev_b32 v8, 3, v1
        v_lshlrev_b32 v8, 9, v8
        v_lshl_add_u32 v18, v2, 4, v8
        v_lshrrev_b32 v8, 1, v2
        v_lshlrev_b32 v8, 10, v8
        v_lshl_add_u32 v8, v1, 5, v8
        v_and_b32 v9, 1, v2
        v_lshl_add_u32 v8, v9, 4, v8
        s_lshl_b32 s26, s22, 11
        s_add_u32 s26, s26, 1024
        v_add_u32 v19, s26, v8
        v_lshrrev_b32 v8, 3, v1
        s_lshl_b32 s26, s22, 3
        s_add_u32 s26, s26, 9216
        v_lshl_add_u32 v20, v8, 5, s26
        v_and_b32 v8, 31, v0
        s_lshl_b32 s26, s22, 9
        s_add_u32 s26, s26, 1024
        v_lshl_add_u32 v21, v8, 4, s26
        s_lshr_b32 s26, s22, 1
        s_lshl_b32 s26, s26, 5
        s_add_u32 s26, s26, 9216
        v_mov_b32 v22, s26
        s_lshl_b32 s26, s52, 2
        s_add_u32 s26, s26, s22
        s_lshl_b32 s27, s26, 14
        s_lshl_b32 s30, s53, 9
        s_add_u32 s27, s27, s30
        s_add_u32 s27, s27, {C_H2O*CH}
        v_lshrrev_b32 v9, 5, v0
        v_lshlrev_b32 v9, 13, v9
        v_lshl_add_u32 v8, v8, 4, v9
        v_add_u32 v23, s27, v8
        s_lshl_b32 s27, s52, 14
        s_lshl_b32 s30, s22, 11
        s_add_u32 s27, s27, s30
        s_lshl_b32 s30, s53, 7
        s_add_u32 s27, s27, s30
        s_add_u32 s27, s27, {C_H2M*CH}
        v_add_u32 v24, s27, v9
        s_mov_b32 s36, {hex(f2u(LOG2E/16))}
        s_mov_b32 s23, 0
        s_waitcnt vmcnt(16)
        """)
        self.stamp(1)
        for pr in range(8):
            X = KR + 8*pr
            for d in range(4): a(f"v_mov_b32_dpp v{60+d}, v{X+d} row_ror:8 row_mask:0xf bank_mask:0xf")
            for d in range(4): a(f"v_mov_b32_dpp v{X+d}, v{X+4+d} row_ror:8 row_mask:0xf bank_mask:0xc")
            for d in range(4): a(f"v_mov_b32_dpp v{X+4+d}, v{60+d} quad_perm:[0,1,2,3] row_mask:0xf bank_mask:0x3")
        if self.o.get("vstamp"):
            a("s_waitcnt vmcnt(0)"); self.stamp(9)
        a("L_Al:\ns_barrier")
        self.stamp_l(2, 6)
        QR = 60
        for ks in range(8):
            a(f"ds_read_b128 v[{QR+4*ks}:{QR+4*ks+3}], v18 offset:{64*ks}")
        for ks in range(8):
            a(f"s_waitcnt lgkmcnt({7-ks})")
            for T in range(2):
                c = "0" if ks == 0 else f"v[{44+4*T}:{47+4*T}]"
                a(f"v_mfma_f32_16x16x32_bf16 v[{44+4*T}:{47+4*T}], v[{KR+32*T+4*ks}:{KR+32*T+4*ks+3}], v[{QR+4*ks}:{QR+4*ks+3}], {c}")
        for i in range(8): a(f"v_mov_b32 v{92+i}, 0")
        for k in range(4): a(f"v_cvt_pk_bf16_f32 v{52+k}, v{44+2*k}, v{45+2*k}")
        for k in range(4): a(f"v_lshlrev_b32 v{44+2*k}, 16, v{52+k}\nv_and_b32 v{45+2*k}, 0xffff0000, v{52+k}")
        a("""
        v_max3_f32 v52, v44, v45, v46
        v_max3_f32 v53, v47, v48, v49
        v_max3_f32 v52, v50, v51, v52
        v_max_f32 v52, v52, v53
        v_mov_b32 v53, v52
        v_permlane32_swap_b32 v52, v53
        v_max_f32 v52, v52, v53
        v_mov_b32 v53, v52
        v_permlane16_swap_b32 v52, v53
        v_max_f32 v52, v52, v53
        v_mul_f32 v56, s36, v52
        """)
        for k in range(8): a(f"v_fma_f32 v{44+k}, v{44+k}, s36, -v56")
        for k in range(8): a(f"v_exp_f32 v{44+k}, v{44+k}")
        for k in range(4): a(f"v_cvt_pk_bf16_f32 v{52+k}, v{44+2*k}, v{45+2*k}")
        self.abuild(34, 52)
        a("s_waitcnt vmcnt(0)")
        self.stamp_l(3, 7)
        fill = ["v_pk_add_f32 v[44:45], v[44:45], v[46:47]\nv_pk_add_f32 v[48:49], v[48:49], v[50:51]",
                "v_pk_add_f32 v[44:45], v[44:45], v[48:49]\nv_add_f32 v57, v44, v45\nv_mov_b32 v58, v57",
                "v_permlane32_swap_b32 v57, v58\nv_add_f32 v57, v57, v58\nv_mov_b32 v58, v57",
                "v_permlane16_swap_b32 v57, v58\nv_add_f32 v57, v57, v58"]
        for n in range(4):
            A = 34 + 4*(n & 1)
            if n < 3: self.abuild(34 + 4*((n+1) & 1), 52 + n + 1)
            for cb in range(2):
                r = VR + (n*2 + cb)*8
                a(f"v_smfmac_f32_16x16x64_bf16 v[{92+4*cb}:{95+4*cb}], v[{A}:{A+3}], v[{r}:{r+7}], v7")
            a(fill[n])
        a(f"s_mul_i32 s26, s23, {32*CH}\ns_lshl_b32 s27, s23, 17")
        a("""
        s_mov_b64 exec, 0x101
        ds_write_b64 v20, v[56:57]
        s_mov_b64 exec, -1
        ds_write_b128 v19, v[92:95]
        ds_write_b128 v19, v[96:99] offset:512
        s_waitcnt lgkmcnt(0)
        s_barrier
        ds_read_b128 v[44:47], v22
        ds_read_b128 v[48:51], v22 offset:16
        ds_read_b128 v[60:63], v21
        ds_read_b128 v[64:67], v21 offset:2048
        ds_read_b128 v[68:71], v21 offset:4096
        ds_read_b128 v[72:75], v21 offset:6144
        s_waitcnt lgkmcnt(4)
        v_max3_f32 v56, v44, v46, v48
        v_max_f32 v56, v56, v50
        v_sub_f32 v52, v44, v56
        v_sub_f32 v53, v46, v56
        v_sub_f32 v54, v48, v56
        v_sub_f32 v55, v50, v56
        v_exp_f32 v52, v52
        v_exp_f32 v53, v53
        v_exp_f32 v54, v54
        v_exp_f32 v55, v55
        v_mul_f32 v57, v52, v45
        v_fmac_f32 v57, v53, v47
        v_fmac_f32 v57, v54, v49
        v_fmac_f32 v57, v55, v51
        v_min_u32 v56, -2, v56
        s_waitcnt lgkmcnt(3)
        v_pk_mul_f32 v[60:61], v[60:61], v[52:53] op_sel_hi:[1,0]
        v_pk_mul_f32 v[62:63], v[62:63], v[52:53] op_sel_hi:[1,0]
        s_mov_b32 exec_lo, 1
        s_mov_b32 exec_hi, 1
        buffer_store_dwordx2 v[56:57], v24, s[4:7], s27 offen sc1
        s_mov_b64 exec, -1
        s_waitcnt lgkmcnt(2)
        v_pk_fma_f32 v[60:61], v[64:65], v[52:53], v[60:61] op_sel:[0,1,0] op_sel_hi:[1,1,1]
        v_pk_fma_f32 v[62:63], v[66:67], v[52:53], v[62:63] op_sel:[0,1,0] op_sel_hi:[1,1,1]
        s_waitcnt lgkmcnt(1)
        v_pk_fma_f32 v[60:61], v[68:69], v[54:55], v[60:61] op_sel_hi:[1,0,1]
        v_pk_fma_f32 v[62:63], v[70:71], v[54:55], v[62:63] op_sel_hi:[1,0,1]
        s_waitcnt lgkmcnt(0)
        v_pk_fma_f32 v[60:61], v[72:73], v[54:55], v[60:61] op_sel:[0,1,0] op_sel_hi:[1,1,1]
        v_pk_fma_f32 v[62:63], v[74:75], v[54:55], v[62:63] op_sel:[0,1,0] op_sel_hi:[1,1,1]
        """)
        a("""
        v_min_u32 v60, -2, v60
        buffer_store_dwordx4 v[60:63], v23, s[4:7], s26 offen sc1
        """)
        self.stamp_l(4, 8)
        a("s_add_u32 s23, s23, 1\ns_cmp_lt_i32 s23, 2\ns_cbranch_scc1 L_Al\ns_branch L_exit")
        a("L_Ah:")
        self.kwait()
        self.epoch_load()
        a(f"""
        v_and_b32 v8, 31, v0
        v_lshrrev_b32 v11, 5, v0
        v_lshlrev_b32 v11, 13, v11
        v_lshl_add_u32 v10, v8, 4, v11
        s_lshl_b32 s27, s52, 16
        s_lshl_b32 s30, s53, 9
        s_add_u32 s27, s27, s30
        s_add_u32 s27, s27, {C_H2O*CH}
        """)
        for L in range(2):
            for w in range(4):
                a(f"s_add_u32 s26, s27, {(L*32 + w)*CH}\nbuffer_store_dwordx4 v[12:15], v10, s[4:7], s26 offen sc1")
        a(f"""
        v_and_b32 v8, 3, v0
        v_lshlrev_b32 v8, 11, v8
        v_bfe_u32 v11, v0, 2, 1
        v_lshl_add_u32 v8, v11, 13, v8
        v_bfe_u32 v11, v0, 3, 1
        v_lshl_add_u32 v8, v11, 17, v8
        s_lshl_b32 s27, s52, 14
        s_lshl_b32 s30, s53, 7
        s_add_u32 s27, s27, s30
        s_add_u32 s27, s27, {C_H2M*CH}
        s_mov_b64 exec, 0xffff
        buffer_store_dwordx4 v[12:15], v8, s[4:7], s27 offen sc1
        s_mov_b64 exec, -1
        """)
        if self.o.get("hb", 0) & 1: a("s_barrier")
        early = self.o.get("early", 1)
        if not early:
            self.flag_store(0)
            if self.o.get("ga"): a("s_barrier")
            self.stamp(1)
        D = self.o.get("qd", 2)
        def issue(k, so=31):
            r = 20 + 8*k
            a(f"buffer_load_dwordx4 v[{r}:{r+3}], v17, s[4:7], s{so} offen sc1\nbuffer_load_dwordx4 v[{r+4}:{r+7}], v17, s[4:7], s{so} offen offset:1024 sc1")
        a(f"""
        v_lshlrev_b32 v16, 3, v0
        s_lshr_b32 s26, s52, 2
        s_lshl_b32 s26, s26, 14
        s_and_b32 s27, s52, 3
        s_lshl_b32 s27, s27, 11
        s_add_u32 s26, s26, s27
        s_add_u32 s30, s26, {C_H1*CH}
        v_lshlrev_b32 v17, 4, v0
        s_mov_b32 s23, 0
        """)
        if early:
            a("s_add_u32 s31, s30, s20\ns_mov_b32 s25, 0")
            for k in range(D - 1): issue(k)
            self.flag_store(2*(D - 1))
            self.stamp(1)
            a("s_branch L_Ahp0")
        a(f"""
        L_Ahl:
        s_lshl_b32 s31, s23, 15
        s_add_u32 s31, s31, s30
        s_add_u32 s31, s31, s20
        s_mov_b32 s25, 0
        """)
        for k in range(D - 1): issue(k)
        a("L_Ahp0:")
        a("L_Ahp:")
        for k in range(D):
            r = 20 + 8*k
            issue((k + D - 1) % D)
            if k == 0: self.timeout()
            a(f"""
            s_waitcnt vmcnt({2*(D-1)})
            v_xor_b32 v18, s24, v{r+1}
            v_xor_b32 v19, s24, v{r+3}
            v_xor_b32 v{r+1}, s24, v{r+5}
            v_xor_b32 v{r+3}, s24, v{r+7}
            v_or3_b32 v18, v18, v19, v{r+1}
            v_or_b32 v18, v18, v{r+3}
            v_cmp_ne_u32 vcc, 0, v18
            """)
            if k < D - 1: a(f"s_cbranch_vccz L_Ahd{k}")
            else: a("s_cbranch_vccnz L_Ahp")
        for k in reversed(range(D)):
            r = 20 + 8*k
            a(f"L_Ahd{k}:\nds_write2_b32 v16, v{r}, v{r+2} offset0:0 offset1:1\nds_write2_b32 v16, v{r+4}, v{r+6} offset0:128 offset1:129")
            if k > 0: a("s_branch L_Ahe")
        a("""
        L_Ahe:
        s_waitcnt lgkmcnt(0)
        s_barrier
        s_waitcnt vmcnt(0)
        s_barrier
        s_cmp_eq_u32 s23, 1
        s_cbranch_scc1 L_exit
        s_mov_b32 s23, 1
        s_mov_b32 s27, 0
        """)
        self.flag_poll("a", 27, 0)
        a("s_branch L_Ahl")

    def role_c(self):
        a = self.a
        a("L_C:")
        a("s_cmp_eq_u32 s22, 0\ns_cbranch_scc0 L_exit\ns_setprio 3")
        self.kwait()
        self.epoch_load()
        ld = self.o.get("cld", 0)
        def op(soff, off):
            if ld: return f"buffer_load_dword v16, v8, s[4:7], s{soff} offen offset:{off} sc1"
            return f"buffer_store_dword v8, v8, s[4:7], s{soff} offen offset:{off} sc1"
        a(f"""
        s_mov_b32 s26, {C_PR*CH}
        s_mov_b32 s27, {C_PR*CH+8192}
        v_lshlrev_b32 v17, 8, v0
        s_mov_b64 exec, {hex(0xffff if self.o.get("cpre") else 1)}
        buffer_store_dword v8, v17, s[4:7], s26 offen offset:{128 if self.o.get("cpre") else 0} sc1
        buffer_store_dword v8, v17, s[4:7], s27 offen offset:{128 if self.o.get("cpre") else 0} sc1
        s_mov_b64 exec, 1
        s_mov_b32 s32, -1
        s_mov_b32 s33, -1
        s_waitcnt vmcnt(0)
        """)
        n = self.o.get("cmax", 8); thr = self.o.get("cthr", 100)
        dbgs = ""
        step = 0 if self.o.get("csame") else 256
        if self.o.get("cdbg"):
            self.srd(8, 84, 256)
            dbgs = "s_mul_i32 s42, s34, 10000\ns_add_u32 s42, s42, s35\nv_mov_b32 v17, s42\ns_lshl_b32 s42, s30, 2\nbuffer_store_dword v17, v8, s[8:11], s42 offen\ns_waitcnt vmcnt(0)"
        a(f"""
        s_mov_b32 s30, 0
        L_Cl:
        s_add_u32 s26, s26, {step}
        s_add_u32 s27, s27, {step}
        s_memtime s[36:37]
        s_waitcnt lgkmcnt(0)
        {op(26, 128 if step else 0)}
        s_waitcnt vmcnt(0)
        s_memtime s[38:39]
        s_waitcnt lgkmcnt(0)
        {op(27, 128 if step else 0)}
        s_waitcnt vmcnt(0)
        s_memtime s[40:41]
        s_waitcnt lgkmcnt(0)
        s_sub_u32 s34, s38, s36
        s_sub_u32 s35, s40, s38
        s_min_u32 s32, s32, s34
        s_min_u32 s33, s33, s35
        {dbgs}
        s_add_u32 s30, s30, 1
        s_cmp_ge_u32 s30, {n}
        s_cbranch_scc1 L_Cd
        s_min_u32 s34, s32, s33
        s_max_u32 s35, s32, s33
        s_sub_u32 s35, s35, s34
        s_cmp_ge_u32 s30, {self.o.get("cabsn", 99)}
        s_cselect_b32 s34, 0, s34
        s_cmp_le_u32 s34, {self.o.get("cabs", 600)}
        s_cselect_b32 s35, s35, 0
        s_cmp_ge_u32 s30, 2
        s_cselect_b32 s35, s35, 0
        s_cmp_ge_u32 s35, {thr}
        s_cbranch_scc0 L_Cl
        """)
        a(f"""
        L_Cd:
        s_mov_b64 exec, -1
        s_cmp_lt_u32 s33, s32
        s_cselect_b32 s30, 1, 0
        s_lshr_b32 s31, s20, 13
        s_xor_b32 s30, s30, s31
        """)
        if self.o.get("cflip"): a("s_xor_b32 s30, s30, 1")
        if self.diag: a("s_mov_b32 s57, s32\ns_mov_b32 s58, s33\ns_mov_b32 s59, s30")
        self.flag_store(0, xor_s=30)
        self.stamp(4)
        a("s_branch L_exit")

    def build(self):
        a = self.a
        a(f"s_cmp_ge_u32 s2, {NWG}\ns_cbranch_scc1 L_end")
        if self.o.get("dbg"): a("s_memrealtime s[56:57]")
        a("s_load_dwordx16 s[64:79], s[0:1], 0\ns_load_dwordx8 s[80:87], s[0:1], 64")
        if self.diag:
            for s in self.STS: a(f"s_mov_b32 s{s}, 0")
            a("s_mov_b32 s23, -1")
        a("""
        v_lshrrev_b32 v1, 6, v0
        v_and_b32 v0, 63, v0
        s_getreg_b32 s20, hwreg(HW_REG_XCC_ID, 0, 4)
        v_readfirstlane_b32 s22, v1
        s_bfe_u32 s20, s20, 0x10002
        s_lshl_b32 s20, s20, 13
        v_and_b32 v1, 15, v0
        v_lshrrev_b32 v2, 4, v0
        s_cmp_lt_u32 s22, 4
        s_cbranch_scc1 L_np
        s_setprio 3
        L_np:
        """)
        order = self.o.get("order", "cqawf")
        if order[0] == "a":
            a(f"s_cmp_ge_u32 s2, {ID_F}\ns_cbranch_scc1 L_F\ns_cmp_ge_u32 s2, {ID_W}\ns_cbranch_scc1 L_W\ns_cmp_eq_u32 s2, 0\ns_cbranch_scc1 L_C\ns_cmp_lt_u32 s2, {ID_A}\ns_cbranch_scc1 L_Q")
        elif order[0] == "q":
            a(f"s_cmp_ge_u32 s2, {ID_F}\ns_cbranch_scc1 L_F\ns_cmp_ge_u32 s2, {ID_W}\ns_cbranch_scc1 L_W\ns_cmp_ge_u32 s2, {ID_A}\ns_cbranch_scc1 L_A\ns_cmp_eq_u32 s2, 0\ns_cbranch_scc1 L_C")
        else:
            a("s_cmp_eq_u32 s2, 0\ns_cbranch_scc1 L_C")
            a(f"s_cmp_lt_u32 s2, {ID_A}\ns_cbranch_scc1 L_Q\ns_cmp_lt_u32 s2, {ID_W}\ns_cbranch_scc1 L_A\ns_cmp_lt_u32 s2, {ID_F}\ns_cbranch_scc1 L_W\ns_branch L_F")
        for r in order: getattr(self, "role_" + r)()
        a("L_exit:\ns_waitcnt lgkmcnt(0)")
        if self.o.get("dbg"):
            a("s_cmp_eq_u32 s22, 0\ns_cbranch_scc0 L_end\ns_mov_b32 s26, -1")
            for n, w in enumerate((1, 65, 192, 193, 225, 252)):
                a(f"s_cmp_eq_u32 s2, {w}\ns_cselect_b32 s26, {8*n}, s26")
            a("s_cmp_eq_u32 s26, -1\ns_cbranch_scc1 L_end\ns_memrealtime s[54:55]")
            if self.o.get("amp"):
                a(f"s_waitcnt lgkmcnt(0)\ns_cmp_eq_u32 s2, 1\ns_cbranch_scc0 L_amp2\ns_sub_u32 s27, s54, s56\ns_mul_i32 s27, s27, {self.o['amp']}\ns_min_u32 s27, s27, 100000")
                a("L_amp:\ns_memrealtime s[58:59]\ns_waitcnt lgkmcnt(0)\ns_sub_u32 s30, s58, s56\ns_cmp_lt_u32 s30, s27\ns_cbranch_scc1 L_amp\nL_amp2:")
            self.srd(8, 84, 256)
            a("s_mov_b64 exec, 1\ns_waitcnt lgkmcnt(0)\nv_mov_b32 v8, 0\nv_mov_b32 v12, s56\nv_mov_b32 v13, s54")
            a("buffer_store_dwordx2 v[12:13], v8, s[8:11], s26 offen")
        if self.diag:
            a("s_mov_b64 exec, -1\ns_waitcnt vmcnt(0) lgkmcnt(0)")
            self.srd(4, 86, 4 << 20)
            self.stamp(19)
            a("s_lshl_b32 s26, s2, 3\ns_add_u32 s26, s26, s22\ns_lshl_b32 s26, s26, 7\ns_add_u32 s26, s26, 0x200000\nv_mov_b32 v8, 0\ns_mov_b64 exec, 1")
            for k in range(0, 20, 4):
                for i in range(4): a(f"v_mov_b32 v{12+i}, s{self.STS[k+i]}")
                a(f"buffer_store_dwordx4 v[12:15], v8, s[4:7], s26 offen offset:{4*k}")
            a("s_waitcnt vmcnt(0)")
        a("L_end:")
        hdr = open("interleave_layers__sliding_block_cached__glu_gated_swiglu__decode.s.ref").read().split("\n")
        top = [l for l in hdr if l.startswith(";") and "@launch" not in l]
        out = "\n".join(top) + f"\n; @launch grid=({NWG},1,1) block=(512,1,1) lds=16384\n"
        out += f'.amdgcn_target "amdgcn-amd-amdhsa--gfx950"\n.text\n.globl {NAME}\n.p2align 8\n.type {NAME},@function\n{NAME}:\n'
        out += a.text().replace(' OUTPOL', {0: '', 1: ' sc1', 2: ' sc0 sc1', 3: ' sc0 sc1 nt'}[self.o.get('op', 0)])
        out += f"""s_endpgm
.section .rodata,"a"
.p2align 6
.amdhsa_kernel {NAME}
  .amdhsa_next_free_vgpr 256
  .amdhsa_next_free_sgpr 102
  .amdhsa_accum_offset 256
  .amdhsa_group_segment_fixed_size 0
  .amdhsa_kernarg_size 96
  .amdhsa_user_sgpr_count 2
  .amdhsa_user_sgpr_kernarg_segment_ptr 1
  .amdhsa_system_sgpr_workgroup_id_x 1
.end_amdhsa_kernel
"""
        return out

if __name__ == "__main__":
    opts = {}
    for x in sys.argv[3:]:
        k, v = x.split("=")
        opts[k] = int(v) if v.lstrip("-").isdigit() else v
    if sys.argv[1] != "-": open(sys.argv[1], "w").write(G(False, opts).build())
    if len(sys.argv) > 2 and sys.argv[2] != "-": open(sys.argv[2], "w").write(G(True, opts).build())
```

```python
import sys
from asmlib import Asm
NAME = "interleave_layers__sliding_block_cached__glu_gated_swiglu__decode_kernel"
CH = 16384
C_FLAG, C_H1, C_H2O, C_H2M, C_H3, C_XR2, C_H4, C_XR1, C_XR3, C_PR = 1, 3, 8, 72, 88, 96, 97, 105, 106, 107
NQ, NA, NW, NF = 64, 128, 32, 28
ID_Q, ID_A, ID_W, ID_F = 1, 65, 193, 225
NWG = 253
TMO = 20000
LOG2E = 1.4426950408889634
import struct
def f2u(x): return struct.unpack("<I", struct.pack("<f", x))[0]

class G:
    def __init__(self, diag=False, opts=None):
        self.a = Asm(); self.diag = diag; self.o = dict(pw=2, pwn=8, pf=1, pfn=3, pb=1, pbn=1); self.o.update(opts or {})
        self.nst = 0
    STS = list(range(56, 64)) + list(range(88, 100))
    def stamp(self, k):
        if not self.diag: return
        if self.o.get("lite") and k not in (0, 1, 4, 8, 9, 19): return
        self.a(f"s_memrealtime s[54:55]\ns_waitcnt lgkmcnt(0)\ns_mov_b32 s{self.STS[k]}, s54")
    def stamp_l(self, k0, k1):
        if not self.diag: return
        if self.o.get("lite"): return
        self.a(f"s_memrealtime s[54:55]\ns_waitcnt lgkmcnt(0)\ns_cmp_eq_u32 s23, 1\ns_cselect_b32 s{self.STS[k1]}, s54, s{self.STS[k1]}\ns_cmp_eq_u32 s23, 0\ns_cselect_b32 s{self.STS[k0]}, s54, s{self.STS[k0]}")
    def srd(self, d, p, nbytes, off_s=None):
        a = self.a
        if off_s is None:
            a(f"s_mov_b32 s{d}, s{p}\ns_mov_b32 s{d+1}, s{p+1}")
        else:
            a(f"s_add_u32 s{d}, s{p}, s{off_s}\ns_addc_u32 s{d+1}, s{p+1}, 0")
        a(f"s_mov_b32 s{d+2}, {nbytes}\ns_mov_b32 s{d+3}, 0x20000")
    def kwait(self):
        self.a("s_waitcnt lgkmcnt(0)")
        self.stamp(0)
        self.srd(4, 86, (4 << 20) if self.diag else (2 << 20))
    def timeout(self):
        self.a(f"s_add_u32 s25, s25, 1\ns_cmp_gt_u32 s25, {TMO}\ns_cbranch_scc1 L_exit")
    def masks(self):
        a = self.a
        a("""
        v_and_b32 v8, 4, v1
        v_cmp_eq_u32 vcc, 0, v8
        v_mov_b32 v9, 0xffff
        v_cndmask_b32 v3, 0, v9, vcc
        v_xor_b32 v4, v3, v9
        v_lshlrev_b32 v5, 16, v3
        v_lshlrev_b32 v6, 16, v4
        v_and_b32 v8, 3, v1
        v_mul_u32_u24 v7, 17425, v8
        v_xor_b32 v8, 1, v8
        v_mul_u32_u24 v8, 4420, v8
        v_add_u32 v7, v7, v8
        """)
    def abuild(self, dst, src):
        for d in range(4):
            self.a(f"v_and_b32 v{dst+d}, v{src}, v{3+d}")
    def epoch_load(self):
        self.a("v_mov_b32 v8, 0\nbuffer_load_dword v9, v8, s[4:7], 0 offen sc1\nv_mov_b32 v12, -1\nv_mov_b32 v13, -1\nv_mov_b32 v14, -1\nv_mov_b32 v15, -1")
    def reset1k(self, sbase):
        a = self.a
        a(f"buffer_store_dwordx4 v[12:15], v10, s[4:7], s{sbase} offen sc1")
        a(f"s_add_u32 s31, s{sbase}, 8192")
        a(f"buffer_store_dwordx4 v[12:15], v10, s[4:7], s31 offen sc1")
    def tag_calc(self, nleft):
        self.a(f"s_waitcnt vmcnt({nleft})\nv_readfirstlane_b32 s24, v9\ns_mul_i32 s24, s24, 0x9E3779B1\ns_add_u32 s24, s24, 0x7F4A7C15")
    def flag_store(self, nleft, xor_s=None, have_tag=False):
        a = self.a
        if have_tag: a(f"s_waitcnt vmcnt({nleft})")
        else: self.tag_calc(nleft)
        if xor_s is not None: a(f"s_xor_b32 s24, s24, s{xor_s}")
        a(f"""
        s_lshr_b32 s26, s2, 7
        s_lshl_b32 s26, s26, 14
        s_and_b32 s27, s2, 127
        s_lshl_b32 s27, s27, 6
        s_add_u32 s26, s26, s27
        s_add_u32 s26, s26, {C_FLAG*CH}
        v_mov_b32 v8, 0
        v_mov_b32 v11, s24
        s_mov_b64 exec, 1
        buffer_store_dword v11, v8, s[4:7], s26 offen sc1
        s_mov_b64 exec, -1
        """)
    def flag_poll(self, tagn, first_s, n, extra_id=None):
        a = self.a
        a(f"v_add_u32 v8, s{first_s}, v0")
        nl = n
        if extra_id is not None:
            a(f"v_cmp_eq_u32 vcc, {n}, v0\nv_mov_b32 v11, {extra_id}\nv_cndmask_b32 v8, v8, v11, vcc")
            nl = n + 1
        a(f"v_cmp_ne_u32 vcc, {nl}, v0\nv_cndmask_b32 v8, 0, v8, vcc\nv_cndmask_b32_e64 v9, 1, 0, vcc")
        cl = nl; nl += 1
        a(f"""
        v_lshrrev_b32 v11, 7, v8
        v_lshlrev_b32 v11, 14, v11
        v_and_b32 v8, 127, v8
        v_lshl_add_u32 v8, v8, 6, v11
        s_mov_b32 s26, {C_FLAG*CH}
        s_mov_b32 s25, 0
        s_mov_b32 exec_lo, {hex(((1 << nl) - 1) & 0xffffffff)}
        s_mov_b32 exec_hi, {hex(((1 << nl) - 1) >> 32)}
        L_fp_{tagn}:
        buffer_load_dword v11, v8, s[4:7], s26 offen sc1
        """)
        self.timeout()
        a(f"""
        s_waitcnt vmcnt(0)
        v_xor_b32 v11, s24, v11
        v_cmp_gt_u32 vcc, v11, v9
        s_cbranch_vccnz L_fp_{tagn}
        v_readlane_b32 s26, v11, {cl}
        s_mov_b64 exec, -1
        s_lshl_b32 s26, s26, 13
        s_xor_b32 s20, s20, s26
        """)
    def tag_from_lds(self, addr):
        self.a(f"v_mov_b32 v8, {addr}\nds_read_b32 v9, v8\ns_waitcnt lgkmcnt(0)\nv_readfirstlane_b32 s24, v9")
    def front_setup(self, c_src, c_xr):
        a = self.a
        a(f"""
        s_mov_b32 s50, 0x00ff00ff
        s_mov_b32 s51, 0xff00ff00
        s_mov_b32 s48, 0
        s_mov_b32 s49, -1
        s_cmp_eq_u32 s22, 3
        s_cselect_b32 s28, 0x00ff00ff, -1
        s_mov_b32 s29, s28
        s_lshl_b32 s26, s22, 8
        v_lshlrev_b32 v8, 10, v2
        v_lshl_add_u32 v8, v1, 4, v8
        v_add_u32 v16, s26, v8
        v_add_u32 v18, s26, v14
        s_add_u32 s27, s26, {c_xr*CH}
        v_add_u32 v17, s27, v14
        v_lshrrev_b32 v11, 3, v0
        v_lshl_add_u32 v19, v11, 5, s26
        v_lshlrev_b32 v8, 14, v11
        v_and_b32 v9, 7, v0
        v_lshl_add_u32 v8, v9, 10, v8
        s_add_u32 s27, s26, {c_src*CH}
        v_add_u32 v13, s27, v8
        v_lshrrev_b32 v11, 3, v1
        v_lshlrev_b32 v11, 8, v11
        v_and_b32 v12, 7, v1
        v_lshl_add_u32 v11, v12, 5, v11
        v_and_b32 v12, 1, v2
        v_lshl_add_u32 v11, v12, 4, v11
        s_lshl_b32 s26, s22, 9
        s_add_u32 s26, s26, 1024
        v_add_u32 v20, s26, v11
        s_lshl_b32 s26, s22, 3
        s_add_u32 s26, s26, {1024+4096}
        v_lshrrev_b32 v8, 5, v0
        v_lshl_add_u32 v21, v8, 2, s26
        v_and_b32 v92, 0x3f803f80, v3
        v_and_b32 v93, 0x3f803f80, v4
        v_and_b32 v94, 0x3f803f80, v5
        v_and_b32 v95, 0x3f803f80, v6
        v_mov_b32 v22, 0
        """)
        for i in range(32): a(f"v_mov_b32 v{60+i}, 0")
        for i in range(8):
            a(f"s_mov_b32 s{32+i}, {c_src*CH + (i>>1)*CH + (i&1)*4096}")
    def add_side(self, src):
        self.a(f"v_add_u32 v16, {src}, v16\nv_add_u32 v17, {src}, v17\nv_add_u32 v13, {src}, v13")
    def r16_loads(self, srd, reg, rowstride, vaddr, pace=0, npace=99):
        for s in range(8):
            for hf in range(2):
                self.a(f"s_mov_b32 s26, {(64*hf + 2*s)*rowstride}")
                r = reg + 8*s + 4*hf
                if pace and 2*s + hf <= npace: self.a(f"s_waitcnt vmcnt({pace-1})")
                self.a(f"buffer_load_dwordx4 v[{r}:{r+3}], v{vaddr}, s[{srd}:{srd+3}], s26 offen nt")
    def r16_addr(self, vdst, rowstride):
        self.a(f"""
        v_lshrrev_b32 v8, 1, v2
        v_lshrrev_b32 v9, 3, v1
        v_lshl_add_u32 v8, v8, 1, v9
        v_and_b32 v9, 1, v2
        v_lshl_add_u32 v8, v8, 4, v9
        s_lshl_b32 s26, s22, 7
        v_add_u32 v8, s26, v8
        v_mul_u32_u24 v8, {rowstride}, v8
        v_and_b32 v9, 7, v1
        v_lshl_add_u32 v{vdst}, v9, 4, v8
        """)
    def x_load(self):
        self.a("""
        v_and_b32 v8, 1, v2
        v_lshlrev_b32 v8, 3, v8
        v_lshl_add_u32 v8, v1, 4, v8
        v_lshrrev_b32 v9, 1, v2
        v_lshl_add_u32 v14, v9, 2, v8
        s_lshl_b32 s26, s22, 8
        buffer_load_dword v25, v14, s[16:19], s26 offen
        """)
    def gather(self, tagn, nld, xr_cond):
        a = self.a
        mode = self.o.get("pre", "any")
        a("s_mov_b32 s25, 0")
        if mode != "none":
            a(f"s_mov_b32 exec_lo, {hex(0xffffffff if nld == 8 else 0x0fffffff)}\ns_mov_b32 exec_hi, 0")
            a(f"L_gl_{tagn}:\nbuffer_load_dword v54, v13, s[4:7], 0 offen sc1")
            self.timeout()
            a("s_waitcnt vmcnt(0)")
            if isinstance(mode, int):
                a(f"v_cmp_ne_u32 vcc, -1, v54\ns_bcnt1_i32_b32 s26, vcc_lo\ns_cmp_lt_u32 s26, {mode * 4 * nld // 32}\ns_cbranch_scc1 L_gl_{tagn}")
            elif mode == "all": a(f"v_cmp_eq_u32 vcc, -1, v54\ns_cbranch_vccnz L_gl_{tagn}")
            else: a(f"v_cmp_ne_u32 vcc, -1, v54\ns_cbranch_vccz L_gl_{tagn}")
        if self.o.get("inc", 0):
            def gload(g, t):
                if g == 0:
                    if xr_cond: a(f"s_cmp_eq_u32 s23, 0\ns_cbranch_scc1 L_gx{t}_{tagn}")
                    a("buffer_load_dword v22, v17, s[4:7], 0 offen sc1")
                    if xr_cond: a(f"L_gx{t}_{tagn}:")
                for i in (2*g, 2*g + 1):
                    if i < nld: a(f"buffer_load_dwordx4 v[{60+4*i}:{63+4*i}], v16, s[4:7], s{32+i} offen sc1")
            def gcheck(g, t):
                r = 60 + 8*g
                if g == 0: a(f"v_max3_u32 v54, v22, v{r}, v{r+4}")
                else: a(f"v_max_u32 v54, v{r}, v{r+4}")
                a(f"v_cmp_eq_u32 vcc, -1, v54\ns_cbranch_vccnz L_gs{t}{g}_{tagn}")
                a(f"v_smfmac_f32_16x16x64_bf16 v[42:45], v[92:95], v[{r}:{r+7}], v7\ns_bitset0_b32 s30, {g}")
                a(f"L_gs{t}{g}_{tagn}:")
            a("s_mov_b64 exec, s[28:29]")
            for g in range(4): gload(g, "a")
            a("s_mov_b64 exec, -1\ns_mov_b32 s30, 15\nv_mov_b32 v42, 0\nv_mov_b32 v43, 0\nv_mov_b32 v44, 0\nv_mov_b32 v45, 0")
            for g in range(4):
                a(f"s_waitcnt vmcnt({max(0, nld-2-2*g)})")
                gcheck(g, "a")
            a(f"s_cmp_eq_u32 s30, 0\ns_cbranch_scc1 L_gd_{tagn}")
            a(f"L_gp_{tagn}:\ns_mov_b64 exec, s[28:29]")
            for g in range(4):
                a(f"s_bitcmp1_b32 s30, {g}\ns_cbranch_scc0 L_gq{g}_{tagn}")
                gload(g, "b")
                a(f"L_gq{g}_{tagn}:")
            a("s_mov_b64 exec, -1")
            self.timeout()
            a("s_waitcnt vmcnt(0)")
            for g in range(4):
                a(f"s_bitcmp1_b32 s30, {g}\ns_cbranch_scc0 L_gsb{g}_{tagn}")
                gcheck(g, "b")
            a(f"s_cmp_eq_u32 s30, 0\ns_cbranch_scc0 L_gp_{tagn}")
            a(f"L_gd_{tagn}:\nv_lshlrev_b32 v52, 16, v22\nv_and_b32 v53, 0xffff0000, v22\ns_nop 2")
        else:
            def loads(pol, t):
                a("s_mov_b64 exec, s[28:29]")
                if xr_cond:
                    a(f"s_cmp_eq_u32 s23, 0\ns_cbranch_scc1 L_gx{t}_{tagn}")
                a("buffer_load_dword v22, v17, s[4:7], 0 offen sc1")
                if xr_cond: a(f"L_gx{t}_{tagn}:")
                for i in range(nld):
                    a(f"buffer_load_dwordx4 v[{60+4*i}:{63+4*i}], v16, s[4:7], s{32+i} offen {pol}")
            if self.o.get("l2"):
                loads({1: "", 2: "sc0"}[self.o["l2"]], "a")
                a(f"s_branch L_gc_{tagn}")
            a(f"L_gp_{tagn}:")
            loads("sc1", "")
            a(f"L_gc_{tagn}:")
            a("s_mov_b64 exec, -1")
            self.timeout()
            a("v_mov_b32 v42, 0\nv_mov_b32 v43, 0\nv_mov_b32 v44, 0\nv_mov_b32 v45, 0")
            for i in range(0, 8, 2):
                a(f"s_waitcnt vmcnt({max(0, nld-2-i)})")
                r = 60 + 4*i
                a(f"v_smfmac_f32_16x16x64_bf16 v[42:45], v[92:95], v[{r}:{r+7}], v7")
                a(f"v_max3_u32 v54, v{22 if i == 0 else 54}, v{r}, v{r+4}")
                if i == 0: a("v_lshlrev_b32 v52, 16, v22\nv_and_b32 v53, 0xffff0000, v22")
            a(f"v_cmp_eq_u32 vcc, -1, v54\ns_cbranch_vccnz L_gp_{tagn}")
        a("""
        v_cndmask_b32 v50, v42, v44, s[48:49]
        v_cndmask_b32 v51, v43, v45, s[48:49]
        v_cvt_pk_bf16_f32 v55, v50, v51
        v_lshlrev_b32 v50, 16, v55
        v_and_b32 v51, 0xffff0000, v55
        v_pk_add_f32 v[50:51], v[50:51], v[52:53]
        v_cvt_pk_bf16_f32 v24, v50, v51
        """)
    def front_gemv(self, two, cs=False):
        a = self.a
        a("""
        ds_write_b32 v18, v24
        v_lshlrev_b32 v50, 16, v24
        v_and_b32 v51, 0xffff0000, v24
        v_mov_b32 v42, 0
        v_mov_b32 v43, 0
        s_waitcnt lgkmcnt(0)
        ds_read_b128 v[26:29], v19
        ds_read_b128 v[30:33], v19 offset:16
        v_add_f32 v55, v50, v51
        v_mul_f32 v56, v50, v50
        v_fmac_f32 v56, v51, v51
        v_mov_b32 v44, 0
        v_mov_b32 v45, 0
        """)
        if two: a("v_mov_b32 v46, 0\nv_mov_b32 v47, 0\nv_mov_b32 v48, 0\nv_mov_b32 v49, 0")
        a("v_permlane32_swap_b32 v55, v56\nv_add_f32 v55, v55, v56")
        a("s_and_b32 s26, s23, 1\ns_mul_i32 s26, s26, 4352\nv_add_u32 v8, s26, v20\nv_add_u32 v9, s26, v21")
        a("s_waitcnt lgkmcnt(1)")
        self.abuild(34, 26)
        fill = ["v_mov_b32 v56, v55", None, "v_permlane16_swap_b32 v55, v56\nv_add_f32 v55, v55, v56",
                "v_add_f32_dpp v55, v55, v55 row_ror:8 row_mask:0xf bank_mask:0xf", "v_add_f32_dpp v55, v55, v55 row_ror:4 row_mask:0xf bank_mask:0xf",
                "v_add_f32_dpp v55, v55, v55 row_ror:2 row_mask:0xf bank_mask:0xf", "v_add_f32_dpp v55, v55, v55 row_ror:1 row_mask:0xf bank_mask:0xf",
                "s_mov_b32 exec_lo, 1\ns_mov_b32 exec_hi, 1\nds_write_b32 v9, v55\ns_mov_b64 exec, s[50:51]"]
        for s in range(8):
            A = 34 + 4*(s & 1)
            if s == 3: a("s_waitcnt lgkmcnt(0)")
            if s < 7: self.abuild(34 + 4*((s+1) & 1), 26 + s + 1)
            a(f"v_smfmac_f32_16x16x64_bf16 v[42:45], v[{A}:{A+3}], v[{128+8*s}:{135+8*s}], v7")
            if two: a(f"v_smfmac_f32_16x16x64_bf16 v[46:49], v[{A}:{A+3}], v[{192+8*s}:{199+8*s}], v7")
            if fill[s]: a(fill[s])
        a("ds_write_b128 v8, v[42:45]")
        if two: a("ds_write_b128 v8, v[46:49] offset:2048")
        if cs:
            a("s_cmp_eq_u32 s23, 0\ns_cbranch_scc0 L_ncs\ns_mov_b64 exec, -1\nv_mov_b32 v46, 0\nv_mov_b32 v47, 0\nv_mov_b32 v48, 0\nv_mov_b32 v49, 0")
            for s in range(8): a(f"v_smfmac_f32_16x16x64_bf16 v[46:49], v[92:95], v[{128+8*s}:{135+8*s}], v7")
            a("s_mov_b64 exec, s[50:51]\nds_write_b128 v8, v[46:49] offset:2048\nL_ncs:")
        a("s_mov_b64 exec, -1\ns_waitcnt lgkmcnt(0)\ns_barrier")
    def xr_publish(self, sofs_expr):
        self.a(f"""
        v_subrev_u32 v8, s20, v17
        v_min_u32 v9, -2, v24
        {sofs_expr}
        v_add_u32 v8, s26, v8
        s_mov_b32 s26, 8192
        s_mov_b64 exec, s[28:29]
        buffer_store_dword v9, v8, s[4:7], 0 offen sc1
        buffer_store_dword v9, v8, s[4:7], s26 offen sc1
        s_mov_b64 exec, -1
        """)
    def back_reduce(self, two, base, ro):
        a = self.a
        a(f"ds_read_b128 v[{ro+16}:{ro+19}], v{base+1}\nds_read_b128 v[{ro+20}:{ro+23}], v{base+1} offset:16")
        for m in range(2 if two else 1):
            for k in range(4):
                a(f"ds_read2st64_b32 v[{ro+8*m+2*k}:{ro+8*m+2*k+1}], v{base} offset0:{8*m+2*k} offset1:{8*m+2*k+1}")
    def ln_scalars(self, ro, nrest):
        a = self.a
        t = ro + 16
        a(f"""
        s_waitcnt lgkmcnt({nrest})
        v_pk_add_f32 v[{t}:{t+1}], v[{t}:{t+1}], v[{t+2}:{t+3}]
        v_pk_add_f32 v[{t+4}:{t+5}], v[{t+4}:{t+5}], v[{t+6}:{t+7}]
        v_pk_add_f32 v[{t}:{t+1}], v[{t}:{t+1}], v[{t+4}:{t+5}]
        v_mul_f32 v{t}, {hex(f2u(1.0/448))}, v{t}
        v_mul_f32 v{t+1}, {hex(f2u(1.0/448))}, v{t+1}
        v_fma_f32 v{t+1}, -v{t}, v{t}, v{t+1}
        v_max_f32 v{t+1}, 0, v{t+1}
        v_cvt_pk_bf16_f32 v{t+2}, v{t}, v{t+1}
        v_lshlrev_b32 v{t}, 16, v{t+2}
        v_and_b32 v{t+1}, 0xffff0000, v{t+2}
        v_add_f32 v{t+1}, {hex(f2u(1e-5))}, v{t+1}
        v_cvt_pk_bf16_f32 v{t+1}, v{t+1}, v{t+1}
        v_and_b32 v{t+1}, 0xffff0000, v{t+1}
        v_sqrt_f32 v{t+1}, v{t+1}
        v_cvt_pk_bf16_f32 v{t+1}, v{t+1}, v{t+1}
        v_and_b32 v{t+1}, 0xffff0000, v{t+1}
        v_rcp_f32 v{t+1}, v{t+1}
        """)
    def sum8(self, r):
        self.a(f"""
        v_pk_add_f32 v[{r}:{r+1}], v[{r}:{r+1}], v[{r+2}:{r+3}]
        v_pk_add_f32 v[{r+4}:{r+5}], v[{r+4}:{r+5}], v[{r+6}:{r+7}]
        v_pk_add_f32 v[{r}:{r+1}], v[{r}:{r+1}], v[{r+4}:{r+5}]
        v_add_f32 v{r}, v{r}, v{r+1}
        """)
    def r8_addr(self, vdst, NS, wv):
        self.a(f"""
        v_lshrrev_b32 v8, 1, v2
        v_mul_u32_u24 v8, {2*NS}, v8
        v_and_b32 v9, 1, v2
        v_add_u32 v8, v8, v9
        v_mul_u32_u24 v8, 896, v8
        v_lshl_add_u32 v8, v1, 4, v8
        s_lshl_b32 s26, s{wv}, 8
        v_add_u32 v{vdst}, s26, v8
        s_cmp_eq_u32 s{wv}, 3
        s_cselect_b32 s28, 0x00ff00ff, -1
        s_mov_b32 s29, s28
        """)
    def r8_loads(self, NS, srd, vaddr, reg, pace=0, npace=99):
        a = self.a
        a("s_mov_b64 exec, s[28:29]")
        for s in range(NS):
            for hf in range(2):
                a(f"s_mov_b32 s26, {(4*NS*hf + 2*s)*896}")
                r = reg + 8*s + 4*hf
                if pace and 2*s + hf <= npace: a(f"s_waitcnt vmcnt({pace-1})")
                a(f"buffer_load_dwordx4 v[{r}:{r+3}], v{vaddr}, s[{srd}:{srd+3}], s26 offen nt")
        a("s_mov_b64 exec, -1")
    def r8_pub_addr(self, vdst, wv, sslot):
        self.a(f"""
        v_lshrrev_b32 v9, 1, v2
        v_lshlrev_b32 v9, 13, v9
        v_lshl_add_u32 v8, v1, 4, v9
        s_lshl_b32 s26, s{wv}, 8
        s_add_u32 s26, s26, s{sslot}
        v_add_u32 v{vdst}, s26, v8
        s_and_b32 s46, s28, 0xffff
        s_mov_b32 s47, s46
        """)
    def r8_gemv(self, NS, X, reg, vpub, sofs, bc=False):
        a = self.a
        a("v_mov_b32 v42, 0\nv_mov_b32 v43, 0\nv_mov_b32 v44, 0\nv_mov_b32 v45, 0")
        nrd = NS // 4
        def ab(dst, s):
            if bc:
                for d in range(4): a(f"v_and_b32_dpp v{dst+d}, v{X}, v{3+d} row_newbcast:{2*s} row_mask:0xf bank_mask:0xf")
            else: self.abuild(dst, X + s)
        if not bc: a(f"s_waitcnt lgkmcnt({nrd-1})")
        ab(34, 0)
        for s in range(NS):
            A = 34 + 4*(s & 1)
            if s + 1 < NS:
                if (s + 1) % 4 == 0 and not bc: a(f"s_waitcnt lgkmcnt({nrd - 1 - (s+1)//4})")
                ab(34 + 4*((s+1) & 1), s + 1)
            a(f"v_smfmac_f32_16x16x64_bf16 v[42:45], v[{A}:{A+3}], v[{reg+8*s}:{reg+8*s+7}], v7")
        a(f"""
        v_cvt_pk_bf16_f32 v46, v42, v43
        v_cvt_pk_bf16_f32 v48, v42, v43
        v_cvt_pk_bf16_f32 v47, v44, v45
        v_cvt_pk_bf16_f32 v49, v44, v45
        v_permlane16_swap_b32 v46, v48
        v_permlane16_swap_b32 v47, v49
        s_mov_b64 exec, s[46:47]
        v_min_u32 v46, -2, v46
        buffer_store_dwordx4 v[46:49], v{vpub}, s[4:7], s{sofs} offen sc1
        s_mov_b64 exec, -1
        """)

    def q_head(self):
        a = self.a
        a(f"L_Q:\ns_sub_u32 s21, s2, {ID_Q}")
        a("s_cmp_gt_u32 s22, 4\ns_cbranch_scc1 L_exit\ns_cmp_eq_u32 s22, 4\ns_cbranch_scc1 L_Qh")
        self.r16_addr(15, 8192)
        a("s_lshl_b32 s27, s21, 7")
        self.kwait()
        self.srd(8, 70, 448*8192 - 0, off_s=27)
        a("s_sub_u32 s10, s10, s27")
        if self.o.get("hb", 0) & 2: a("s_barrier")
        self.r16_loads(8, 128, 8192, 15)
        self.srd(16, 64, 896)
        self.x_load()
    def role_q(self):
        a = self.a
        if self.o.get("qh", 1): a("L_Q2:")
        else: self.q_head()
        self.stamp(10)
        self.masks()
        self.front_setup(C_H4, C_XR1)
        a(f"v_lshlrev_b32 v58, 2, v0\nv_add_u32 v58, 1024, v58")
        a(f"s_lshr_b32 s26, s21, 5\ns_lshl_b32 s26, s26, 14\ns_and_b32 s27, s21, 31\ns_lshl_b32 s27, s27, 8\ns_add_u32 s26, s26, s27\ns_add_u32 s26, s26, {C_H1*CH}\nv_lshl_add_u32 v59, v0, 2, s26\nv_mov_b32 v99, 12288")
        a("s_mov_b32 s23, 0\ns_branch L_Qg0")
        a("L_Qloop:")
        self.tag_from_lds(12288)
        a(f"s_mov_b32 s27, {ID_F}")
        self.flag_poll("q", 27, NF)
        self.add_side("s20")
        self.gather("q", 7, False)
        self.stamp(5)
        a("s_branch L_Qg\nL_Qg0:\ns_waitcnt vmcnt(0)\nv_mov_b32 v24, v25")
        self.stamp(1)
        a("L_Qg:")
        self.front_gemv(False, cs=True)
        self.stamp_l(2, 6)
        a("s_cmp_eq_u32 s22, 0\ns_cbranch_scc0 L_Qnext")
        a(f"s_and_b32 s26, s23, 1\ns_mul_i32 s26, s26, 4352\nv_add_u32 v10, s26, v58\ns_add_u32 s26, s26, {1024+4096}\nv_mov_b32 v11, s26")
        a("s_cmp_eq_u32 s23, 0\ns_cbranch_scc0 L_Qr\nds_read_b32 v125, v99")
        for k in range(4): a(f"ds_read2st64_b32 v[{108+2*k}:{109+2*k}], v10 offset0:{8+2*k} offset1:{9+2*k}")
        a("s_waitcnt lgkmcnt(0)")
        self.sum8(108)
        a("v_mov_b32 v57, v108\nL_Qr:")
        self.back_reduce(False, 10, 100)
        self.ln_scalars(100, 4)
        a("s_waitcnt lgkmcnt(0)")
        self.sum8(100)
        a("""
        v_fma_f32 v100, -v116, v57, v100
        v_mul_f32 v100, v100, v117
        s_lshl_b32 s26, s23, 15
        s_add_u32 s27, s26, 8192
        v_mov_b32_dpp v101, v100 quad_perm:[1,0,3,2] row_mask:0xf bank_mask:0xf
        s_mov_b32 exec_lo, 0x55555555
        s_mov_b32 exec_hi, 0x55555555
        v_cvt_pk_bf16_f32 v124, v100, v101
        buffer_store_dwordx2 v[124:125], v59, s[4:7], s26 offen sc1
        buffer_store_dwordx2 v[124:125], v59, s[4:7], s27 offen sc1
        s_mov_b64 exec, -1
        """)
        self.stamp_l(3, 7)
        a("L_Qnext:\ns_add_u32 s23, s23, 1\ns_cmp_lt_i32 s23, 2\ns_cbranch_scc1 L_Qloop")
        a("s_cmp_eq_u32 s21, 0\ns_cbranch_scc0 L_Qnx")
        self.xr_publish(f"s_mov_b32 s26, {(C_XR2-C_XR1)*CH & 0xffffffff}")
        a("L_Qnx:")
        a("s_cmp_lt_u32 s21, 7\ns_cbranch_scc0 L_exit\ns_cmp_eq_u32 s22, 0\ns_cbranch_scc0 L_exit")
        self.srd(16, 82, 896)
        a(f"""
        v_lshrrev_b32 v8, 3, v0
        v_lshlrev_b32 v8, 10, v8
        v_and_b32 v9, 7, v0
        v_lshl_add_u32 v8, v9, 4, v8
        s_lshl_b32 s26, s21, 7
        s_add_u32 s27, s26, s20
        v_add_u32 v16, s27, v8
        v_add_u32 v97, s26, v14
        s_add_u32 s27, s27, {C_XR3*CH}
        v_add_u32 v17, s27, v14
        v_mov_b32 v22, 0
        v_mov_b32 v72, 0
        v_mov_b32 v73, 0
        v_mov_b32 v74, 0
        v_mov_b32 v75, 0
        s_mov_b32 s32, {(C_H4+4)*CH}
        s_mov_b32 s33, {(C_H4+5)*CH}
        s_mov_b32 s34, {(C_H4+6)*CH}
        s_mov_b32 s35, {(C_H4+7)*CH}
        s_mov_b32 s28, 0x00ff00ff
        s_mov_b32 s29, 0x00ff00ff
        s_mov_b32 s25, 0
        L_Fp:
        s_mov_b64 exec, s[28:29]
        buffer_load_dword v22, v17, s[4:7], 0 offen sc1
        s_mov_b64 exec, -1
        buffer_load_dwordx4 v[60:63], v16, s[4:7], s32 offen sc1
        buffer_load_dwordx4 v[64:67], v16, s[4:7], s33 offen sc1
        buffer_load_dwordx4 v[68:71], v16, s[4:7], s34 offen sc1
        s_mov_b32 exec_hi, 0
        buffer_load_dwordx4 v[72:75], v16, s[4:7], s35 offen sc1
        s_mov_b64 exec, -1
        """)
        self.timeout()
        a("""
        v_mov_b32 v42, 0
        v_mov_b32 v43, 0
        v_mov_b32 v44, 0
        v_mov_b32 v45, 0
        s_waitcnt vmcnt(2)
        v_smfmac_f32_16x16x64_bf16 v[42:45], v[92:95], v[60:67], v7
        v_max3_u32 v54, v22, v60, v64
        v_lshlrev_b32 v52, 16, v22
        v_and_b32 v53, 0xffff0000, v22
        s_waitcnt vmcnt(0)
        v_smfmac_f32_16x16x64_bf16 v[42:45], v[92:95], v[68:75], v7
        v_max3_u32 v54, v54, v68, v72
        v_cmp_eq_u32 vcc, -1, v54
        s_cbranch_vccnz L_Fp
        v_cndmask_b32 v50, v42, v44, s[48:49]
        v_cndmask_b32 v51, v43, v45, s[48:49]
        v_add_f32_dpp v50, v50, v50 row_ror:8 row_mask:0xf bank_mask:0xf
        v_add_f32_dpp v51, v51, v51 row_ror:8 row_mask:0xf bank_mask:0xf
        v_cvt_pk_bf16_f32 v55, v50, v51
        v_lshlrev_b32 v50, 16, v55
        v_and_b32 v51, 0xffff0000, v55
        v_pk_add_f32 v[50:51], v[50:51], v[52:53]
        v_cvt_pk_bf16_f32 v50, v50, v51
        s_mov_b64 exec, s[28:29]
        buffer_store_dword v50, v97, s[16:19], 0 offen OUTPOL
        """)
        self.stamp(8)
        a("s_cmp_eq_u32 s21, 0\ns_cbranch_scc0 L_exit\nv_mov_b32 v9, s24\nv_mov_b32 v8, 0\ns_mov_b64 exec, 1\nbuffer_store_dword v9, v8, s[4:7], 0 offen sc1\ns_branch L_exit")
        a("L_Qh:")
        self.kwait()
        self.epoch_load()
        a(f"""
        v_lshlrev_b32 v10, 4, v0
        s_cmp_eq_u32 s21, 0
        s_cbranch_scc0 L_Qh1
        s_mov_b32 s30, {C_XR2*CH}
        """)
        self.reset1k(30)
        a("L_Qh1:")
        if self.o.get("hb", 0) & 2: a("s_barrier")
        self.flag_store(0)
        a("v_mov_b32 v16, 12288\nds_write_b32 v16, v11\ns_waitcnt lgkmcnt(0)\ns_branch L_exit")

    def role_f(self):
        a = self.a
        a(f"L_F:\ns_sub_u32 s21, s2, {ID_F}")
        self.kwait()
        a("s_cmp_gt_u32 s22, 3\ns_cbranch_scc1 L_Fb")
        self.srd(16, 64, 896)
        a("s_lshl_b32 s27, s21, 7")
        self.srd(8, 76, 448*3584, off_s=27)
        a("s_sub_u32 s10, s10, s27")
        self.srd(12, 78, 448*3584, off_s=27)
        a("s_sub_u32 s14, s14, s27")
        self.x_load()
        self.r16_addr(15, 3584)
        if self.o.get("gatef") or self.o.get("hb", 0) & 8: a("s_barrier")
        self.r16_loads(8, 128, 3584, 15, self.o.get("pf", 0), self.o.get("pfn", 99))
        self.r16_loads(12, 192, 3584, 15, self.o.get("pf", 0), self.o.get("pfn", 99) - 16)
        self.stamp(10)
        self.masks()
        self.front_setup(C_H3, C_XR2)
        a("s_mov_b32 s23, -1\nv_mov_b32 v24, 0x3f803f80\ns_branch L_Fg0")
        a("L_Floop:")
        self.gather("f", 8, True)
        self.stamp_l(2, 5)
        a("s_branch L_Fg\nL_Fg0:\ns_waitcnt vmcnt(0)\nv_mov_b32 v22, v25")
        self.stamp(1)
        a("L_Fg:")
        self.front_gemv(True)
        self.stamp_l(3, 6)
        a("s_cmp_eq_u32 s23, -1\ns_cbranch_scc0 L_Fn1")
        a("v_mov_b32 v8, 12288\nds_read_b32 v9, v8\ns_waitcnt lgkmcnt(0)\nv_readfirstlane_b32 s20, v9")
        self.add_side("v9")
        a("s_mov_b32 s23, 0\ns_branch L_Floop")
        a("L_Fn1:\ns_cmp_eq_u32 s21, 0\ns_cbranch_scc0 L_Fnx")
        self.xr_publish(f"s_lshl_b32 s26, s23, 14\ns_add_u32 s26, s26, {(C_XR1-C_XR2)*CH}")
        a("L_Fnx:")
        a(f"v_add_u32 v16, {4*CH}, v16\nv_add_u32 v13, {4*CH}, v13")
        a("s_add_u32 s23, s23, 1\ns_cmp_lt_i32 s23, 2\ns_cbranch_scc1 L_Floop\ns_branch L_exit")
        a("L_Fb:\ns_sub_u32 s30, s22, 4")
        a("s_mul_i32 s27, s21, 57344")
        self.srd(8, 80, 57344, off_s=27)
        a(f"""
        s_lshr_b32 s27, s21, 3
        s_lshl_b32 s27, s27, 14
        s_and_b32 s26, s21, 7
        s_lshl_b32 s26, s26, 10
        s_add_u32 s52, s26, s27
        s_add_u32 s52, s52, {C_H4*CH}
        s_cmp_eq_u32 s22, 4
        s_cbranch_scc0 L_Fb1
        """)
        self.epoch_load()
        a("v_lshlrev_b32 v10, 4, v0")
        self.reset1k(52)
        a(f"s_add_u32 s53, s52, {4*CH}")
        self.reset1k(53)
        a(f"s_cmp_eq_u32 s21, 0\ns_cbranch_scc0 L_Fb1\ns_mov_b32 s53, {C_XR1*CH}")
        self.reset1k(53)
        a(f"s_mov_b32 s53, {C_XR3*CH}")
        self.reset1k(53)
        a("L_Fb1:")
        self.r8_addr2(16, 8, 30)
        if self.o.get("gatef"):
            a("s_cmp_eq_u32 s22, 4\ns_cbranch_scc0 L_Fb3")
            self.flag_store(0)
            a("L_Fb3:\ns_barrier")
        elif self.o.get("hb", 0) & 8: a("s_barrier")
        def w4():
            a("s_cmp_eq_u32 s22, 4\ns_cbranch_scc0 L_Fb2")
            if not self.o.get("gatef"): self.flag_store(0 if self.o.get("fb4") else 16)
            a(f"s_mov_b32 s27, {ID_W}")
            self.flag_poll("f", 27, NW, extra_id=ID_Q)
            a("v_mov_b32 v8, 12288\nv_mov_b32 v9, s20\nds_write_b32 v8, v9\ns_waitcnt lgkmcnt(0)")
            a("L_Fb2:")
        if self.o.get("fb4"): w4()
        self.r8_loads(8, 8, 16, 128, self.o.get("pb", 0), self.o.get("pbn", 99))
        if not self.o.get("fb4"): w4()
        self.masks()
        self.r8_pub_addr(17, 30, 52)
        a("v_lshlrev_b32 v58, 2, v0\nv_add_u32 v58, 1024, v58")
        a("s_lshl_b32 s26, s30, 7\ns_add_u32 s26, s26, 10240\nv_lshl_add_u32 v18, v0, 1, s26\nv_lshl_add_u32 v19, v2, 5, s26")
        a("s_mov_b32 s23, -1")
        self.stamp(1)
        a("L_Fbl:")
        a(f"s_and_b32 s26, s23, 1\ns_mul_i32 s26, s26, 4352\nv_add_u32 v10, s26, v58\ns_add_u32 s26, s26, {1024+4096}\nv_mov_b32 v11, s26\ns_lshl_b32 s27, s23, 16")
        a("s_barrier")
        self.stamp_l(2, 5)
        self.back_reduce(True, 10, 60)
        self.ln_scalars(60, 8)
        a("s_waitcnt lgkmcnt(4)")
        self.sum8(60)
        a("s_waitcnt lgkmcnt(0)")
        self.sum8(68)
        a("s_cmp_eq_u32 s23, -1\ns_cbranch_scc0 L_Fbh\nv_mov_b32 v56, v60\nv_mov_b32 v57, v68\ns_mov_b32 s23, 0\ns_branch L_Fbl")
        a(f"""
        L_Fbh:
        v_fma_f32 v60, -v76, v56, v60
        v_fma_f32 v68, -v76, v57, v68
        v_mul_f32 v60, v60, v77
        v_mul_f32 v68, v68, v77
        v_cvt_pk_bf16_f32 v61, v60, v68
        v_lshlrev_b32 v60, 16, v61
        v_and_b32 v68, 0xffff0000, v61
        v_mul_f32 v61, {hex(f2u(-LOG2E))}, v60
        v_exp_f32 v61, v61
        v_add_f32 v61, 1.0, v61
        v_rcp_f32 v61, v61
        v_mul_f32 v61, v60, v61
        v_cvt_pk_bf16_f32 v61, v61, v61
        v_and_b32 v61, 0xffff0000, v61
        v_mul_f32 v61, v61, v68
        v_mov_b32_dpp v62, v61 quad_perm:[1,0,3,2] row_mask:0xf bank_mask:0xf
        v_cvt_pk_bf16_f32 v26, v61, v62
        """)
        a("s_waitcnt vmcnt(0)")
        self.stamp_l(3, 6)
        self.r8_gemv(8, 26, 128, 17, 27, bc=True)
        self.stamp_l(4, 7)
        a("s_add_u32 s23, s23, 1\ns_cmp_lt_i32 s23, 2\ns_cbranch_scc1 L_Fbl\ns_branch L_exit")
    def r8_addr2(self, vdst, NS, wv):
        self.a(f"""
        v_lshrrev_b32 v20, 1, v2
        v_mul_u32_u24 v20, {2*NS}, v20
        v_and_b32 v21, 1, v2
        v_add_u32 v20, v20, v21
        v_mul_u32_u24 v20, 896, v20
        v_lshl_add_u32 v20, v1, 4, v20
        s_lshl_b32 s26, s{wv}, 8
        v_add_u32 v{vdst}, s26, v20
        s_cmp_eq_u32 s{wv}, 3
        s_cselect_b32 s28, 0x00ff00ff, -1
        s_mov_b32 s29, s28
        """)

    def role_w(self):
        a = self.a
        a(f"L_W:\ns_sub_u32 s21, s2, {ID_W}")
        a(f"""
        s_lshr_b32 s27, s21, 2
        s_lshl_b32 s27, s27, 14
        s_and_b32 s26, s21, 3
        s_lshl_b32 s26, s26, 11
        s_add_u32 s53, s26, s27
        s_lshr_b32 s27, s21, 3
        s_lshl_b32 s27, s27, 14
        s_and_b32 s26, s21, 7
        s_lshl_b32 s26, s26, 10
        s_add_u32 s52, s26, s27
        s_add_u32 s52, s52, {C_H3*CH}
        """)
        a("s_cmp_gt_u32 s22, 4\ns_cbranch_scc1 L_exit\ns_cmp_eq_u32 s22, 4\ns_cbranch_scc1 L_Wh")
        self.kwait()
        a("s_mul_i32 s27, s21, 114688")
        self.srd(8, 72, 114688, off_s=27)
        self.r8_addr(16, 16, 22)
        if self.o.get("gatew") or self.o.get("hb", 0) & 4: a("s_barrier")
        self.r8_loads(16, 8, 16, 128, self.o.get("pw", 0), self.o.get("pwn", 99))
        self.stamp(10)
        self.masks()
        self.r8_pub_addr(17, 22, 52)
        a(f"""
        v_lshrrev_b32 v8, 2, v0
        v_and_b32 v9, 3, v0
        v_lshlrev_b32 v10, 9, v8
        v_lshl_add_u32 v10, v9, 5, v10
        s_lshl_b32 s26, s21, 14
        s_lshl_b32 s27, s22, 7
        s_add_u32 s26, s26, s27
        s_add_u32 s26, s26, {C_H2O*CH}
        v_add_u32 v18, s26, v10
        s_add_u32 s26, s53, {C_H2M*CH}
        v_lshl_add_u32 v19, v8, 7, s26
        v_lshlrev_b32 v10, 4, v9
        v_lshl_add_u32 v10, v2, 2, v10
        s_lshl_b32 s26, s22, 6
        v_add_u32 v20, s26, v10
        v_lshlrev_b32 v21, 6, v2
        s_mov_b32 s23, 0
        s_waitcnt vmcnt(0)
        """)
        self.stamp(1)
        a("v_mov_b32 v8, 512\ns_barrier\nds_read_b32 v9, v8\ns_waitcnt lgkmcnt(0)\nv_add_u32 v18, v9, v18\nv_add_u32 v19, v9, v19")
        a("L_Wl:\ns_mov_b32 s25, 0")
        a(f"s_mul_i32 s30, s23, {32*CH}\ns_lshl_b32 s27, s23, 17\ns_lshl_b32 s31, s23, 16")
        a("""
        L_Wp:
        buffer_load_dwordx2 v[22:23], v19, s[4:7], s27 offen sc1
        buffer_load_dwordx4 v[60:63], v18, s[4:7], s30 offen sc1
        buffer_load_dwordx4 v[64:67], v18, s[4:7], s30 offen offset:16 sc1
        """)
        self.timeout()
        a("""
        s_waitcnt vmcnt(2)
        v_max_f32_dpp v24, v22, v22 row_ror:4 row_mask:0xf bank_mask:0xf
        v_max_f32_dpp v24, v24, v24 row_ror:8 row_mask:0xf bank_mask:0xf
        v_mov_b32 v25, v24
        v_permlane16_swap_b32 v24, v25
        v_max_f32 v24, v24, v25
        v_mov_b32 v25, v24
        v_permlane32_swap_b32 v24, v25
        v_max_f32 v24, v24, v25
        v_sub_f32 v24, v22, v24
        v_exp_f32 v24, v24
        s_waitcnt vmcnt(0)
        v_max3_u32 v54, v22, v60, v64
        v_cmp_eq_u32 vcc, -1, v54
        s_cbranch_vccnz L_Wp
        """)
        self.stamp_l(2, 5)
        a("""
        v_mul_f32 v26, v23, v24
        v_pk_mul_f32 v[60:61], v[60:61], v[24:25] op_sel_hi:[1,0]
        v_pk_mul_f32 v[64:65], v[64:65], v[24:25] op_sel_hi:[1,0]
        v_pk_mul_f32 v[62:63], v[62:63], v[24:25] op_sel_hi:[1,0]
        v_pk_mul_f32 v[66:67], v[66:67], v[24:25] op_sel_hi:[1,0]
        v_add_f32_dpp v26, v26, v26 row_ror:4 row_mask:0xf bank_mask:0xf
        v_permlane32_swap_b32 v60, v64
        v_permlane32_swap_b32 v61, v65
        v_add_f32_dpp v26, v26, v26 row_ror:8 row_mask:0xf bank_mask:0xf
        v_permlane32_swap_b32 v62, v66
        v_permlane32_swap_b32 v63, v67
        v_mov_b32 v27, v26
        v_pk_add_f32 v[60:61], v[60:61], v[64:65]
        v_pk_add_f32 v[62:63], v[62:63], v[66:67]
        v_permlane16_swap_b32 v26, v27
        v_add_f32 v26, v26, v27
        v_permlane16_swap_b32 v60, v62
        v_permlane16_swap_b32 v61, v63
        v_mov_b32 v27, v26
        v_pk_add_f32 v[60:61], v[60:61], v[62:63]
        v_permlane32_swap_b32 v26, v27
        v_add_f32_dpp v60, v60, v60 row_ror:4 row_mask:0xf bank_mask:0xf
        v_add_f32_dpp v61, v61, v61 row_ror:4 row_mask:0xf bank_mask:0xf
        v_add_f32 v26, v26, v27
        v_rcp_f32 v26, v26
        v_add_f32_dpp v60, v60, v60 row_ror:8 row_mask:0xf bank_mask:0xf
        v_add_f32_dpp v61, v61, v61 row_ror:8 row_mask:0xf bank_mask:0xf
        v_pk_mul_f32 v[60:61], v[60:61], v[26:27] op_sel_hi:[1,0]
        v_cvt_pk_bf16_f32 v60, v60, v61
        ds_write_b32 v20, v60
        s_waitcnt lgkmcnt(0)
        s_barrier
        ds_read_b128 v[60:63], v21
        ds_read_b128 v[64:67], v21 offset:16
        ds_read_b128 v[68:71], v21 offset:32
        ds_read_b128 v[72:75], v21 offset:48
        """)
        self.stamp_l(3, 6)
        self.r8_gemv(16, 60, 128, 17, 31)
        self.stamp_l(4, 7)
        a("s_cmp_eq_u32 s23, 1\ns_cbranch_scc1 L_exit\ns_mov_b32 s23, 1\ns_branch L_Wl")
        a("L_Wh:")
        self.kwait()
        self.epoch_load()
        a("v_lshlrev_b32 v10, 4, v0")
        self.reset1k(52)
        a(f"s_add_u32 s53, s52, {4*CH}")
        self.reset1k(53)
        if self.o.get("hb", 0) & 4 and not self.o.get("gatew"): a("s_barrier")
        self.flag_store(0)
        if self.o.get("gatew"): a("s_barrier")
        a(f"s_lshr_b32 s27, s21, 2\ns_lshl_b32 s27, s27, 4\ns_add_u32 s27, s27, {ID_A}")
        self.flag_poll("w", 27, 16)
        a("v_mov_b32 v8, 512\nv_mov_b32 v9, s20\nds_write_b32 v8, v9\ns_waitcnt lgkmcnt(0)\ns_branch L_exit")

    def role_a(self):
        a = self.a
        a(f"L_A:\ns_sub_u32 s21, s2, {ID_A}\ns_lshr_b32 s52, s21, 4\ns_and_b32 s53, s21, 15")
        a("s_cmp_gt_u32 s22, 4\ns_cbranch_scc1 L_exit\ns_cmp_eq_u32 s22, 4\ns_cbranch_scc1 L_Ah")
        a(f"s_lshl_b32 s27, s52, 22\ns_lshl_b32 s26, s53, 16\ns_add_u32 s27, s27, s26\ns_add_u32 s27, s27, {6144*512}")
        a("""
        s_lshl_b32 s26, s22, 14
        v_and_b32 v8, 7, v1
        v_lshlrev_b32 v8, 9, v8
        v_lshl_add_u32 v8, v2, 4, v8
        v_lshrrev_b32 v9, 3, v1
        v_lshl_add_u32 v8, v9, 6, v8
        v_add_u32 v16, s26, v8
        v_lshrrev_b32 v8, 1, v2
        v_and_b32 v9, 1, v2
        v_lshl_add_u32 v8, v8, 2, v9
        v_lshlrev_b32 v8, 9, v8
        v_lshl_add_u32 v8, v1, 4, v8
        v_add_u32 v17, s26, v8
        s_mov_b32 s32, 0
        s_mov_b32 s33, 4096
        s_mov_b32 s34, 8192
        s_mov_b32 s35, 12288
        """)
        self.kwait()
        self.srd(8, 66, 65536, off_s=27)
        self.srd(12, 68, 65536, off_s=27)
        KR, VR = 128, 192
        if self.o.get("hb", 0) & 1 or self.o.get("ga"): a("s_barrier")
        for T in range(2):
            for ks in range(8):
                r = KR + 32*T + 4*ks
                if self.o.get("pk") and 8*T + ks >= self.o["pk"]: a(f"s_waitcnt vmcnt({self.o['pk'] - 1})")
                a(f"buffer_load_dwordx4 v[{r}:{r+3}], v16, s[8:11], s{32+2*T+(ks&1)} offen offset:{128*(ks>>1)} nt")
        self.stamp(10)
        if self.o.get("qh", 1):
            a("s_branch L_A2")
            self.q_head()
            a("s_branch L_Q2\nL_A2:")
        for T in range(2):
            for aa in range(2):
                for cb in range(2):
                    for hf in range(2):
                        r = VR + ((2*T + aa)*2 + cb)*8 + 4*hf
                        if self.o.get("pace", 1): a(f"s_waitcnt vmcnt({self.o.get('pv', 16) - 1})")
                        a(f"buffer_load_dwordx4 v[{r}:{r+3}], v17, s[12:15], s{32+2*T+hf} offen offset:{1024*aa + 256*cb} nt")
        self.masks()
        a(f"""
        v_lshrrev_b32 v8, 3, v1
        v_lshlrev_b32 v8, 9, v8
        v_lshl_add_u32 v18, v2, 4, v8
        v_lshrrev_b32 v8, 1, v2
        v_lshlrev_b32 v8, 10, v8
        v_lshl_add_u32 v8, v1, 5, v8
        v_and_b32 v9, 1, v2
        v_lshl_add_u32 v8, v9, 4, v8
        s_lshl_b32 s26, s22, 11
        s_add_u32 s26, s26, 1024
        v_add_u32 v19, s26, v8
        v_lshrrev_b32 v8, 3, v1
        s_lshl_b32 s26, s22, 3
        s_add_u32 s26, s26, 9216
        v_lshl_add_u32 v20, v8, 5, s26
        v_and_b32 v8, 31, v0
        s_lshl_b32 s26, s22, 9
        s_add_u32 s26, s26, 1024
        v_lshl_add_u32 v21, v8, 4, s26
        s_lshr_b32 s26, s22, 1
        s_lshl_b32 s26, s26, 5
        s_add_u32 s26, s26, 9216
        v_mov_b32 v22, s26
        s_lshl_b32 s26, s52, 2
        s_add_u32 s26, s26, s22
        s_lshl_b32 s27, s26, 14
        s_lshl_b32 s30, s53, 9
        s_add_u32 s27, s27, s30
        s_add_u32 s27, s27, {C_H2O*CH}
        v_lshrrev_b32 v9, 5, v0
        v_lshlrev_b32 v9, 13, v9
        v_lshl_add_u32 v8, v8, 4, v9
        v_add_u32 v23, s27, v8
        s_lshl_b32 s27, s52, 14
        s_lshl_b32 s30, s22, 11
        s_add_u32 s27, s27, s30
        s_lshl_b32 s30, s53, 7
        s_add_u32 s27, s27, s30
        s_add_u32 s27, s27, {C_H2M*CH}
        v_add_u32 v24, s27, v9
        s_mov_b32 s36, {hex(f2u(LOG2E/16))}
        s_mov_b32 s23, 0
        s_waitcnt vmcnt(16)
        """)
        self.stamp(1)
        for pr in range(8):
            X = KR + 8*pr
            for d in range(4): a(f"v_mov_b32_dpp v{60+d}, v{X+d} row_ror:8 row_mask:0xf bank_mask:0xf")
            for d in range(4): a(f"v_mov_b32_dpp v{X+d}, v{X+4+d} row_ror:8 row_mask:0xf bank_mask:0xc")
            for d in range(4): a(f"v_mov_b32_dpp v{X+4+d}, v{60+d} quad_perm:[0,1,2,3] row_mask:0xf bank_mask:0x3")
        if self.o.get("vstamp"):
            a("s_waitcnt vmcnt(0)"); self.stamp(9)
        a("L_Al:\ns_barrier")
        self.stamp_l(2, 6)
        QR = 60
        for ks in range(8):
            a(f"ds_read_b128 v[{QR+4*ks}:{QR+4*ks+3}], v18 offset:{64*ks}")
        for ks in range(8):
            a(f"s_waitcnt lgkmcnt({7-ks})")
            for T in range(2):
                c = "0" if ks == 0 else f"v[{44+4*T}:{47+4*T}]"
                a(f"v_mfma_f32_16x16x32_bf16 v[{44+4*T}:{47+4*T}], v[{KR+32*T+4*ks}:{KR+32*T+4*ks+3}], v[{QR+4*ks}:{QR+4*ks+3}], {c}")
        for i in range(8): a(f"v_mov_b32 v{92+i}, 0")
        for k in range(4): a(f"v_cvt_pk_bf16_f32 v{52+k}, v{44+2*k}, v{45+2*k}")
        for k in range(4): a(f"v_lshlrev_b32 v{44+2*k}, 16, v{52+k}\nv_and_b32 v{45+2*k}, 0xffff0000, v{52+k}")
        a("""
        v_max3_f32 v52, v44, v45, v46
        v_max3_f32 v53, v47, v48, v49
        v_max3_f32 v52, v50, v51, v52
        v_max_f32 v52, v52, v53
        v_mov_b32 v53, v52
        v_permlane32_swap_b32 v52, v53
        v_max_f32 v52, v52, v53
        v_mov_b32 v53, v52
        v_permlane16_swap_b32 v52, v53
        v_max_f32 v52, v52, v53
        v_mul_f32 v56, s36, v52
        """)
        for k in range(8): a(f"v_fma_f32 v{44+k}, v{44+k}, s36, -v56")
        for k in range(8): a(f"v_exp_f32 v{44+k}, v{44+k}")
        for k in range(4): a(f"v_cvt_pk_bf16_f32 v{52+k}, v{44+2*k}, v{45+2*k}")
        self.abuild(34, 52)
        a("s_waitcnt vmcnt(0)")
        self.stamp_l(3, 7)
        fill = ["v_pk_add_f32 v[44:45], v[44:45], v[46:47]\nv_pk_add_f32 v[48:49], v[48:49], v[50:51]",
                "v_pk_add_f32 v[44:45], v[44:45], v[48:49]\nv_add_f32 v57, v44, v45\nv_mov_b32 v58, v57",
                "v_permlane32_swap_b32 v57, v58\nv_add_f32 v57, v57, v58\nv_mov_b32 v58, v57",
                "v_permlane16_swap_b32 v57, v58\nv_add_f32 v57, v57, v58"]
        for n in range(4):
            A = 34 + 4*(n & 1)
            if n < 3: self.abuild(34 + 4*((n+1) & 1), 52 + n + 1)
            for cb in range(2):
                r = VR + (n*2 + cb)*8
                a(f"v_smfmac_f32_16x16x64_bf16 v[{92+4*cb}:{95+4*cb}], v[{A}:{A+3}], v[{r}:{r+7}], v7")
            a(fill[n])
        a(f"s_mul_i32 s26, s23, {32*CH}\ns_lshl_b32 s27, s23, 17")
        a("""
        s_mov_b64 exec, 0x101
        ds_write_b64 v20, v[56:57]
        s_mov_b64 exec, -1
        ds_write_b128 v19, v[92:95]
        ds_write_b128 v19, v[96:99] offset:512
        s_waitcnt lgkmcnt(0)
        s_barrier
        ds_read_b128 v[44:47], v22
        ds_read_b128 v[48:51], v22 offset:16
        ds_read_b128 v[60:63], v21
        ds_read_b128 v[64:67], v21 offset:2048
        ds_read_b128 v[68:71], v21 offset:4096
        ds_read_b128 v[72:75], v21 offset:6144
        s_waitcnt lgkmcnt(4)
        v_max3_f32 v56, v44, v46, v48
        v_max_f32 v56, v56, v50
        v_sub_f32 v52, v44, v56
        v_sub_f32 v53, v46, v56
        v_sub_f32 v54, v48, v56
        v_sub_f32 v55, v50, v56
        v_exp_f32 v52, v52
        v_exp_f32 v53, v53
        v_exp_f32 v54, v54
        v_exp_f32 v55, v55
        v_mul_f32 v57, v52, v45
        v_fmac_f32 v57, v53, v47
        v_fmac_f32 v57, v54, v49
        v_fmac_f32 v57, v55, v51
        v_min_u32 v56, -2, v56
        s_waitcnt lgkmcnt(3)
        v_pk_mul_f32 v[60:61], v[60:61], v[52:53] op_sel_hi:[1,0]
        v_pk_mul_f32 v[62:63], v[62:63], v[52:53] op_sel_hi:[1,0]
        s_mov_b32 exec_lo, 1
        s_mov_b32 exec_hi, 1
        buffer_store_dwordx2 v[56:57], v24, s[4:7], s27 offen sc1
        s_mov_b64 exec, -1
        s_waitcnt lgkmcnt(2)
        v_pk_fma_f32 v[60:61], v[64:65], v[52:53], v[60:61] op_sel:[0,1,0] op_sel_hi:[1,1,1]
        v_pk_fma_f32 v[62:63], v[66:67], v[52:53], v[62:63] op_sel:[0,1,0] op_sel_hi:[1,1,1]
        s_waitcnt lgkmcnt(1)
        v_pk_fma_f32 v[60:61], v[68:69], v[54:55], v[60:61] op_sel_hi:[1,0,1]
        v_pk_fma_f32 v[62:63], v[70:71], v[54:55], v[62:63] op_sel_hi:[1,0,1]
        s_waitcnt lgkmcnt(0)
        v_pk_fma_f32 v[60:61], v[72:73], v[54:55], v[60:61] op_sel:[0,1,0] op_sel_hi:[1,1,1]
        v_pk_fma_f32 v[62:63], v[74:75], v[54:55], v[62:63] op_sel:[0,1,0] op_sel_hi:[1,1,1]
        """)
        a("""
        v_min_u32 v60, -2, v60
        buffer_store_dwordx4 v[60:63], v23, s[4:7], s26 offen sc1
        """)
        self.stamp_l(4, 8)
        a("s_add_u32 s23, s23, 1\ns_cmp_lt_i32 s23, 2\ns_cbranch_scc1 L_Al\ns_branch L_exit")
        a("L_Ah:")
        self.kwait()
        self.epoch_load()
        a(f"""
        v_and_b32 v8, 31, v0
        v_lshrrev_b32 v11, 5, v0
        v_lshlrev_b32 v11, 13, v11
        v_lshl_add_u32 v10, v8, 4, v11
        s_lshl_b32 s27, s52, 16
        s_lshl_b32 s30, s53, 9
        s_add_u32 s27, s27, s30
        s_add_u32 s27, s27, {C_H2O*CH}
        """)
        for L in range(2):
            for w in range(4):
                a(f"s_add_u32 s26, s27, {(L*32 + w)*CH}\nbuffer_store_dwordx4 v[12:15], v10, s[4:7], s26 offen sc1")
        a(f"""
        v_and_b32 v8, 3, v0
        v_lshlrev_b32 v8, 11, v8
        v_bfe_u32 v11, v0, 2, 1
        v_lshl_add_u32 v8, v11, 13, v8
        v_bfe_u32 v11, v0, 3, 1
        v_lshl_add_u32 v8, v11, 17, v8
        s_lshl_b32 s27, s52, 14
        s_lshl_b32 s30, s53, 7
        s_add_u32 s27, s27, s30
        s_add_u32 s27, s27, {C_H2M*CH}
        s_mov_b64 exec, 0xffff
        buffer_store_dwordx4 v[12:15], v8, s[4:7], s27 offen sc1
        s_mov_b64 exec, -1
        """)
        if self.o.get("hb", 0) & 1: a("s_barrier")
        early = self.o.get("early", 1)
        if not early:
            self.flag_store(0)
            if self.o.get("ga"): a("s_barrier")
            self.stamp(1)
        D = self.o.get("qd", 2)
        def issue(k, so=31):
            r = 20 + 8*k
            a(f"buffer_load_dwordx4 v[{r}:{r+3}], v17, s[4:7], s{so} offen sc1\nbuffer_load_dwordx4 v[{r+4}:{r+7}], v17, s[4:7], s{so} offen offset:1024 sc1")
        a(f"""
        v_lshlrev_b32 v16, 3, v0
        s_lshr_b32 s26, s52, 2
        s_lshl_b32 s26, s26, 14
        s_and_b32 s27, s52, 3
        s_lshl_b32 s27, s27, 11
        s_add_u32 s26, s26, s27
        s_add_u32 s30, s26, {C_H1*CH}
        v_lshlrev_b32 v17, 4, v0
        s_mov_b32 s23, 0
        """)
        if early:
            a("s_add_u32 s31, s30, s20\ns_mov_b32 s25, 0")
            for k in range(D - 1): issue(k)
            self.flag_store(2*(D - 1))
            self.stamp(1)
            a("s_branch L_Ahp0")
        a(f"""
        L_Ahl:
        s_lshl_b32 s31, s23, 15
        s_add_u32 s31, s31, s30
        s_add_u32 s31, s31, s20
        s_mov_b32 s25, 0
        """)
        for k in range(D - 1): issue(k)
        a("L_Ahp0:")
        a("L_Ahp:")
        for k in range(D):
            r = 20 + 8*k
            issue((k + D - 1) % D)
            if k == 0: self.timeout()
            a(f"""
            s_waitcnt vmcnt({2*(D-1)})
            v_xor_b32 v18, s24, v{r+1}
            v_xor_b32 v19, s24, v{r+3}
            v_xor_b32 v{r+1}, s24, v{r+5}
            v_xor_b32 v{r+3}, s24, v{r+7}
            v_or3_b32 v18, v18, v19, v{r+1}
            v_or_b32 v18, v18, v{r+3}
            v_cmp_ne_u32 vcc, 0, v18
            """)
            if k < D - 1: a(f"s_cbranch_vccz L_Ahd{k}")
            else: a("s_cbranch_vccnz L_Ahp")
        for k in reversed(range(D)):
            r = 20 + 8*k
            a(f"L_Ahd{k}:\nds_write2_b32 v16, v{r}, v{r+2} offset0:0 offset1:1\nds_write2_b32 v16, v{r+4}, v{r+6} offset0:128 offset1:129")
            if k > 0: a("s_branch L_Ahe")
        a("""
        L_Ahe:
        s_waitcnt lgkmcnt(0)
        s_barrier
        s_waitcnt vmcnt(0)
        s_barrier
        s_cmp_eq_u32 s23, 1
        s_cbranch_scc1 L_exit
        s_mov_b32 s23, 1
        s_mov_b32 s27, 0
        """)
        self.flag_poll("a", 27, 0)
        a("s_branch L_Ahl")

    def role_c(self):
        a = self.a
        a("L_C:")
        a("s_cmp_eq_u32 s22, 0\ns_cbranch_scc0 L_exit\ns_setprio 3")
        self.kwait()
        self.epoch_load()
        ld = self.o.get("cld", 0)
        def op(soff, off):
            if ld: return f"buffer_load_dword v16, v8, s[4:7], s{soff} offen offset:{off} sc1"
            return f"buffer_store_dword v8, v8, s[4:7], s{soff} offen offset:{off} sc1"
        a(f"""
        s_mov_b32 s26, {C_PR*CH}
        s_mov_b32 s27, {C_PR*CH+8192}
        v_lshlrev_b32 v17, 8, v0
        s_mov_b64 exec, {hex(0xffff if self.o.get("cpre") else 1)}
        buffer_store_dword v8, v17, s[4:7], s26 offen offset:{128 if self.o.get("cpre") else 0} sc1
        buffer_store_dword v8, v17, s[4:7], s27 offen offset:{128 if self.o.get("cpre") else 0} sc1
        s_mov_b64 exec, 1
        s_mov_b32 s32, -1
        s_mov_b32 s33, -1
        s_waitcnt vmcnt(0)
        """)
        n = self.o.get("cmax", 8); thr = self.o.get("cthr", 100)
        dbgs = ""
        step = 0 if self.o.get("csame") else 256
        if self.o.get("cdbg"):
            self.srd(8, 84, 256)
            dbgs = "s_mul_i32 s42, s34, 10000\ns_add_u32 s42, s42, s35\nv_mov_b32 v17, s42\ns_lshl_b32 s42, s30, 2\nbuffer_store_dword v17, v8, s[8:11], s42 offen\ns_waitcnt vmcnt(0)"
        a(f"""
        s_mov_b32 s30, 0
        L_Cl:
        s_add_u32 s26, s26, {step}
        s_add_u32 s27, s27, {step}
        s_memtime s[36:37]
        s_waitcnt lgkmcnt(0)
        {op(26, 128 if step else 0)}
        s_waitcnt vmcnt(0)
        s_memtime s[38:39]
        s_waitcnt lgkmcnt(0)
        {op(27, 128 if step else 0)}
        s_waitcnt vmcnt(0)
        s_memtime s[40:41]
        s_waitcnt lgkmcnt(0)
        s_sub_u32 s34, s38, s36
        s_sub_u32 s35, s40, s38
        s_min_u32 s32, s32, s34
        s_min_u32 s33, s33, s35
        {dbgs}
        s_add_u32 s30, s30, 1
        s_cmp_ge_u32 s30, {n}
        s_cbranch_scc1 L_Cd
        s_min_u32 s34, s32, s33
        s_max_u32 s35, s32, s33
        s_sub_u32 s35, s35, s34
        s_cmp_ge_u32 s30, {self.o.get("cabsn", 99)}
        s_cselect_b32 s34, 0, s34
        s_cmp_le_u32 s34, {self.o.get("cabs", 600)}
        s_cselect_b32 s35, s35, 0
        s_cmp_ge_u32 s30, 2
        s_cselect_b32 s35, s35, 0
        s_cmp_ge_u32 s35, {thr}
        s_cbranch_scc0 L_Cl
        """)
        a(f"""
        L_Cd:
        s_mov_b64 exec, -1
        s_cmp_lt_u32 s33, s32
        s_cselect_b32 s30, 1, 0
        s_lshr_b32 s31, s20, 13
        s_xor_b32 s30, s30, s31
        """)
        if self.o.get("cflip"): a("s_xor_b32 s30, s30, 1")
        if self.diag: a("s_mov_b32 s57, s32\ns_mov_b32 s58, s33\ns_mov_b32 s59, s30")
        self.flag_store(0, xor_s=30)
        self.stamp(4)
        a("s_branch L_exit")

    def build(self):
        a = self.a
        a(f"s_cmp_ge_u32 s2, {NWG}\ns_cbranch_scc1 L_end")
        if self.o.get("dbg"): a("s_memrealtime s[56:57]")
        a("s_load_dwordx16 s[64:79], s[0:1], 0\ns_load_dwordx8 s[80:87], s[0:1], 64")
        if self.diag:
            for s in self.STS: a(f"s_mov_b32 s{s}, 0")
            a("s_mov_b32 s23, -1")
        a("""
        v_lshrrev_b32 v1, 6, v0
        v_and_b32 v0, 63, v0
        s_getreg_b32 s20, hwreg(HW_REG_XCC_ID, 0, 4)
        v_readfirstlane_b32 s22, v1
        s_bfe_u32 s20, s20, 0x10002
        s_lshl_b32 s20, s20, 13
        v_and_b32 v1, 15, v0
        v_lshrrev_b32 v2, 4, v0
        s_cmp_lt_u32 s22, 4
        s_cbranch_scc1 L_np
        s_setprio 3
        L_np:
        """)
        order = self.o.get("order", "aqwcf")
        if order[0] == "a":
            a(f"s_cmp_ge_u32 s2, {ID_F}\ns_cbranch_scc1 L_F\ns_cmp_ge_u32 s2, {ID_W}\ns_cbranch_scc1 L_W\ns_cmp_eq_u32 s2, 0\ns_cbranch_scc1 L_C\ns_cmp_lt_u32 s2, {ID_A}\ns_cbranch_scc1 L_Q")
        elif order[0] == "q":
            a(f"s_cmp_ge_u32 s2, {ID_F}\ns_cbranch_scc1 L_F\ns_cmp_ge_u32 s2, {ID_W}\ns_cbranch_scc1 L_W\ns_cmp_ge_u32 s2, {ID_A}\ns_cbranch_scc1 L_A\ns_cmp_eq_u32 s2, 0\ns_cbranch_scc1 L_C")
        else:
            a("s_cmp_eq_u32 s2, 0\ns_cbranch_scc1 L_C")
            a(f"s_cmp_lt_u32 s2, {ID_A}\ns_cbranch_scc1 L_Q\ns_cmp_lt_u32 s2, {ID_W}\ns_cbranch_scc1 L_A\ns_cmp_lt_u32 s2, {ID_F}\ns_cbranch_scc1 L_W\ns_branch L_F")
        for r in order: getattr(self, "role_" + r)()
        a("L_exit:\ns_waitcnt lgkmcnt(0)")
        if self.o.get("dbg"):
            a("s_cmp_eq_u32 s22, 0\ns_cbranch_scc0 L_end\ns_mov_b32 s26, -1")
            for n, w in enumerate((1, 65, 192, 193, 225, 252)):
                a(f"s_cmp_eq_u32 s2, {w}\ns_cselect_b32 s26, {8*n}, s26")
            a("s_cmp_eq_u32 s26, -1\ns_cbranch_scc1 L_end\ns_memrealtime s[54:55]")
            if self.o.get("amp"):
                a(f"s_waitcnt lgkmcnt(0)\ns_cmp_eq_u32 s2, 1\ns_cbranch_scc0 L_amp2\ns_sub_u32 s27, s54, s56\ns_mul_i32 s27, s27, {self.o['amp']}\ns_min_u32 s27, s27, 100000")
                a("L_amp:\ns_memrealtime s[58:59]\ns_waitcnt lgkmcnt(0)\ns_sub_u32 s30, s58, s56\ns_cmp_lt_u32 s30, s27\ns_cbranch_scc1 L_amp\nL_amp2:")
            self.srd(8, 84, 256)
            a("s_mov_b64 exec, 1\ns_waitcnt lgkmcnt(0)\nv_mov_b32 v8, 0\nv_mov_b32 v12, s56\nv_mov_b32 v13, s54")
            a("buffer_store_dwordx2 v[12:13], v8, s[8:11], s26 offen")
        if self.diag:
            a("s_mov_b64 exec, -1\ns_waitcnt vmcnt(0) lgkmcnt(0)")
            self.srd(4, 86, 4 << 20)
            self.stamp(19)
            a("s_lshl_b32 s26, s2, 3\ns_add_u32 s26, s26, s22\ns_lshl_b32 s26, s26, 7\ns_add_u32 s26, s26, 0x200000\nv_mov_b32 v8, 0\ns_mov_b64 exec, 1")
            for k in range(0, 20, 4):
                for i in range(4): a(f"v_mov_b32 v{12+i}, s{self.STS[k+i]}")
                a(f"buffer_store_dwordx4 v[12:15], v8, s[4:7], s26 offen offset:{4*k}")
            a("s_waitcnt vmcnt(0)")
        a("L_end:")
        hdr = open("interleave_layers__sliding_block_cached__glu_gated_swiglu__decode.s.ref").read().split("\n")
        top = [l for l in hdr if l.startswith(";") and "@launch" not in l]
        out = "\n".join(top) + f"\n; @launch grid=({NWG},1,1) block=(512,1,1) lds=16384\n"
        out += f'.amdgcn_target "amdgcn-amd-amdhsa--gfx950"\n.text\n.globl {NAME}\n.p2align 8\n.type {NAME},@function\n{NAME}:\n'
        out += a.text().replace(' OUTPOL', {0: '', 1: ' sc1', 2: ' sc0 sc1', 3: ' sc0 sc1 nt'}[self.o.get('op', 0)])
        out += f"""s_endpgm
.section .rodata,"a"
.p2align 6
.amdhsa_kernel {NAME}
  .amdhsa_next_free_vgpr 256
  .amdhsa_next_free_sgpr 102
  .amdhsa_accum_offset 256
  .amdhsa_group_segment_fixed_size 0
  .amdhsa_kernarg_size 96
  .amdhsa_user_sgpr_count 2
  .amdhsa_user_sgpr_kernarg_segment_ptr 1
  .amdhsa_system_sgpr_workgroup_id_x 1
.end_amdhsa_kernel
"""
        return out

if __name__ == "__main__":
    opts = {}
    for x in sys.argv[3:]:
        k, v = x.split("=")
        opts[k] = int(v) if v.lstrip("-").isdigit() else v
    if sys.argv[1] != "-": open(sys.argv[1], "w").write(G(False, opts).build())
    if len(sys.argv) > 2 and sys.argv[2] != "-": open(sys.argv[2], "w").write(G(True, opts).build())
```
